```python
import torch

def _softmax(x, axis=-1):
    return torch.softmax(x, dim=axis)
def _gelu(x):
    return torch.nn.functional.gelu(x, approximate="tanh")
def _silu(x):
    return torch.nn.functional.silu(x)
def _sigmoid(x):
    return torch.sigmoid(x)
def _layernorm(x, axis=-1, eps=1e-5):
    m = x.mean(dim=axis, keepdim=True)
    v = x.var(dim=axis, keepdim=True, unbiased=False)
    return (x - m) / torch.sqrt(v + eps)
def _scatter_add(tgt, idx, src, axis=0):
    return tgt.clone().index_add_(axis, idx, src)
def _segment_sum(src, seg, n):
    out = torch.zeros((n,) + src.shape[1:], dtype=src.dtype)
    return out.index_add_(0, seg, src)
def _pad(x, pw):
    flat = tuple(v for pair in reversed(pw) for v in pair)
    return torch.nn.functional.pad(x, flat)

kernel_name = 'parallel_sum__linear_attn_block__glu_gated_swiglu__prompt'

def setup_inputs():

    _w = (lambda a: (lambda t: t.to(torch.bfloat16) if t.is_floating_point() else t)(torch.as_tensor(a)))
    def _A_setup():
        B, S, D = 1, 2048, 640
        return {
            "x": _w((lambda *s: torch.randn(*s, dtype=torch.bfloat16) * 0.05)(B, S, D)),
            "wqkv": _w((lambda *s: torch.randn(*s, dtype=torch.bfloat16) * 0.05)(D, 3 * D)),
            "wo": _w((lambda *s: torch.randn(*s, dtype=torch.bfloat16) * 0.05)(D, D)),
        }
    _A_in = _A_setup()

    def _B_setup():
        B, S, D, F = 1, 2048, 640, 1536
        return {
            "x": _w((lambda *s: torch.randn(*s, dtype=torch.bfloat16) * 0.05)(B, S, D)),
            "w1": _w((lambda *s: torch.randn(*s, dtype=torch.bfloat16) * 0.2)(D, F) * (2.0 / D) ** 0.5),
            "w3": _w((lambda *s: torch.randn(*s, dtype=torch.bfloat16) * 0.2)(D, F) * (2.0 / D) ** 0.5),
            "w2": _w((lambda *s: torch.randn(*s, dtype=torch.bfloat16) * 0.2)(F, D) * (2.0 / F) ** 0.5),
        }
    _B_in = _B_setup()

    return {
        "A_x": _A_in["x"],
        "A_wqkv": _A_in["wqkv"],
        "A_wo": _A_in["wo"],
        "B_x": _B_in["x"],
        "B_w1": _B_in["w1"],
        "B_w3": _B_in["w3"],
        "B_w2": _B_in["w2"],
    }

def reference(A_x, A_wqkv, A_wo, B_x, B_w1, B_w3, B_w2):
    def _A_ref(x, wqkv, wo):
        B, S, D = x.shape
        H = 32; Dh = D // H
        qkv = (lambda x, *d: x.permute(*d))((x @ wqkv).reshape(B, S, 3, H, Dh), 2, 0, 3, 1, 4)
        q, k, v = qkv[0], qkv[1], qkv[2]
        phi = lambda t: torch.where(t > 0, t + 1, torch.exp(t)) + 1e-6
        pq, pk = phi(q), phi(k)
        kv = torch.einsum("bhsd,bhse->bhde", pk, v)
        z = torch.einsum("bhsd->bhd", pk)
        num = torch.einsum("bhqd,bhde->bhqe", pq, kv)
        den = torch.einsum("bhqd,bhd->bhq", pq, z)[..., None] + 1e-6
        o = num / den
        return (lambda x, *d: x.permute(*d))(o, 0, 2, 1, 3).reshape(B, S, D) @ wo

    def _B_ref(x, w1, w3, w2):
        gate = torch.einsum("bsd,df->bsf", x, w1)
        up = torch.einsum("bsd,df->bsf", x, w3)
        h = _silu(gate) * up
        out = torch.einsum("bsf,fd->bsd", h, w2)
        return out

    x = A_x
    xn = _layernorm(x, axis=-1)
    return x + _A_ref(xn, A_wqkv, A_wo) + _B_ref(xn, B_w1, B_w3, B_w2)
```

```python
class Emit:
    def __init__(self):
        self.lines = []
    def __call__(self, s):
        import re
        m = re.search(r"offset:(-?\d+)", s)
        if m:
            o = int(m.group(1))
            op = s.split()[0]
            if op.startswith("buffer_"): assert 0 <= o <= 4095, s
            elif op.startswith("ds_"): assert 0 <= o <= 65535, s
            elif op.startswith("global_"): assert -4096 <= o <= 4095, s
        self.lines.append("  " + s)
    def label(self, l):
        self.lines.append(l + ":")
    def raw(self, s):
        self.lines.append(s)
    def comment(self, s):
        self.lines.append("  ; " + s)
    def nop(self, n):
        while n > 0:
            k = min(n, 16)
            self("s_nop %d" % (k - 1))
            n -= k
    def text(self):
        return "\n".join(self.lines) + "\n"

class Queue:
    def __init__(self, e, name, maxn):
        self.e = e; self.name = name; self.maxn = maxn; self.p = []
    def issue(self, tag):
        self.p.append(tag)
        assert len(self.p) <= self.maxn, (self.name, len(self.p), tag)
    def wait(self, *tags):
        idx = -1
        for i, t in enumerate(self.p):
            if t in tags:
                idx = i
        if idx < 0:
            return False
        n = len(self.p) - idx - 1
        self.e("s_waitcnt %s(%d)" % (self.name, n))
        self.p = self.p[idx + 1:]
        return True
    def wait_pred(self, pred):
        idx = -1
        for i, t in enumerate(self.p):
            if pred(t):
                idx = i
        if idx < 0:
            return False
        n = len(self.p) - idx - 1
        self.e("s_waitcnt %s(%d)" % (self.name, n))
        self.p = self.p[idx + 1:]
        return True
    def drain(self):
        self.e("s_waitcnt %s(0)" % self.name)
        self.p = []

def v(i, n=1):
    return "v%d" % i if n == 1 else "v[%d:%d]" % (i, i + n - 1)
def s(i, n=1):
    return "s%d" % i if n == 1 else "s[%d:%d]" % (i, i + n - 1)
def a(i, n=1):
    return "a%d" % i if n == 1 else "a[%d:%d]" % (i, i + n - 1)

def f32(x):
    import struct
    return "0x%08x" % struct.unpack("<I", struct.pack("<f", x))[0]

def kernel_desc(name, vgpr, sgpr, accum):
    return f""".section .rodata,"a"
.p2align 6
.amdhsa_kernel {name}
  .amdhsa_next_free_vgpr {vgpr}
  .amdhsa_next_free_sgpr {sgpr}
  .amdhsa_accum_offset {accum}
  .amdhsa_group_segment_fixed_size 0
  .amdhsa_kernarg_size 80
  .amdhsa_user_sgpr_count 2
  .amdhsa_user_sgpr_kernarg_segment_ptr 1
  .amdhsa_system_sgpr_workgroup_id_x 1
.end_amdhsa_kernel
"""
```

```python
from asmlib import *
import math

NSTAGE = 20
NSLOT = 6
SLOT = 26624
A_BYTES = 16384
BH = 5120
LDS_AUX = NSLOT * SLOT
LDS_STATS = LDS_AUX
LDS_CS = LDS_AUX + 2048
LDS_TOTAL = 163840
LDS_KV = 2 * SLOT
LDS_KV_TRASH = LDS_KV + 6720 + 320
WS_PQ = 0
WS_H = 2621440
WS_KV = WS_H + 6291456
WS_STATS = WS_KV + 65536
WS_USED = WS_STATS + 16384
LOG2E = 1.4426950408889634

S_X = 8; S_B0 = 12; S_B1 = 16; S_WS = 20; S_DBG = 24
S_RB = 26; S_CG = 27; S_WAVE = 28; S_TYPE = 29; S_SUB = 30; S_BSTR = 31
S_CB0 = 32; S_CB1 = 33; S_ROT = 34; S_SLOT = 35; S_CNT = 36
S_T = 37
S_EPS6 = 40
S_L2E = 42
S_WSP = 46
S_AOFF = 56; S_BOFF = 57; S_PA = 58; S_PB = 59; S_M0S = 60; S_T2 = 61; S_T3 = 62; S_T4 = 63
S_EXS = 64
S_TICK = 66

V_ACC = 96
def acc(mt, ct): return V_ACC + (ct * 4 + mt) * 4
V_X = 32
V_W = 64
V_XB = 2; V_WB = 3; V_XA = 4; V_WA = 6
V_LANE = 8; V_I = 9; V_G = 10

OPTS = {}
STAMP = False
WS_STAMP = 0x1000000
def stamp(e, idx):
    if STAMP:
        e(f"s_memtime {s(70 + 2*idx, 2)}")
        e("s_waitcnt lgkmcnt(0)")
def stamp_flush(e, n):
    if STAMP:
        e(f"s_lshl_b32 {s(S_T)}, s2, 3"); e(f"s_add_u32 {s(S_T)}, {s(S_T)}, {s(S_WAVE)}"); e(f"s_lshl_b32 {s(S_T)}, {s(S_T)}, 6")
        e(f"s_add_u32 {s(S_T)}, {s(S_T)}, {WS_STAMP}")
        e(f"v_mov_b32 v14, 0")
        for k in range(n):
            e(f"v_mov_b32 v15, {s(70 + 2*k)}")
            e(f"buffer_store_dword v15, v14, {s(S_WS,4)}, {s(S_T)} offen offset:{4*k}")
            e("s_nop 1")

def consumer_loop(e, swapped, tag, BG=7):
    q = Queue(e, "lgkmcnt", 15)
    def rd_x(par, mt):
        if OPTS.get("nox"): return
        e(f"ds_read_b128 {v(V_X + par*16 + mt*4, 4)}, {v(V_XA + par)} offset:{mt*1024}")
        q.issue(("x", par, mt))
    def rd_w(par, ct, ring, part):
        if OPTS.get("now"): return
        half, c16 = divmod(ct, 5)
        off = half * BH + c16 * 32 + part * 1280
        e(f"ds_read_b64_tr_b16 {v(V_W + ring*4 + part*2, 2)}, {v(V_WA + par)} offset:{off}")
        q.issue(("w", ring, part))
    def next_addr(par):
        e(f"v_add_u32 {v(V_XA + par)}, {s(S_SLOT)}, {v(V_XB)}")
        e(f"v_add_u32 {v(V_WA + par)}, {s(S_SLOT)}, {v(V_WB)}")
        e(f"s_add_u32 {s(S_SLOT)}, {s(S_SLOT)}, {SLOT}")
        e(f"s_cmp_eq_u32 {s(S_SLOT)}, {NSLOT*SLOT}")
        e(f"s_cselect_b32 {s(S_SLOT)}, 0, {s(S_SLOT)}")
    PD = 10 - BG
    e(f"s_mov_b32 {s(S_SLOT)}, 0")
    stamp(e, 1)
    e("s_barrier")
    stamp(e, 2)
    next_addr(0)
    def tail_reads(par_next, ringbase):
        out = {g: [] for g in range(BG, 10)}
        xs = list(range(4))
        for k in range(PD):
            g = BG + k
            if k == 0:
                out[g] += [("x", 0), ("x", 1)]
            if k == 1:
                out[g] += [("x", 2), ("x", 3)]
            out[g] += [("w", k, 0), ("w", k, 1)]
        return out
    tr = tail_reads(0, 0)
    for g in range(BG, 10):
        for r in tr[g]:
            if r[0] == "x": rd_x(0, r[1])
            else: rd_w(0, r[1], r[1] % 4, r[2])
    state0 = list(q.p)
    e(f"s_mov_b32 {s(S_CNT)}, {NSTAGE//2}")
    e.raw(".p2align 6")
    e.label(f"L_cloop_{tag}")
    for ks in range(2):
        par = ks; nxt = 1 - ks
        for ct in range(10):
            fi = ks * 10 + ct
            ring = fi % 4
            reads = []
            if ct == BG:
                e("s_barrier")
                next_addr(nxt)
            if ct + PD < 10:
                c2 = ct + PD
                reads = [("w", par, c2, (fi + PD) % 4, 0), ("w", par, c2, (fi + PD) % 4, 1)]
            else:
                for r in tr[ct]:
                    if r[0] == "x": reads.append(("x", nxt, r[1]))
                    else: reads.append(("w", nxt, r[1], (ks * 10 + 10 + r[1]) % 4, r[2]))
            ri = 0
            for mt in range(4):
                q.wait(("w", ring, 0), ("w", ring, 1), ("x", par, mt))
                A = acc(mt, ct)
                xo = v(V_X + par*16 + mt*4, 4); wo = v(V_W + ring*4, 4)
                if swapped:
                    e(f"v_mfma_f32_16x16x32_bf16 {v(A,4)}, {wo}, {xo}, {v(A,4)}")
                else:
                    e(f"v_mfma_f32_16x16x32_bf16 {v(A,4)}, {xo}, {wo}, {v(A,4)}")
                nrd = (len(reads) - ri + (3 - mt)) // (4 - mt) if mt < 4 else 0
                for _ in range(nrd):
                    r = reads[ri]; ri += 1
                    if r[0] == "x": rd_x(r[1], r[2])
                    else: rd_w(r[1], r[2], r[3], r[4])
            assert ri == len(reads)
    if OPTS.get("loopstamp"):
        e("s_memtime s[90:91]"); e("s_waitcnt lgkmcnt(0)")
        e(f"s_mov_b32 m0, {s(S_CNT)}"); e("s_nop 0")
        e(f"v_writelane_b32 v1, s90, m0")
    e(f"s_sub_u32 {s(S_CNT)}, {s(S_CNT)}, 1")
    e(f"s_cmp_lg_u32 {s(S_CNT)}, 0")
    e(f"s_cbranch_scc1 L_cloop_{tag}")
    if OPTS.get("loopstamp"):
        e(f"s_lshl_b32 {s(S_T)}, s2, 3"); e(f"s_add_u32 {s(S_T)}, {s(S_T)}, {s(S_WAVE)}"); e(f"s_lshl_b32 {s(S_T)}, {s(S_T)}, 8")
        e(f"s_add_u32 {s(S_T)}, {s(S_T)}, {WS_STAMP + 0x100000}")
        e(f"v_lshlrev_b32 v14, 2, {v(V_LANE)}")
        e(f"buffer_store_dword v1, v14, {s(S_WS,4)}, {s(S_T)} offen")
        q.p = list(state0)
    assert q.p == state0, (q.p, state0)
    e("s_waitcnt lgkmcnt(0)")
    stamp(e, 3)

def setup_common(e):
    e("s_cmp_ge_u32 s2, 256")
    e("s_cbranch_scc1 L_k1_end")
    e("s_load_dwordx4 s[4:7], s[0:1], 0")
    e("s_load_dwordx4 s[48:51], s[0:1], 32")
    e("s_load_dwordx4 s[52:55], s[0:1], 64")
    if STAMP: e(f"s_memtime {s(70,2)}")
    e(f"v_lshrrev_b32 v1, 6, v0")
    e(f"v_and_b32 {v(V_LANE)}, 63, v0")
    e(f"v_readfirstlane_b32 {s(S_WAVE)}, v1")
    e(f"s_and_b32 {s(S_T)}, s2, 7")
    e(f"s_lshr_b32 {s(S_T+1)}, s2, 3")
    e(f"s_and_b32 {s(S_RB)}, {s(S_T)}, 1")
    e(f"s_lshl_b32 {s(S_RB)}, {s(S_RB)}, 2")
    e(f"s_and_b32 {s(S_T+2)}, {s(S_T+1)}, 3")
    e(f"s_add_u32 {s(S_RB)}, {s(S_RB)}, {s(S_T+2)}")
    e(f"s_lshr_b32 {s(S_CG)}, {s(S_T)}, 1")
    e(f"s_lshl_b32 {s(S_CG)}, {s(S_CG)}, 3")
    e(f"s_lshr_b32 {s(S_T+2)}, {s(S_T+1)}, 2")
    e(f"s_add_u32 {s(S_CG)}, {s(S_CG)}, {s(S_T+2)}")
    e(f"v_and_b32 {v(V_I)}, 15, {v(V_LANE)}")
    e(f"v_lshrrev_b32 {v(V_G)}, 4, {v(V_LANE)}")
    e(f"s_mov_b32 {s(S_EPS6)}, {f32(1e-6)}"); e(f"s_mov_b32 {s(S_EPS6+1)}, {f32(1e-6)}")
    e(f"s_mov_b32 {s(S_L2E)}, {f32(LOG2E)}"); e(f"s_mov_b32 {s(S_L2E+1)}, {f32(LOG2E)}")
    e("s_waitcnt lgkmcnt(0)")
    e(f"s_mov_b32 {s(S_X)}, s4"); e(f"s_mov_b32 {s(S_X+1)}, s5"); e(f"s_mov_b32 {s(S_X+2)}, 2621440"); e(f"s_mov_b32 {s(S_X+3)}, 0x20000")
    e(f"s_mov_b32 {s(S_WS)}, s54"); e(f"s_mov_b32 {s(S_WS+1)}, s55"); e(f"s_mov_b32 {s(S_WS+2)}, {WS_USED if not STAMP else 0x2000000}"); e(f"s_mov_b32 {s(S_WS+3)}, 0x20000")
    e(f"s_mov_b32 {s(S_DBG)}, s52"); e(f"s_mov_b32 {s(S_DBG+1)}, s53")
    e(f"s_mov_b32 {s(S_WSP)}, s54"); e(f"s_mov_b32 {s(S_WSP+1)}, s55")
    e(f"s_mov_b32 {s(S_B0+3)}, 0x20000"); e(f"s_mov_b32 {s(S_B1+3)}, 0x20000")
    e(f"s_mov_b32 {s(S_ROT)}, 0")
    e(f"s_cmp_ge_u32 {s(S_CG)}, 12"); e("s_cbranch_scc1 L_set_gu")
    e(f"s_mov_b32 {s(S_B0)}, s6"); e(f"s_mov_b32 {s(S_B0+1)}, s7"); e(f"s_mov_b32 {s(S_B0+2)}, 2457600")
    e(f"s_mov_b32 {s(S_B1)}, s6"); e(f"s_mov_b32 {s(S_B1+1)}, s7"); e(f"s_mov_b32 {s(S_B1+2)}, 2457600")
    e(f"s_mov_b32 {s(S_BSTR)}, 3840")
    e(f"s_cmp_ge_u32 {s(S_CG)}, 4"); e("s_cbranch_scc1 L_set_kv")
    e(f"s_mov_b32 {s(S_TYPE)}, 0"); e(f"s_mov_b32 {s(S_SUB)}, {s(S_CG)}")
    e(f"s_mul_i32 {s(S_CB0)}, {s(S_SUB)}, 320"); e(f"s_add_u32 {s(S_CB1)}, {s(S_CB0)}, 160")
    e("s_branch L_set_done")
    e.label("L_set_kv")
    e(f"s_mov_b32 {s(S_TYPE)}, 1"); e(f"s_sub_u32 {s(S_SUB)}, {s(S_CG)}, 4")
    e(f"s_mul_i32 {s(S_CB0)}, {s(S_SUB)}, 160"); e(f"s_add_u32 {s(S_CB1)}, {s(S_CB0)}, 2560"); e(f"s_add_u32 {s(S_CB0)}, {s(S_CB0)}, 1280")
    e("s_branch L_set_done")
    e.label("L_set_gu")
    e(f"s_mov_b32 {s(S_B0)}, s48"); e(f"s_mov_b32 {s(S_B0+1)}, s49"); e(f"s_mov_b32 {s(S_B0+2)}, 1966080")
    e(f"s_mov_b32 {s(S_B1)}, s50"); e(f"s_mov_b32 {s(S_B1+1)}, s51"); e(f"s_mov_b32 {s(S_B1+2)}, 1966080")
    e(f"s_mov_b32 {s(S_BSTR)}, 3072")
    e(f"s_mov_b32 {s(S_TYPE)}, 2"); e(f"s_sub_u32 {s(S_SUB)}, {s(S_CG)}, 12")
    e(f"s_mul_i32 {s(S_CB0)}, {s(S_SUB)}, 160"); e(f"s_mov_b32 {s(S_CB1)}, {s(S_CB0)}")
    e(f"s_and_b32 {s(S_ROT)}, {s(S_SUB)}, 1"); e(f"s_lshl_b32 {s(S_ROT)}, {s(S_ROT)}, 1")
    e.label("L_set_done")

def consumer_setup(e):
    e(f"v_lshrrev_b32 v11, 3, {v(V_I)}")
    e(f"v_mul_u32_u24 v11, 3, v11")
    e(f"v_xor_b32 v11, {v(V_G)}, v11")
    e(f"v_lshlrev_b32 v11, 4, v11")
    e(f"s_lshl_b32 {s(S_T)}, {s(S_WAVE)}, 12")
    e(f"v_lshlrev_b32 v12, 6, {v(V_I)}")
    e(f"v_add3_u32 {v(V_XB)}, v11, v12, {s(S_T)}")
    e(f"v_lshrrev_b32 v11, 1, {v(V_G)}")
    e(f"v_lshlrev_b32 v11, 4, v11")
    e(f"v_and_b32 v12, 1, {v(V_G)}")
    e(f"v_lshlrev_b32 v12, 2, v12")
    e(f"v_lshrrev_b32 v13, 2, {v(V_I)}")
    e(f"v_add3_u32 v11, v11, v12, v13")
    e(f"v_mul_u32_u24 v11, 160, v11")
    e(f"v_and_b32 v12, 3, {v(V_I)}")
    e(f"v_lshlrev_b32 v12, 3, v12")
    e(f"v_add_u32 v11, v11, v12")
    e(f"v_add_u32 {v(V_WB)}, {A_BYTES}, v11")
    for r in range(V_ACC, 256):
        e(f"v_mov_b32 {v(r)}, 0")

P_VA = 16
P_VB = 20
P_CS = 32
P_LD = 64
P_UN = 80
P_RA = 27
P_ONE = 26
P_ST = 100

def div10(e, dst, src, tmp):
    e(f"v_mul_u32_u24 {v(dst)}, 205, {v(src)}")
    e(f"v_lshrrev_b32 {v(dst)}, 11, {v(dst)}")

def producer_setup(e, p):
    even = (p % 2 == 0); half = p >> 1
    bl = [0, 1, 2] if even else [3, 4]
    if half == 1:
        for k in range(3): e(f"s_mov_b32 {s(S_B0+k)}, {s(S_B1+k)}")
        e(f"s_mov_b32 {s(S_CB0)}, {s(S_CB1)}")
    e(f"v_lshrrev_b32 v11, 5, {v(V_LANE)}")
    e(f"v_mul_u32_u24 v11, 3, v11")
    e(f"v_and_b32 v12, 3, {v(V_LANE)}")
    e(f"v_xor_b32 v11, v11, v12")
    e(f"v_lshlrev_b32 v11, 4, v11")
    e(f"v_lshrrev_b32 v12, 2, {v(V_LANE)}")
    e(f"v_mul_u32_u24 v12, 1280, v12")
    e(f"v_add_u32 v11, v11, v12")
    for a_ in range(4):
        e(f"v_add_u32 {v(P_VA + a_)}, {(4*p + a_)*16*1280}, v11")
    e(f"s_mul_i32 {s(S_AOFF)}, {s(S_RB)}, {256*1280}")
    e(f"s_mov_b32 {s(S_BOFF)}, {s(S_CB0)}")
    for n, b in enumerate(bl):
        e(f"v_add_u32 v11, {64*b}, {v(V_LANE)}")
        div10(e, 12, 11, 13)
        e(f"v_mul_u32_u24 v13, 10, v12")
        e(f"v_sub_u32 v13, v11, v13")
        e(f"v_add_u32 v13, {s(S_ROT)}, v13")
        e(f"v_cmp_le_u32 vcc, 10, v13")
        e(f"v_subrev_u32 v14, 10, v13")
        e("s_nop 0")
        e(f"v_cndmask_b32 v13, v13, v14, vcc")
        e(f"v_and_b32 v14, 0x13, v12")
        e(f"v_and_b32 v15, 4, v12"); e(f"v_lshlrev_b32 v15, 1, v15"); e(f"v_or_b32 v14, v14, v15")
        e(f"v_and_b32 v15, 8, v12"); e(f"v_lshrrev_b32 v15, 1, v15"); e(f"v_or_b32 v14, v14, v15")
        e(f"v_mul_lo_u32 v14, v14, {s(S_BSTR)}")
        e(f"v_lshlrev_b32 v13, 4, v13")
        e(f"v_add_u32 {v(P_VB + n)}, v14, v13")
    e(f"s_lshl_b32 {s(S_T4)}, {s(S_BSTR)}, 5")
    e(f"v_lshrrev_b32 v11, 1, {v(V_G)}")
    e(f"v_lshlrev_b32 v11, 4, v11")
    e(f"v_and_b32 v12, 1, {v(V_G)}")
    e(f"v_lshlrev_b32 v12, 2, v12")
    e(f"v_lshrrev_b32 v13, 2, {v(V_I)}")
    e(f"v_add3_u32 v11, v11, v12, v13")
    e(f"v_mul_u32_u24 v11, 160, v11")
    e(f"v_and_b32 v12, 3, {v(V_I)}")
    e(f"v_lshlrev_b32 v12, 3, v12")
    e(f"v_add_u32 v11, v11, v12")
    e(f"v_add_u32 {v(P_RA)}, {A_BYTES}, v11")
    e(f"v_mov_b32 {v(P_ONE)}, 0x3f803f80")
    for r in range(P_CS, P_CS + 3): e(f"v_mov_b32 {v(r)}, 0")
    return bl

def issue_stage(e, q, p, bl, slot_sgpr=None, slot_imm=None, tag=None):
    half = p >> 1
    if OPTS.get("nodma") and slot_sgpr is not None:
        return
    for a_ in range(4):
        off = (4*p + a_) * 1024
        if slot_sgpr is None: e(f"s_mov_b32 m0, {slot_imm + off}")
        else: e(f"s_add_u32 m0, {s(slot_sgpr)}, {off}")
        e("s_nop 0")
        e(f"buffer_load_dwordx4 {v(P_VA + a_)}, {s(S_X,4)}, {s(S_AOFF)} offen lds")
        q.issue(tag)
    for n, b in enumerate(bl):
        off = A_BYTES + half*BH + b*1024
        if slot_sgpr is None: e(f"s_mov_b32 m0, {slot_imm + off}")
        else: e(f"s_add_u32 m0, {s(slot_sgpr)}, {off}")
        e("s_nop 0")
        e(f"buffer_load_dwordx4 {v(P_VB + n)}, {s(S_B0,4)}, {s(S_BOFF)} offen lds")
        q.issue(tag)
    e(f"s_add_u32 {s(S_AOFF)}, {s(S_AOFF)}, 64")
    e(f"s_add_u32 {s(S_BOFF)}, {s(S_BOFF)}, {s(S_T4)}")

def cs_tiles(p):
    return [ct for ct in (p, p + 4, p + 8) if ct < 10]

def colsum_stage(e, p, slot_sgpr):
    if OPTS.get("nocolsum"): return
    cts = cs_tiles(p)
    e(f"v_add_u32 v13, {s(slot_sgpr)}, {v(P_RA)}")
    for n, ct in enumerate(cts):
        half, c16 = divmod(ct, 5)
        off = half * BH + c16 * 32
        e(f"ds_read_b64_tr_b16 {v(P_LD + 4*n, 2)}, v13 offset:{off}")
        e(f"ds_read_b64_tr_b16 {v(P_LD + 4*n + 2, 2)}, v13 offset:{off + 1280}")
    for n, ct in enumerate(cts):
        e(f"s_waitcnt lgkmcnt({2*(len(cts)-1-n)})")
        for d in range(4):
            e(f"v_dot2c_f32_bf16 {v(P_CS + n)}, {v(P_LD + 4*n + d)}, {v(P_ONE)}")


DBG_CNT = 0
DBG_TICK = 32
DBG_FLAG = 64
LDS_ST8 = LDS_AUX + 2048 + 640
LDS_CSS = 3 * SLOT
LDS_KVS = 2 * SLOT
P_SL = 100
P_POLL = 60
P_GS = 64
S_OK = 67

def wrap_slot(e, sreg):
    e(f"s_add_u32 {s(sreg)}, {s(sreg)}, {SLOT}")
    e(f"s_cmp_eq_u32 {s(sreg)}, {NSLOT*SLOT}")
    e(f"s_cselect_b32 {s(sreg)}, 0, {s(sreg)}")

def lane0(e, on=True):
    if on:
        e(f"v_cmp_eq_u32 vcc, 0, {v(V_LANE)}")
        e(f"s_and_saveexec_b64 {s(S_EXS,2)}, vcc")
    else:
        e(f"s_mov_b64 exec, {s(S_EXS,2)}")

def stats2_load(e, row_sgpr, q):
    e(f"v_lshrrev_b32 v11, 5, {v(V_LANE)}")
    e(f"v_add_u32 v11, {s(row_sgpr)}, v11")
    e(f"v_mul_u32_u24 v11, 1280, v11")
    e(f"v_and_b32 v14, 31, {v(V_LANE)}")
    e(f"v_lshlrev_b32 v14, 3, v14")
    e(f"v_add_u32 v11, v11, v14")
    for k in range(5):
        e(f"buffer_load_dwordx2 {v(P_SL + 2*k, 2)}, v11, {s(S_X,4)}, 0 offen offset:{k*256}")
        if q: q.issue("S")

def stats2_compute(e):
    A = P_SL + 10
    for k in range(4): e(f"v_mov_b32 {v(A + k)}, 0")
    for d in range(10):
        e(f"v_dot2c_f32_bf16 {v(A + (d & 1))}, {v(P_SL + d)}, {v(P_ONE)}")
        e(f"v_dot2c_f32_bf16 {v(A + 2 + (d & 1))}, {v(P_SL + d)}, {v(P_SL + d)}")
    e("s_nop 2")
    e(f"v_add_f32 {v(A)}, {v(A)}, {v(A+1)}")
    e(f"v_add_f32 {v(A+2)}, {v(A+2)}, {v(A+3)}")
    for ctl in ("quad_perm:[1,0,3,2]", "quad_perm:[2,3,0,1]", "row_half_mirror", "row_mirror"):
        e("s_nop 0")
        e(f"v_add_f32_dpp {v(A)}, {v(A)}, {v(A)} {ctl} row_mask:0xf bank_mask:0xf")
        e(f"v_add_f32_dpp {v(A+2)}, {v(A+2)}, {v(A+2)} {ctl} row_mask:0xf bank_mask:0xf")
        e("s_nop 0")
    e(f"v_mov_b32 {v(A+1)}, {v(A)}")
    e(f"v_mov_b32 {v(A+3)}, {v(A+2)}")
    e("s_nop 1")
    e(f"v_permlane16_swap_b32 {v(A)}, {v(A+1)}")
    e(f"v_permlane16_swap_b32 {v(A+2)}, {v(A+3)}")
    e("s_nop 1")
    e(f"v_add_f32 {v(A)}, {v(A)}, {v(A+1)}")
    e(f"v_add_f32 {v(A+2)}, {v(A+2)}, {v(A+3)}")
    M = P_SL + 16
    e(f"v_mul_f32 {v(M)}, {f32(1.0/640)}, {v(A)}")
    e(f"v_mul_f32 {v(A+1)}, {v(M)}, {v(M)}")
    e(f"v_mul_f32 {v(A+2)}, {f32(1.0/640)}, {v(A+2)}")
    e(f"v_sub_f32 {v(A+2)}, {v(A+2)}, {v(A+1)}")
    e(f"v_max_f32 {v(A+2)}, 0, {v(A+2)}")
    e(f"v_add_f32 {v(A+2)}, {f32(1e-5)}, {v(A+2)}")
    e(f"v_rsq_f32 {v(M+1)}, {v(A+2)}")
    e("s_nop 0")

def write_stats_lds_from_pairs(e, R, tag):
    e(f"s_cmp_eq_u32 {s(S_TYPE)}, 1")
    e(f"s_cbranch_scc1 L_wsk_{tag}")
    e(f"v_lshlrev_b32 v13, 5, {v(V_LANE)}")
    e(f"v_add_u32 v13, {LDS_STATS}, v13")
    e(f"ds_write_b128 v13, {v(R,4)}")
    e(f"ds_write_b128 v13, {v(R+4,4)} offset:16")
    e(f"s_branch L_wsd_{tag}")
    e.label(f"L_wsk_{tag}")
    T = R + 8
    for k in range(4):
        e(f"v_mov_b32 {v(T + k)}, {v(R + 2*k)}")
        e(f"v_mov_b32 {v(T + 4 + k)}, {v(R + 2*k + 1)}")
    e(f"v_lshlrev_b32 v13, 4, {v(V_LANE)}")
    e(f"v_add_u32 v13, {LDS_STATS}, v13")
    e(f"ds_write_b128 v13, {v(T,4)}")
    e(f"ds_write_b128 v13, {v(T+4,4)} offset:1024")
    e.label(f"L_wsd_{tag}")

def producer(e, p, opts):
    tagp = f"p{p}"
    q = Queue(e, "vmcnt", 63)
    e(f"s_lshl_b32 {s(S_T)}, {s(S_RB)}, 8")
    e(f"s_lshl_b32 {s(S_T+1)}, {s(S_CG)}, 3")
    e(f"s_add_u32 {s(S_T)}, {s(S_T)}, {s(S_T+1)}")
    e(f"s_add_u32 {s(S_T)}, {s(S_T)}, {2*p}")
    stats2_load(e, S_T, q)
    e(f"s_mov_b32 {s(S_TICK)}, 1")
    e(f"s_mov_b32 {s(S_OK)}, 0")
    if p == 3:
        e(f"s_cmp_eq_u32 {s(S_TYPE)}, 1")
        e(f"s_cbranch_scc0 L_notick")
        e(f"s_lshl_b32 {s(S_T)}, {s(S_SUB)}, 2")
        e(f"s_add_u32 {s(S_T)}, {s(S_T)}, {DBG_TICK}")
        e(f"v_mov_b32 v11, {s(S_T)}")
        e(f"v_mov_b32 v12, 1")
        lane0(e)
        e(f"global_atomic_add {v(P_POLL)}, v11, v12, {s(S_DBG,2)} sc0")
        lane0(e, False)
        e.label("L_notick")
    bl = producer_setup(e, p)
    n = 4 + len(bl)
    for st in range(NSLOT):
        issue_stage(e, q, p, bl, slot_imm=st*SLOT, tag=st)
    q.wait(0)
    stats2_compute(e)
    e(f"v_and_b32 v13, 31, {v(V_LANE)}")
    e(f"v_cmp_eq_u32 vcc, 0, v13")
    e(f"v_lshrrev_b32 v13, 5, {v(V_LANE)}")
    e(f"v_lshlrev_b32 v13, 3, v13")
    e(f"v_add_u32 v13, {LDS_ST8 + 16*p}, v13")
    e(f"s_and_saveexec_b64 {s(S_EXS,2)}, vcc")
    e(f"ds_write_b64 v13, {v(P_SL + 16, 2)}")
    e(f"s_mov_b64 exec, {s(S_EXS,2)}")
    e("s_waitcnt lgkmcnt(0)")
    e("s_barrier")
    e(f"s_mov_b32 {s(S_SLOT)}, 0")
    if p == 1:
        e(f"v_lshlrev_b32 v13, 3, {v(V_LANE)}")
        e(f"v_add_u32 v14, {LDS_ST8}, v13")
        e(f"v_cmp_gt_u32 vcc, 8, {v(V_LANE)}")
        e(f"s_and_saveexec_b64 {s(S_EXS,2)}, vcc")
        e(f"ds_read_b64 v[28:29], v14")
        e(f"s_lshl_b32 {s(S_T)}, {s(S_RB)}, 8")
        e(f"s_lshl_b32 {s(S_T+1)}, {s(S_CG)}, 3")
        e(f"s_add_u32 {s(S_T)}, {s(S_T)}, {s(S_T+1)}")
        e(f"s_lshl_b32 {s(S_T)}, {s(S_T)}, 3")
        e(f"s_add_u32 {s(S_T)}, {s(S_T)}, {WS_STATS}")
        e("s_waitcnt lgkmcnt(0)")
        e(f"buffer_store_dwordx2 v[28:29], v13, {s(S_WS,4)}, {s(S_T)} offen sc1")
        e(f"s_mov_b64 exec, {s(S_EXS,2)}")
    if p == 3:
        e(f"s_cmp_eq_u32 {s(S_TYPE)}, 1")
        e(f"s_cbranch_scc0 L_nozero")
        e(f"v_readfirstlane_b32 {s(S_TICK)}, {v(P_POLL)}")
        e("s_nop 3")
        e(f"s_cmp_eq_u32 {s(S_TICK)}, 0")
        e(f"s_cbranch_scc0 L_nozero")
        for r in range(28, 32): e(f"v_mov_b32 {v(r)}, 0")
        e(f"s_mul_i32 {s(S_T)}, {s(S_SUB)}, 6720")
        e(f"s_add_u32 {s(S_T)}, {s(S_T)}, {WS_KV}")
        e(f"s_add_u32 {s(S_T2)}, {s(S_T)}, 4096")
        e(f"v_lshlrev_b32 v11, 4, {v(V_LANE)}")
        for k in range(7):
            if k == 6:
                e(f"v_cmp_gt_u32 vcc, 36, {v(V_LANE)}")
                e(f"s_and_saveexec_b64 {s(S_EXS,2)}, vcc")
            sreg = S_T if k < 4 else S_T2
            e(f"buffer_store_dwordx4 v[28:31], v11, {s(S_WS,4)}, {s(sreg)} offen offset:{(k % 4)*1024} sc1")
            if k == 6:
                e(f"s_mov_b64 exec, {s(S_EXS,2)}")
        e.label("L_nozero")
    colsum_stage(e, p, S_SLOT); wrap_slot(e, S_SLOT)
    e(f"s_waitcnt vmcnt({4*n})")
    e("s_barrier")
    colsum_stage(e, p, S_SLOT); wrap_slot(e, S_SLOT)
    e(f"s_mov_b32 {s(S_M0S)}, 0")
    e(f"s_mov_b32 {s(S_CNT)}, 14")
    e.label(f"L_ploop_{tagp}")
    e(f"s_waitcnt vmcnt({3*n})")
    e("s_barrier")
    q2 = Queue(e, "vmcnt", 63)
    issue_stage(e, q2, p, bl, slot_sgpr=S_M0S, tag="x"); wrap_slot(e, S_M0S)
    if p == 1:
        e(f"s_cmp_eq_u32 {s(S_CNT)}, 10"); e(f"s_cbranch_scc0 L_p1_nosig")
        e(f"s_lshl_b32 {s(S_T)}, {s(S_RB)}, 2")
        e(f"v_mov_b32 v11, {s(S_T)}"); e(f"v_mov_b32 v12, 1")
        lane0(e); e(f"global_atomic_add v11, v12, {s(S_DBG,2)} offset:{DBG_CNT}"); lane0(e, False)
        e.label("L_p1_nosig")
        e(f"s_cmp_eq_u32 {s(S_CNT)}, 4"); e(f"s_cbranch_scc0 L_p1_nopoll")
        e(f"s_lshl_b32 {s(S_T)}, {s(S_RB)}, 2")
        e(f"v_mov_b32 v11, {s(S_T)}")
        e(f"global_load_dword {v(P_POLL)}, v11, {s(S_DBG,2)} offset:{DBG_CNT} sc1")
        e.label("L_p1_nopoll")
    if p == 3:
        e(f"s_cmp_eq_u32 {s(S_TYPE)}, 1"); e(f"s_cbranch_scc0 L_p3_skip")
        e(f"s_lshl_b32 {s(S_T)}, {s(S_SUB)}, 2")
        e(f"v_mov_b32 v11, {s(S_T)}")
        e(f"s_cmp_eq_u32 {s(S_CNT)}, 10"); e(f"s_cbranch_scc0 L_p3_nosig")
        e(f"s_cmp_eq_u32 {s(S_TICK)}, 0"); e(f"s_cbranch_scc0 L_p3_nosig")
        e(f"v_mov_b32 v12, 1")
        lane0(e); e(f"global_atomic_add v11, v12, {s(S_DBG,2)} offset:{DBG_FLAG}"); lane0(e, False)
        e.label("L_p3_nosig")
        e(f"s_cmp_eq_u32 {s(S_CNT)}, 4"); e(f"s_cbranch_scc0 L_p3_skip")
        e(f"global_load_dword {v(P_POLL)}, v11, {s(S_DBG,2)} offset:{DBG_FLAG} sc1")
        e.label("L_p3_skip")
    colsum_stage(e, p, S_SLOT); wrap_slot(e, S_SLOT)
    e(f"s_sub_u32 {s(S_CNT)}, {s(S_CNT)}, 1")
    e(f"s_cmp_lg_u32 {s(S_CNT)}, 0")
    e(f"s_cbranch_scc1 L_ploop_{tagp}")
    for k, s_ in enumerate((15, 16, 17, 18)):
        e(f"s_waitcnt vmcnt({(3-k)*n})")
        e("s_barrier")
        if s_ == 15 and p == 1:
            e(f"v_readfirstlane_b32 {s(S_T)}, {v(P_POLL)}")
            e("s_nop 3")
            e(f"s_cmp_eq_u32 {s(S_T)}, 32")
            e(f"s_cbranch_scc0 L_p1_notready")
            if opts.get("forcefb"): e("s_branch L_p1_notready")
            e(f"s_mov_b32 {s(S_OK)}, 1")
            e(f"s_lshl_b32 {s(S_T)}, {s(S_RB)}, 11")
            e(f"s_add_u32 {s(S_T)}, {s(S_T)}, {WS_STATS}")
            e(f"v_lshlrev_b32 v11, 5, {v(V_LANE)}")
            e(f"buffer_load_dwordx4 {v(P_SL,4)}, v11, {s(S_WS,4)}, {s(S_T)} offen sc1")
            e(f"buffer_load_dwordx4 {v(P_SL+4,4)}, v11, {s(S_WS,4)}, {s(S_T)} offen offset:16 sc1")
            e.label("L_p1_notready")
        if s_ == 15 and p == 3:
            e(f"v_readfirstlane_b32 {s(S_OK)}, {v(P_POLL)}")
        colsum_stage(e, p, S_SLOT); wrap_slot(e, S_SLOT)
    for n_, ct in enumerate(cs_tiles(p)):
        if n_ == 0:
            e(f"v_lshlrev_b32 v13, 2, {v(V_LANE)}")
            e(f"v_add_u32 v13, {LDS_CSS}, v13")
            e("s_nop 1")
        e(f"ds_write_b32 v13, {v(P_CS + n_)} offset:{ct*256}")
    if p == 1:
        e(f"s_cmp_eq_u32 {s(S_OK)}, 1"); e(f"s_cbranch_scc0 L_p1_nowr")
        write_stats_lds_from_pairs(e, P_SL, "fast")
        e.label("L_p1_nowr")
    e("s_waitcnt lgkmcnt(0)")
    e("s_barrier")
    if p < 3:
        e(f"v_add_u32 v11, {64*p}, {v(V_LANE)}")
        e(f"v_lshrrev_b32 v12, 4, v11")
        e(f"v_lshlrev_b32 v12, 8, v12")
        e(f"v_lshlrev_b32 v13, 2, {v(V_I)}")
        e(f"v_add3_u32 v12, v12, v13, {LDS_CSS}" if False else f"v_add_u32 v12, v12, v13")
        e(f"v_add_u32 v12, {LDS_CSS}, v12")
        if p == 2:
            e(f"v_cmp_gt_u32 vcc, 160, v11")
            e(f"s_and_saveexec_b64 {s(S_EXS,2)}, vcc")
        for g in range(4): e(f"ds_read_b32 {v(28 + g)}, v12 offset:{g*64}")
        e("s_waitcnt lgkmcnt(0)")
        e("v_add_f32 v28, v28, v29"); e("v_add_f32 v30, v30, v31"); e("v_add_f32 v28, v28, v30")
        e(f"v_lshlrev_b32 v11, 2, v11"); e(f"v_add_u32 v11, {LDS_CS}, v11")
        e("ds_write_b32 v11, v28")
        if p == 2: e(f"s_mov_b64 exec, {s(S_EXS,2)}")
    if p == 1:
        e(f"s_cmp_eq_u32 {s(S_OK)}, 1"); e(f"s_cbranch_scc1 L_p1_done")
        e(f"s_mov_b32 {s(S_CNT)}, {0 if opts.get('forcefb') else 2000}")
        e(f"s_lshl_b32 {s(S_T)}, {s(S_RB)}, 2")
        e(f"v_mov_b32 v11, {s(S_T)}")
        e.label("L_p1_spin")
        e(f"s_cmp_eq_u32 {s(S_CNT)}, 0"); e(f"s_cbranch_scc1 L_p1_fb")
        e(f"global_load_dword {v(P_POLL)}, v11, {s(S_DBG,2)} offset:{DBG_CNT} sc1")
        e("s_waitcnt vmcnt(0)")
        e(f"v_readfirstlane_b32 {s(S_T)}, {v(P_POLL)}")
        e(f"s_sub_u32 {s(S_CNT)}, {s(S_CNT)}, 1")
        e(f"s_cmp_eq_u32 {s(S_T)}, 32"); e(f"s_cbranch_scc1 L_p1_got")
        e("s_sleep 4")
        e("s_branch L_p1_spin")
        e.label("L_p1_got")
        e(f"s_lshl_b32 {s(S_T)}, {s(S_RB)}, 11")
        e(f"s_add_u32 {s(S_T)}, {s(S_T)}, {WS_STATS}")
        e(f"v_lshlrev_b32 v11, 5, {v(V_LANE)}")
        e(f"buffer_load_dwordx4 {v(P_SL,4)}, v11, {s(S_WS,4)}, {s(S_T)} offen sc1")
        e(f"buffer_load_dwordx4 {v(P_SL+4,4)}, v11, {s(S_WS,4)}, {s(S_T)} offen offset:16 sc1")
        e("s_waitcnt vmcnt(0)")
        write_stats_lds_from_pairs(e, P_SL, "slow")
        e("s_branch L_p1_done")
        e.label("L_p1_fb")
        e(f"s_mov_b32 {s(S_CNT)}, 0")
        e.label("L_fb_loop")
        e(f"s_lshl_b32 {s(S_T)}, {s(S_RB)}, 8")
        e(f"s_lshl_b32 {s(S_T+1)}, {s(S_CNT)}, 1")
        e(f"s_add_u32 {s(S_T)}, {s(S_T)}, {s(S_T+1)}")
        stats2_load(e, S_T, None)
        e("s_waitcnt vmcnt(0)")
        stats2_compute(e)
        e(f"v_lshrrev_b32 v15, 5, {v(V_LANE)}")
        e(f"v_add_u32 v15, {s(S_T+1)}, v15")
        e(f"v_and_b32 v13, 31, {v(V_LANE)}")
        e(f"v_cmp_eq_u32 vcc, 0, v13")
        e(f"s_and_saveexec_b64 {s(S_EXS,2)}, vcc")
        e(f"s_cmp_eq_u32 {s(S_TYPE)}, 1")
        e(f"s_cbranch_scc1 L_fb_kv")
        e(f"v_lshlrev_b32 v13, 3, v15"); e(f"v_add_u32 v13, {LDS_STATS}, v13")
        e(f"ds_write_b64 v13, {v(P_SL + 16, 2)}")
        e(f"s_branch L_fb_n")
        e.label("L_fb_kv")
        e(f"v_lshlrev_b32 v13, 2, v15"); e(f"v_add_u32 v13, {LDS_STATS}, v13")
        e(f"ds_write_b32 v13, {v(P_SL + 16)}")
        e(f"ds_write_b32 v13, {v(P_SL + 17)} offset:1024")
        e.label("L_fb_n")
        e(f"s_mov_b64 exec, {s(S_EXS,2)}")
        e(f"s_add_u32 {s(S_CNT)}, {s(S_CNT)}, 1")
        e(f"s_cmp_lt_u32 {s(S_CNT)}, 128")
        e("s_cbranch_scc1 L_fb_loop")
        e.label("L_p1_done")
    if p == 3:
        e(f"s_cmp_eq_u32 {s(S_TYPE)}, 1")
        e(f"s_cbranch_scc0 L_nopoll")
        e(f"s_cmp_lg_u32 {s(S_OK)}, 0")
        e(f"s_cbranch_scc1 L_nopoll")
        e(f"s_lshl_b32 {s(S_T)}, {s(S_SUB)}, 2")
        e(f"v_mov_b32 v11, {s(S_T)}")
        e.label("L_poll_flag")
        e(f"global_load_dword v12, v11, {s(S_DBG,2)} offset:{DBG_FLAG} sc1")
        e("s_waitcnt vmcnt(0)")
        e(f"v_readfirstlane_b32 {s(S_T)}, v12")
        e("s_nop 3")
        e(f"s_cmp_eq_u32 {s(S_T)}, 0")
        e(f"s_cbranch_scc0 L_nopoll")
        e("s_sleep 2")
        e("s_branch L_poll_flag")
        e.label("L_nopoll")
    e("s_waitcnt lgkmcnt(0)")
    e("s_barrier")
    stamp(e, 4)
    e(f"s_cmp_eq_u32 {s(S_TYPE)}, 1")
    e(f"s_cbranch_scc1 L_kv_final")
    e("s_endpgm")

def ep_load_swapped(e):
    e(f"s_lshl_b32 {s(S_T)}, {s(S_WAVE)}, 9")
    e(f"v_lshlrev_b32 v11, 3, {v(V_I)}")
    e(f"v_add_u32 v11, {s(S_T)}, v11")
    e(f"v_add_u32 v11, {LDS_STATS}, v11")
    for mt in range(4):
        e(f"ds_read_b64 {v(16 + 2*mt, 2)}, v11 offset:{mt*128}")
    e(f"v_lshlrev_b32 v12, 4, {v(V_G)}")
    e(f"v_add_u32 v12, {LDS_CS}, v12")
    for ct in range(10):
        e(f"ds_read_b128 {v(32 + 4*ct, 4)}, v12 offset:{ct*64}")
    e("s_waitcnt lgkmcnt(0)")

def epilogue_gu(e):
    ep_load_swapped(e)
    for mt in range(4):
        e(f"v_mul_f32 {v(24 + 2*mt)}, {f32(-LOG2E)}, {v(17 + 2*mt)}")
        e(f"v_mul_f32 {v(25 + 2*mt)}, {v(17 + 2*mt)}, {v(17 + 2*mt)}")
    for mt in range(4):
        e(f"v_rcp_f32 {v(25 + 2*mt)}, {v(25 + 2*mt)}")
    e(f"v_lshlrev_b32 v11, 4, {v(V_LANE)}")
    e(f"s_mul_i32 {s(S_T)}, {s(S_WAVE)}, {4*48*1024}")
    e(f"v_add_u32 v11, {s(S_T)}, v11")
    e(f"s_mul_i32 {s(S_T)}, {s(S_RB)}, {16*48*1024}")
    e(f"s_add_u32 {s(S_T)}, {s(S_T)}, {WS_H}")
    e(f"s_mul_i32 {s(S_T+1)}, {s(S_SUB)}, 5")
    e(f"s_add_u32 {s(S_T+2)}, {s(S_T+1)}, 1")
    e(f"s_lshr_b32 {s(S_T+2)}, {s(S_T+2)}, 1")
    e(f"s_lshl_b32 {s(S_T+2)}, {s(S_T+2)}, 10")
    e(f"s_add_u32 {s(S_T2)}, {s(S_T)}, {s(S_T+2)}")
    e(f"s_and_b32 {s(S_T3)}, {s(S_SUB)}, 1")
    e(f"s_cmp_eq_u32 {s(S_T3)}, 0")
    e(f"s_cselect_b32 {s(S_T3)}, 4, -1")
    e(f"s_add_u32 {s(S_T+1)}, {s(S_T+1)}, {s(S_T3)}")
    e(f"s_lshr_b32 {s(S_T+1)}, {s(S_T+1)}, 1")
    e(f"s_lshl_b32 {s(S_T+1)}, {s(S_T+1)}, 10")
    e(f"s_add_u32 {s(S_T3)}, {s(S_T)}, {s(S_T+1)}")
    e(f"s_and_b32 {s(S_T+1)}, {s(S_SUB)}, 1")
    e(f"s_lshl_b32 {s(S_T+1)}, {s(S_T+1)}, 3")
    e(f"s_add_u32 {s(S_T3)}, {s(S_T3)}, {s(S_T+1)}")
    T = 72
    for mt in range(4):
        MR = 16 + 2*mt; CI = 24 + 2*mt
        items = [(ct, hh) for ct in range(5) for hh in range(2)]
        for (ct, hh) in items:
            G = acc(mt, ct) + 2*hh; U = acc(mt, ct + 5) + 2*hh
            e(f"v_pk_fma_f32 {v(G,2)}, {v(32 + 4*ct + 2*hh,2)}, {v(MR,2)}, {v(G,2)} op_sel_hi:[1,0,1] neg_lo:[0,1,0] neg_hi:[0,1,0]")
            e(f"v_pk_fma_f32 {v(U,2)}, {v(32 + 4*(ct+5) + 2*hh,2)}, {v(MR,2)}, {v(U,2)} op_sel_hi:[1,0,1] neg_lo:[0,1,0] neg_hi:[0,1,0]")
        for k, (ct, hh) in enumerate(items):
            G = acc(mt, ct) + 2*hh
            e(f"v_pk_mul_f32 {v(T + 2*k,2)}, {v(G,2)}, {v(CI,2)} op_sel_hi:[1,0]")
        for k in range(10):
            e(f"v_exp_f32 {v(T + 2*k)}, {v(T + 2*k)}"); e(f"v_exp_f32 {v(T + 2*k + 1)}, {v(T + 2*k + 1)}")
        for k, (ct, hh) in enumerate(items):
            G = acc(mt, ct) + 2*hh; U = acc(mt, ct + 5) + 2*hh
            e(f"v_pk_mul_f32 {v(U,2)}, {v(G,2)}, {v(U,2)}")
        for k in range(10):
            e(f"v_pk_fma_f32 {v(T + 2*k,2)}, {v(T + 2*k,2)}, {v(CI,2)}, {v(CI,2)} op_sel:[0,1,1] op_sel_hi:[1,1,1]")
        for k in range(10):
            e(f"v_rcp_f32 {v(T + 2*k)}, {v(T + 2*k)}"); e(f"v_rcp_f32 {v(T + 2*k + 1)}, {v(T + 2*k + 1)}")
        e("s_nop 0")
        for k, (ct, hh) in enumerate(items):
            U = acc(mt, ct + 5) + 2*hh
            e(f"v_pk_mul_f32 {v(U,2)}, {v(U,2)}, {v(T + 2*k,2)}")
        for pp in range(2):
            O = acc(mt, 2*pp)
            for tt in range(2):
                U = acc(mt, 2*pp + tt + 5)
                e(f"v_cvt_pk_bf16_f32 {v(O + 2*tt)}, {v(U)}, {v(U+1)}")
                e(f"v_cvt_pk_bf16_f32 {v(O + 2*tt + 1)}, {v(U+2)}, {v(U+3)}")
        O = acc(mt, 4); U = acc(mt, 9)
        e(f"v_cvt_pk_bf16_f32 {v(O)}, {v(U)}, {v(U+1)}")
        e(f"v_cvt_pk_bf16_f32 {v(O+1)}, {v(U+2)}, {v(U+3)}")
        if mt > 0:
            e(f"v_add_u32 v11, {48*1024}, v11")
        e(f"s_cmp_eq_u32 {s(S_SUB)}, 19")
        e(f"s_cbranch_scc1 L_gu_skip{mt}")
        e(f"buffer_store_dwordx4 {v(acc(mt,0),4)}, v11, {s(S_WS,4)}, {s(S_T2)} offen")
        e(f"buffer_store_dwordx4 {v(acc(mt,2),4)}, v11, {s(S_WS,4)}, {s(S_T2)} offen offset:1024")
        e.label(f"L_gu_skip{mt}")
        e(f"buffer_store_dwordx2 {v(acc(mt,4),2)}, v11, {s(S_WS,4)}, {s(S_T3)} offen")
        e("s_nop 1")
    stamp(e, 5)
    if STAMP:
        e("s_waitcnt vmcnt(0)"); stamp(e, 6); stamp_flush(e, 7)
    e("s_endpgm")

def epilogue_q(e):
    ep_load_swapped(e)
    e(f"v_lshlrev_b32 v11, 4, {v(V_LANE)}")
    e(f"s_mul_i32 {s(S_T)}, {s(S_WAVE)}, {4*20*1024}")
    e(f"v_add_u32 v11, {s(S_T)}, v11")
    e(f"s_mul_i32 {s(S_T)}, {s(S_RB)}, {16*20*1024}")
    e(f"s_mul_i32 {s(S_T+1)}, {s(S_SUB)}, {5*1024}")
    e(f"s_add_u32 {s(S_T2)}, {s(S_T)}, {s(S_T+1)}")
    e(f"s_add_u32 {s(S_T2)}, {s(S_T2)}, {WS_PQ}")
    e(f"s_add_u32 {s(S_T3)}, {s(S_T2)}, 4096")
    T = 72
    for mt in range(4):
        MR = 16 + 2*mt
        for grp in range(2):
            items = [(ct, hh) for ct in range(grp*5, grp*5 + 5) for hh in range(2)]
            for (ct, hh) in items:
                A = acc(mt, ct) + 2*hh
                e(f"v_pk_fma_f32 {v(A,2)}, {v(32 + 4*ct + 2*hh,2)}, {v(MR,2)}, {v(A,2)} op_sel_hi:[1,0,1] neg_lo:[0,1,0] neg_hi:[0,1,0]")
            for (ct, hh) in items:
                A = acc(mt, ct) + 2*hh
                e(f"v_pk_fma_f32 {v(A,2)}, {v(A,2)}, {v(MR,2)}, {s(S_EPS6,2)} op_sel:[0,1,0] op_sel_hi:[1,1,1]")
            for k, (ct, hh) in enumerate(items):
                A = acc(mt, ct) + 2*hh
                e(f"v_pk_mul_f32 {v(T + 2*k,2)}, {v(A,2)}, {s(S_L2E,2)}")
            for k in range(10):
                e(f"v_exp_f32_e64 {v(T + 2*k)}, {v(T + 2*k)} clamp"); e(f"v_exp_f32_e64 {v(T + 2*k + 1)}, {v(T + 2*k + 1)} clamp")
            for (ct, hh) in items:
                A = acc(mt, ct) + 2*hh
                e(f"v_max_f32 {v(A)}, {s(S_EPS6)}, {v(A)}"); e(f"v_max_f32 {v(A+1)}, {s(S_EPS6)}, {v(A+1)}")
            for k, (ct, hh) in enumerate(items):
                A = acc(mt, ct) + 2*hh
                e(f"v_pk_add_f32 {v(A,2)}, {v(A,2)}, {v(T + 2*k,2)}")
        for pp in range(5):
            O = acc(mt, 2*pp); A0 = acc(mt, 2*pp); A1 = acc(mt, 2*pp + 1)
            e(f"v_cvt_pk_bf16_f32 {v(O)}, {v(A0)}, {v(A0+1)}")
            e(f"v_cvt_pk_bf16_f32 {v(O+1)}, {v(A0+2)}, {v(A0+3)}")
            e(f"v_cvt_pk_bf16_f32 {v(O+2)}, {v(A1)}, {v(A1+1)}")
            e(f"v_cvt_pk_bf16_f32 {v(O+3)}, {v(A1+2)}, {v(A1+3)}")
        if mt > 0:
            e(f"v_add_u32 v11, {20*1024}, v11")
        for pp in range(5):
            if pp < 4:
                e(f"buffer_store_dwordx4 {v(acc(mt,2*pp),4)}, v11, {s(S_WS,4)}, {s(S_T2)} offen offset:{pp*1024}")
            else:
                e(f"buffer_store_dwordx4 {v(acc(mt,2*pp),4)}, v11, {s(S_WS,4)}, {s(S_T3)} offen")
        e("s_nop 1")
    stamp(e, 5)
    if STAMP:
        e("s_waitcnt vmcnt(0)"); stamp(e, 6); stamp_flush(e, 7)
    e("s_endpgm")

KV_TILES = [(0,0),(0,1),(1,0),(1,1),(1,2),(2,1),(2,2),(2,3),(3,2),(3,3),(3,4),(4,3),(4,4)]

def epilogue_kv(e):
    MV = 16; RV = 32; CS = 48; T = 60
    e(f"s_lshl_b32 {s(S_T)}, {s(S_WAVE)}, 8")
    e(f"v_lshlrev_b32 v11, 4, {v(V_G)}")
    e(f"v_add_u32 v11, {s(S_T)}, v11")
    e(f"v_add_u32 v11, {LDS_STATS}, v11")
    for mt in range(4):
        e(f"ds_read_b128 {v(MV + 4*mt, 4)}, v11 offset:{mt*64}")
        e(f"ds_read_b128 {v(RV + 4*mt, 4)}, v11 offset:{1024 + mt*64}")
    e(f"v_lshlrev_b32 v12, 2, {v(V_I)}")
    e(f"v_add_u32 v12, {LDS_CS}, v12")
    e("s_waitcnt lgkmcnt(4)")
    for ct in range(10):
        e(f"ds_read_b32 {v(CS + ct)}, v12 offset:{ct*64}")
    e("s_waitcnt lgkmcnt(0)")
    def cs_mod(ct):
        if ct % 2 == 0: return v(CS + ct, 2), 0, 0
        return v(CS + ct - 1, 2), 1, 1
    for mt in range(4):
        kk, odd = divmod(mt, 2)
        items = [(ct, hh) for ct in range(5) for hh in range(2)]
        allit = [(ct, hh) for ct in range(10) for hh in range(2)]
        for (ct, hh) in allit:
            A = acc(mt, ct) + 2*hh
            c, o, oh = cs_mod(ct)
            e(f"v_pk_fma_f32 {v(A,2)}, {v(MV + 4*mt + 2*hh,2)}, {c}, {v(A,2)} op_sel:[0,{o},0] op_sel_hi:[1,{oh},1] neg_lo:[0,1,0] neg_hi:[0,1,0]")
        for (ct, hh) in items:
            A = acc(mt, ct) + 2*hh
            e(f"v_pk_fma_f32 {v(A,2)}, {v(A,2)}, {v(RV + 4*mt + 2*hh,2)}, {s(S_EPS6,2)}")
        for (ct, hh) in items:
            A = acc(mt, ct + 5) + 2*hh
            e(f"v_pk_mul_f32 {v(A,2)}, {v(A,2)}, {v(RV + 4*mt + 2*hh,2)}")
        for k, (ct, hh) in enumerate(items):
            A = acc(mt, ct) + 2*hh
            e(f"v_pk_mul_f32 {v(T + 2*k,2)}, {v(A,2)}, {s(S_L2E,2)}")
        for k in range(10):
            e(f"v_exp_f32_e64 {v(T + 2*k)}, {v(T + 2*k)} clamp"); e(f"v_exp_f32_e64 {v(T + 2*k + 1)}, {v(T + 2*k + 1)} clamp")
        for (ct, hh) in items:
            A = acc(mt, ct) + 2*hh
            e(f"v_max_f32 {v(A)}, {s(S_EPS6)}, {v(A)}"); e(f"v_max_f32 {v(A+1)}, {s(S_EPS6)}, {v(A+1)}")
        for k, (ct, hh) in enumerate(items):
            A = acc(mt, ct) + 2*hh
            e(f"v_pk_add_f32 {v(A,2)}, {v(A,2)}, {v(T + 2*k,2)}")
        for ct in range(10):
            A = acc(mt, ct); O = acc(2*kk, ct) + 2*odd
            e(f"v_cvt_pk_bf16_f32 {v(O)}, {v(A)}, {v(A+1)}")
            e(f"v_cvt_pk_bf16_f32 {v(O+1)}, {v(A+2)}, {v(A+3)}")
    free = [acc(1, ct) for ct in range(10)] + [acc(3, ct) for ct in range(10)]
    ONES = 16
    for r in range(4): e(f"v_mov_b32 {v(ONES + r)}, 0x3f803f80")
    e("s_nop 1")
    D = {}
    for n, (te, td) in enumerate(KV_TILES):
        D[(te, td)] = free[n]
        for kk in range(2):
            c = "0" if kk == 0 else v(free[n], 4)
            e(f"v_mfma_f32_16x16x32_bf16 {v(free[n],4)}, {v(acc(2*kk, 5 + te),4)}, {v(acc(2*kk, td),4)}, {c}")
    Z = {}
    for td in range(5):
        Z[td] = free[13 + td]
        for kk in range(2):
            c = "0" if kk == 0 else v(Z[td], 4)
            e(f"v_mfma_f32_16x16x32_bf16 {v(Z[td],4)}, {v(ONES,4)}, {v(acc(2*kk, td),4)}, {c}")
    e(f"s_mul_i32 {s(S_T)}, {s(S_WAVE)}, {18*1024}")
    e(f"v_lshlrev_b32 v11, 4, {v(V_LANE)}")
    e(f"v_add_u32 v11, {s(S_T)}, v11")
    e(f"v_add_u32 v11, {LDS_KVS}, v11")
    e("s_nop 4")
    for nn in range(18):
        e(f"ds_write_b128 v11, {v(free[nn],4)} offset:{nn*1024}")
    e("s_waitcnt lgkmcnt(0)")

def kv_final(e):
    TE = 0; TD = 0
    for n, (te, td) in enumerate(KV_TILES):
        TE |= te << (4*n); TD |= td << (4*n)
    e.label("L_kv_final")
    e("s_barrier")
    e(f"s_mul_i32 {s(S_T4)}, {s(S_SUB)}, 6720")
    e(f"s_add_u32 {s(S_T4)}, {s(S_T4)}, {WS_KV}")
    e(f"s_mov_b32 {s(S_CNT)}, {s(S_WAVE)}")
    e(f"v_lshlrev_b32 v16, 4, {v(V_LANE)}")
    e(f"v_add_u32 v16, {LDS_KVS}, v16")
    e.label("L_kvf_loop")
    e(f"s_lshl_b32 {s(S_T)}, {s(S_CNT)}, 10")
    e(f"v_add_u32 v17, {s(S_T)}, v16")
    for w in range(4):
        e(f"ds_read_b128 {v(20 + 4*w,4)}, v17 offset:{w*18*1024}")
    e(f"s_cmp_ge_u32 {s(S_CNT)}, 13"); e("s_cbranch_scc1 L_kvf_z")
    e(f"s_lshl_b32 {s(S_T)}, {s(S_CNT)}, 2")
    e(f"s_mov_b32 s68, {TE & 0xffffffff}"); e(f"s_mov_b32 s69, {TE >> 32}")
    e(f"s_lshr_b64 s[68:69], s[68:69], {s(S_T)}"); e(f"s_and_b32 {s(S_T+1)}, s68, 15")
    e(f"s_mov_b32 s68, {TD & 0xffffffff}"); e(f"s_mov_b32 s69, {TD >> 32}")
    e(f"s_lshr_b64 s[68:69], s[68:69], {s(S_T)}"); e(f"s_and_b32 {s(S_T+2)}, s68, 15")
    e(f"s_lshl_b32 {s(S_T+1)}, {s(S_T+1)}, 2"); e(f"s_lshl_b32 {s(S_T+2)}, {s(S_T+2)}, 4")
    e(f"v_add_u32 v11, {s(S_T+1)}, {v(V_G)}")
    e(f"v_mul_u32_u24 v12, 52, v11"); e(f"v_lshrrev_b32 v12, 8, v12")
    e(f"v_lshlrev_b32 v11, 2, v11"); e(f"v_sub_u32 v11, v11, v12"); e(f"v_mul_u32_u24 v11, 80, v11")
    e(f"v_add_u32 v13, {s(S_T+2)}, {v(V_I)}")
    e(f"v_mul_u32_u24 v14, 205, v13"); e(f"v_lshrrev_b32 v14, 12, v14")
    e(f"v_cmp_eq_u32 vcc, v12, v14")
    e(f"v_lshlrev_b32 v13, 2, v13")
    e(f"v_add_u32 v11, v11, v13")
    e(f"v_mov_b32 v12, 0x7ffffff0")
    e(f"v_cndmask_b32 v11, v12, v11, vcc")
    e("s_waitcnt lgkmcnt(0)")
    for h in range(2):
        e(f"v_pk_add_f32 {v(20+2*h,2)}, {v(20+2*h,2)}, {v(24+2*h,2)}")
        e(f"v_pk_add_f32 {v(28+2*h,2)}, {v(28+2*h,2)}, {v(32+2*h,2)}")
    for h in range(2):
        e(f"v_pk_add_f32 {v(20+2*h,2)}, {v(20+2*h,2)}, {v(28+2*h,2)}")
    for r in range(4):
        e(f"buffer_atomic_add_f32 {v(20 + r)}, v11, {s(S_WS,4)}, {s(S_T4)} offen offset:{80*r}")
    e("s_branch L_kvf_next")
    e.label("L_kvf_z")
    e(f"s_sub_u32 {s(S_T)}, {s(S_CNT)}, 13"); e(f"s_lshl_b32 {s(S_T)}, {s(S_T)}, 6")
    e(f"v_lshlrev_b32 v11, 2, {v(V_I)}")
    e(f"v_add_u32 v11, {s(S_T)}, v11")
    e(f"v_add_u32 v11, 6400, v11")
    e(f"v_cmp_eq_u32 vcc, 0, {v(V_G)}")
    e(f"v_mov_b32 v12, 0x7ffffff0")
    e("s_nop 0")
    e(f"v_cndmask_b32 v11, v12, v11, vcc")
    e("s_waitcnt lgkmcnt(0)")
    e("v_add_f32 v20, v20, v24"); e("v_add_f32 v28, v28, v32"); e("v_add_f32 v20, v20, v28")
    e(f"buffer_atomic_add_f32 v20, v11, {s(S_WS,4)}, {s(S_T4)} offen")
    e.label("L_kvf_next")
    e(f"s_add_u32 {s(S_CNT)}, {s(S_CNT)}, 8")
    e(f"s_cmp_lt_u32 {s(S_CNT)}, 18")
    e("s_cbranch_scc1 L_kvf_loop")
    e.label("L_k1_end2")
    if STAMP:
        stamp(e, 5)
        e("s_waitcnt vmcnt(0)"); stamp(e, 6); stamp_flush(e, 7)
    e.label("L_k1_end")
    e("s_endpgm")

def gen_k1(e, opts=None):
    opts = opts or {}
    global STAMP
    STAMP = opts.get("stamp", False)
    OPTS.clear(); OPTS.update(opts)
    e.raw(".globl k1_kernel"); e.raw(".p2align 8"); e.raw(".type k1_kernel,@function"); e.label("k1_kernel")
    setup_common(e)
    e(f"s_cmp_ge_u32 {s(S_WAVE)}, 4")
    e("s_cbranch_scc1 L_producers")
    consumer_setup(e)
    e("s_setprio 2")
    e(f"s_cmp_eq_u32 {s(S_TYPE)}, 1")
    e("s_cbranch_scc1 L_cons_kv")
    consumer_loop(e, True, "sw")
    e("s_barrier")
    stamp(e, 4)
    e(f"s_cmp_eq_u32 {s(S_TYPE)}, 0")
    e("s_cbranch_scc1 L_epi_q")
    epilogue_gu(e)
    e.label("L_epi_q")
    epilogue_q(e)
    e.label("L_cons_kv")
    consumer_loop(e, False, "ns")
    e("s_barrier")
    stamp(e, 4)
    epilogue_kv(e)
    kv_final(e)
    e.label("L_producers")
    e(f"s_cmp_eq_u32 {s(S_WAVE)}, 5"); e("s_cbranch_scc1 L_prod1")
    e(f"s_cmp_eq_u32 {s(S_WAVE)}, 6"); e("s_cbranch_scc1 L_prod2")
    e(f"s_cmp_eq_u32 {s(S_WAVE)}, 7"); e("s_cbranch_scc1 L_prod3")
    producer(e, 0, opts)
    for p in (1, 2, 3):
        e.label(f"L_prod{p}")
        producer(e, p, opts)
```

```python
from asmlib import *
import k1
from k1 import WS_PQ, WS_H, WS_KV, WS_USED

LDS_WAVE = 40960
NS = 4
SLOTB = 5120
RING = NS * SLOTB
KVO = RING
ZBASE = KVO + 13440
LDS_TOTAL = 4 * LDS_WAVE
OPTS = {}

S_X = 8; S_W2 = 12; S_WO = 16; S_WS = 20; S_OUT = 24
S_RB = 28; S_CB = 29; S_W = 30; S_LB = 31
S_T = 32
S_BO = 40
S_HO = 41
S_SL = 42
S_RS = 43
S_CNT = 44
S_PQO = 45
S_EPS = 46

V_LANE = 1; V_I = 2; V_G = 3
V_BV = 4
V_HV = 9
V_WB = 10
V_WA = 11
V_T = 12
V_KVT = 20
V_HE = 128
V_NUM = 176
V_DEN = 216
V_RC = 228
V_TMP = 240
V_W = 20
V_O = 64
A_ACC = 0
A_H = 80
A_PQ = 144
def acc(mt, ct): return A_ACC + (ct * 4 + mt) * 4

NUM = [(0,0),(1,0),(1,1),(2,0),(2,1),(3,1),(3,2),(4,1),(4,2),(5,2),(5,3),(6,2),(6,3),(7,3),(7,4),(8,3),(8,4),(9,4)]
DEN = [(0,0),(0,1),(0,2),(1,1),(1,2),(1,3),(1,4),(2,3),(2,4)]

def stamp(e, idx):
    if OPTS.get("stamp"):
        e(f"s_memtime {s(70 + 2*idx, 2)}")
        e("s_waitcnt lgkmcnt(0)")

def dma_b(e, q, srd, tag, slot_sgpr, boff_sgpr):
    for b in range(5):
        e(f"s_add_u32 m0, {s(slot_sgpr)}, {b*1024}")
        e("s_nop 0")
        e(f"buffer_load_dwordx4 {v(V_BV + b)}, {s(srd,4)}, {s(boff_sgpr)} offen lds")
        q.issue(tag)

def gen_k2(e, opts=None):
    opts = opts or {}
    OPTS.clear(); OPTS.update(opts)
    e.raw(".globl k2_kernel"); e.raw(".p2align 8"); e.raw(".type k2_kernel,@function"); e.label("k2_kernel")
    e("s_cmp_ge_u32 s2, 256")
    e("s_cbranch_scc1 L_k2_end")
    e("s_load_dwordx2 s[4:5], s[0:1], 0")
    e("s_load_dwordx2 s[6:7], s[0:1], 16")
    e("s_load_dwordx4 s[48:51], s[0:1], 48")
    e("s_load_dwordx2 s[52:53], s[0:1], 72")
    if opts.get("stamp"): e(f"s_memtime {s(70,2)}")
    e("v_lshrrev_b32 v4, 6, v0")
    e(f"v_and_b32 {v(V_LANE)}, 63, v0")
    e(f"v_readfirstlane_b32 {s(S_W)}, v4")
    e(f"v_and_b32 {v(V_I)}, 15, {v(V_LANE)}")
    e(f"v_lshrrev_b32 {v(V_G)}, 4, {v(V_LANE)}")
    e(f"s_and_b32 {s(S_T)}, s2, 7"); e(f"s_lshr_b32 {s(S_T+1)}, s2, 3")
    e(f"s_lshr_b32 {s(S_RB)}, {s(S_T)}, 1"); e(f"s_lshl_b32 {s(S_RB)}, {s(S_RB)}, 3")
    e(f"s_and_b32 {s(S_T+2)}, {s(S_T+1)}, 7"); e(f"s_add_u32 {s(S_RB)}, {s(S_RB)}, {s(S_T+2)}")
    e(f"s_and_b32 {s(S_CB)}, {s(S_T)}, 1"); e(f"s_lshl_b32 {s(S_CB)}, {s(S_CB)}, 2")
    e(f"s_lshr_b32 {s(S_T+2)}, {s(S_T+1)}, 3"); e(f"s_add_u32 {s(S_CB)}, {s(S_CB)}, {s(S_T+2)}")
    e(f"s_mul_i32 {s(S_LB)}, {s(S_W)}, {LDS_WAVE}")
    for b in range(5):
        e(f"v_add_u32 {v(V_T)}, {64*b}, {v(V_LANE)}")
        e(f"v_mul_u32_u24 {v(V_T+1)}, 205, {v(V_T)}"); e(f"v_lshrrev_b32 {v(V_T+1)}, 11, {v(V_T+1)}")
        e(f"v_mul_u32_u24 {v(V_T+2)}, 10, {v(V_T+1)}"); e(f"v_sub_u32 {v(V_T+2)}, {v(V_T)}, {v(V_T+2)}")
        e(f"v_mul_u32_u24 {v(V_T+1)}, 1280, {v(V_T+1)}"); e(f"v_lshlrev_b32 {v(V_T+2)}, 4, {v(V_T+2)}")
        e(f"v_add_u32 {v(V_BV + b)}, {v(V_T+1)}, {v(V_T+2)}")
    e(f"v_lshlrev_b32 {v(V_HV)}, 4, {v(V_LANE)}")
    e("s_waitcnt lgkmcnt(0)")
    e(f"s_mov_b32 {s(S_X)}, s4"); e(f"s_mov_b32 {s(S_X+1)}, s5"); e(f"s_mov_b32 {s(S_X+2)}, 2621440"); e(f"s_mov_b32 {s(S_X+3)}, 0x20000")
    e(f"s_mov_b32 {s(S_WO)}, s6"); e(f"s_mov_b32 {s(S_WO+1)}, s7"); e(f"s_mov_b32 {s(S_WO+2)}, 819200"); e(f"s_mov_b32 {s(S_WO+3)}, 0x20000")
    e(f"s_mov_b32 {s(S_W2)}, s48"); e(f"s_mov_b32 {s(S_W2+1)}, s49"); e(f"s_mov_b32 {s(S_W2+2)}, 1966080"); e(f"s_mov_b32 {s(S_W2+3)}, 0x20000")
    e(f"s_mov_b32 {s(S_OUT)}, s50"); e(f"s_mov_b32 {s(S_OUT+1)}, s51"); e(f"s_mov_b32 {s(S_OUT+2)}, 2621440"); e(f"s_mov_b32 {s(S_OUT+3)}, 0x20000")
    e(f"s_mov_b32 {s(S_WS)}, s52"); e(f"s_mov_b32 {s(S_WS+1)}, s53"); e(f"s_mov_b32 {s(S_WS+2)}, {WS_USED if not opts.get('stamp') else 0x2000000}"); e(f"s_mov_b32 {s(S_WS+3)}, 0x20000")
    q = Queue(e, "vmcnt", 63)
    e(f"s_mul_i32 {s(S_T)}, {s(S_W)}, 13440"); e(f"s_add_u32 {s(S_T)}, {s(S_T)}, {WS_KV}")
    e(f"s_add_u32 {s(S_T+1)}, {s(S_LB)}, {KVO}")
    for k in range(14):
        if k == 13:
            e(f"v_cmp_gt_u32 vcc, 8, {v(V_LANE)}"); e(f"s_and_saveexec_b64 s[36:37], vcc")
        e(f"s_add_u32 m0, {s(S_T+1)}, {k*1024}")
        e(f"s_add_u32 {s(S_T+2)}, {s(S_T)}, {k*1024}")
        e(f"buffer_load_dwordx4 {v(V_HV)}, {s(S_WS,4)}, {s(S_T+2)} offen lds")
        q.issue("kv")
        if k == 13: e("s_mov_b64 exec, s[36:37]")
    e(f"s_mul_i32 {s(S_PQO)}, {s(S_RB)}, {4*20*1024}"); e(f"s_mul_i32 {s(S_T)}, {s(S_W)}, {5*1024}")
    e(f"s_add_u32 {s(S_PQO)}, {s(S_PQO)}, {s(S_T)}"); e(f"s_add_u32 {s(S_PQO)}, {s(S_PQO)}, {WS_PQ}")
    def load_pq(set_, tag):
        for p in range(5):
            if p < 4:
                e(f"buffer_load_dwordx4 {a(A_PQ + set_*20 + 4*p,4)}, {v(V_HV)}, {s(S_WS,4)}, {s(S_PQO)} offen offset:{p*1024}")
            else:
                e(f"s_add_u32 {s(S_T)}, {s(S_PQO)}, 4096")
                e(f"buffer_load_dwordx4 {a(A_PQ + set_*20 + 4*p,4)}, {v(V_HV)}, {s(S_WS,4)}, {s(S_T)} offen")
            q.issue(tag)
        e(f"s_add_u32 {s(S_PQO)}, {s(S_PQO)}, {20*1024}")
    load_pq(0, "pq0"); load_pq(1, "pq1")
    e(f"s_mul_i32 {s(S_BO)}, {s(S_W)}, {12*32*1280}"); e(f"s_mul_i32 {s(S_T)}, {s(S_CB)}, 160"); e(f"s_add_u32 {s(S_BO)}, {s(S_BO)}, {s(S_T)}")
    e(f"s_mul_i32 {s(S_HO)}, {s(S_RB)}, {4*48*1024}"); e(f"s_mul_i32 {s(S_T)}, {s(S_W)}, {12*1024}")
    e(f"s_add_u32 {s(S_HO)}, {s(S_HO)}, {s(S_T)}"); e(f"s_add_u32 {s(S_HO)}, {s(S_HO)}, {WS_H}")
    for mt in range(4):
        e(f"v_add_u32 {v(16 + mt)}, {mt*48*1024}, {v(V_HV)}")
    def load_h(set_, tag):
        for mt in range(4):
            e(f"buffer_load_dwordx4 {a(A_H + set_*16 + 4*mt,4)}, {v(16 + mt)}, {s(S_WS,4)}, {s(S_HO)} offen")
            q.issue(tag)
        e(f"s_add_u32 {s(S_HO)}, {s(S_HO)}, 1024")
    def issue_b(srd, tag):
        dma_b(e, q, srd, tag, S_SL, S_BO)
        e(f"s_add_u32 {s(S_BO)}, {s(S_BO)}, {32*1280}")
    e(f"s_mov_b32 {s(S_SL)}, {s(S_LB)}")
    def adv_slot(reg):
        e(f"s_add_u32 {s(reg)}, {s(reg)}, {SLOTB}")
        e(f"s_add_u32 {s(S_T)}, {s(S_LB)}, {RING}")
        e(f"s_cmp_eq_u32 {s(reg)}, {s(S_T)}")
        e(f"s_cselect_b32 {s(reg)}, {s(S_LB)}, {s(reg)}")
    for t in range(3):
        issue_b(S_W2, ("b", t)); adv_slot(S_SL)
        load_h(t, ("h", t))
    stamp(e, 1)
    for r in range(4): e(f"v_mov_b32 {v(V_TMP + r)}, 0")
    e(f"v_lshlrev_b32 {v(V_T)}, 4, {v(V_LANE)}")
    e(f"v_add_u32 {v(V_T)}, {s(S_LB)}, {v(V_T)}")
    e(f"v_cmp_gt_u32 vcc, 44, {v(V_LANE)}"); e(f"s_and_saveexec_b64 s[36:37], vcc")
    e(f"ds_write_b128 {v(V_T)}, {v(V_TMP,4)} offset:{ZBASE}")
    e("s_mov_b64 exec, s[36:37]")
    KB = S_T + 4
    e(f"s_add_u32 s38, {s(S_LB)}, {KVO}")
    e(f"v_lshlrev_b32 {v(V_T+3)}, 4, {v(V_G)}")
    for t in range(10):
        e(f"v_add_u32 {v(V_T)}, {16*t}, {v(V_I)}")
        e(f"v_mul_u32_u24 {v(V_HE + t)}, 205, {v(V_T)}"); e(f"v_lshrrev_b32 {v(V_HE + t)}, 12, {v(V_HE + t)}")
        e(f"v_sub_u32 {v(V_T)}, {v(V_T)}, {v(V_HE + t)}"); e(f"v_mul_u32_u24 {v(V_T)}, 80, {v(V_T)}")
        e(f"v_lshrrev_b32 {v(V_T+1)}, 2, {v(V_HE + t)}"); e(f"v_mul_u32_u24 {v(V_T+1)}, 320, {v(V_T+1)}")
        e(f"v_add3_u32 {v(V_T)}, {v(V_T)}, {v(V_T+1)}, {v(V_T+3)}")
        e(f"v_add_u32 {v(V_HE + 10 + t)}, s38, {v(V_T)}")
    for wh in range(10):
        e(f"v_add_u32 {v(V_T)}, {4*wh}, {v(V_G)}")
        e(f"v_mul_u32_u24 {v(V_HE + 20 + wh)}, 52, {v(V_T)}"); e(f"v_lshrrev_b32 {v(V_HE + 20 + wh)}, 8, {v(V_HE + 20 + wh)}")
        e(f"v_lshrrev_b32 {v(V_T+1)}, 2, {v(V_HE + 20 + wh)}"); e(f"v_mul_u32_u24 {v(V_T+1)}, 6400, {v(V_T+1)}")
        e(f"v_add3_u32 {v(V_T+1)}, {v(V_T+1)}, {v(V_T+3)}, s38")
        e(f"v_add_u32 {v(V_HE + 30 + wh)}, 6400, {v(V_T+1)}")
    for u in range(3):
        e(f"v_and_b32 {v(V_T)}, 3, {v(V_I)}"); e(f"v_lshlrev_b32 {v(V_T)}, 2, {v(V_T)}")
        e(f"v_lshrrev_b32 {v(V_T+1)}, 2, {v(V_I)}")
        e(f"v_add3_u32 {v(V_T)}, {v(V_T)}, {v(V_T+1)}, {16*u}")
        e(f"v_mul_u32_u24 {v(V_HE + 40 + u)}, 52, {v(V_T)}"); e(f"v_lshrrev_b32 {v(V_HE + 40 + u)}, 8, {v(V_HE + 40 + u)}")
    e(f"s_add_u32 s39, {s(S_LB)}, {ZBASE}")
    e(f"v_mov_b32 {v(V_T+4-1+0)}, s39") if False else None
    e(f"v_mov_b32 {v(V_WA)}, s39")
    q.wait("kv")
    e("s_waitcnt lgkmcnt(0)")
    stamp(e, 2)
    lq = Queue(e, "lgkmcnt", 15)
    frs = [("n", t, w) for (t, w) in NUM] + [("d", u, w) for (u, w) in DEN]
    pend = []
    def finish(fr_idx, tb):
        lq.wait(("f", fr_idx))
        R = V_KVT + 4*fr_idx
        for k in range(4):
            e(f"v_cvt_pk_bf16_f32 {v(R + k)}, {v(tb + 2*k)}, {v(tb + 2*k + 1)}")
    for fi, (kind, t, w) in enumerate(frs):
        tb = V_TMP + (fi % 2) * 8
        for hf in range(2):
            wh = 2*w + hf
            hsrc = V_HE + t if kind == "n" else V_HE + 40 + t
            asrc = V_HE + 10 + t if kind == "n" else V_HE + 30 + wh
            e(f"v_cmp_eq_u32 vcc, {v(hsrc)}, {v(V_HE + 20 + wh)}")
            e("s_nop 1")
            e(f"v_cndmask_b32 {v(V_T + hf)}, {v(V_WA)}, {v(asrc)}, vcc")
            e(f"ds_read_b128 {v(tb + 4*hf, 4)}, {v(V_T + hf)} offset:{64*wh}")
            lq.issue(("f", fi))
        if fi > 0: finish(fi - 1, V_TMP + ((fi - 1) % 2) * 8)
    finish(len(frs) - 1, V_TMP + ((len(frs) - 1) % 2) * 8)
    stamp(e, 3)
    e(f"s_mov_b32 {s(S_EPS)}, {f32(1e-6)}")
    e(f"v_lshlrev_b32 {v(V_T+2)}, 4, {v(V_LANE)}")
    e(f"s_add_u32 {s(S_T)}, {s(S_LB)}, {KVO}")
    e(f"v_add_u32 {v(V_T+2)}, {s(S_T)}, {v(V_T+2)}")
    def o_compute(set_):
        PQ = A_PQ + set_*20
        for n_, (u, w) in enumerate(DEN):
            fi = 18 + n_
            first = (n_ == 0 or DEN[n_-1][0] != u)
            c = "0" if first else v(V_DEN + 4*u, 4)
            e(f"v_mfma_f32_16x16x32_bf16 {v(V_DEN + 4*u,4)}, {v(V_KVT + 4*fi,4)}, {a(PQ + 4*w,4)}, {c}")
        for fi, (t, w) in enumerate(NUM):
            first = (fi == 0 or NUM[fi-1][0] != t)
            c = "0" if first else v(V_NUM + 4*t, 4)
            e(f"v_mfma_f32_16x16x32_bf16 {v(V_NUM + 4*t,4)}, {v(V_KVT + 4*fi,4)}, {a(PQ + 4*w,4)}, {c}")
        for t in range(10):
            e(f"v_add_f32 {v(V_RC + t)}, {s(S_EPS)}, {v(V_DEN + 4*(t >> 2) + (t & 3))}")
        for t in range(10):
            e(f"v_rcp_f32 {v(V_RC + t)}, {v(V_RC + t)}")
        e("s_nop 1")
        for t in range(10):
            N = V_NUM + 4*t
            r = V_RC + t
            if r % 2 == 0: pr, o, oh = v(r,2), 0, 0
            else: pr, o, oh = v(r-1,2), 1, 1
            if t == 9: pass
            e(f"v_pk_mul_f32 {v(N,2)}, {v(N,2)}, {pr} op_sel:[0,{o}] op_sel_hi:[1,{oh}]")
            e(f"v_pk_mul_f32 {v(N+2,2)}, {v(N+2,2)}, {pr} op_sel:[0,{o}] op_sel_hi:[1,{oh}]")
        for p in range(5):
            O = V_NUM + 8*p
            e(f"v_cvt_pk_bf16_f32 {v(O)}, {v(O)}, {v(O+1)}")
            e(f"v_cvt_pk_bf16_f32 {v(O+1)}, {v(O+2)}, {v(O+3)}")
            e(f"v_cvt_pk_bf16_f32 {v(O+2)}, {v(O+4)}, {v(O+5)}")
            e(f"v_cvt_pk_bf16_f32 {v(O+3)}, {v(O+6)}, {v(O+7)}")
            e(f"ds_write_b128 {v(V_T+2)}, {v(O,4)} offset:{p*1024}")
        e(f"v_add_u32 {v(V_T+2)}, {5*1024}, {v(V_T+2)}")
    q.wait("pq0"); o_compute(0)
    load_pq(0, "pq2")
    q.wait("pq1"); o_compute(1)
    load_pq(1, "pq3")
    issue_b(S_W2, ("b", 3)); adv_slot(S_SL)
    load_h(3, ("h", 3))
    q.wait("pq2"); o_compute(0)
    q.wait("pq3"); o_compute(1)
    stamp(e, 4)
    for r in range(80): e(f"v_accvgpr_write_b32 {a(A_ACC + r)}, 0")
    e(f"v_lshlrev_b32 {v(V_T)}, 2, {v(V_G)}"); e(f"v_lshrrev_b32 {v(V_T+1)}, 2, {v(V_I)}"); e(f"v_add_u32 {v(V_T)}, {v(V_T)}, {v(V_T+1)}")
    e(f"v_mul_u32_u24 {v(V_T)}, 160, {v(V_T)}"); e(f"v_and_b32 {v(V_T+1)}, 3, {v(V_I)}"); e(f"v_lshlrev_b32 {v(V_T+1)}, 3, {v(V_T+1)}")
    e(f"v_add_u32 {v(V_WB)}, {v(V_T)}, {v(V_T+1)}")
    e(f"s_mov_b32 {s(S_RS)}, {s(S_LB)}")
    e(f"v_lshlrev_b32 {v(V_T+2)}, 4, {v(V_LANE)}"); e(f"s_add_u32 {s(S_T)}, {s(S_LB)}, {KVO}"); e(f"v_add_u32 {v(V_T+2)}, {s(S_T)}, {v(V_T+2)}")
    def read_w(setw):
        e(f"v_add_u32 {v(V_WA)}, {s(S_RS)}, {v(V_WB)}")
        for ct in range(5):
            for part in range(2):
                e(f"ds_read_b64_tr_b16 {v(V_W + setw*20 + 4*ct + 2*part, 2)}, {v(V_WA)} offset:{ct*32 + part*16*160}")
                lq.issue(("w", setw))
        adv_slot(S_RS)
    def read_o(p, seto):
        for mt in range(4):
            e(f"ds_read_b128 {v(V_O + seto*16 + 4*mt,4)}, {v(V_T+2)} offset:{(mt*5 + p)*1024}")
            lq.issue(("o", seto))
    NST = 17
    q.wait(("b", 0)); read_w(0)
    for t in range(NST):
        sw = t % 2
        if t + 1 < NST:
            q.wait(("b", t + 1))
        lq.wait(("w", sw))
        if t >= 12: lq.wait(("o", t % 2))
        if t + 4 < NST:
            if t + 4 == 12:
                e(f"s_mul_i32 {s(S_BO)}, {s(S_W)}, {160*1280}"); e(f"s_mul_i32 {s(S_T)}, {s(S_CB)}, 160"); e(f"s_add_u32 {s(S_BO)}, {s(S_BO)}, {s(S_T)}")
            issue_b(S_W2 if t + 4 < 12 else S_WO, ("b", t + 4)); adv_slot(S_SL)
        if t + 1 < NST:
            read_w(1 - sw)
            if t + 1 >= 12: read_o(t + 1 - 12, (t + 1) % 2)
        if t < 12: q.wait(("h", t))
        for ct in range(5):
            for mt in range(4):
                A = acc(mt, ct)
                bop = a(A_H + (t % 4)*16 + 4*mt, 4) if t < 12 else v(V_O + (t % 2)*16 + 4*mt, 4)
                e(f"v_mfma_f32_16x16x32_bf16 {a(A,4)}, {v(V_W + sw*20 + 4*ct,4)}, {bop}, {a(A,4)}")
        if t + 4 < 12:
            load_h(t % 4, ("h", t + 4))
    stamp(e, 5)
    e("s_nop 7")
    e("s_barrier")
    e(f"v_lshlrev_b32 {v(V_T)}, 4, {v(V_LANE)}")
    e(f"s_mul_i32 {s(S_T)}, {s(S_W)}, {20*1024}")
    e(f"v_add_u32 {v(V_T)}, {s(S_T)}, {v(V_T)}")
    for mt in range(4):
        for ct in range(5):
            e(f"ds_write_b128 {v(V_T)}, {a(acc(mt,ct),4)} offset:{(mt*5 + ct)*1024}")
    e(f"s_lshl_b32 {s(S_T)}, {s(S_RB)}, 6"); e(f"s_lshl_b32 {s(S_T+1)}, {s(S_W)}, 4"); e(f"s_add_u32 {s(S_T)}, {s(S_T)}, {s(S_T+1)}")
    e(f"v_add_u32 {v(V_T+1)}, {s(S_T)}, {v(V_I)}"); e(f"v_mul_u32_u24 {v(V_T+1)}, 1280, {v(V_T+1)}")
    e(f"v_lshlrev_b32 {v(V_T+3)}, 3, {v(V_G)}"); e(f"v_add_u32 {v(V_T+1)}, {v(V_T+1)}, {v(V_T+3)}")
    e(f"s_mul_i32 {s(S_T+2)}, {s(S_CB)}, 160")
    for ct in range(5):
        e(f"buffer_load_dwordx2 {v(100 + 2*ct,2)}, {v(V_T+1)}, {s(S_X,4)}, {s(S_T+2)} offen offset:{ct*32}")
    e("s_waitcnt lgkmcnt(0)")
    e("s_barrier")
    e(f"v_lshlrev_b32 {v(V_T)}, 4, {v(V_LANE)}")
    e(f"s_mul_i32 {s(S_T)}, {s(S_W)}, {5*1024}")
    e(f"v_add_u32 {v(V_T)}, {s(S_T)}, {v(V_T)}")
    e(f"v_add_u32 {v(V_T+3)}, {2*20*1024}, {v(V_T)}")
    for ct in range(5):
        for ww in range(4):
            ad = V_T if ww < 2 else V_T + 3
            e(f"ds_read_b128 {v(20 + (ct*4 + ww)*4,4)}, {v(ad)} offset:{(ww % 2)*20*1024 + ct*1024}")
        if ct == 2: e("s_waitcnt lgkmcnt(0)")
    e("s_waitcnt vmcnt(0) lgkmcnt(0)")
    for ct in range(5):
        B = 20 + ct*16
        for h in range(2):
            e(f"v_pk_add_f32 {v(B+2*h,2)}, {v(B+2*h,2)}, {v(B+4+2*h,2)}")
            e(f"v_pk_add_f32 {v(B+8+2*h,2)}, {v(B+8+2*h,2)}, {v(B+12+2*h,2)}")
        X = 100 + 2*ct
        e(f"v_lshlrev_b32 {v(B+4)}, 16, {v(X)}"); e(f"v_and_b32 {v(B+5)}, 0xffff0000, {v(X)}")
        e(f"v_lshlrev_b32 {v(B+6)}, 16, {v(X+1)}"); e(f"v_and_b32 {v(B+7)}, 0xffff0000, {v(X+1)}")
        for h in range(2):
            e(f"v_pk_add_f32 {v(B+2*h,2)}, {v(B+2*h,2)}, {v(B+8+2*h,2)}")
        for h in range(2):
            e(f"v_pk_add_f32 {v(B+2*h,2)}, {v(B+2*h,2)}, {v(B+4+2*h,2)}")
        e(f"v_cvt_pk_bf16_f32 {v(B)}, {v(B)}, {v(B+1)}")
        e(f"v_cvt_pk_bf16_f32 {v(B+1)}, {v(B+2)}, {v(B+3)}")
        e(f"buffer_store_dwordx2 {v(B,2)}, {v(V_T+1)}, {s(S_OUT,4)}, {s(S_T+2)} offen offset:{ct*32}")
    if opts.get("stamp"):
        stamp(e, 6)
        e("s_waitcnt vmcnt(0)"); stamp(e, 7)
        e(f"s_lshl_b32 {s(S_T)}, s2, 3"); e(f"s_add_u32 {s(S_T)}, {s(S_T)}, {s(S_W)}"); e(f"s_lshl_b32 {s(S_T)}, {s(S_T)}, 6")
        e(f"s_add_u32 {s(S_T)}, {s(S_T)}, {0x1200000}")
        e(f"v_mov_b32 v14, 0")
        for k in range(8):
            e(f"v_mov_b32 v15, {s(70 + 2*k)}")
            e(f"buffer_store_dword v15, v14, {s(S_WS,4)}, {s(S_T)} offen offset:{4*k}")
            e("s_nop 1")
    e.label("L_k2_end")
    e("s_endpgm")
```

```python
import sys
from asmlib import *
import k1
HDR = open('parallel_sum__linear_attn_block__glu_gated_swiglu__prompt.s.ref').read().split("; Override launch")[0]
def build(opts=None, with_k2=True):
    e = Emit()
    e.raw(HDR.rstrip())
    e.raw(f"; @launch kernel=k1_kernel grid=(256,1,1) block=(512,1,1) lds={k1.LDS_TOTAL}")
    if with_k2:
        import k2
        e.raw(f"; @launch kernel=k2_kernel grid=(256,1,1) block=({getattr(k2, 'BLOCK', 256)},1,1) lds={k2.LDS_TOTAL}")
    e.raw('.amdgcn_target "amdgcn-amd-amdhsa--gfx950"')
    e.raw(".text")
    k1.gen_k1(e, opts)
    if with_k2:
        k2.gen_k2(e, opts)
    e.raw(kernel_desc("k1_kernel", 256, 96, 256))
    if with_k2:
        e.raw(kernel_desc("k2_kernel", getattr(k2, "NVGPR", 512), 96, 256))
    return e.text()
if __name__ == "__main__":
    out = sys.argv[1]
    flags = sys.argv[2:]
    opts = {}
    for f in flags:
        if "=" in f:
            k, val = f.split("=")
            try: opts[k] = int(val)
            except ValueError: opts[k] = val
        else: opts[f] = True
    open(out, "w").write(build(opts, with_k2=not opts.get("k1only")))
```

```python
from asmlib import *
import math

NSTAGE = 20
NSLOT = 6
SLOT = 26624
A_BYTES = 16384
BH = 5120
LDS_AUX = NSLOT * SLOT
LDS_STATS = LDS_AUX
LDS_CS = LDS_AUX + 2048
LDS_TOTAL = 163840
LDS_KV = 2 * SLOT
LDS_KV_TRASH = LDS_KV + 6720 + 320
WS_PQ = 0
WS_H = 2621440
WS_KV = WS_H + 6291456
WS_STATS = WS_KV + 65536
WS_USED = WS_STATS + 16384
LOG2E = 1.4426950408889634

S_X = 8; S_B0 = 12; S_B1 = 16; S_WS = 20; S_DBG = 24
S_RB = 26; S_CG = 27; S_WAVE = 28; S_TYPE = 29; S_SUB = 30; S_BSTR = 31
S_CB0 = 32; S_CB1 = 33; S_ROT = 34; S_SLOT = 35; S_CNT = 36
S_T = 37
S_EPS6 = 40
S_L2E = 42
S_WSP = 46
S_AOFF = 56; S_BOFF = 57; S_PA = 58; S_PB = 59; S_M0S = 60; S_T2 = 61; S_T3 = 62; S_T4 = 63
S_EXS = 64
S_TICK = 66

V_ACC = 96
def acc(mt, ct): return V_ACC + (ct * 4 + mt) * 4
V_X = 32
V_W = 64
V_XB = 2; V_WB = 3; V_XA = 4; V_WA = 6
V_LANE = 8; V_I = 9; V_G = 10

OPTS = {}
STAMP = False
WS_STAMP = 0x1000000
def stamp(e, idx):
    if STAMP:
        e(f"s_memtime {s(70 + 2*idx, 2)}")
        e("s_waitcnt lgkmcnt(0)")
def stamp_flush(e, n):
    if STAMP:
        e(f"s_lshl_b32 {s(S_T)}, s2, 3"); e(f"s_add_u32 {s(S_T)}, {s(S_T)}, {s(S_WAVE)}"); e(f"s_lshl_b32 {s(S_T)}, {s(S_T)}, 6")
        e(f"s_add_u32 {s(S_T)}, {s(S_T)}, {WS_STAMP}")
        e(f"v_mov_b32 v14, 0")
        e("s_memrealtime s[88:89]"); e("s_waitcnt lgkmcnt(0)")
        for k in range(n):
            e(f"v_mov_b32 v15, {s(70 + 2*k)}")
            e(f"buffer_store_dword v15, v14, {s(S_WS,4)}, {s(S_T)} offen offset:{4*k}")
            e("s_nop 1")
        e(f"v_mov_b32 v15, s86"); e(f"buffer_store_dword v15, v14, {s(S_WS,4)}, {s(S_T)} offen offset:{4*8}"); e("s_nop 1")
        e(f"v_mov_b32 v15, s88"); e(f"buffer_store_dword v15, v14, {s(S_WS,4)}, {s(S_T)} offen offset:{4*9}"); e("s_nop 1")

def consumer_loop(e, swapped, tag, BG=7):
    q = Queue(e, "lgkmcnt", 15)
    def rd_x(par, mt):
        if OPTS.get("nox"): return
        e(f"ds_read_b128 {v(V_X + par*16 + mt*4, 4)}, {v(V_XA + par)} offset:{mt*1024}")
        q.issue(("x", par, mt))
    def rd_w(par, ct, ring, part):
        if OPTS.get("now"): return
        half, c16 = divmod(ct, 5)
        off = half * BH + c16 * 32 + part * 1280
        e(f"ds_read_b64_tr_b16 {v(V_W + ring*4 + part*2, 2)}, {v(V_WA + par)} offset:{off}")
        q.issue(("w", ring, part))
    def next_addr(par):
        e(f"v_add_u32 {v(V_XA + par)}, {s(S_SLOT)}, {v(V_XB)}")
        e(f"v_add_u32 {v(V_WA + par)}, {s(S_SLOT)}, {v(V_WB)}")
        e(f"s_add_u32 {s(S_SLOT)}, {s(S_SLOT)}, {SLOT}")
        e(f"s_cmp_eq_u32 {s(S_SLOT)}, {NSLOT*SLOT}")
        e(f"s_cselect_b32 {s(S_SLOT)}, 0, {s(S_SLOT)}")
    PD = 10 - BG
    e(f"s_mov_b32 {s(S_SLOT)}, 0")
    stamp(e, 1)
    e("s_barrier")
    stamp(e, 2)
    next_addr(0)
    def tail_reads(par_next, ringbase):
        out = {g: [] for g in range(BG, 10)}
        xs = list(range(4))
        for k in range(PD):
            g = BG + k
            if k == 0:
                out[g] += [("x", 0), ("x", 1)]
            if k == 1:
                out[g] += [("x", 2), ("x", 3)]
            out[g] += [("w", k, 0), ("w", k, 1)]
        return out
    tr = tail_reads(0, 0)
    for g in range(BG, 10):
        for r in tr[g]:
            if r[0] == "x": rd_x(0, r[1])
            else: rd_w(0, r[1], r[1] % 4, r[2])
    state0 = list(q.p)
    e(f"s_mov_b32 {s(S_CNT)}, {NSTAGE//2}")
    e.raw(".p2align 6")
    e.label(f"L_cloop_{tag}")
    for ks in range(2):
        par = ks; nxt = 1 - ks
        for ct in range(10):
            fi = ks * 10 + ct
            ring = fi % 4
            reads = []
            if ct == BG:
                e("s_barrier")
                next_addr(nxt)
            if ct + PD < 10:
                c2 = ct + PD
                reads = [("w", par, c2, (fi + PD) % 4, 0), ("w", par, c2, (fi + PD) % 4, 1)]
            else:
                for r in tr[ct]:
                    if r[0] == "x": reads.append(("x", nxt, r[1]))
                    else: reads.append(("w", nxt, r[1], (ks * 10 + 10 + r[1]) % 4, r[2]))
            ri = 0
            for mt in range(4):
                q.wait(("w", ring, 0), ("w", ring, 1), ("x", par, mt))
                A = acc(mt, ct)
                xo = v(V_X + par*16 + mt*4, 4); wo = v(V_W + ring*4, 4)
                if swapped:
                    e(f"v_mfma_f32_16x16x32_bf16 {v(A,4)}, {wo}, {xo}, {v(A,4)}")
                else:
                    e(f"v_mfma_f32_16x16x32_bf16 {v(A,4)}, {xo}, {wo}, {v(A,4)}")
                nrd = (len(reads) - ri + (3 - mt)) // (4 - mt) if mt < 4 else 0
                for _ in range(nrd):
                    r = reads[ri]; ri += 1
                    if r[0] == "x": rd_x(r[1], r[2])
                    else: rd_w(r[1], r[2], r[3], r[4])
            assert ri == len(reads)
    if OPTS.get("loopstamp"):
        e("s_memtime s[90:91]"); e("s_waitcnt lgkmcnt(0)")
        e(f"s_mov_b32 m0, {s(S_CNT)}"); e("s_nop 0")
        e(f"v_writelane_b32 v1, s90, m0")
    e(f"s_sub_u32 {s(S_CNT)}, {s(S_CNT)}, 1")
    e(f"s_cmp_lg_u32 {s(S_CNT)}, 0")
    e(f"s_cbranch_scc1 L_cloop_{tag}")
    if OPTS.get("loopstamp"):
        e(f"s_lshl_b32 {s(S_T)}, s2, 3"); e(f"s_add_u32 {s(S_T)}, {s(S_T)}, {s(S_WAVE)}"); e(f"s_lshl_b32 {s(S_T)}, {s(S_T)}, 8")
        e(f"s_add_u32 {s(S_T)}, {s(S_T)}, {WS_STAMP + 0x100000}")
        e(f"v_lshlrev_b32 v14, 2, {v(V_LANE)}")
        e(f"buffer_store_dword v1, v14, {s(S_WS,4)}, {s(S_T)} offen")
        q.p = list(state0)
    assert q.p == state0, (q.p, state0)
    e("s_waitcnt lgkmcnt(0)")
    stamp(e, 3)

def setup_common(e):
    e("s_cmp_ge_u32 s2, 256")
    e("s_cbranch_scc1 L_k1_end")
    e("s_load_dwordx4 s[4:7], s[0:1], 0")
    e("s_load_dwordx4 s[48:51], s[0:1], 32")
    e("s_load_dwordx4 s[52:55], s[0:1], 64")
    if STAMP: e(f"s_memtime {s(70,2)}")
    if STAMP: e(f"s_memrealtime s[86:87]")
    e(f"v_lshrrev_b32 v1, 6, v0")
    e(f"v_and_b32 {v(V_LANE)}, 63, v0")
    e(f"v_readfirstlane_b32 {s(S_WAVE)}, v1")
    e(f"s_and_b32 {s(S_T)}, s2, 7")
    e(f"s_lshr_b32 {s(S_T+1)}, s2, 3")
    e(f"s_and_b32 {s(S_RB)}, {s(S_T)}, 1")
    e(f"s_lshl_b32 {s(S_RB)}, {s(S_RB)}, 2")
    e(f"s_and_b32 {s(S_T+2)}, {s(S_T+1)}, 3")
    e(f"s_add_u32 {s(S_RB)}, {s(S_RB)}, {s(S_T+2)}")
    e(f"s_lshr_b32 {s(S_CG)}, {s(S_T)}, 1")
    e(f"s_lshl_b32 {s(S_CG)}, {s(S_CG)}, 3")
    e(f"s_lshr_b32 {s(S_T+2)}, {s(S_T+1)}, 2")
    e(f"s_add_u32 {s(S_CG)}, {s(S_CG)}, {s(S_T+2)}")
    e(f"v_and_b32 {v(V_I)}, 15, {v(V_LANE)}")
    e(f"v_lshrrev_b32 {v(V_G)}, 4, {v(V_LANE)}")
    e(f"s_mov_b32 {s(S_EPS6)}, {f32(1e-6)}"); e(f"s_mov_b32 {s(S_EPS6+1)}, {f32(1e-6)}")
    e(f"s_mov_b32 {s(S_L2E)}, {f32(LOG2E)}"); e(f"s_mov_b32 {s(S_L2E+1)}, {f32(LOG2E)}")
    e("s_waitcnt lgkmcnt(0)")
    e(f"s_mov_b32 {s(S_X)}, s4"); e(f"s_mov_b32 {s(S_X+1)}, s5"); e(f"s_mov_b32 {s(S_X+2)}, 2621440"); e(f"s_mov_b32 {s(S_X+3)}, 0x20000")
    e(f"s_mov_b32 {s(S_WS)}, s54"); e(f"s_mov_b32 {s(S_WS+1)}, s55"); e(f"s_mov_b32 {s(S_WS+2)}, {WS_USED if not STAMP else 0x2000000}"); e(f"s_mov_b32 {s(S_WS+3)}, 0x20000")
    e(f"s_mov_b32 {s(S_DBG)}, s52"); e(f"s_mov_b32 {s(S_DBG+1)}, s53")
    e(f"s_mov_b32 {s(S_WSP)}, s54"); e(f"s_mov_b32 {s(S_WSP+1)}, s55")
    e(f"s_mov_b32 {s(S_B0+3)}, 0x20000"); e(f"s_mov_b32 {s(S_B1+3)}, 0x20000")
    e(f"s_mov_b32 {s(S_ROT)}, 0")
    e(f"s_cmp_ge_u32 {s(S_CG)}, 12"); e("s_cbranch_scc1 L_set_gu")
    e(f"s_mov_b32 {s(S_B0)}, s6"); e(f"s_mov_b32 {s(S_B0+1)}, s7"); e(f"s_mov_b32 {s(S_B0+2)}, 2457600")
    e(f"s_mov_b32 {s(S_B1)}, s6"); e(f"s_mov_b32 {s(S_B1+1)}, s7"); e(f"s_mov_b32 {s(S_B1+2)}, 2457600")
    e(f"s_mov_b32 {s(S_BSTR)}, 3840")
    e(f"s_cmp_ge_u32 {s(S_CG)}, 4"); e("s_cbranch_scc1 L_set_kv")
    e(f"s_mov_b32 {s(S_TYPE)}, 0"); e(f"s_mov_b32 {s(S_SUB)}, {s(S_CG)}")
    e(f"s_mul_i32 {s(S_CB0)}, {s(S_SUB)}, 320"); e(f"s_add_u32 {s(S_CB1)}, {s(S_CB0)}, 160")
    e("s_branch L_set_done")
    e.label("L_set_kv")
    e(f"s_mov_b32 {s(S_TYPE)}, 1"); e(f"s_sub_u32 {s(S_SUB)}, {s(S_CG)}, 4")
    e(f"s_mul_i32 {s(S_CB0)}, {s(S_SUB)}, 160"); e(f"s_add_u32 {s(S_CB1)}, {s(S_CB0)}, 2560"); e(f"s_add_u32 {s(S_CB0)}, {s(S_CB0)}, 1280")
    e("s_branch L_set_done")
    e.label("L_set_gu")
    e(f"s_mov_b32 {s(S_B0)}, s48"); e(f"s_mov_b32 {s(S_B0+1)}, s49"); e(f"s_mov_b32 {s(S_B0+2)}, 1966080")
    e(f"s_mov_b32 {s(S_B1)}, s50"); e(f"s_mov_b32 {s(S_B1+1)}, s51"); e(f"s_mov_b32 {s(S_B1+2)}, 1966080")
    e(f"s_mov_b32 {s(S_BSTR)}, 3072")
    e(f"s_mov_b32 {s(S_TYPE)}, 2"); e(f"s_sub_u32 {s(S_SUB)}, {s(S_CG)}, 12")
    e(f"s_mul_i32 {s(S_CB0)}, {s(S_SUB)}, 160"); e(f"s_mov_b32 {s(S_CB1)}, {s(S_CB0)}")
    e(f"s_and_b32 {s(S_ROT)}, {s(S_SUB)}, 1"); e(f"s_lshl_b32 {s(S_ROT)}, {s(S_ROT)}, 1")
    e.label("L_set_done")

def consumer_setup(e):
    e(f"v_lshrrev_b32 v11, 3, {v(V_I)}")
    e(f"v_mul_u32_u24 v11, 3, v11")
    e(f"v_xor_b32 v11, {v(V_G)}, v11")
    e(f"v_lshlrev_b32 v11, 4, v11")
    e(f"s_lshl_b32 {s(S_T)}, {s(S_WAVE)}, 12")
    e(f"v_lshlrev_b32 v12, 6, {v(V_I)}")
    e(f"v_add3_u32 {v(V_XB)}, v11, v12, {s(S_T)}")
    e(f"v_lshrrev_b32 v11, 1, {v(V_G)}")
    e(f"v_lshlrev_b32 v11, 4, v11")
    e(f"v_and_b32 v12, 1, {v(V_G)}")
    e(f"v_lshlrev_b32 v12, 2, v12")
    e(f"v_lshrrev_b32 v13, 2, {v(V_I)}")
    e(f"v_add3_u32 v11, v11, v12, v13")
    e(f"v_mul_u32_u24 v11, 160, v11")
    e(f"v_and_b32 v12, 3, {v(V_I)}")
    e(f"v_lshlrev_b32 v12, 3, v12")
    e(f"v_add_u32 v11, v11, v12")
    e(f"v_add_u32 {v(V_WB)}, {A_BYTES}, v11")
    for r in range(V_ACC, 256):
        e(f"v_mov_b32 {v(r)}, 0")

P_VA = 16
P_VB = 20
P_CS = 32
P_LD = 64
P_UN = 80
P_RA = 27
P_ONE = 26
P_ST = 100

def div10(e, dst, src, tmp):
    e(f"v_mul_u32_u24 {v(dst)}, 205, {v(src)}")
    e(f"v_lshrrev_b32 {v(dst)}, 11, {v(dst)}")

def producer_setup(e, p):
    even = (p % 2 == 0); half = p >> 1
    bl = [0, 1, 2] if even else [3, 4]
    if half == 1:
        for k in range(3): e(f"s_mov_b32 {s(S_B0+k)}, {s(S_B1+k)}")
        e(f"s_mov_b32 {s(S_CB0)}, {s(S_CB1)}")
    e(f"v_lshrrev_b32 v11, 5, {v(V_LANE)}")
    e(f"v_mul_u32_u24 v11, 3, v11")
    e(f"v_and_b32 v12, 3, {v(V_LANE)}")
    e(f"v_xor_b32 v11, v11, v12")
    e(f"v_lshlrev_b32 v11, 4, v11")
    e(f"v_lshrrev_b32 v12, 2, {v(V_LANE)}")
    e(f"v_mul_u32_u24 v12, 1280, v12")
    e(f"v_add_u32 v11, v11, v12")
    for a_ in range(4):
        e(f"v_add_u32 {v(P_VA + a_)}, {(4*p + a_)*16*1280}, v11")
    e(f"s_mul_i32 {s(S_AOFF)}, {s(S_RB)}, {256*1280}")
    e(f"s_mov_b32 {s(S_BOFF)}, {s(S_CB0)}")
    for n, b in enumerate(bl):
        e(f"v_add_u32 v11, {64*b}, {v(V_LANE)}")
        div10(e, 12, 11, 13)
        e(f"v_mul_u32_u24 v13, 10, v12")
        e(f"v_sub_u32 v13, v11, v13")
        e(f"v_add_u32 v13, {s(S_ROT)}, v13")
        e(f"v_cmp_le_u32 vcc, 10, v13")
        e(f"v_subrev_u32 v14, 10, v13")
        e("s_nop 0")
        e(f"v_cndmask_b32 v13, v13, v14, vcc")
        e(f"v_and_b32 v14, 0x13, v12")
        e(f"v_and_b32 v15, 4, v12"); e(f"v_lshlrev_b32 v15, 1, v15"); e(f"v_or_b32 v14, v14, v15")
        e(f"v_and_b32 v15, 8, v12"); e(f"v_lshrrev_b32 v15, 1, v15"); e(f"v_or_b32 v14, v14, v15")
        e(f"v_mul_lo_u32 v14, v14, {s(S_BSTR)}")
        e(f"v_lshlrev_b32 v13, 4, v13")
        e(f"v_add_u32 {v(P_VB + n)}, v14, v13")
    e(f"s_lshl_b32 {s(S_T4)}, {s(S_BSTR)}, 5")
    e(f"v_lshrrev_b32 v11, 1, {v(V_G)}")
    e(f"v_lshlrev_b32 v11, 4, v11")
    e(f"v_and_b32 v12, 1, {v(V_G)}")
    e(f"v_lshlrev_b32 v12, 2, v12")
    e(f"v_lshrrev_b32 v13, 2, {v(V_I)}")
    e(f"v_add3_u32 v11, v11, v12, v13")
    e(f"v_mul_u32_u24 v11, 160, v11")
    e(f"v_and_b32 v12, 3, {v(V_I)}")
    e(f"v_lshlrev_b32 v12, 3, v12")
    e(f"v_add_u32 v11, v11, v12")
    e(f"v_add_u32 {v(P_RA)}, {A_BYTES}, v11")
    e(f"v_mov_b32 {v(P_ONE)}, 0x3f803f80")
    for r in range(P_CS, P_CS + 3): e(f"v_mov_b32 {v(r)}, 0")
    return bl

def issue_stage(e, q, p, bl, slot_sgpr=None, slot_imm=None, tag=None):
    half = p >> 1
    if OPTS.get("nodma") and slot_sgpr is not None:
        return
    for a_ in range(4):
        off = (4*p + a_) * 1024
        if slot_sgpr is None: e(f"s_mov_b32 m0, {slot_imm + off}")
        else: e(f"s_add_u32 m0, {s(slot_sgpr)}, {off}")
        e("s_nop 0")
        e(f"buffer_load_dwordx4 {v(P_VA + a_)}, {s(S_X,4)}, {s(S_AOFF)} offen lds")
        q.issue(tag)
    for n, b in enumerate(bl):
        off = A_BYTES + half*BH + b*1024
        if slot_sgpr is None: e(f"s_mov_b32 m0, {slot_imm + off}")
        else: e(f"s_add_u32 m0, {s(slot_sgpr)}, {off}")
        e("s_nop 0")
        e(f"buffer_load_dwordx4 {v(P_VB + n)}, {s(S_B0,4)}, {s(S_BOFF)} offen lds")
        q.issue(tag)
    e(f"s_add_u32 {s(S_AOFF)}, {s(S_AOFF)}, 64")
    e(f"s_add_u32 {s(S_BOFF)}, {s(S_BOFF)}, {s(S_T4)}")

def cs_tiles(p):
    return [ct for ct in (p, p + 4, p + 8) if ct < 10]

def colsum_stage(e, p, slot_sgpr):
    if OPTS.get("nocolsum"): return
    cts = cs_tiles(p)
    e(f"v_add_u32 v13, {s(slot_sgpr)}, {v(P_RA)}")
    for n, ct in enumerate(cts):
        half, c16 = divmod(ct, 5)
        off = half * BH + c16 * 32
        e(f"ds_read_b64_tr_b16 {v(P_LD + 4*n, 2)}, v13 offset:{off}")
        e(f"ds_read_b64_tr_b16 {v(P_LD + 4*n + 2, 2)}, v13 offset:{off + 1280}")
    for n, ct in enumerate(cts):
        e(f"s_waitcnt lgkmcnt({2*(len(cts)-1-n)})")
        for d in range(4):
            e(f"v_dot2c_f32_bf16 {v(P_CS + n)}, {v(P_LD + 4*n + d)}, {v(P_ONE)}")


DBG_CNT = 0
DBG_TICK = 32
DBG_FLAG = 64
LDS_ST8 = LDS_AUX + 2048 + 640
LDS_CSS = 3 * SLOT
LDS_KVS = 2 * SLOT
P_SL = 100
P_POLL = 60
P_GS = 64
S_OK = 67

def wrap_slot(e, sreg):
    e(f"s_add_u32 {s(sreg)}, {s(sreg)}, {SLOT}")
    e(f"s_cmp_eq_u32 {s(sreg)}, {NSLOT*SLOT}")
    e(f"s_cselect_b32 {s(sreg)}, 0, {s(sreg)}")

def lane0(e, on=True):
    if on:
        e(f"v_cmp_eq_u32 vcc, 0, {v(V_LANE)}")
        e(f"s_and_saveexec_b64 {s(S_EXS,2)}, vcc")
    else:
        e(f"s_mov_b64 exec, {s(S_EXS,2)}")

def stats2_load(e, row_sgpr, q):
    e(f"v_lshrrev_b32 v11, 5, {v(V_LANE)}")
    e(f"v_add_u32 v11, {s(row_sgpr)}, v11")
    e(f"v_mul_u32_u24 v11, 1280, v11")
    e(f"v_and_b32 v14, 31, {v(V_LANE)}")
    e(f"v_lshlrev_b32 v14, 3, v14")
    e(f"v_add_u32 v11, v11, v14")
    for k in range(5):
        e(f"buffer_load_dwordx2 {v(P_SL + 2*k, 2)}, v11, {s(S_X,4)}, 0 offen offset:{k*256}")
        if q: q.issue("S")

def stats2_compute(e):
    A = P_SL + 10
    for k in range(4): e(f"v_mov_b32 {v(A + k)}, 0")
    for d in range(10):
        e(f"v_dot2c_f32_bf16 {v(A + (d & 1))}, {v(P_SL + d)}, {v(P_ONE)}")
        e(f"v_dot2c_f32_bf16 {v(A + 2 + (d & 1))}, {v(P_SL + d)}, {v(P_SL + d)}")
    e("s_nop 2")
    e(f"v_add_f32 {v(A)}, {v(A)}, {v(A+1)}")
    e(f"v_add_f32 {v(A+2)}, {v(A+2)}, {v(A+3)}")
    for ctl in ("quad_perm:[1,0,3,2]", "quad_perm:[2,3,0,1]", "row_half_mirror", "row_mirror"):
        e("s_nop 0")
        e(f"v_add_f32_dpp {v(A)}, {v(A)}, {v(A)} {ctl} row_mask:0xf bank_mask:0xf")
        e(f"v_add_f32_dpp {v(A+2)}, {v(A+2)}, {v(A+2)} {ctl} row_mask:0xf bank_mask:0xf")
        e("s_nop 0")
    e(f"v_mov_b32 {v(A+1)}, {v(A)}")
    e(f"v_mov_b32 {v(A+3)}, {v(A+2)}")
    e("s_nop 1")
    e(f"v_permlane16_swap_b32 {v(A)}, {v(A+1)}")
    e(f"v_permlane16_swap_b32 {v(A+2)}, {v(A+3)}")
    e("s_nop 1")
    e(f"v_add_f32 {v(A)}, {v(A)}, {v(A+1)}")
    e(f"v_add_f32 {v(A+2)}, {v(A+2)}, {v(A+3)}")
    M = P_SL + 16
    e(f"v_mul_f32 {v(M)}, {f32(1.0/640)}, {v(A)}")
    e(f"v_mul_f32 {v(A+1)}, {v(M)}, {v(M)}")
    e(f"v_mul_f32 {v(A+2)}, {f32(1.0/640)}, {v(A+2)}")
    e(f"v_sub_f32 {v(A+2)}, {v(A+2)}, {v(A+1)}")
    e(f"v_max_f32 {v(A+2)}, 0, {v(A+2)}")
    e(f"v_add_f32 {v(A+2)}, {f32(1e-5)}, {v(A+2)}")
    e(f"v_rsq_f32 {v(M+1)}, {v(A+2)}")
    e("s_nop 0")

def write_stats_lds_from_pairs(e, R, tag):
    e(f"s_cmp_eq_u32 {s(S_TYPE)}, 1")
    e(f"s_cbranch_scc1 L_wsk_{tag}")
    e(f"v_lshlrev_b32 v13, 5, {v(V_LANE)}")
    e(f"v_add_u32 v13, {LDS_STATS}, v13")
    e(f"ds_write_b128 v13, {v(R,4)}")
    e(f"ds_write_b128 v13, {v(R+4,4)} offset:16")
    e(f"s_branch L_wsd_{tag}")
    e.label(f"L_wsk_{tag}")
    T = R + 8
    for k in range(4):
        e(f"v_mov_b32 {v(T + k)}, {v(R + 2*k)}")
        e(f"v_mov_b32 {v(T + 4 + k)}, {v(R + 2*k + 1)}")
    e(f"v_lshlrev_b32 v13, 4, {v(V_LANE)}")
    e(f"v_add_u32 v13, {LDS_STATS}, v13")
    e(f"ds_write_b128 v13, {v(T,4)}")
    e(f"ds_write_b128 v13, {v(T+4,4)} offset:1024")
    e.label(f"L_wsd_{tag}")

def producer(e, p, opts):
    tagp = f"p{p}"
    q = Queue(e, "vmcnt", 63)
    e(f"s_lshl_b32 {s(S_T)}, {s(S_RB)}, 8")
    e(f"s_lshl_b32 {s(S_T+1)}, {s(S_CG)}, 3")
    e(f"s_add_u32 {s(S_T)}, {s(S_T)}, {s(S_T+1)}")
    e(f"s_add_u32 {s(S_T)}, {s(S_T)}, {2*p}")
    stats2_load(e, S_T, q)
    e(f"s_mov_b32 {s(S_TICK)}, 1")
    e(f"s_mov_b32 {s(S_OK)}, 0")
    if p == 3:
        e(f"s_cmp_eq_u32 {s(S_TYPE)}, 1")
        e(f"s_cbranch_scc0 L_notick")
        e(f"s_lshl_b32 {s(S_T)}, {s(S_SUB)}, 2")
        e(f"s_add_u32 {s(S_T)}, {s(S_T)}, {DBG_TICK}")
        e(f"v_mov_b32 v11, {s(S_T)}")
        e(f"v_mov_b32 v12, 1")
        lane0(e)
        e(f"global_atomic_add {v(P_POLL)}, v11, v12, {s(S_DBG,2)} sc0")
        lane0(e, False)
        e.label("L_notick")
    bl = producer_setup(e, p)
    n = 4 + len(bl)
    for st in range(NSLOT):
        issue_stage(e, q, p, bl, slot_imm=st*SLOT, tag=st)
    q.wait(0)
    stats2_compute(e)
    e(f"v_and_b32 v13, 31, {v(V_LANE)}")
    e(f"v_cmp_eq_u32 vcc, 0, v13")
    e(f"v_lshrrev_b32 v13, 5, {v(V_LANE)}")
    e(f"v_lshlrev_b32 v13, 3, v13")
    e(f"v_add_u32 v13, {LDS_ST8 + 16*p}, v13")
    e(f"s_and_saveexec_b64 {s(S_EXS,2)}, vcc")
    e(f"ds_write_b64 v13, {v(P_SL + 16, 2)}")
    e(f"s_mov_b64 exec, {s(S_EXS,2)}")
    e("s_waitcnt lgkmcnt(0)")
    e("s_barrier")
    e(f"s_mov_b32 {s(S_SLOT)}, 0")
    if p == 1:
        e(f"v_lshlrev_b32 v13, 3, {v(V_LANE)}")
        e(f"v_add_u32 v14, {LDS_ST8}, v13")
        e(f"v_cmp_gt_u32 vcc, 8, {v(V_LANE)}")
        e(f"s_and_saveexec_b64 {s(S_EXS,2)}, vcc")
        e(f"ds_read_b64 v[28:29], v14")
        e(f"s_lshl_b32 {s(S_T)}, {s(S_RB)}, 8")
        e(f"s_lshl_b32 {s(S_T+1)}, {s(S_CG)}, 3")
        e(f"s_add_u32 {s(S_T)}, {s(S_T)}, {s(S_T+1)}")
        e(f"s_lshl_b32 {s(S_T)}, {s(S_T)}, 3")
        e(f"s_add_u32 {s(S_T)}, {s(S_T)}, {WS_STATS}")
        e("s_waitcnt lgkmcnt(0)")
        e(f"buffer_store_dwordx2 v[28:29], v13, {s(S_WS,4)}, {s(S_T)} offen sc1")
        e(f"s_mov_b64 exec, {s(S_EXS,2)}")
    if p == 3:
        e(f"s_cmp_eq_u32 {s(S_TYPE)}, 1")
        e(f"s_cbranch_scc0 L_nozero")
        e(f"v_readfirstlane_b32 {s(S_TICK)}, {v(P_POLL)}")
        e("s_nop 3")
        e(f"s_cmp_eq_u32 {s(S_TICK)}, 0")
        e(f"s_cbranch_scc0 L_nozero")
        for r in range(28, 32): e(f"v_mov_b32 {v(r)}, 0")
        e(f"s_mul_i32 {s(S_T)}, {s(S_SUB)}, 6720")
        e(f"s_add_u32 {s(S_T)}, {s(S_T)}, {WS_KV}")
        e(f"s_add_u32 {s(S_T2)}, {s(S_T)}, 4096")
        e(f"v_lshlrev_b32 v11, 4, {v(V_LANE)}")
        for k in range(7):
            if k == 6:
                e(f"v_cmp_gt_u32 vcc, 36, {v(V_LANE)}")
                e(f"s_and_saveexec_b64 {s(S_EXS,2)}, vcc")
            sreg = S_T if k < 4 else S_T2
            e(f"buffer_store_dwordx4 v[28:31], v11, {s(S_WS,4)}, {s(sreg)} offen offset:{(k % 4)*1024} sc1")
            if k == 6:
                e(f"s_mov_b64 exec, {s(S_EXS,2)}")
        e.label("L_nozero")
    colsum_stage(e, p, S_SLOT); wrap_slot(e, S_SLOT)
    e(f"s_waitcnt vmcnt({4*n})")
    e("s_barrier")
    colsum_stage(e, p, S_SLOT); wrap_slot(e, S_SLOT)
    e(f"s_mov_b32 {s(S_M0S)}, 0")
    e(f"s_mov_b32 {s(S_CNT)}, 14")
    e.label(f"L_ploop_{tagp}")
    e(f"s_waitcnt vmcnt({3*n})")
    e("s_barrier")
    q2 = Queue(e, "vmcnt", 63)
    issue_stage(e, q2, p, bl, slot_sgpr=S_M0S, tag="x"); wrap_slot(e, S_M0S)
    if p == 1:
        e(f"s_cmp_eq_u32 {s(S_CNT)}, 10"); e(f"s_cbranch_scc0 L_p1_nosig")
        e(f"s_lshl_b32 {s(S_T)}, {s(S_RB)}, 2")
        e(f"v_mov_b32 v11, {s(S_T)}"); e(f"v_mov_b32 v12, 1")
        lane0(e); e(f"global_atomic_add v11, v12, {s(S_DBG,2)} offset:{DBG_CNT}"); lane0(e, False)
        e.label("L_p1_nosig")
        e(f"s_cmp_eq_u32 {s(S_CNT)}, 4"); e(f"s_cbranch_scc0 L_p1_nopoll")
        e(f"s_lshl_b32 {s(S_T)}, {s(S_RB)}, 2")
        e(f"v_mov_b32 v11, {s(S_T)}")
        e(f"global_load_dword {v(P_POLL)}, v11, {s(S_DBG,2)} offset:{DBG_CNT} sc1")
        e.label("L_p1_nopoll")
    if p == 3:
        e(f"s_cmp_eq_u32 {s(S_TYPE)}, 1"); e(f"s_cbranch_scc0 L_p3_skip")
        e(f"s_lshl_b32 {s(S_T)}, {s(S_SUB)}, 2")
        e(f"v_mov_b32 v11, {s(S_T)}")
        e(f"s_cmp_eq_u32 {s(S_CNT)}, 10"); e(f"s_cbranch_scc0 L_p3_nosig")
        e(f"s_cmp_eq_u32 {s(S_TICK)}, 0"); e(f"s_cbranch_scc0 L_p3_nosig")
        e(f"v_mov_b32 v12, 1")
        lane0(e); e(f"global_atomic_add v11, v12, {s(S_DBG,2)} offset:{DBG_FLAG}"); lane0(e, False)
        e.label("L_p3_nosig")
        e(f"s_cmp_eq_u32 {s(S_CNT)}, 4"); e(f"s_cbranch_scc0 L_p3_skip")
        e(f"global_load_dword {v(P_POLL)}, v11, {s(S_DBG,2)} offset:{DBG_FLAG} sc1")
        e.label("L_p3_skip")
    colsum_stage(e, p, S_SLOT); wrap_slot(e, S_SLOT)
    e(f"s_sub_u32 {s(S_CNT)}, {s(S_CNT)}, 1")
    e(f"s_cmp_lg_u32 {s(S_CNT)}, 0")
    e(f"s_cbranch_scc1 L_ploop_{tagp}")
    for k, s_ in enumerate((15, 16, 17, 18)):
        e(f"s_waitcnt vmcnt({(3-k)*n})")
        e("s_barrier")
        if s_ == 15 and p == 1:
            e(f"v_readfirstlane_b32 {s(S_T)}, {v(P_POLL)}")
            e("s_nop 3")
            e(f"s_cmp_eq_u32 {s(S_T)}, 32")
            e(f"s_cbranch_scc0 L_p1_notready")
            if opts.get("forcefb"): e("s_branch L_p1_notready")
            e(f"s_mov_b32 {s(S_OK)}, 1")
            e(f"s_lshl_b32 {s(S_T)}, {s(S_RB)}, 11")
            e(f"s_add_u32 {s(S_T)}, {s(S_T)}, {WS_STATS}")
            e(f"v_lshlrev_b32 v11, 5, {v(V_LANE)}")
            e(f"buffer_load_dwordx4 {v(P_SL,4)}, v11, {s(S_WS,4)}, {s(S_T)} offen sc1")
            e(f"buffer_load_dwordx4 {v(P_SL+4,4)}, v11, {s(S_WS,4)}, {s(S_T)} offen offset:16 sc1")
            e.label("L_p1_notready")
        if s_ == 15 and p == 3:
            e(f"v_readfirstlane_b32 {s(S_OK)}, {v(P_POLL)}")
        colsum_stage(e, p, S_SLOT); wrap_slot(e, S_SLOT)
    for n_, ct in enumerate(cs_tiles(p)):
        if n_ == 0:
            e(f"v_lshlrev_b32 v13, 2, {v(V_LANE)}")
            e(f"v_add_u32 v13, {LDS_CSS}, v13")
            e("s_nop 1")
        e(f"ds_write_b32 v13, {v(P_CS + n_)} offset:{ct*256}")
    if p == 1:
        e(f"s_cmp_eq_u32 {s(S_OK)}, 1"); e(f"s_cbranch_scc0 L_p1_nowr")
        write_stats_lds_from_pairs(e, P_SL, "fast")
        e.label("L_p1_nowr")
    e("s_waitcnt lgkmcnt(0)")
    e("s_barrier")
    if p < 3:
        e(f"v_add_u32 v11, {64*p}, {v(V_LANE)}")
        e(f"v_lshrrev_b32 v12, 4, v11")
        e(f"v_lshlrev_b32 v12, 8, v12")
        e(f"v_lshlrev_b32 v13, 2, {v(V_I)}")
        e(f"v_add3_u32 v12, v12, v13, {LDS_CSS}" if False else f"v_add_u32 v12, v12, v13")
        e(f"v_add_u32 v12, {LDS_CSS}, v12")
        if p == 2:
            e(f"v_cmp_gt_u32 vcc, 160, v11")
            e(f"s_and_saveexec_b64 {s(S_EXS,2)}, vcc")
        for g in range(4): e(f"ds_read_b32 {v(28 + g)}, v12 offset:{g*64}")
        e("s_waitcnt lgkmcnt(0)")
        e("v_add_f32 v28, v28, v29"); e("v_add_f32 v30, v30, v31"); e("v_add_f32 v28, v28, v30")
        e(f"v_lshlrev_b32 v11, 2, v11"); e(f"v_add_u32 v11, {LDS_CS}, v11")
        e("ds_write_b32 v11, v28")
        if p == 2: e(f"s_mov_b64 exec, {s(S_EXS,2)}")
    if p == 1:
        e(f"s_cmp_eq_u32 {s(S_OK)}, 1"); e(f"s_cbranch_scc1 L_p1_done")
        e(f"s_mov_b32 {s(S_CNT)}, {0 if opts.get('forcefb') else 2000}")
        e(f"s_lshl_b32 {s(S_T)}, {s(S_RB)}, 2")
        e(f"v_mov_b32 v11, {s(S_T)}")
        e.label("L_p1_spin")
        e(f"s_cmp_eq_u32 {s(S_CNT)}, 0"); e(f"s_cbranch_scc1 L_p1_fb")
        e(f"global_load_dword {v(P_POLL)}, v11, {s(S_DBG,2)} offset:{DBG_CNT} sc1")
        e("s_waitcnt vmcnt(0)")
        e(f"v_readfirstlane_b32 {s(S_T)}, {v(P_POLL)}")
        e(f"s_sub_u32 {s(S_CNT)}, {s(S_CNT)}, 1")
        e(f"s_cmp_eq_u32 {s(S_T)}, 32"); e(f"s_cbranch_scc1 L_p1_got")
        e("s_sleep 4")
        e("s_branch L_p1_spin")
        e.label("L_p1_got")
        e(f"s_lshl_b32 {s(S_T)}, {s(S_RB)}, 11")
        e(f"s_add_u32 {s(S_T)}, {s(S_T)}, {WS_STATS}")
        e(f"v_lshlrev_b32 v11, 5, {v(V_LANE)}")
        e(f"buffer_load_dwordx4 {v(P_SL,4)}, v11, {s(S_WS,4)}, {s(S_T)} offen sc1")
        e(f"buffer_load_dwordx4 {v(P_SL+4,4)}, v11, {s(S_WS,4)}, {s(S_T)} offen offset:16 sc1")
        e("s_waitcnt vmcnt(0)")
        write_stats_lds_from_pairs(e, P_SL, "slow")
        e("s_branch L_p1_done")
        e.label("L_p1_fb")
        e(f"s_mov_b32 {s(S_CNT)}, 0")
        e.label("L_fb_loop")
        e(f"s_lshl_b32 {s(S_T)}, {s(S_RB)}, 8")
        e(f"s_lshl_b32 {s(S_T+1)}, {s(S_CNT)}, 1")
        e(f"s_add_u32 {s(S_T)}, {s(S_T)}, {s(S_T+1)}")
        stats2_load(e, S_T, None)
        e("s_waitcnt vmcnt(0)")
        stats2_compute(e)
        e(f"v_lshrrev_b32 v15, 5, {v(V_LANE)}")
        e(f"v_add_u32 v15, {s(S_T+1)}, v15")
        e(f"v_and_b32 v13, 31, {v(V_LANE)}")
        e(f"v_cmp_eq_u32 vcc, 0, v13")
        e(f"s_and_saveexec_b64 {s(S_EXS,2)}, vcc")
        e(f"s_cmp_eq_u32 {s(S_TYPE)}, 1")
        e(f"s_cbranch_scc1 L_fb_kv")
        e(f"v_lshlrev_b32 v13, 3, v15"); e(f"v_add_u32 v13, {LDS_STATS}, v13")
        e(f"ds_write_b64 v13, {v(P_SL + 16, 2)}")
        e(f"s_branch L_fb_n")
        e.label("L_fb_kv")
        e(f"v_lshlrev_b32 v13, 2, v15"); e(f"v_add_u32 v13, {LDS_STATS}, v13")
        e(f"ds_write_b32 v13, {v(P_SL + 16)}")
        e(f"ds_write_b32 v13, {v(P_SL + 17)} offset:1024")
        e.label("L_fb_n")
        e(f"s_mov_b64 exec, {s(S_EXS,2)}")
        e(f"s_add_u32 {s(S_CNT)}, {s(S_CNT)}, 1")
        e(f"s_cmp_lt_u32 {s(S_CNT)}, 128")
        e("s_cbranch_scc1 L_fb_loop")
        e.label("L_p1_done")
    if p == 3:
        e(f"s_cmp_eq_u32 {s(S_TYPE)}, 1")
        e(f"s_cbranch_scc0 L_nopoll")
        e(f"s_cmp_lg_u32 {s(S_OK)}, 0")
        e(f"s_cbranch_scc1 L_nopoll")
        e(f"s_lshl_b32 {s(S_T)}, {s(S_SUB)}, 2")
        e(f"v_mov_b32 v11, {s(S_T)}")
        e.label("L_poll_flag")
        e(f"global_load_dword v12, v11, {s(S_DBG,2)} offset:{DBG_FLAG} sc1")
        e("s_waitcnt vmcnt(0)")
        e(f"v_readfirstlane_b32 {s(S_T)}, v12")
        e("s_nop 3")
        e(f"s_cmp_eq_u32 {s(S_T)}, 0")
        e(f"s_cbranch_scc0 L_nopoll")
        e("s_sleep 2")
        e("s_branch L_poll_flag")
        e.label("L_nopoll")
    e("s_waitcnt lgkmcnt(0)")
    e("s_barrier")
    stamp(e, 4)
    e(f"s_cmp_eq_u32 {s(S_TYPE)}, 1")
    e(f"s_cbranch_scc1 L_kv_final")
    e("s_endpgm")

def ep_load_swapped(e):
    e(f"s_lshl_b32 {s(S_T)}, {s(S_WAVE)}, 9")
    e(f"v_lshlrev_b32 v11, 3, {v(V_I)}")
    e(f"v_add_u32 v11, {s(S_T)}, v11")
    e(f"v_add_u32 v11, {LDS_STATS}, v11")
    for mt in range(4):
        e(f"ds_read_b64 {v(16 + 2*mt, 2)}, v11 offset:{mt*128}")
    e(f"v_lshlrev_b32 v12, 4, {v(V_G)}")
    e(f"v_add_u32 v12, {LDS_CS}, v12")
    for ct in range(10):
        e(f"ds_read_b128 {v(32 + 4*ct, 4)}, v12 offset:{ct*64}")
    e("s_waitcnt lgkmcnt(0)")

def epilogue_gu(e):
    ep_load_swapped(e)
    for mt in range(4):
        e(f"v_mul_f32 {v(24 + 2*mt)}, {f32(-LOG2E)}, {v(17 + 2*mt)}")
        e(f"v_mul_f32 {v(25 + 2*mt)}, {v(17 + 2*mt)}, {v(17 + 2*mt)}")
    for mt in range(4):
        e(f"v_rcp_f32 {v(25 + 2*mt)}, {v(25 + 2*mt)}")
    e(f"v_lshlrev_b32 v11, 4, {v(V_LANE)}")
    e(f"s_mul_i32 {s(S_T)}, {s(S_WAVE)}, {4*48*1024}")
    e(f"v_add_u32 v11, {s(S_T)}, v11")
    e(f"s_mul_i32 {s(S_T)}, {s(S_RB)}, {16*48*1024}")
    e(f"s_add_u32 {s(S_T)}, {s(S_T)}, {WS_H}")
    e(f"s_mul_i32 {s(S_T+1)}, {s(S_SUB)}, 5")
    e(f"s_add_u32 {s(S_T+2)}, {s(S_T+1)}, 1")
    e(f"s_lshr_b32 {s(S_T+2)}, {s(S_T+2)}, 1")
    e(f"s_lshl_b32 {s(S_T+2)}, {s(S_T+2)}, 10")
    e(f"s_add_u32 {s(S_T2)}, {s(S_T)}, {s(S_T+2)}")
    e(f"s_and_b32 {s(S_T3)}, {s(S_SUB)}, 1")
    e(f"s_cmp_eq_u32 {s(S_T3)}, 0")
    e(f"s_cselect_b32 {s(S_T3)}, 4, -1")
    e(f"s_add_u32 {s(S_T+1)}, {s(S_T+1)}, {s(S_T3)}")
    e(f"s_lshr_b32 {s(S_T+1)}, {s(S_T+1)}, 1")
    e(f"s_lshl_b32 {s(S_T+1)}, {s(S_T+1)}, 10")
    e(f"s_add_u32 {s(S_T3)}, {s(S_T)}, {s(S_T+1)}")
    e(f"s_and_b32 {s(S_T+1)}, {s(S_SUB)}, 1")
    e(f"s_lshl_b32 {s(S_T+1)}, {s(S_T+1)}, 3")
    e(f"s_add_u32 {s(S_T3)}, {s(S_T3)}, {s(S_T+1)}")
    T = 72
    for mt in range(4):
        MR = 16 + 2*mt; CI = 24 + 2*mt
        items = [(ct, hh) for ct in range(5) for hh in range(2)]
        for (ct, hh) in items:
            G = acc(mt, ct) + 2*hh; U = acc(mt, ct + 5) + 2*hh
            e(f"v_pk_fma_f32 {v(G,2)}, {v(32 + 4*ct + 2*hh,2)}, {v(MR,2)}, {v(G,2)} op_sel_hi:[1,0,1] neg_lo:[0,1,0] neg_hi:[0,1,0]")
            e(f"v_pk_fma_f32 {v(U,2)}, {v(32 + 4*(ct+5) + 2*hh,2)}, {v(MR,2)}, {v(U,2)} op_sel_hi:[1,0,1] neg_lo:[0,1,0] neg_hi:[0,1,0]")
        for k, (ct, hh) in enumerate(items):
            G = acc(mt, ct) + 2*hh
            e(f"v_pk_mul_f32 {v(T + 2*k,2)}, {v(G,2)}, {v(CI,2)} op_sel_hi:[1,0]")
        for k in range(10):
            e(f"v_exp_f32 {v(T + 2*k)}, {v(T + 2*k)}"); e(f"v_exp_f32 {v(T + 2*k + 1)}, {v(T + 2*k + 1)}")
        for k, (ct, hh) in enumerate(items):
            G = acc(mt, ct) + 2*hh; U = acc(mt, ct + 5) + 2*hh
            e(f"v_pk_mul_f32 {v(U,2)}, {v(G,2)}, {v(U,2)}")
        for k in range(10):
            e(f"v_pk_fma_f32 {v(T + 2*k,2)}, {v(T + 2*k,2)}, {v(CI,2)}, {v(CI,2)} op_sel:[0,1,1] op_sel_hi:[1,1,1]")
        for k in range(10):
            e(f"v_rcp_f32 {v(T + 2*k)}, {v(T + 2*k)}"); e(f"v_rcp_f32 {v(T + 2*k + 1)}, {v(T + 2*k + 1)}")
        e("s_nop 0")
        for k, (ct, hh) in enumerate(items):
            U = acc(mt, ct + 5) + 2*hh
            e(f"v_pk_mul_f32 {v(U,2)}, {v(U,2)}, {v(T + 2*k,2)}")
        for pp in range(2):
            O = acc(mt, 2*pp)
            for tt in range(2):
                U = acc(mt, 2*pp + tt + 5)
                e(f"v_cvt_pk_bf16_f32 {v(O + 2*tt)}, {v(U)}, {v(U+1)}")
                e(f"v_cvt_pk_bf16_f32 {v(O + 2*tt + 1)}, {v(U+2)}, {v(U+3)}")
        O = acc(mt, 4); U = acc(mt, 9)
        e(f"v_cvt_pk_bf16_f32 {v(O)}, {v(U)}, {v(U+1)}")
        e(f"v_cvt_pk_bf16_f32 {v(O+1)}, {v(U+2)}, {v(U+3)}")
        if mt > 0:
            e(f"v_add_u32 v11, {48*1024}, v11")
        e(f"s_cmp_eq_u32 {s(S_SUB)}, 19")
        e(f"s_cbranch_scc1 L_gu_skip{mt}")
        e(f"buffer_store_dwordx4 {v(acc(mt,0),4)}, v11, {s(S_WS,4)}, {s(S_T2)} offen")
        e(f"buffer_store_dwordx4 {v(acc(mt,2),4)}, v11, {s(S_WS,4)}, {s(S_T2)} offen offset:1024")
        e.label(f"L_gu_skip{mt}")
        e(f"buffer_store_dwordx2 {v(acc(mt,4),2)}, v11, {s(S_WS,4)}, {s(S_T3)} offen")
        e("s_nop 1")
    stamp(e, 5)
    if STAMP:
        e("s_waitcnt vmcnt(0)"); stamp(e, 6); stamp_flush(e, 7)
    e("s_endpgm")

def epilogue_q(e):
    ep_load_swapped(e)
    e(f"v_lshlrev_b32 v11, 4, {v(V_LANE)}")
    e(f"s_mul_i32 {s(S_T)}, {s(S_WAVE)}, {4*20*1024}")
    e(f"v_add_u32 v11, {s(S_T)}, v11")
    e(f"s_mul_i32 {s(S_T)}, {s(S_RB)}, {16*20*1024}")
    e(f"s_mul_i32 {s(S_T+1)}, {s(S_SUB)}, {5*1024}")
    e(f"s_add_u32 {s(S_T2)}, {s(S_T)}, {s(S_T+1)}")
    e(f"s_add_u32 {s(S_T2)}, {s(S_T2)}, {WS_PQ}")
    e(f"s_add_u32 {s(S_T3)}, {s(S_T2)}, 4096")
    T = 72
    for mt in range(4):
        MR = 16 + 2*mt
        for grp in range(2):
            items = [(ct, hh) for ct in range(grp*5, grp*5 + 5) for hh in range(2)]
            for (ct, hh) in items:
                A = acc(mt, ct) + 2*hh
                e(f"v_pk_fma_f32 {v(A,2)}, {v(32 + 4*ct + 2*hh,2)}, {v(MR,2)}, {v(A,2)} op_sel_hi:[1,0,1] neg_lo:[0,1,0] neg_hi:[0,1,0]")
            for (ct, hh) in items:
                A = acc(mt, ct) + 2*hh
                e(f"v_pk_fma_f32 {v(A,2)}, {v(A,2)}, {v(MR,2)}, {s(S_EPS6,2)} op_sel:[0,1,0] op_sel_hi:[1,1,1]")
            for k, (ct, hh) in enumerate(items):
                A = acc(mt, ct) + 2*hh
                e(f"v_pk_mul_f32 {v(T + 2*k,2)}, {v(A,2)}, {s(S_L2E,2)}")
            for k in range(10):
                e(f"v_exp_f32_e64 {v(T + 2*k)}, {v(T + 2*k)} clamp"); e(f"v_exp_f32_e64 {v(T + 2*k + 1)}, {v(T + 2*k + 1)} clamp")
            for (ct, hh) in items:
                A = acc(mt, ct) + 2*hh
                e(f"v_max_f32 {v(A)}, {s(S_EPS6)}, {v(A)}"); e(f"v_max_f32 {v(A+1)}, {s(S_EPS6)}, {v(A+1)}")
            for k, (ct, hh) in enumerate(items):
                A = acc(mt, ct) + 2*hh
                e(f"v_pk_add_f32 {v(A,2)}, {v(A,2)}, {v(T + 2*k,2)}")
        for pp in range(5):
            O = acc(mt, 2*pp); A0 = acc(mt, 2*pp); A1 = acc(mt, 2*pp + 1)
            e(f"v_cvt_pk_bf16_f32 {v(O)}, {v(A0)}, {v(A0+1)}")
            e(f"v_cvt_pk_bf16_f32 {v(O+1)}, {v(A0+2)}, {v(A0+3)}")
            e(f"v_cvt_pk_bf16_f32 {v(O+2)}, {v(A1)}, {v(A1+1)}")
            e(f"v_cvt_pk_bf16_f32 {v(O+3)}, {v(A1+2)}, {v(A1+3)}")
        if mt > 0:
            e(f"v_add_u32 v11, {20*1024}, v11")
        for pp in range(5):
            if pp < 4:
                e(f"buffer_store_dwordx4 {v(acc(mt,2*pp),4)}, v11, {s(S_WS,4)}, {s(S_T2)} offen offset:{pp*1024}")
            else:
                e(f"buffer_store_dwordx4 {v(acc(mt,2*pp),4)}, v11, {s(S_WS,4)}, {s(S_T3)} offen")
        e("s_nop 1")
    stamp(e, 5)
    if STAMP:
        e("s_waitcnt vmcnt(0)"); stamp(e, 6); stamp_flush(e, 7)
    e("s_endpgm")

KV_TILES = [(0,0),(0,1),(1,0),(1,1),(1,2),(2,1),(2,2),(2,3),(3,2),(3,3),(3,4),(4,3),(4,4)]

def epilogue_kv(e):
    MV = 16; RV = 32; CS = 48; T = 60
    e(f"s_lshl_b32 {s(S_T)}, {s(S_WAVE)}, 8")
    e(f"v_lshlrev_b32 v11, 4, {v(V_G)}")
    e(f"v_add_u32 v11, {s(S_T)}, v11")
    e(f"v_add_u32 v11, {LDS_STATS}, v11")
    for mt in range(4):
        e(f"ds_read_b128 {v(MV + 4*mt, 4)}, v11 offset:{mt*64}")
        e(f"ds_read_b128 {v(RV + 4*mt, 4)}, v11 offset:{1024 + mt*64}")
    e(f"v_lshlrev_b32 v12, 2, {v(V_I)}")
    e(f"v_add_u32 v12, {LDS_CS}, v12")
    e("s_waitcnt lgkmcnt(4)")
    for ct in range(10):
        e(f"ds_read_b32 {v(CS + ct)}, v12 offset:{ct*64}")
    e("s_waitcnt lgkmcnt(0)")
    def cs_mod(ct):
        if ct % 2 == 0: return v(CS + ct, 2), 0, 0
        return v(CS + ct - 1, 2), 1, 1
    for mt in range(4):
        kk, odd = divmod(mt, 2)
        items = [(ct, hh) for ct in range(5) for hh in range(2)]
        allit = [(ct, hh) for ct in range(10) for hh in range(2)]
        for (ct, hh) in allit:
            A = acc(mt, ct) + 2*hh
            c, o, oh = cs_mod(ct)
            e(f"v_pk_fma_f32 {v(A,2)}, {v(MV + 4*mt + 2*hh,2)}, {c}, {v(A,2)} op_sel:[0,{o},0] op_sel_hi:[1,{oh},1] neg_lo:[0,1,0] neg_hi:[0,1,0]")
        for (ct, hh) in items:
            A = acc(mt, ct) + 2*hh
            e(f"v_pk_fma_f32 {v(A,2)}, {v(A,2)}, {v(RV + 4*mt + 2*hh,2)}, {s(S_EPS6,2)}")
        for (ct, hh) in items:
            A = acc(mt, ct + 5) + 2*hh
            e(f"v_pk_mul_f32 {v(A,2)}, {v(A,2)}, {v(RV + 4*mt + 2*hh,2)}")
        for k, (ct, hh) in enumerate(items):
            A = acc(mt, ct) + 2*hh
            e(f"v_pk_mul_f32 {v(T + 2*k,2)}, {v(A,2)}, {s(S_L2E,2)}")
        for k in range(10):
            e(f"v_exp_f32_e64 {v(T + 2*k)}, {v(T + 2*k)} clamp"); e(f"v_exp_f32_e64 {v(T + 2*k + 1)}, {v(T + 2*k + 1)} clamp")
        for (ct, hh) in items:
            A = acc(mt, ct) + 2*hh
            e(f"v_max_f32 {v(A)}, {s(S_EPS6)}, {v(A)}"); e(f"v_max_f32 {v(A+1)}, {s(S_EPS6)}, {v(A+1)}")
        for k, (ct, hh) in enumerate(items):
            A = acc(mt, ct) + 2*hh
            e(f"v_pk_add_f32 {v(A,2)}, {v(A,2)}, {v(T + 2*k,2)}")
        for ct in range(10):
            A = acc(mt, ct); O = acc(2*kk, ct) + 2*odd
            e(f"v_cvt_pk_bf16_f32 {v(O)}, {v(A)}, {v(A+1)}")
            e(f"v_cvt_pk_bf16_f32 {v(O+1)}, {v(A+2)}, {v(A+3)}")
    free = [acc(1, ct) for ct in range(10)] + [acc(3, ct) for ct in range(10)]
    ONES = 16
    for r in range(4): e(f"v_mov_b32 {v(ONES + r)}, 0x3f803f80")
    e("s_nop 1")
    D = {}
    for n, (te, td) in enumerate(KV_TILES):
        D[(te, td)] = free[n]
        for kk in range(2):
            c = "0" if kk == 0 else v(free[n], 4)
            e(f"v_mfma_f32_16x16x32_bf16 {v(free[n],4)}, {v(acc(2*kk, 5 + te),4)}, {v(acc(2*kk, td),4)}, {c}")
    Z = {}
    for td in range(5):
        Z[td] = free[13 + td]
        for kk in range(2):
            c = "0" if kk == 0 else v(Z[td], 4)
            e(f"v_mfma_f32_16x16x32_bf16 {v(Z[td],4)}, {v(ONES,4)}, {v(acc(2*kk, td),4)}, {c}")
    e(f"s_mul_i32 {s(S_T)}, {s(S_WAVE)}, {18*1024}")
    e(f"v_lshlrev_b32 v11, 4, {v(V_LANE)}")
    e(f"v_add_u32 v11, {s(S_T)}, v11")
    e(f"v_add_u32 v11, {LDS_KVS}, v11")
    e("s_nop 4")
    for nn in range(18):
        e(f"ds_write_b128 v11, {v(free[nn],4)} offset:{nn*1024}")
    e("s_waitcnt lgkmcnt(0)")

def kv_final(e):
    TE = 0; TD = 0
    for n, (te, td) in enumerate(KV_TILES):
        TE |= te << (4*n); TD |= td << (4*n)
    e.label("L_kv_final")
    e("s_barrier")
    e(f"s_mul_i32 {s(S_T4)}, {s(S_SUB)}, 6720")
    e(f"s_add_u32 {s(S_T4)}, {s(S_T4)}, {WS_KV}")
    e(f"s_mov_b32 {s(S_CNT)}, {s(S_WAVE)}")
    e(f"v_lshlrev_b32 v16, 4, {v(V_LANE)}")
    e(f"v_add_u32 v16, {LDS_KVS}, v16")
    e.label("L_kvf_loop")
    e(f"s_lshl_b32 {s(S_T)}, {s(S_CNT)}, 10")
    e(f"v_add_u32 v17, {s(S_T)}, v16")
    for w in range(4):
        e(f"ds_read_b128 {v(20 + 4*w,4)}, v17 offset:{w*18*1024}")
    e(f"s_cmp_ge_u32 {s(S_CNT)}, 13"); e("s_cbranch_scc1 L_kvf_z")
    e(f"s_lshl_b32 {s(S_T)}, {s(S_CNT)}, 2")
    e(f"s_mov_b32 s68, {TE & 0xffffffff}"); e(f"s_mov_b32 s69, {TE >> 32}")
    e(f"s_lshr_b64 s[68:69], s[68:69], {s(S_T)}"); e(f"s_and_b32 {s(S_T+1)}, s68, 15")
    e(f"s_mov_b32 s68, {TD & 0xffffffff}"); e(f"s_mov_b32 s69, {TD >> 32}")
    e(f"s_lshr_b64 s[68:69], s[68:69], {s(S_T)}"); e(f"s_and_b32 {s(S_T+2)}, s68, 15")
    e(f"s_lshl_b32 {s(S_T+1)}, {s(S_T+1)}, 2"); e(f"s_lshl_b32 {s(S_T+2)}, {s(S_T+2)}, 4")
    e(f"v_add_u32 v11, {s(S_T+1)}, {v(V_G)}")
    e(f"v_mul_u32_u24 v12, 52, v11"); e(f"v_lshrrev_b32 v12, 8, v12")
    e(f"v_lshlrev_b32 v11, 2, v11"); e(f"v_sub_u32 v11, v11, v12"); e(f"v_mul_u32_u24 v11, 80, v11")
    e(f"v_add_u32 v13, {s(S_T+2)}, {v(V_I)}")
    e(f"v_mul_u32_u24 v14, 205, v13"); e(f"v_lshrrev_b32 v14, 12, v14")
    e(f"v_cmp_eq_u32 vcc, v12, v14")
    e(f"v_lshlrev_b32 v13, 2, v13")
    e(f"v_add_u32 v11, v11, v13")
    e(f"v_mov_b32 v12, 0x7ffffff0")
    e(f"v_cndmask_b32 v11, v12, v11, vcc")
    e("s_waitcnt lgkmcnt(0)")
    for h in range(2):
        e(f"v_pk_add_f32 {v(20+2*h,2)}, {v(20+2*h,2)}, {v(24+2*h,2)}")
        e(f"v_pk_add_f32 {v(28+2*h,2)}, {v(28+2*h,2)}, {v(32+2*h,2)}")
    for h in range(2):
        e(f"v_pk_add_f32 {v(20+2*h,2)}, {v(20+2*h,2)}, {v(28+2*h,2)}")
    for r in range(4):
        e(f"buffer_atomic_add_f32 {v(20 + r)}, v11, {s(S_WS,4)}, {s(S_T4)} offen offset:{80*r}")
    e("s_branch L_kvf_next")
    e.label("L_kvf_z")
    e(f"s_sub_u32 {s(S_T)}, {s(S_CNT)}, 13"); e(f"s_lshl_b32 {s(S_T)}, {s(S_T)}, 6")
    e(f"v_lshlrev_b32 v11, 2, {v(V_I)}")
    e(f"v_add_u32 v11, {s(S_T)}, v11")
    e(f"v_add_u32 v11, 6400, v11")
    e(f"v_cmp_eq_u32 vcc, 0, {v(V_G)}")
    e(f"v_mov_b32 v12, 0x7ffffff0")
    e("s_nop 0")
    e(f"v_cndmask_b32 v11, v12, v11, vcc")
    e("s_waitcnt lgkmcnt(0)")
    e("v_add_f32 v20, v20, v24"); e("v_add_f32 v28, v28, v32"); e("v_add_f32 v20, v20, v28")
    e(f"buffer_atomic_add_f32 v20, v11, {s(S_WS,4)}, {s(S_T4)} offen")
    e.label("L_kvf_next")
    e(f"s_add_u32 {s(S_CNT)}, {s(S_CNT)}, 8")
    e(f"s_cmp_lt_u32 {s(S_CNT)}, 18")
    e("s_cbranch_scc1 L_kvf_loop")
    e.label("L_k1_end2")
    if STAMP:
        stamp(e, 5)
        e("s_waitcnt vmcnt(0)"); stamp(e, 6); stamp_flush(e, 7)
    e.label("L_k1_end")
    e("s_endpgm")

def gen_k1(e, opts=None):
    opts = opts or {}
    global STAMP
    STAMP = opts.get("stamp", False)
    OPTS.clear(); OPTS.update(opts)
    e.raw(".globl k1_kernel"); e.raw(".p2align 8"); e.raw(".type k1_kernel,@function"); e.label("k1_kernel")
    setup_common(e)
    e(f"s_cmp_ge_u32 {s(S_WAVE)}, 4")
    e("s_cbranch_scc1 L_producers")
    consumer_setup(e)
    e("s_setprio 2")
    e(f"s_cmp_eq_u32 {s(S_TYPE)}, 1")
    e("s_cbranch_scc1 L_cons_kv")
    consumer_loop(e, True, "sw")
    e("s_barrier")
    stamp(e, 4)
    e(f"s_cmp_eq_u32 {s(S_TYPE)}, 0")
    e("s_cbranch_scc1 L_epi_q")
    epilogue_gu(e)
    e.label("L_epi_q")
    epilogue_q(e)
    e.label("L_cons_kv")
    consumer_loop(e, False, "ns")
    e("s_barrier")
    stamp(e, 4)
    epilogue_kv(e)
    kv_final(e)
    e.label("L_producers")
    e(f"s_cmp_eq_u32 {s(S_WAVE)}, 5"); e("s_cbranch_scc1 L_prod1")
    e(f"s_cmp_eq_u32 {s(S_WAVE)}, 6"); e("s_cbranch_scc1 L_prod2")
    e(f"s_cmp_eq_u32 {s(S_WAVE)}, 7"); e("s_cbranch_scc1 L_prod3")
    producer(e, 0, opts)
    for p in (1, 2, 3):
        e.label(f"L_prod{p}")
        producer(e, p, opts)
```

```python
from asmlib import *
import k1
from k1 import WS_PQ, WS_H, WS_KV, WS_USED

LDS_WAVE = 40960
NS = 4
SLOTB = 5120
RING = NS * SLOTB
KVO = RING
ZBASE = KVO + 13440
LDS_TOTAL = 4 * LDS_WAVE
OPTS = {}

S_X = 8; S_W2 = 12; S_WO = 16; S_WS = 20; S_OUT = 24
S_RB = 28; S_CB = 29; S_W = 30; S_LB = 31
S_T = 32
S_BO = 40
S_HO = 41
S_SL = 42
S_RS = 43
S_CNT = 44
S_PQO = 45
S_EPS = 46

V_LANE = 1; V_I = 2; V_G = 3
V_BV = 4
V_HV = 9
V_WB = 10
V_WA = 11
V_T = 12
V_KVT = 20
V_HE = 128
V_NUM = 176
V_DEN = 216
V_RC = 228
V_TMP = 240
V_W = 20
V_O = 64
A_ACC = 0
A_H = 80
A_PQ = 144
def acc(mt, ct): return A_ACC + (ct * 4 + mt) * 4

NUM = [(0,0),(1,0),(1,1),(2,0),(2,1),(3,1),(3,2),(4,1),(4,2),(5,2),(5,3),(6,2),(6,3),(7,3),(7,4),(8,3),(8,4),(9,4)]
DEN = [(0,0),(0,1),(0,2),(1,1),(1,2),(1,3),(1,4),(2,3),(2,4)]

def stamp(e, idx):
    if OPTS.get("stamp"):
        e(f"s_memtime {s(70 + 2*idx, 2)}")
        e("s_waitcnt lgkmcnt(0)")

def dma_b(e, q, srd, tag, slot_sgpr, boff_sgpr):
    for b in range(5):
        e(f"s_add_u32 m0, {s(slot_sgpr)}, {b*1024}")
        e("s_nop 0")
        e(f"buffer_load_dwordx4 {v(V_BV + b)}, {s(srd,4)}, {s(boff_sgpr)} offen lds")
        q.issue(tag)

def gen_k2(e, opts=None):
    opts = opts or {}
    OPTS.clear(); OPTS.update(opts)
    e.raw(".globl k2_kernel"); e.raw(".p2align 8"); e.raw(".type k2_kernel,@function"); e.label("k2_kernel")
    e("s_cmp_ge_u32 s2, 256")
    e("s_cbranch_scc1 L_k2_end")
    e("s_load_dwordx2 s[4:5], s[0:1], 0")
    e("s_load_dwordx2 s[6:7], s[0:1], 16")
    e("s_load_dwordx4 s[48:51], s[0:1], 48")
    e("s_load_dwordx2 s[52:53], s[0:1], 72")
    if opts.get("stamp"): e(f"s_memtime {s(70,2)}"); e("s_memrealtime s[86:87]"); e("s_load_dwordx2 s[90:91], s[0:1], 64")
    e("v_lshrrev_b32 v4, 6, v0")
    e(f"v_and_b32 {v(V_LANE)}, 63, v0")
    e(f"v_readfirstlane_b32 {s(S_W)}, v4")
    e(f"v_and_b32 {v(V_I)}, 15, {v(V_LANE)}")
    e(f"v_lshrrev_b32 {v(V_G)}, 4, {v(V_LANE)}")
    e(f"s_and_b32 {s(S_T)}, s2, 7"); e(f"s_lshr_b32 {s(S_T+1)}, s2, 3")
    e(f"s_lshr_b32 {s(S_RB)}, {s(S_T)}, 1"); e(f"s_lshl_b32 {s(S_RB)}, {s(S_RB)}, 3")
    e(f"s_and_b32 {s(S_T+2)}, {s(S_T+1)}, 7"); e(f"s_add_u32 {s(S_RB)}, {s(S_RB)}, {s(S_T+2)}")
    e(f"s_and_b32 {s(S_CB)}, {s(S_T)}, 1"); e(f"s_lshl_b32 {s(S_CB)}, {s(S_CB)}, 2")
    e(f"s_lshr_b32 {s(S_T+2)}, {s(S_T+1)}, 3"); e(f"s_add_u32 {s(S_CB)}, {s(S_CB)}, {s(S_T+2)}")
    e(f"s_mul_i32 {s(S_LB)}, {s(S_W)}, {LDS_WAVE}")
    for b in range(5):
        e(f"v_add_u32 {v(V_T)}, {64*b}, {v(V_LANE)}")
        e(f"v_mul_u32_u24 {v(V_T+1)}, 205, {v(V_T)}"); e(f"v_lshrrev_b32 {v(V_T+1)}, 11, {v(V_T+1)}")
        e(f"v_mul_u32_u24 {v(V_T+2)}, 10, {v(V_T+1)}"); e(f"v_sub_u32 {v(V_T+2)}, {v(V_T)}, {v(V_T+2)}")
        e(f"v_mul_u32_u24 {v(V_T+1)}, 1280, {v(V_T+1)}"); e(f"v_lshlrev_b32 {v(V_T+2)}, 4, {v(V_T+2)}")
        e(f"v_add_u32 {v(V_BV + b)}, {v(V_T+1)}, {v(V_T+2)}")
    e(f"v_lshlrev_b32 {v(V_HV)}, 4, {v(V_LANE)}")
    e("s_waitcnt lgkmcnt(0)")
    e(f"s_mov_b32 {s(S_X)}, s4"); e(f"s_mov_b32 {s(S_X+1)}, s5"); e(f"s_mov_b32 {s(S_X+2)}, 2621440"); e(f"s_mov_b32 {s(S_X+3)}, 0x20000")
    e(f"s_mov_b32 {s(S_WO)}, s6"); e(f"s_mov_b32 {s(S_WO+1)}, s7"); e(f"s_mov_b32 {s(S_WO+2)}, 819200"); e(f"s_mov_b32 {s(S_WO+3)}, 0x20000")
    e(f"s_mov_b32 {s(S_W2)}, s48"); e(f"s_mov_b32 {s(S_W2+1)}, s49"); e(f"s_mov_b32 {s(S_W2+2)}, 1966080"); e(f"s_mov_b32 {s(S_W2+3)}, 0x20000")
    e(f"s_mov_b32 {s(S_OUT)}, s50"); e(f"s_mov_b32 {s(S_OUT+1)}, s51"); e(f"s_mov_b32 {s(S_OUT+2)}, 2621440"); e(f"s_mov_b32 {s(S_OUT+3)}, 0x20000")
    e(f"s_mov_b32 {s(S_WS)}, s52"); e(f"s_mov_b32 {s(S_WS+1)}, s53"); e(f"s_mov_b32 {s(S_WS+2)}, {WS_USED if not opts.get('stamp') else 0x2000000}"); e(f"s_mov_b32 {s(S_WS+3)}, 0x20000")
    q = Queue(e, "vmcnt", 63)
    e(f"s_mul_i32 {s(S_T)}, {s(S_W)}, 13440"); e(f"s_add_u32 {s(S_T)}, {s(S_T)}, {WS_KV}")
    e(f"s_add_u32 {s(S_T+1)}, {s(S_LB)}, {KVO}")
    for k in range(14):
        if k == 13:
            e(f"v_cmp_gt_u32 vcc, 8, {v(V_LANE)}"); e(f"s_and_saveexec_b64 s[36:37], vcc")
        e(f"s_add_u32 m0, {s(S_T+1)}, {k*1024}")
        e(f"s_add_u32 {s(S_T+2)}, {s(S_T)}, {k*1024}")
        e(f"buffer_load_dwordx4 {v(V_HV)}, {s(S_WS,4)}, {s(S_T+2)} offen lds")
        q.issue("kv")
        if k == 13: e("s_mov_b64 exec, s[36:37]")
    e(f"s_mul_i32 {s(S_PQO)}, {s(S_RB)}, {4*20*1024}"); e(f"s_mul_i32 {s(S_T)}, {s(S_W)}, {5*1024}")
    e(f"s_add_u32 {s(S_PQO)}, {s(S_PQO)}, {s(S_T)}"); e(f"s_add_u32 {s(S_PQO)}, {s(S_PQO)}, {WS_PQ}")
    def load_pq(set_, tag):
        for p in range(5):
            if p < 4:
                e(f"buffer_load_dwordx4 {a(A_PQ + set_*20 + 4*p,4)}, {v(V_HV)}, {s(S_WS,4)}, {s(S_PQO)} offen offset:{p*1024}")
            else:
                e(f"s_add_u32 {s(S_T)}, {s(S_PQO)}, 4096")
                e(f"buffer_load_dwordx4 {a(A_PQ + set_*20 + 4*p,4)}, {v(V_HV)}, {s(S_WS,4)}, {s(S_T)} offen")
            q.issue(tag)
        e(f"s_add_u32 {s(S_PQO)}, {s(S_PQO)}, {20*1024}")
    load_pq(0, "pq0"); load_pq(1, "pq1")
    e(f"s_mul_i32 {s(S_BO)}, {s(S_W)}, {12*32*1280}"); e(f"s_mul_i32 {s(S_T)}, {s(S_CB)}, 160"); e(f"s_add_u32 {s(S_BO)}, {s(S_BO)}, {s(S_T)}")
    e(f"s_mul_i32 {s(S_HO)}, {s(S_RB)}, {4*48*1024}"); e(f"s_mul_i32 {s(S_T)}, {s(S_W)}, {12*1024}")
    e(f"s_add_u32 {s(S_HO)}, {s(S_HO)}, {s(S_T)}"); e(f"s_add_u32 {s(S_HO)}, {s(S_HO)}, {WS_H}")
    for mt in range(4):
        e(f"v_add_u32 {v(16 + mt)}, {mt*48*1024}, {v(V_HV)}")
    def load_h(set_, tag):
        for mt in range(4):
            e(f"buffer_load_dwordx4 {a(A_H + set_*16 + 4*mt,4)}, {v(16 + mt)}, {s(S_WS,4)}, {s(S_HO)} offen")
            q.issue(tag)
        e(f"s_add_u32 {s(S_HO)}, {s(S_HO)}, 1024")
    def issue_b(srd, tag):
        dma_b(e, q, srd, tag, S_SL, S_BO)
        e(f"s_add_u32 {s(S_BO)}, {s(S_BO)}, {32*1280}")
    e(f"s_mov_b32 {s(S_SL)}, {s(S_LB)}")
    def adv_slot(reg):
        e(f"s_add_u32 {s(reg)}, {s(reg)}, {SLOTB}")
        e(f"s_add_u32 {s(S_T)}, {s(S_LB)}, {RING}")
        e(f"s_cmp_eq_u32 {s(reg)}, {s(S_T)}")
        e(f"s_cselect_b32 {s(reg)}, {s(S_LB)}, {s(reg)}")
    for t in range(3):
        issue_b(S_W2, ("b", t)); adv_slot(S_SL)
        load_h(t, ("h", t))
    stamp(e, 1)
    for r in range(4): e(f"v_mov_b32 {v(V_TMP + r)}, 0")
    e(f"v_lshlrev_b32 {v(V_T)}, 4, {v(V_LANE)}")
    e(f"v_add_u32 {v(V_T)}, {s(S_LB)}, {v(V_T)}")
    e(f"v_cmp_gt_u32 vcc, 44, {v(V_LANE)}"); e(f"s_and_saveexec_b64 s[36:37], vcc")
    e(f"ds_write_b128 {v(V_T)}, {v(V_TMP,4)} offset:{ZBASE}")
    e("s_mov_b64 exec, s[36:37]")
    KB = S_T + 4
    e(f"s_add_u32 s38, {s(S_LB)}, {KVO}")
    e(f"v_lshlrev_b32 {v(V_T+3)}, 4, {v(V_G)}")
    for t in range(10):
        e(f"v_add_u32 {v(V_T)}, {16*t}, {v(V_I)}")
        e(f"v_mul_u32_u24 {v(V_HE + t)}, 205, {v(V_T)}"); e(f"v_lshrrev_b32 {v(V_HE + t)}, 12, {v(V_HE + t)}")
        e(f"v_sub_u32 {v(V_T)}, {v(V_T)}, {v(V_HE + t)}"); e(f"v_mul_u32_u24 {v(V_T)}, 80, {v(V_T)}")
        e(f"v_lshrrev_b32 {v(V_T+1)}, 2, {v(V_HE + t)}"); e(f"v_mul_u32_u24 {v(V_T+1)}, 320, {v(V_T+1)}")
        e(f"v_add3_u32 {v(V_T)}, {v(V_T)}, {v(V_T+1)}, {v(V_T+3)}")
        e(f"v_add_u32 {v(V_HE + 10 + t)}, s38, {v(V_T)}")
    for wh in range(10):
        e(f"v_add_u32 {v(V_T)}, {4*wh}, {v(V_G)}")
        e(f"v_mul_u32_u24 {v(V_HE + 20 + wh)}, 52, {v(V_T)}"); e(f"v_lshrrev_b32 {v(V_HE + 20 + wh)}, 8, {v(V_HE + 20 + wh)}")
        e(f"v_lshrrev_b32 {v(V_T+1)}, 2, {v(V_HE + 20 + wh)}"); e(f"v_mul_u32_u24 {v(V_T+1)}, 6400, {v(V_T+1)}")
        e(f"v_add3_u32 {v(V_T+1)}, {v(V_T+1)}, {v(V_T+3)}, s38")
        e(f"v_add_u32 {v(V_HE + 30 + wh)}, 6400, {v(V_T+1)}")
    for u in range(3):
        e(f"v_and_b32 {v(V_T)}, 3, {v(V_I)}"); e(f"v_lshlrev_b32 {v(V_T)}, 2, {v(V_T)}")
        e(f"v_lshrrev_b32 {v(V_T+1)}, 2, {v(V_I)}")
        e(f"v_add3_u32 {v(V_T)}, {v(V_T)}, {v(V_T+1)}, {16*u}")
        e(f"v_mul_u32_u24 {v(V_HE + 40 + u)}, 52, {v(V_T)}"); e(f"v_lshrrev_b32 {v(V_HE + 40 + u)}, 8, {v(V_HE + 40 + u)}")
    e(f"s_add_u32 s39, {s(S_LB)}, {ZBASE}")
    e(f"v_mov_b32 {v(V_T+4-1+0)}, s39") if False else None
    e(f"v_mov_b32 {v(V_WA)}, s39")
    q.wait("kv")
    e("s_waitcnt lgkmcnt(0)")
    stamp(e, 2)
    lq = Queue(e, "lgkmcnt", 15)
    frs = [("n", t, w) for (t, w) in NUM] + [("d", u, w) for (u, w) in DEN]
    pend = []
    def finish(fr_idx, tb):
        lq.wait(("f", fr_idx))
        R = V_KVT + 4*fr_idx
        for k in range(4):
            e(f"v_cvt_pk_bf16_f32 {v(R + k)}, {v(tb + 2*k)}, {v(tb + 2*k + 1)}")
    for fi, (kind, t, w) in enumerate(frs):
        tb = V_TMP + (fi % 2) * 8
        for hf in range(2):
            wh = 2*w + hf
            hsrc = V_HE + t if kind == "n" else V_HE + 40 + t
            asrc = V_HE + 10 + t if kind == "n" else V_HE + 30 + wh
            e(f"v_cmp_eq_u32 vcc, {v(hsrc)}, {v(V_HE + 20 + wh)}")
            e("s_nop 1")
            e(f"v_cndmask_b32 {v(V_T + hf)}, {v(V_WA)}, {v(asrc)}, vcc")
            e(f"ds_read_b128 {v(tb + 4*hf, 4)}, {v(V_T + hf)} offset:{64*wh}")
            lq.issue(("f", fi))
        if fi > 0: finish(fi - 1, V_TMP + ((fi - 1) % 2) * 8)
    finish(len(frs) - 1, V_TMP + ((len(frs) - 1) % 2) * 8)
    stamp(e, 3)
    e(f"s_mov_b32 {s(S_EPS)}, {f32(1e-6)}")
    e(f"v_lshlrev_b32 {v(V_T+2)}, 4, {v(V_LANE)}")
    e(f"s_add_u32 {s(S_T)}, {s(S_LB)}, {KVO}")
    e(f"v_add_u32 {v(V_T+2)}, {s(S_T)}, {v(V_T+2)}")
    def o_compute(set_):
        PQ = A_PQ + set_*20
        for n_, (u, w) in enumerate(DEN):
            fi = 18 + n_
            first = (n_ == 0 or DEN[n_-1][0] != u)
            c = "0" if first else v(V_DEN + 4*u, 4)
            e(f"v_mfma_f32_16x16x32_bf16 {v(V_DEN + 4*u,4)}, {v(V_KVT + 4*fi,4)}, {a(PQ + 4*w,4)}, {c}")
        for fi, (t, w) in enumerate(NUM):
            first = (fi == 0 or NUM[fi-1][0] != t)
            c = "0" if first else v(V_NUM + 4*t, 4)
            e(f"v_mfma_f32_16x16x32_bf16 {v(V_NUM + 4*t,4)}, {v(V_KVT + 4*fi,4)}, {a(PQ + 4*w,4)}, {c}")
        for t in range(10):
            e(f"v_add_f32 {v(V_RC + t)}, {s(S_EPS)}, {v(V_DEN + 4*(t >> 2) + (t & 3))}")
        for t in range(10):
            e(f"v_rcp_f32 {v(V_RC + t)}, {v(V_RC + t)}")
        e("s_nop 1")
        for t in range(10):
            N = V_NUM + 4*t
            r = V_RC + t
            if r % 2 == 0: pr, o, oh = v(r,2), 0, 0
            else: pr, o, oh = v(r-1,2), 1, 1
            if t == 9: pass
            e(f"v_pk_mul_f32 {v(N,2)}, {v(N,2)}, {pr} op_sel:[0,{o}] op_sel_hi:[1,{oh}]")
            e(f"v_pk_mul_f32 {v(N+2,2)}, {v(N+2,2)}, {pr} op_sel:[0,{o}] op_sel_hi:[1,{oh}]")
        for p in range(5):
            O = V_NUM + 8*p
            e(f"v_cvt_pk_bf16_f32 {v(O)}, {v(O)}, {v(O+1)}")
            e(f"v_cvt_pk_bf16_f32 {v(O+1)}, {v(O+2)}, {v(O+3)}")
            e(f"v_cvt_pk_bf16_f32 {v(O+2)}, {v(O+4)}, {v(O+5)}")
            e(f"v_cvt_pk_bf16_f32 {v(O+3)}, {v(O+6)}, {v(O+7)}")
            e(f"ds_write_b128 {v(V_T+2)}, {v(O,4)} offset:{p*1024}")
        e(f"v_add_u32 {v(V_T+2)}, {5*1024}, {v(V_T+2)}")
    q.wait("pq0"); o_compute(0)
    load_pq(0, "pq2")
    q.wait("pq1"); o_compute(1)
    load_pq(1, "pq3")
    issue_b(S_W2, ("b", 3)); adv_slot(S_SL)
    load_h(3, ("h", 3))
    q.wait("pq2"); o_compute(0)
    q.wait("pq3"); o_compute(1)
    stamp(e, 4)
    for r in range(80): e(f"v_accvgpr_write_b32 {a(A_ACC + r)}, 0")
    e(f"v_lshlrev_b32 {v(V_T)}, 2, {v(V_G)}"); e(f"v_lshrrev_b32 {v(V_T+1)}, 2, {v(V_I)}"); e(f"v_add_u32 {v(V_T)}, {v(V_T)}, {v(V_T+1)}")
    e(f"v_mul_u32_u24 {v(V_T)}, 160, {v(V_T)}"); e(f"v_and_b32 {v(V_T+1)}, 3, {v(V_I)}"); e(f"v_lshlrev_b32 {v(V_T+1)}, 3, {v(V_T+1)}")
    e(f"v_add_u32 {v(V_WB)}, {v(V_T)}, {v(V_T+1)}")
    e(f"s_mov_b32 {s(S_RS)}, {s(S_LB)}")
    e(f"v_lshlrev_b32 {v(V_T+2)}, 4, {v(V_LANE)}"); e(f"s_add_u32 {s(S_T)}, {s(S_LB)}, {KVO}"); e(f"v_add_u32 {v(V_T+2)}, {s(S_T)}, {v(V_T+2)}")
    def read_w(setw):
        e(f"v_add_u32 {v(V_WA)}, {s(S_RS)}, {v(V_WB)}")
        for ct in range(5):
            for part in range(2):
                e(f"ds_read_b64_tr_b16 {v(V_W + setw*20 + 4*ct + 2*part, 2)}, {v(V_WA)} offset:{ct*32 + part*16*160}")
                lq.issue(("w", setw))
        adv_slot(S_RS)
    def read_o(p, seto):
        for mt in range(4):
            e(f"ds_read_b128 {v(V_O + seto*16 + 4*mt,4)}, {v(V_T+2)} offset:{(mt*5 + p)*1024}")
            lq.issue(("o", seto))
    NST = 17
    q.wait(("b", 0)); read_w(0)
    for t in range(NST):
        sw = t % 2
        if t + 1 < NST:
            q.wait(("b", t + 1))
        lq.wait(("w", sw))
        if t >= 12: lq.wait(("o", t % 2))
        if t + 4 < NST:
            if t + 4 == 12:
                e(f"s_mul_i32 {s(S_BO)}, {s(S_W)}, {160*1280}"); e(f"s_mul_i32 {s(S_T)}, {s(S_CB)}, 160"); e(f"s_add_u32 {s(S_BO)}, {s(S_BO)}, {s(S_T)}")
            issue_b(S_W2 if t + 4 < 12 else S_WO, ("b", t + 4)); adv_slot(S_SL)
        if t + 1 < NST:
            read_w(1 - sw)
            if t + 1 >= 12: read_o(t + 1 - 12, (t + 1) % 2)
        if t < 12: q.wait(("h", t))
        for ct in range(5):
            for mt in range(4):
                A = acc(mt, ct)
                bop = a(A_H + (t % 4)*16 + 4*mt, 4) if t < 12 else v(V_O + (t % 2)*16 + 4*mt, 4)
                e(f"v_mfma_f32_16x16x32_bf16 {a(A,4)}, {v(V_W + sw*20 + 4*ct,4)}, {bop}, {a(A,4)}")
        if t + 4 < 12:
            load_h(t % 4, ("h", t + 4))
    stamp(e, 5)
    e("s_nop 7")
    e("s_barrier")
    e(f"v_lshlrev_b32 {v(V_T)}, 4, {v(V_LANE)}")
    e(f"s_mul_i32 {s(S_T)}, {s(S_W)}, {20*1024}")
    e(f"v_add_u32 {v(V_T)}, {s(S_T)}, {v(V_T)}")
    for mt in range(4):
        for ct in range(5):
            e(f"ds_write_b128 {v(V_T)}, {a(acc(mt,ct),4)} offset:{(mt*5 + ct)*1024}")
    e(f"s_lshl_b32 {s(S_T)}, {s(S_RB)}, 6"); e(f"s_lshl_b32 {s(S_T+1)}, {s(S_W)}, 4"); e(f"s_add_u32 {s(S_T)}, {s(S_T)}, {s(S_T+1)}")
    e(f"v_add_u32 {v(V_T+1)}, {s(S_T)}, {v(V_I)}"); e(f"v_mul_u32_u24 {v(V_T+1)}, 1280, {v(V_T+1)}")
    e(f"v_lshlrev_b32 {v(V_T+3)}, 3, {v(V_G)}"); e(f"v_add_u32 {v(V_T+1)}, {v(V_T+1)}, {v(V_T+3)}")
    e(f"s_mul_i32 {s(S_T+2)}, {s(S_CB)}, 160")
    for ct in range(5):
        e(f"buffer_load_dwordx2 {v(100 + 2*ct,2)}, {v(V_T+1)}, {s(S_X,4)}, {s(S_T+2)} offen offset:{ct*32}")
    e("s_waitcnt lgkmcnt(0)")
    e("s_barrier")
    e(f"v_lshlrev_b32 {v(V_T)}, 4, {v(V_LANE)}")
    e(f"s_mul_i32 {s(S_T)}, {s(S_W)}, {5*1024}")
    e(f"v_add_u32 {v(V_T)}, {s(S_T)}, {v(V_T)}")
    e(f"v_add_u32 {v(V_T+3)}, {2*20*1024}, {v(V_T)}")
    for ct in range(5):
        for ww in range(4):
            ad = V_T if ww < 2 else V_T + 3
            e(f"ds_read_b128 {v(20 + (ct*4 + ww)*4,4)}, {v(ad)} offset:{(ww % 2)*20*1024 + ct*1024}")
        if ct == 2: e("s_waitcnt lgkmcnt(0)")
    e("s_waitcnt vmcnt(0) lgkmcnt(0)")
    for ct in range(5):
        B = 20 + ct*16
        for h in range(2):
            e(f"v_pk_add_f32 {v(B+2*h,2)}, {v(B+2*h,2)}, {v(B+4+2*h,2)}")
            e(f"v_pk_add_f32 {v(B+8+2*h,2)}, {v(B+8+2*h,2)}, {v(B+12+2*h,2)}")
        X = 100 + 2*ct
        e(f"v_lshlrev_b32 {v(B+4)}, 16, {v(X)}"); e(f"v_and_b32 {v(B+5)}, 0xffff0000, {v(X)}")
        e(f"v_lshlrev_b32 {v(B+6)}, 16, {v(X+1)}"); e(f"v_and_b32 {v(B+7)}, 0xffff0000, {v(X+1)}")
        for h in range(2):
            e(f"v_pk_add_f32 {v(B+2*h,2)}, {v(B+2*h,2)}, {v(B+8+2*h,2)}")
        for h in range(2):
            e(f"v_pk_add_f32 {v(B+2*h,2)}, {v(B+2*h,2)}, {v(B+4+2*h,2)}")
        e(f"v_cvt_pk_bf16_f32 {v(B)}, {v(B)}, {v(B+1)}")
        e(f"v_cvt_pk_bf16_f32 {v(B+1)}, {v(B+2)}, {v(B+3)}")
        e(f"buffer_store_dwordx2 {v(B,2)}, {v(V_T+1)}, {s(S_OUT,4)}, {s(S_T+2)} offen offset:{ct*32}")
    if opts.get("stamp"):
        stamp(e, 6)
        e("s_waitcnt vmcnt(0)"); stamp(e, 7)
        e(f"s_lshl_b32 {s(S_T)}, s2, 3"); e(f"s_add_u32 {s(S_T)}, {s(S_T)}, {s(S_W)}"); e(f"s_lshl_b32 {s(S_T)}, {s(S_T)}, 6")
        e(f"s_add_u32 {s(S_T)}, {s(S_T)}, {0x1200000}")
        e(f"v_mov_b32 v14, 0")
        e("s_memrealtime s[88:89]"); e("s_waitcnt lgkmcnt(0)")
        for k in range(8):
            e(f"v_mov_b32 v15, {s(70 + 2*k)}")
            e(f"buffer_store_dword v15, v14, {s(S_WS,4)}, {s(S_T)} offen offset:{4*k}")
            e("s_nop 1")
        e(f"v_mov_b32 v15, s86"); e(f"buffer_store_dword v15, v14, {s(S_WS,4)}, {s(S_T)} offen offset:{4*8}"); e("s_nop 1")
        e(f"v_mov_b32 v15, s88"); e(f"buffer_store_dword v15, v14, {s(S_WS,4)}, {s(S_T)} offen offset:{4*9}"); e("s_nop 1")
        e("s_cmp_eq_u32 s2, 0"); e("s_cbranch_scc0 L_k2_end")
        e(f"s_cmp_eq_u32 {s(S_W)}, 0"); e("s_cbranch_scc0 L_k2_end")
        e(f"v_lshlrev_b32 v14, 2, {v(V_LANE)}")
        e(f"s_mov_b32 {s(S_T)}, {0x1000000 + 100*8*64}")
        e(f"buffer_load_dword v15, v14, {s(S_WS,4)}, {s(S_T)} offen")
        e("s_waitcnt vmcnt(0)")
        for ln, sr in ((10, 86), (11, 88)):
            e(f"v_writelane_b32 v15, s{sr}, {ln}")
        e("s_sub_u32 s92, s84, s70"); e("v_writelane_b32 v15, s92, 12")
        e("s_sub_u32 s92, s72, s70"); e("v_writelane_b32 v15, s92, 13")
        e("s_sub_u32 s92, s78, s70"); e("v_writelane_b32 v15, s92, 14")
        e("s_sub_u32 s92, s80, s70"); e("v_writelane_b32 v15, s92, 15")
        e(f"v_cmp_gt_u32 vcc, 16, {v(V_LANE)}"); e("s_and_saveexec_b64 s[36:37], vcc")
        e("global_store_dword v14, v15, s[90:91]")
    e.label("L_k2_end")
    e("s_endpgm")
```

```python
from asmlib import *
import math

NST = 10
NSLOT = 3
A_BYTES = 32768
BH = 10240
SLOT = A_BYTES + 2*BH
LDS_AUX = NSLOT * SLOT
LDS_STATS = LDS_AUX
LDS_CS = LDS_AUX + 2048
LDS_TOTAL = 163840
LDS_KVS = 0
LDS_RP = SLOT + 24576
WS_PQ = 0
WS_H = 2621440
WS_KV = WS_H + 6291456
WS_STATS = WS_KV + 65536
WS_WF = WS_STATS + 32768
WS_USED = WS_WF + 544*5120
LOG2E = 1.4426950408889634

S_X = 8; S_B0 = 12; S_B1 = 16; S_WS = 20; S_DBG = 24
S_RB = 26; S_CG = 27; S_WAVE = 28; S_TYPE = 29; S_SUB = 30; S_BSTR = 31
S_CB0 = 32; S_CB1 = 33; S_ROT = 34; S_SLOT = 35; S_CNT = 36
S_T = 37
S_EPS6 = 40
S_L2E = 42
S_AOFF = 56; S_BOFF = 57; S_M0S = 60; S_T2 = 61; S_T3 = 62; S_T4 = 63
S_EXS = 64
S_OK = 67
S_NONCE = 68

V_ACC = 96
def acc(mt, ct): return V_ACC + (ct * 4 + mt) * 4
V_X = 32
V_W = 64
V_XB = 2; V_WB = 3; V_XA = 4; V_WA = 6
V_LANE = 8; V_I = 9; V_G = 10
V_CSA = 80
V_ONES = 92

OPTS = {}
STAMP = False
WS_STAMP = 0x1000000
def stamp(e, idx):
    if STAMP:
        e(f"s_memtime {s(70 + 2*idx, 2)}")
        e("s_waitcnt lgkmcnt(0)")
def stamp_flush(e, n):
    if STAMP:
        e(f"s_lshl_b32 {s(S_T)}, s2, 3"); e(f"s_add_u32 {s(S_T)}, {s(S_T)}, {s(S_WAVE)}"); e(f"s_lshl_b32 {s(S_T)}, {s(S_T)}, 6")
        e(f"s_add_u32 {s(S_T)}, {s(S_T)}, {WS_STAMP}")
        e(f"v_mov_b32 v14, 0")
        e("s_memrealtime s[88:89]"); e("s_waitcnt lgkmcnt(0)")
        for k in range(n):
            e(f"v_mov_b32 v15, {s(70 + 2*k)}")
            e(f"buffer_store_dword v15, v14, {s(S_WS,4)}, {s(S_T)} offen offset:{4*k}")
            e("s_nop 1")
        e(f"v_mov_b32 v15, s86"); e(f"buffer_store_dword v15, v14, {s(S_WS,4)}, {s(S_T)} offen offset:{4*8}"); e("s_nop 1")
        e(f"v_mov_b32 v15, s88"); e(f"buffer_store_dword v15, v14, {s(S_WS,4)}, {s(S_T)} offen offset:{4*9}"); e("s_nop 1")

def cs_owned(w): return [ct for ct in (w, w + 4, w + 8) if ct < 10]

def wrap_slot(e, sreg):
    e(f"s_add_u32 {s(sreg)}, {s(sreg)}, {SLOT}")
    e(f"s_cmp_eq_u32 {s(sreg)}, {NSLOT*SLOT}")
    e(f"s_cselect_b32 {s(sreg)}, 0, {s(sreg)}")

def consumer_loop(e, swapped, tag, w):
    own = cs_owned(w) if not OPTS.get("nocolsum") else []
    RING = 4
    q = Queue(e, "lgkmcnt", 15)
    def rd_x(par, mt):
        if OPTS.get("nox"): return
        e(f"ds_read_b128 {v(V_X + par*16 + mt*4, 4)}, {v(V_XA + par)} offset:{mt*2048}")
        q.issue(("x", par, mt))
    def rd_w(f, part):
        if OPTS.get("now"): return
        ks, ct = divmod(f % 20, 10)
        half, c16 = divmod(ct, 5)
        off = half * BH + ks * 5120 + c16 * 32 + part * 1280
        ring = f % RING
        e(f"ds_read_b64_tr_b16 {v(V_W + ring*4 + part*2, 2)}, {v(V_WA)} offset:{off}")
        q.issue(("w", ring, part))
    def next_addr():
        e(f"v_add_u32 {v(V_XA)}, {s(S_SLOT)}, {v(V_XB)}")
        e(f"v_add_u32 {v(V_WA)}, {s(S_SLOT)}, {v(V_WB)}")
        e(f"v_xor_b32 {v(V_XA + 1)}, 64, {v(V_XA)}")
        wrap_slot(e, S_SLOT)
    sched = {G: [] for G in range(20)}
    sched[0] = [("w", 2, 0), ("w", 2, 1), ("w", 3, 0), ("w", 3, 1)]
    for G in range(1, 17): sched[G] = [("w", G + 3, 0), ("w", G + 3, 1)]
    for k, G in enumerate((4, 5, 6, 7)): sched[G].append(("x", 1, k))
    sched[18] = [("x", 0, 0), ("x", 0, 1), ("w", 20, 0), ("w", 20, 1)]
    sched[19] = [("x", 0, 2), ("x", 0, 3), ("w", 21, 0), ("w", 21, 1)]
    def do_read(r):
        if r[0] == "x": rd_x(r[1], r[2])
        else: rd_w(r[1], r[2])
    e(f"s_mov_b32 {s(S_SLOT)}, 0")
    stamp(e, 1)
    e("s_barrier")
    stamp(e, 2)
    next_addr()
    for G in (18, 19):
        for r in sched[G]: do_read(r)
    state0 = list(q.p)
    e(f"s_mov_b32 {s(S_CNT)}, {NST}")
    e.raw(".p2align 6")
    e.label(f"L_cloop_{tag}")
    for G in range(20):
        ks, ct = divmod(G, 10)
        ring = G % RING
        reads = list(sched[G])
        if G == 18:
            q.drain()
            e("s_barrier")
            next_addr()
        ri = 0
        for mt in range(4):
            q.wait(("w", ring, 0), ("w", ring, 1), ("x", ks, mt))
            A = acc(mt, ct)
            xo = v(V_X + ks*16 + mt*4, 4); wo = v(V_W + ring*4, 4)
            if OPTS.get("nomfma"): pass
            elif swapped: e(f"v_mfma_f32_16x16x32_bf16 {v(A,4)}, {wo}, {xo}, {v(A,4)}")
            else: e(f"v_mfma_f32_16x16x32_bf16 {v(A,4)}, {xo}, {wo}, {v(A,4)}")
            if mt == 3 and ct in own and not OPTS.get("nomfma"):
                C = V_CSA + 4*own.index(ct)
                if swapped: e(f"v_mfma_f32_16x16x32_bf16 {v(C,4)}, {wo}, {v(V_ONES,4)}, {v(C,4)}")
                else: e(f"v_mfma_f32_16x16x32_bf16 {v(C,4)}, {v(V_ONES,4)}, {wo}, {v(C,4)}")
            nrd = (len(reads) - ri + (3 - mt)) // (4 - mt)
            for _ in range(nrd):
                do_read(reads[ri]); ri += 1
        assert ri == len(reads)
    e(f"s_sub_u32 {s(S_CNT)}, {s(S_CNT)}, 1")
    e(f"s_cmp_lg_u32 {s(S_CNT)}, 0")
    e(f"s_cbranch_scc1 L_cloop_{tag}")
    assert q.p == state0, (q.p, state0)
    e("s_waitcnt lgkmcnt(0)")
    stamp(e, 3)
    if own:
        if swapped:
            e(f"v_lshlrev_b32 v11, 4, {v(V_G)}"); e(f"v_add_u32 v11, {LDS_CS}, v11")
            e(f"v_cmp_eq_u32 vcc, 0, {v(V_I)}")
        else:
            e(f"v_lshlrev_b32 v11, 2, {v(V_I)}"); e(f"v_add_u32 v11, {LDS_CS}, v11")
            e(f"v_cmp_eq_u32 vcc, 0, {v(V_G)}")
        e("s_nop 4")
        e(f"s_and_saveexec_b64 {s(S_EXS,2)}, vcc")
        for k, ct in enumerate(own):
            if swapped: e(f"ds_write_b128 v11, {v(V_CSA + 4*k,4)} offset:{ct*64}")
            else: e(f"ds_write_b32 v11, {v(V_CSA + 4*k)} offset:{ct*64}")
        e(f"s_mov_b64 exec, {s(S_EXS,2)}")
        e("s_waitcnt lgkmcnt(0)")

def setup_common(e):
    e("s_cmp_ge_u32 s2, 256")
    e("s_cbranch_scc1 L_k1_end")
    e("s_load_dwordx4 s[4:7], s[0:1], 0")
    e("s_load_dwordx4 s[48:51], s[0:1], 32")
    e("s_load_dwordx4 s[52:55], s[0:1], 64")
    if STAMP: e(f"s_memtime {s(70,2)}")
    if STAMP: e(f"s_memrealtime s[86:87]")
    e(f"v_lshrrev_b32 v1, 6, v0")
    e(f"v_and_b32 {v(V_LANE)}, 63, v0")
    e(f"v_readfirstlane_b32 {s(S_WAVE)}, v1")
    e(f"s_and_b32 {s(S_T)}, s2, 7")
    e(f"s_lshr_b32 {s(S_T+1)}, s2, 3")
    e(f"s_and_b32 {s(S_RB)}, {s(S_T)}, 1")
    e(f"s_lshl_b32 {s(S_RB)}, {s(S_RB)}, 2")
    e(f"s_and_b32 {s(S_T+2)}, {s(S_T+1)}, 3")
    e(f"s_add_u32 {s(S_RB)}, {s(S_RB)}, {s(S_T+2)}")
    e(f"s_lshr_b32 {s(S_CG)}, {s(S_T)}, 1")
    e(f"s_lshl_b32 {s(S_CG)}, {s(S_CG)}, 3")
    e(f"s_lshr_b32 {s(S_T+2)}, {s(S_T+1)}, 2")
    e(f"s_add_u32 {s(S_CG)}, {s(S_CG)}, {s(S_T+2)}")
    if OPTS.get("samet"):
        e(f"s_mov_b32 {s(S_RB)}, 0"); e(f"s_mov_b32 {s(S_CG)}, 12")
    e(f"v_and_b32 {v(V_I)}, 15, {v(V_LANE)}")
    e(f"v_lshrrev_b32 {v(V_G)}, 4, {v(V_LANE)}")
    e(f"s_mov_b32 {s(S_EPS6)}, {f32(1e-6)}"); e(f"s_mov_b32 {s(S_EPS6+1)}, {f32(1e-6)}")
    e(f"s_mov_b32 {s(S_L2E)}, {f32(LOG2E)}"); e(f"s_mov_b32 {s(S_L2E+1)}, {f32(LOG2E)}")
    e("s_waitcnt lgkmcnt(0)")
    e(f"s_mov_b32 {s(S_X)}, s4"); e(f"s_mov_b32 {s(S_X+1)}, s5"); e(f"s_mov_b32 {s(S_X+2)}, 2621440"); e(f"s_mov_b32 {s(S_X+3)}, 0x20000")
    e(f"s_mov_b32 {s(S_WS)}, s54"); e(f"s_mov_b32 {s(S_WS+1)}, s55"); e(f"s_mov_b32 {s(S_WS+2)}, {WS_USED if not STAMP else 0x2000000}"); e(f"s_mov_b32 {s(S_WS+3)}, 0x20000")
    e(f"s_mov_b32 {s(S_DBG)}, s52"); e(f"s_mov_b32 {s(S_DBG+1)}, s53")
    e(f"s_mov_b32 {s(S_B0+3)}, 0x20000"); e(f"s_mov_b32 {s(S_B1+3)}, 0x20000")
    e(f"s_mov_b32 {s(S_ROT)}, 0")
    e(f"s_cmp_ge_u32 {s(S_CG)}, 12"); e("s_cbranch_scc1 L_set_gu")
    e(f"s_mov_b32 {s(S_B0)}, s6"); e(f"s_mov_b32 {s(S_B0+1)}, s7"); e(f"s_mov_b32 {s(S_B0+2)}, 2457600")
    e(f"s_mov_b32 {s(S_B1)}, s6"); e(f"s_mov_b32 {s(S_B1+1)}, s7"); e(f"s_mov_b32 {s(S_B1+2)}, 2457600")
    e(f"s_mov_b32 {s(S_BSTR)}, 3840")
    e(f"s_cmp_ge_u32 {s(S_CG)}, 4"); e("s_cbranch_scc1 L_set_kv")
    e(f"s_mov_b32 {s(S_TYPE)}, 0"); e(f"s_mov_b32 {s(S_SUB)}, {s(S_CG)}")
    e(f"s_mul_i32 {s(S_CB0)}, {s(S_SUB)}, 320"); e(f"s_add_u32 {s(S_CB1)}, {s(S_CB0)}, 160")
    e("s_branch L_set_done")
    e.label("L_set_kv")
    e(f"s_mov_b32 {s(S_TYPE)}, 1"); e(f"s_sub_u32 {s(S_SUB)}, {s(S_CG)}, 4")
    e(f"s_mul_i32 {s(S_CB0)}, {s(S_SUB)}, 160"); e(f"s_add_u32 {s(S_CB1)}, {s(S_CB0)}, 2560"); e(f"s_add_u32 {s(S_CB0)}, {s(S_CB0)}, 1280")
    e("s_branch L_set_done")
    e.label("L_set_gu")
    e(f"s_mov_b32 {s(S_B0)}, s48"); e(f"s_mov_b32 {s(S_B0+1)}, s49"); e(f"s_mov_b32 {s(S_B0+2)}, 1966080")
    e(f"s_mov_b32 {s(S_B1)}, s50"); e(f"s_mov_b32 {s(S_B1+1)}, s51"); e(f"s_mov_b32 {s(S_B1+2)}, 1966080")
    e(f"s_mov_b32 {s(S_BSTR)}, 3072")
    e(f"s_mov_b32 {s(S_TYPE)}, 2"); e(f"s_sub_u32 {s(S_SUB)}, {s(S_CG)}, 12")
    e(f"s_mul_i32 {s(S_CB0)}, {s(S_SUB)}, 160"); e(f"s_mov_b32 {s(S_CB1)}, {s(S_CB0)}")
    e(f"s_and_b32 {s(S_ROT)}, {s(S_SUB)}, 1"); e(f"s_lshl_b32 {s(S_ROT)}, {s(S_ROT)}, 1")
    e.label("L_set_done")

def consumer_setup(e):
    e(f"v_and_b32 v11, 7, {v(V_I)}")
    e(f"v_xor_b32 v11, {v(V_G)}, v11")
    e(f"v_lshlrev_b32 v11, 4, v11")
    e(f"s_lshl_b32 {s(S_T)}, {s(S_WAVE)}, 13")
    e(f"v_lshlrev_b32 v12, 7, {v(V_I)}")
    e(f"v_add3_u32 {v(V_XB)}, v11, v12, {s(S_T)}")
    e(f"v_lshrrev_b32 v11, 1, {v(V_G)}")
    e(f"v_lshlrev_b32 v11, 4, v11")
    e(f"v_and_b32 v12, 1, {v(V_G)}")
    e(f"v_lshlrev_b32 v12, 2, v12")
    e(f"v_lshrrev_b32 v13, 2, {v(V_I)}")
    e(f"v_add3_u32 v11, v11, v12, v13")
    e(f"v_mul_u32_u24 v11, 160, v11")
    e(f"v_and_b32 v12, 3, {v(V_I)}")
    e(f"v_lshlrev_b32 v12, 3, v12")
    e(f"v_add_u32 v11, v11, v12")
    e(f"v_add_u32 {v(V_WB)}, {A_BYTES}, v11")
    for r in range(V_CSA, V_CSA + 12): e(f"v_mov_b32 {v(r)}, 0")
    for r in range(V_ONES, V_ONES + 4): e(f"v_mov_b32 {v(r)}, 0x3f803f80")
    for r in range(V_ACC, 256):
        e(f"v_mov_b32 {v(r)}, 0")

P_VA = 16
P_VB = 20
P_ONE = 26
P_SL = 100
P_POLL = 60
P_RES = 56
DBG_NONCE = 0
DBG_FLAG = 64

def div10(e, dst, src):
    e(f"v_mul_u32_u24 {v(dst)}, 205, {v(src)}")
    e(f"v_lshrrev_b32 {v(dst)}, 11, {v(dst)}")

def lane0(e, on=True):
    if on:
        e(f"v_cmp_eq_u32 vcc, 0, {v(V_LANE)}")
        e(f"s_and_saveexec_b64 {s(S_EXS,2)}, vcc")
    else:
        e(f"s_mov_b64 exec, {s(S_EXS,2)}")

def issue_a(e, q, d, slot_sgpr, slot_imm, tag):
    for a_ in range(16):
        off = d*16384 + a_*1024
        if slot_sgpr is None: e(f"s_mov_b32 m0, {slot_imm + off}")
        else: e(f"s_add_u32 m0, {s(slot_sgpr)}, {off}")
        e(f"s_add_u32 {s(S_T)}, {s(S_AOFF)}, {a_*8*1280}")
        e(f"buffer_load_dwordx4 {v(P_VA)}, {s(S_X,4)}, {s(S_T)} offen lds")
        q.issue(tag)
    e(f"s_add_u32 {s(S_AOFF)}, {s(S_AOFF)}, 128")

def issue_b(e, q, d, slot_sgpr, slot_imm, tag):
    for b in range(10):
        off = A_BYTES + d*BH + b*1024
        if b == 5: e(f"s_add_u32 {s(S_BOFF)}, {s(S_BOFF)}, {s(S_T4)}")
        if slot_sgpr is None: e(f"s_mov_b32 m0, {slot_imm + off}")
        else: e(f"s_add_u32 m0, {s(slot_sgpr)}, {off}")
        e("s_nop 0")
        e(f"buffer_load_dwordx4 {v(P_VB + b % 5)}, {s(S_B0,4)}, {s(S_BOFF)} offen lds")
        q.issue(tag)
    e(f"s_add_u32 {s(S_BOFF)}, {s(S_BOFF)}, {s(S_T4)}")

def issue_stage(e, q, d, slot_sgpr=None, slot_imm=None, tag=None):
    if OPTS.get("nodma") and slot_sgpr is not None: return
    issue_a(e, q, d, slot_sgpr, slot_imm, tag)
    issue_b(e, q, d, slot_sgpr, slot_imm, tag)

def dma_wave(e, d):
    if OPTS.get("dprio"): e(f"s_setprio {OPTS.get('dprio')}")
    q = Queue(e, "vmcnt", 63)
    n = 26
    if d == 1:
        for k in range(3): e(f"s_mov_b32 {s(S_B0+k)}, {s(S_B1+k)}")
        e(f"s_mov_b32 {s(S_CB0)}, {s(S_CB1)}")
    e(f"v_lshrrev_b32 v12, 3, {v(V_LANE)}")
    e(f"v_and_b32 v11, 7, {v(V_LANE)}")
    e(f"v_xor_b32 v11, v11, v12")
    e(f"v_lshlrev_b32 v11, 4, v11")
    e(f"v_mul_u32_u24 v12, 1280, v12")
    e(f"v_add_u32 {v(P_VA)}, v11, v12")
    e(f"s_mul_i32 {s(S_AOFF)}, {s(S_RB)}, {256*1280}")
    if d: e(f"s_add_u32 {s(S_AOFF)}, {s(S_AOFF)}, {128*1280}")
    stamp(e, 1)
    issue_a(e, q, d, None, 0, 0)
    for b in range(5):
        e(f"v_add_u32 v11, {64*b}, {v(V_LANE)}")
        div10(e, 12, 11)
        e(f"v_mul_u32_u24 v13, 10, v12")
        e(f"v_sub_u32 v13, v11, v13")
        e(f"v_add_u32 v13, {s(S_ROT)}, v13")
        e(f"v_cmp_le_u32 vcc, 10, v13")
        e(f"v_subrev_u32 v14, 10, v13")
        e(f"v_and_b32 v15, 0x13, v12")
        e(f"v_cndmask_b32 v13, v13, v14, vcc")
        e(f"v_and_b32 v14, 4, v12"); e(f"v_lshlrev_b32 v14, 1, v14"); e(f"v_or_b32 v15, v15, v14")
        e(f"v_and_b32 v14, 8, v12"); e(f"v_lshrrev_b32 v14, 1, v14"); e(f"v_or_b32 v15, v15, v14")
        e(f"v_mul_lo_u32 v15, v15, {s(S_BSTR)}")
        e(f"v_lshlrev_b32 v13, 4, v13")
        e(f"v_add_u32 {v(P_VB + b)}, v15, v13")
    e(f"s_mov_b32 {s(S_BOFF)}, {s(S_CB0)}")
    e(f"s_lshl_b32 {s(S_T4)}, {s(S_BSTR)}, 5")
    issue_b(e, q, d, None, 0, 0)
    stamp(e, 2)
    issue_stage(e, q, d, slot_imm=SLOT, tag=1)
    stamp(e, 3)
    q.wait(0)
    stamp(e, 5)
    e("s_barrier")
    issue_stage(e, q, d, slot_imm=2*SLOT, tag=2)
    e(f"s_mov_b32 {s(S_M0S)}, 0")
    e(f"s_mov_b32 {s(S_CNT)}, 7")
    e.label(f"L_dloop_{d}")
    e(f"s_waitcnt vmcnt({n})")
    e("s_barrier")
    q2 = Queue(e, "vmcnt", 63)
    issue_stage(e, q2, d, slot_sgpr=S_M0S, tag="x"); wrap_slot(e, S_M0S)
    e(f"s_sub_u32 {s(S_CNT)}, {s(S_CNT)}, 1")
    e(f"s_cmp_lg_u32 {s(S_CNT)}, 0")
    e(f"s_cbranch_scc1 L_dloop_{d}")
    e(f"s_waitcnt vmcnt({n})"); e("s_barrier")
    e(f"s_waitcnt vmcnt(0)"); e("s_barrier")
    e("s_barrier")
    e("s_barrier")
    e(f"s_cmp_eq_u32 {s(S_TYPE)}, 1")
    e(f"s_cbranch_scc1 L_kv_final")
    if STAMP:
        stamp(e, 4); stamp(e, 6); stamp_flush(e, 7)
    e("s_endpgm")

def stats4_load(e, row_sgpr):
    e(f"v_add_u32 v11, {s(row_sgpr)}, {v(V_G)}")
    e(f"v_mul_u32_u24 v11, 1280, v11")
    e(f"v_lshlrev_b32 v14, 4, {v(V_I)}")
    e(f"v_add_u32 v11, v11, v14")
    for k in range(5):
        e(f"buffer_load_dwordx4 {v(P_SL + 4*k, 4)}, v11, {s(S_X,4)}, 0 offen offset:{k*256}")

def stats4_compute(e):
    A = P_SL + 20
    for k in range(4): e(f"v_mov_b32 {v(A + k)}, 0")
    for d in range(20):
        e(f"v_dot2c_f32_bf16 {v(A + (d & 1))}, {v(P_SL + d)}, {v(P_ONE)}")
        e(f"v_dot2c_f32_bf16 {v(A + 2 + (d & 1))}, {v(P_SL + d)}, {v(P_SL + d)}")
    e("s_nop 2")
    e(f"v_add_f32 {v(A)}, {v(A)}, {v(A+1)}")
    e(f"v_add_f32 {v(A+2)}, {v(A+2)}, {v(A+3)}")
    for ctl in ("quad_perm:[1,0,3,2]", "quad_perm:[2,3,0,1]", "row_half_mirror", "row_mirror"):
        e("s_nop 0")
        e(f"v_add_f32_dpp {v(A)}, {v(A)}, {v(A)} {ctl} row_mask:0xf bank_mask:0xf")
        e(f"v_add_f32_dpp {v(A+2)}, {v(A+2)}, {v(A+2)} {ctl} row_mask:0xf bank_mask:0xf")
        e("s_nop 0")
    M = P_SL + 26
    e(f"v_mul_f32 {v(M)}, {f32(1.0/640)}, {v(A)}")
    e(f"v_mul_f32 {v(A+1)}, {v(M)}, {v(M)}")
    e(f"v_mul_f32 {v(A+2)}, {f32(1.0/640)}, {v(A+2)}")
    e(f"v_sub_f32 {v(A+2)}, {v(A+2)}, {v(A+1)}")
    e(f"v_max_f32 {v(A+2)}, 0, {v(A+2)}")
    e(f"v_add_f32 {v(A+2)}, {f32(1e-5)}, {v(A+2)}")
    e(f"v_rsq_f32 {v(M+1)}, {v(A+2)}")
    e("s_nop 0")

def write_stats_lds_from_pairs(e, R, tag):
    e(f"s_cmp_eq_u32 {s(S_TYPE)}, 1")
    e(f"s_cbranch_scc1 L_wsk_{tag}")
    e(f"v_lshlrev_b32 v13, 5, {v(V_LANE)}")
    e(f"v_add_u32 v13, {LDS_STATS}, v13")
    e(f"ds_write_b128 v13, {v(R,4)}")
    e(f"ds_write_b128 v13, {v(R+4,4)} offset:16")
    e(f"s_branch L_wsd_{tag}")
    e.label(f"L_wsk_{tag}")
    T = R + 8
    for k in range(4):
        e(f"v_mov_b32 {v(T + k)}, {v(R + 2*k)}")
        e(f"v_mov_b32 {v(T + 4 + k)}, {v(R + 2*k + 1)}")
    e(f"v_lshlrev_b32 v13, 4, {v(V_LANE)}")
    e(f"v_add_u32 v13, {LDS_STATS}, v13")
    e(f"ds_write_b128 v13, {v(T,4)}")
    e(f"ds_write_b128 v13, {v(T+4,4)} offset:1024")
    e.label(f"L_wsd_{tag}")

def fetch_stats(e):
    e(f"s_lshl_b32 {s(S_T)}, {s(S_RB)}, 12")
    e(f"s_add_u32 {s(S_T)}, {s(S_T)}, {WS_STATS}")
    e(f"v_lshlrev_b32 v11, 6, {v(V_LANE)}")
    for k in range(4):
        e(f"buffer_load_dwordx4 {v(P_SL + 4*k,4)}, v11, {s(S_WS,4)}, {s(S_T)} offen offset:{16*k} sc1")

def check_stats(e, tag):
    e(f"v_cmp_eq_u32 vcc, {s(S_NONCE)}, {v(P_SL + 1)}")
    e(f"s_mov_b64 s[92:93], vcc")
    for k in range(1, 8):
        e(f"v_cmp_eq_u32 vcc, {s(S_NONCE)}, {v(P_SL + 2*k + 1)}")
        e(f"s_and_b64 s[92:93], s[92:93], vcc")
    e(f"s_cmp_eq_u64 s[92:93], -1")
    e(f"s_cbranch_scc0 L_chk_no_{tag}")
    R = P_SL + 16
    for k in range(8):
        e(f"v_mov_b32 {v(R + k)}, {v(P_SL + 2*k)}")
    write_stats_lds_from_pairs(e, R, tag)
    e(f"s_mov_b32 {s(S_OK)}, 1")
    e.label(f"L_chk_no_{tag}")

def publish_stats(e, tag):
    e(f"v_lshlrev_b32 v13, 4, {v(V_G)}")
    e(f"s_lshl_b32 {s(S_T)}, {s(S_T3)}, 4"); e(f"s_add_u32 {s(S_T)}, {s(S_T)}, {WS_STATS}")
    e(f"v_mov_b32 v29, {s(S_NONCE)}"); e(f"v_mov_b32 v31, {s(S_NONCE)}")
    e(f"v_mov_b32 v33, {s(S_NONCE)}"); e(f"v_mov_b32 v35, {s(S_NONCE)}")
    e(f"v_mov_b32 v28, {v(P_RES)}"); e(f"v_mov_b32 v30, {v(P_RES+1)}")
    e(f"v_mov_b32 v32, {v(P_RES+2)}"); e(f"v_mov_b32 v34, {v(P_RES+3)}")
    e(f"v_cmp_eq_u32 vcc, 0, {v(V_I)}")
    e(f"s_and_saveexec_b64 {s(S_EXS,2)}, vcc")
    e(f"buffer_store_dwordx4 v[28:31], v13, {s(S_WS,4)}, {s(S_T)} offen sc1")
    e(f"buffer_store_dwordx4 v[32:35], v13, {s(S_WS,4)}, {s(S_T)} offen offset:64 sc1")
    e(f"s_mov_b64 exec, {s(S_EXS,2)}")

def poll_nonce(e):
    e(f"v_mov_b32 v11, 0")
    e(f"global_load_dword {v(P_POLL)}, v11, {s(S_DBG,2)} offset:{DBG_NONCE} sc1")

def try_publish(e, tag, repoll=True):
    e(f"s_cmp_lg_u32 {s(S_NONCE)}, 0"); e(f"s_cbranch_scc1 L_tp_{tag}")
    e("s_waitcnt vmcnt(0)")
    e(f"v_readfirstlane_b32 {s(S_NONCE)}, {v(P_POLL)}")
    e("s_nop 3")
    e(f"s_cmp_eq_u32 {s(S_NONCE)}, 0"); e(f"s_cbranch_scc1 L_tpr_{tag}")
    publish_stats(e, tag)
    e(f"s_branch L_tp_{tag}")
    e.label(f"L_tpr_{tag}")
    if repoll: poll_nonce(e)
    e.label(f"L_tp_{tag}")

def hbar(e, j):
    e("s_barrier")
    if OPTS.get("hstamp"):
        e("s_memtime s[90:91]"); e("s_waitcnt lgkmcnt(0)")
        e(f"v_writelane_b32 v62, s90, {j}")

def helper0(e, opts):
    e("s_cmp_eq_u32 s2, 0"); e("s_cbranch_scc0 L_h0_nononce")
    e("s_memrealtime s[92:93]"); e("s_waitcnt lgkmcnt(0)")
    e("s_or_b32 s92, s92, 1")
    e("v_mov_b32 v11, 0"); e("v_mov_b32 v12, s92")
    lane0(e)
    e(f"global_store_dword v11, v12, {s(S_DBG,2)} offset:{DBG_NONCE} sc1")
    lane0(e, False)
    e.label("L_h0_nononce")
    e(f"s_lshl_b32 {s(S_T)}, {s(S_RB)}, 8")
    e(f"s_lshl_b32 {s(S_T+1)}, {s(S_CG)}, 3")
    e(f"s_add_u32 {s(S_T3)}, {s(S_T)}, {s(S_T+1)}")
    stats4_load(e, S_T3)
    e(f"v_add_u32 v11, {4*1280}, v11")
    for k in range(5):
        e(f"buffer_load_dwordx4 {v(P_SL + 32 + 4*k, 4)}, v11, {s(S_X,4)}, 0 offen offset:{k*256}")
    e(f"v_mov_b32 {v(P_ONE)}, 0x3f803f80")
    e(f"s_mov_b32 {s(S_OK)}, 0"); e(f"s_mov_b32 {s(S_NONCE)}, 0")
    e("s_waitcnt vmcnt(5)")
    stats4_compute(e)
    e(f"v_mov_b32 {v(P_RES)}, {v(P_SL+26)}"); e(f"v_mov_b32 {v(P_RES+1)}, {v(P_SL+27)}")
    e("s_waitcnt vmcnt(0)")
    poll_nonce(e)
    for k in range(20): e(f"v_mov_b32 {v(P_SL + k)}, {v(P_SL + 32 + k)}")
    stats4_compute(e)
    e(f"v_mov_b32 {v(P_RES+2)}, {v(P_SL+26)}"); e(f"v_mov_b32 {v(P_RES+3)}, {v(P_SL+27)}")
    FJ = OPTS.get("fetchj", 5); CJ = OPTS.get("checkj", 8)
    for j in range(11):
        e("s_barrier")
        if j in (1, 2, 3, 4): try_publish(e, f"l{j}", repoll=(j < 4))
        if j == FJ: fetch_stats(e)
        if j == CJ:
            e("s_waitcnt vmcnt(0)")
            e(f"s_cmp_eq_u32 {s(S_NONCE)}, 0"); e("s_cbranch_scc1 L_h0_okA")
            if not opts.get("forcefb"): check_stats(e, "a")
            e(f"s_cmp_eq_u32 {s(S_OK)}, 1"); e("s_cbranch_scc1 L_h0_okA")
            fetch_stats(e)
            e.label("L_h0_okA")
        if j == 10:
            e(f"s_cmp_eq_u32 {s(S_OK)}, 1"); e("s_cbranch_scc1 L_h0_okB")
            e(f"s_cmp_eq_u32 {s(S_NONCE)}, 0"); e("s_cbranch_scc1 L_h0_okB")
            e("s_waitcnt vmcnt(0)")
            if not opts.get("forcefb"): check_stats(e, "b")
            e.label("L_h0_okB")
    e(f"s_cmp_eq_u32 {s(S_OK)}, 1"); e(f"s_cbranch_scc1 L_h0_done")
    e(f"s_cmp_eq_u32 {s(S_NONCE)}, 0"); e(f"s_cbranch_scc1 L_h0_fb")
    e(f"s_mov_b32 {s(S_CNT)}, {0 if opts.get('forcefb') else 200}")
    e.label("L_h0_spin")
    e(f"s_cmp_eq_u32 {s(S_CNT)}, 0"); e(f"s_cbranch_scc1 L_h0_fb")
    fetch_stats(e)
    e("s_waitcnt vmcnt(0)")
    check_stats(e, "c")
    e(f"s_sub_u32 {s(S_CNT)}, {s(S_CNT)}, 1")
    e(f"s_cmp_eq_u32 {s(S_OK)}, 1"); e(f"s_cbranch_scc1 L_h0_done")
    e("s_sleep 4")
    e("s_branch L_h0_spin")
    e.label("L_h0_fb")
    e(f"s_mov_b32 {s(S_CNT)}, 0")
    e.label("L_fb_loop")
    e(f"s_lshl_b32 {s(S_T)}, {s(S_RB)}, 8")
    e(f"s_lshl_b32 {s(S_T+1)}, {s(S_CNT)}, 2")
    e(f"s_add_u32 {s(S_T)}, {s(S_T)}, {s(S_T+1)}")
    stats4_load(e, S_T)
    e("s_waitcnt vmcnt(0)")
    stats4_compute(e)
    e(f"v_add_u32 v15, {s(S_T+1)}, {v(V_G)}")
    e(f"v_cmp_eq_u32 vcc, 0, {v(V_I)}")
    e(f"s_and_saveexec_b64 {s(S_EXS,2)}, vcc")
    e(f"s_cmp_eq_u32 {s(S_TYPE)}, 1")
    e(f"s_cbranch_scc1 L_fb_kv")
    e(f"v_lshlrev_b32 v13, 3, v15"); e(f"v_add_u32 v13, {LDS_STATS}, v13")
    e(f"ds_write_b64 v13, {v(P_SL + 26, 2)}")
    e(f"s_branch L_fb_n")
    e.label("L_fb_kv")
    e(f"v_lshlrev_b32 v13, 2, v15"); e(f"v_add_u32 v13, {LDS_STATS}, v13")
    e(f"ds_write_b32 v13, {v(P_SL + 26)}")
    e(f"ds_write_b32 v13, {v(P_SL + 27)} offset:1024")
    e.label("L_fb_n")
    e(f"s_mov_b64 exec, {s(S_EXS,2)}")
    e(f"s_add_u32 {s(S_CNT)}, {s(S_CNT)}, 1")
    e(f"s_cmp_lt_u32 {s(S_CNT)}, 64")
    e("s_cbranch_scc1 L_fb_loop")
    e.label("L_h0_done")
    e("s_waitcnt lgkmcnt(0)")
    e("s_barrier")
    e(f"s_cmp_eq_u32 {s(S_TYPE)}, 1")
    e(f"s_cbranch_scc1 L_kv_final")
    e("s_endpgm")

def repack_setup(e):
    for b in range(5):
        e(f"v_add_u32 v11, {64*b}, {v(V_LANE)}")
        div10(e, 12, 11)
        e(f"v_mul_u32_u24 v13, 10, v12"); e(f"v_sub_u32 v13, v11, v13")
        e(f"v_mul_u32_u24 v12, 1280, v12"); e(f"v_lshlrev_b32 v13, 4, v13")
        e(f"v_add_u32 {v(40 + b)}, v12, v13")
    e(f"v_lshlrev_b32 v11, 2, {v(V_G)}"); e(f"v_lshrrev_b32 v12, 2, {v(V_I)}"); e(f"v_add_u32 v11, v11, v12")
    e(f"v_mul_u32_u24 v11, 160, v11"); e(f"v_and_b32 v12, 3, {v(V_I)}"); e(f"v_lshlrev_b32 v12, 3, v12")
    e(f"v_add_u32 v11, v11, v12"); e(f"v_add_u32 v45, {LDS_RP}, v11")
    e(f"v_lshlrev_b32 v46, 4, {v(V_LANE)}")

def repack_issue(e):
    for r in range(3):
        e(f"s_add_u32 {s(S_T)}, s2, {256*r}")
        if r == 2:
            e(f"s_cmp_ge_u32 {s(S_T)}, 544"); e("s_cbranch_scc1 L_rp_i_done")
        e(f"s_lshr_b32 {s(S_T+1)}, {s(S_T)}, 3")
        e(f"s_and_b32 {s(S_T+2)}, {s(S_T)}, 7")
        e(f"s_mul_i32 {s(S_T+2)}, {s(S_T+2)}, 160")
        e(f"s_cmp_ge_u32 {s(S_T+1)}, 48")
        e(f"s_cbranch_scc1 L_rp_wo{r}")
        e(f"s_mul_i32 {s(S_T+1)}, {s(S_T+1)}, {32*1280}"); e(f"s_add_u32 {s(S_T+1)}, {s(S_T+1)}, {s(S_T+2)}")
        for b in range(5):
            e(f"s_mov_b32 m0, {LDS_RP + r*5120 + b*1024}"); e("s_nop 0")
            e(f"buffer_load_dwordx4 {v(40 + b)}, s[44:47], {s(S_T+1)} offen lds")
        e(f"s_branch L_rp_n{r}")
        e.label(f"L_rp_wo{r}")
        e(f"s_sub_u32 {s(S_T+1)}, {s(S_T+1)}, 48")
        e(f"s_mul_i32 {s(S_T+1)}, {s(S_T+1)}, {32*1280}"); e(f"s_add_u32 {s(S_T+1)}, {s(S_T+1)}, {s(S_T+2)}")
        for b in range(5):
            e(f"s_mov_b32 m0, {LDS_RP + r*5120 + b*1024}"); e("s_nop 0")
            e(f"buffer_load_dwordx4 {v(40 + b)}, s[48:51], {s(S_T+1)} offen lds")
        e.label(f"L_rp_n{r}")
    e.label("L_rp_i_done")

def repack_finish(e):
    e("s_waitcnt vmcnt(0)")
    for r in range(3):
        R = 64 + 20*r
        e(f"s_add_u32 {s(S_T)}, s2, {256*r}")
        if r == 2:
            e(f"s_cmp_ge_u32 {s(S_T)}, 544"); e("s_cbranch_scc1 L_rp_f_done")
        for ct in range(5):
            for part in range(2):
                e(f"ds_read_b64_tr_b16 {v(R + 4*ct + 2*part, 2)}, v45 offset:{r*5120 + ct*32 + part*2560}")
        e(f"s_mul_i32 {s(S_T)}, {s(S_T)}, 5120"); e(f"s_add_u32 {s(S_T)}, {s(S_T)}, {WS_WF}")
        e(f"s_add_u32 {s(S_T+1)}, {s(S_T)}, 4096")
        for ct in range(5):
            e(f"s_waitcnt lgkmcnt({2*(4-ct)})")
            if ct < 4: e(f"buffer_store_dwordx4 {v(R + 4*ct,4)}, v46, {s(S_WS,4)}, {s(S_T)} offen offset:{ct*1024}")
            else: e(f"buffer_store_dwordx4 {v(R + 4*ct,4)}, v46, {s(S_WS,4)}, {s(S_T+1)} offen")
    e.label("L_rp_f_done")

def helper1(e, opts):
    touch = OPTS.get("touch", 1)
    e("s_load_dwordx2 s[44:45], s[0:1], 48")
    e("s_load_dwordx2 s[48:49], s[0:1], 16")
    if touch:
        e(f"s_and_b32 {s(S_T+1)}, {s(S_RB)}, 3")
        e(f"v_and_b32 v20, 31, {v(V_LANE)}")
        e(f"v_lshlrev_b32 v21, 2, v20"); e(f"v_add_u32 v21, {s(S_T+1)}, v21"); e(f"v_mul_lo_u32 v21, v21, {s(S_BSTR)}")
        e(f"v_lshrrev_b32 v22, 5, {v(V_LANE)}"); e(f"v_lshlrev_b32 v22, 7, v22"); e(f"v_add_u32 v21, v21, v22")
        e(f"s_and_b32 {s(S_T+1)}, {s(S_CG)}, 7"); e(f"s_lshl_b32 {s(S_T+1)}, {s(S_T+1)}, 5")
        e(f"s_lshl_b32 {s(S_T+2)}, {s(S_RB)}, 8"); e(f"s_add_u32 {s(S_T+1)}, {s(S_T+1)}, {s(S_T+2)}")
        e(f"v_add_u32 v20, {s(S_T+1)}, v20"); e(f"v_mul_u32_u24 v20, 1280, v20"); e(f"v_add_u32 v20, v20, v22")
        e(f"s_lshl_b32 s54, {s(S_BSTR)}, 7")
        e(f"s_add_u32 {s(S_CB0)}, {s(S_CB0)}, s54"); e(f"s_add_u32 {s(S_CB1)}, {s(S_CB1)}, s54"); e(f"s_mov_b32 s52, 256")
    def trip():
        if not touch: return
        e(f"buffer_load_dword v24, v21, {s(S_B0,4)}, {s(S_CB0)} offen")
        e(f"buffer_load_dword v25, v21, {s(S_B1,4)}, {s(S_CB1)} offen")
        e(f"buffer_load_dword v26, v20, {s(S_X,4)}, s52 offen")
        e(f"s_add_u32 {s(S_CB0)}, {s(S_CB0)}, s54"); e(f"s_add_u32 {s(S_CB1)}, {s(S_CB1)}, s54"); e("s_add_u32 s52, s52, 256")
    tj = OPTS.get("tj", "s,0,2,4")
    tj = [x for x in str(tj).replace("x", ",").split(",")]
    if OPTS.get("tdelay"): e(f"s_sleep {OPTS.get('tdelay')}")
    for x in tj:
        if x == "s": trip()
    if not OPTS.get("norepack"): repack_setup(e)
    e("s_waitcnt lgkmcnt(0)")
    e("s_mov_b32 s46, 1966080"); e("s_mov_b32 s47, 0x20000")
    e("s_mov_b32 s50, 819200"); e("s_mov_b32 s51, 0x20000")
    e(f"s_cmp_eq_u32 {s(S_TYPE)}, 1"); e(f"s_cbranch_scc0 L_nozero")
    e(f"s_cmp_eq_u32 {s(S_RB)}, 0"); e(f"s_cbranch_scc0 L_nozero")
    for r in range(28, 32): e(f"v_mov_b32 {v(r)}, 0")
    e(f"s_mul_i32 {s(S_T)}, {s(S_SUB)}, 6720")
    e(f"s_add_u32 {s(S_T)}, {s(S_T)}, {WS_KV}")
    e(f"s_add_u32 {s(S_T2)}, {s(S_T)}, 4096")
    e(f"v_lshlrev_b32 v11, 4, {v(V_LANE)}")
    for k in range(7):
        if k == 6:
            e(f"v_cmp_gt_u32 vcc, 36, {v(V_LANE)}")
            e(f"s_and_saveexec_b64 {s(S_EXS,2)}, vcc")
        sreg = S_T if k < 4 else S_T2
        e(f"buffer_store_dwordx4 v[28:31], v11, {s(S_WS,4)}, {s(sreg)} offen offset:{(k % 4)*1024} sc1")
        if k == 6:
            e(f"s_mov_b64 exec, {s(S_EXS,2)}")
    e.label("L_nozero")
    for j in range(11):
        hbar(e, j)
        for x in tj:
            if x == str(j): trip()
        if j == OPTS.get("sigj", 6):
            e(f"s_cmp_eq_u32 {s(S_TYPE)}, 1"); e(f"s_cbranch_scc0 L_h1_nosig")
            e(f"s_cmp_eq_u32 {s(S_RB)}, 0"); e(f"s_cbranch_scc0 L_h1_nosig")
            e("s_waitcnt vmcnt(0)")
            e(f"s_lshl_b32 {s(S_T)}, {s(S_SUB)}, 2")
            e(f"v_mov_b32 v11, {s(S_T)}"); e(f"v_mov_b32 v12, 1")
            lane0(e); e(f"global_store_dword v11, v12, {s(S_DBG,2)} offset:{DBG_FLAG} sc1"); lane0(e, False)
            e.label("L_h1_nosig")
        if j == 8 and not OPTS.get("norepack"): repack_issue(e)
        if j == 9:
            e(f"s_cmp_eq_u32 {s(S_TYPE)}, 1"); e(f"s_cbranch_scc0 L_h1_np")
            e(f"s_lshl_b32 {s(S_T)}, {s(S_SUB)}, 2")
            e(f"v_mov_b32 v11, {s(S_T)}")
            e(f"global_load_dword {v(P_POLL)}, v11, {s(S_DBG,2)} offset:{DBG_FLAG} sc1")
            e.label("L_h1_np")
    if OPTS.get("hstamp"):
        e(f"s_lshl_b32 {s(S_T)}, s2, 3"); e(f"s_add_u32 {s(S_T)}, {s(S_T)}, 4"); e(f"s_lshl_b32 {s(S_T)}, {s(S_T)}, 8")
        e(f"s_add_u32 {s(S_T)}, {s(S_T)}, {WS_STAMP + 0x100000}")
        e(f"v_lshlrev_b32 v14, 2, {v(V_LANE)}")
        e(f"buffer_store_dword v62, v14, {s(S_WS,4)}, {s(S_T)} offen")
    e("s_barrier")
    if not OPTS.get("norepack"): repack_finish(e)
    e(f"s_cmp_eq_u32 {s(S_TYPE)}, 1")
    e(f"s_cbranch_scc0 L_h1_end")
    e("s_waitcnt vmcnt(0)")
    e(f"s_lshl_b32 {s(S_T)}, {s(S_SUB)}, 2")
    e(f"v_mov_b32 v11, {s(S_T)}")
    e.label("L_poll_flag")
    e(f"v_readfirstlane_b32 {s(S_T)}, {v(P_POLL)}")
    e("s_nop 3")
    e(f"s_cmp_eq_u32 {s(S_T)}, 0")
    e(f"s_cbranch_scc0 L_kv_final")
    e("s_sleep 2")
    e(f"global_load_dword {v(P_POLL)}, v11, {s(S_DBG,2)} offset:{DBG_FLAG} sc1")
    e("s_waitcnt vmcnt(0)")
    e("s_branch L_poll_flag")
    e.label("L_h1_end")
    e("s_endpgm")

def ep_load_swapped(e):
    e(f"s_lshl_b32 {s(S_T)}, {s(S_WAVE)}, 9")
    e(f"v_lshlrev_b32 v11, 3, {v(V_I)}")
    e(f"v_add_u32 v11, {s(S_T)}, v11")
    e(f"v_add_u32 v11, {LDS_STATS}, v11")
    for mt in range(4):
        e(f"ds_read_b64 {v(16 + 2*mt, 2)}, v11 offset:{mt*128}")
    e(f"v_lshlrev_b32 v12, 4, {v(V_G)}")
    e(f"v_add_u32 v12, {LDS_CS}, v12")
    for ct in range(10):
        e(f"ds_read_b128 {v(32 + 4*ct, 4)}, v12 offset:{ct*64}")
    e("s_waitcnt lgkmcnt(0)")

def epilogue_gu(e):
    ep_load_swapped(e)
    for mt in range(4):
        e(f"v_mul_f32 {v(24 + 2*mt)}, {f32(-LOG2E)}, {v(17 + 2*mt)}")
        e(f"v_mul_f32 {v(25 + 2*mt)}, {v(17 + 2*mt)}, {v(17 + 2*mt)}")
    for mt in range(4):
        e(f"v_rcp_f32 {v(25 + 2*mt)}, {v(25 + 2*mt)}")
    e(f"v_lshlrev_b32 v11, 4, {v(V_LANE)}")
    e(f"s_mul_i32 {s(S_T)}, {s(S_WAVE)}, {4*48*1024}")
    e(f"v_add_u32 v11, {s(S_T)}, v11")
    e(f"s_mul_i32 {s(S_T)}, {s(S_RB)}, {16*48*1024}")
    e(f"s_add_u32 {s(S_T)}, {s(S_T)}, {WS_H}")
    e(f"s_mul_i32 {s(S_T+1)}, {s(S_SUB)}, 5")
    e(f"s_add_u32 {s(S_T+2)}, {s(S_T+1)}, 1")
    e(f"s_lshr_b32 {s(S_T+2)}, {s(S_T+2)}, 1")
    e(f"s_lshl_b32 {s(S_T+2)}, {s(S_T+2)}, 10")
    e(f"s_add_u32 {s(S_T2)}, {s(S_T)}, {s(S_T+2)}")
    e(f"s_and_b32 {s(S_T3)}, {s(S_SUB)}, 1")
    e(f"s_cmp_eq_u32 {s(S_T3)}, 0")
    e(f"s_cselect_b32 {s(S_T3)}, 4, -1")
    e(f"s_add_u32 {s(S_T+1)}, {s(S_T+1)}, {s(S_T3)}")
    e(f"s_lshr_b32 {s(S_T+1)}, {s(S_T+1)}, 1")
    e(f"s_lshl_b32 {s(S_T+1)}, {s(S_T+1)}, 10")
    e(f"s_add_u32 {s(S_T3)}, {s(S_T)}, {s(S_T+1)}")
    e(f"s_and_b32 {s(S_T+1)}, {s(S_SUB)}, 1")
    e(f"s_lshl_b32 {s(S_T+1)}, {s(S_T+1)}, 3")
    e(f"s_add_u32 {s(S_T3)}, {s(S_T3)}, {s(S_T+1)}")
    T = 72
    for mt in range(4):
        MR = 16 + 2*mt; CI = 24 + 2*mt
        items = [(ct, hh) for ct in range(5) for hh in range(2)]
        for (ct, hh) in items:
            G = acc(mt, ct) + 2*hh; U = acc(mt, ct + 5) + 2*hh
            e(f"v_pk_fma_f32 {v(G,2)}, {v(32 + 4*ct + 2*hh,2)}, {v(MR,2)}, {v(G,2)} op_sel_hi:[1,0,1] neg_lo:[0,1,0] neg_hi:[0,1,0]")
            e(f"v_pk_fma_f32 {v(U,2)}, {v(32 + 4*(ct+5) + 2*hh,2)}, {v(MR,2)}, {v(U,2)} op_sel_hi:[1,0,1] neg_lo:[0,1,0] neg_hi:[0,1,0]")
        for k, (ct, hh) in enumerate(items):
            G = acc(mt, ct) + 2*hh
            e(f"v_pk_mul_f32 {v(T + 2*k,2)}, {v(G,2)}, {v(CI,2)} op_sel_hi:[1,0]")
        for k in range(10):
            e(f"v_exp_f32 {v(T + 2*k)}, {v(T + 2*k)}"); e(f"v_exp_f32 {v(T + 2*k + 1)}, {v(T + 2*k + 1)}")
        for k, (ct, hh) in enumerate(items):
            G = acc(mt, ct) + 2*hh; U = acc(mt, ct + 5) + 2*hh
            e(f"v_pk_mul_f32 {v(U,2)}, {v(G,2)}, {v(U,2)}")
        for k in range(10):
            e(f"v_pk_fma_f32 {v(T + 2*k,2)}, {v(T + 2*k,2)}, {v(CI,2)}, {v(CI,2)} op_sel:[0,1,1] op_sel_hi:[1,1,1]")
        for k in range(10):
            e(f"v_rcp_f32 {v(T + 2*k)}, {v(T + 2*k)}"); e(f"v_rcp_f32 {v(T + 2*k + 1)}, {v(T + 2*k + 1)}")
        e("s_nop 0")
        for k, (ct, hh) in enumerate(items):
            U = acc(mt, ct + 5) + 2*hh
            e(f"v_pk_mul_f32 {v(U,2)}, {v(U,2)}, {v(T + 2*k,2)}")
        for pp in range(2):
            O = acc(mt, 2*pp)
            for tt in range(2):
                U = acc(mt, 2*pp + tt + 5)
                e(f"v_cvt_pk_bf16_f32 {v(O + 2*tt)}, {v(U)}, {v(U+1)}")
                e(f"v_cvt_pk_bf16_f32 {v(O + 2*tt + 1)}, {v(U+2)}, {v(U+3)}")
        O = acc(mt, 4); U = acc(mt, 9)
        e(f"v_cvt_pk_bf16_f32 {v(O)}, {v(U)}, {v(U+1)}")
        e(f"v_cvt_pk_bf16_f32 {v(O+1)}, {v(U+2)}, {v(U+3)}")
        if mt > 0:
            e(f"v_add_u32 v11, {48*1024}, v11")
        e(f"s_cmp_eq_u32 {s(S_SUB)}, 19")
        e(f"s_cbranch_scc1 L_gu_skip{mt}")
        e(f"buffer_store_dwordx4 {v(acc(mt,0),4)}, v11, {s(S_WS,4)}, {s(S_T2)} offen")
        e(f"buffer_store_dwordx4 {v(acc(mt,2),4)}, v11, {s(S_WS,4)}, {s(S_T2)} offen offset:1024")
        e.label(f"L_gu_skip{mt}")
        e(f"buffer_store_dwordx2 {v(acc(mt,4),2)}, v11, {s(S_WS,4)}, {s(S_T3)} offen")
        e("s_nop 1")
    stamp(e, 5)
    if STAMP:
        e("s_waitcnt vmcnt(0)"); stamp(e, 6); stamp_flush(e, 7)
    e("s_endpgm")

def epilogue_q(e):
    ep_load_swapped(e)
    e(f"v_lshlrev_b32 v11, 4, {v(V_LANE)}")
    e(f"s_mul_i32 {s(S_T)}, {s(S_WAVE)}, {4*20*1024}")
    e(f"v_add_u32 v11, {s(S_T)}, v11")
    e(f"s_mul_i32 {s(S_T)}, {s(S_RB)}, {16*20*1024}")
    e(f"s_mul_i32 {s(S_T+1)}, {s(S_SUB)}, {5*1024}")
    e(f"s_add_u32 {s(S_T2)}, {s(S_T)}, {s(S_T+1)}")
    e(f"s_add_u32 {s(S_T2)}, {s(S_T2)}, {WS_PQ}")
    e(f"s_add_u32 {s(S_T3)}, {s(S_T2)}, 4096")
    T = 72
    for mt in range(4):
        MR = 16 + 2*mt
        for grp in range(2):
            items = [(ct, hh) for ct in range(grp*5, grp*5 + 5) for hh in range(2)]
            for (ct, hh) in items:
                A = acc(mt, ct) + 2*hh
                e(f"v_pk_fma_f32 {v(A,2)}, {v(32 + 4*ct + 2*hh,2)}, {v(MR,2)}, {v(A,2)} op_sel_hi:[1,0,1] neg_lo:[0,1,0] neg_hi:[0,1,0]")
            for (ct, hh) in items:
                A = acc(mt, ct) + 2*hh
                e(f"v_pk_fma_f32 {v(A,2)}, {v(A,2)}, {v(MR,2)}, {s(S_EPS6,2)} op_sel:[0,1,0] op_sel_hi:[1,1,1]")
            for k, (ct, hh) in enumerate(items):
                A = acc(mt, ct) + 2*hh
                e(f"v_pk_mul_f32 {v(T + 2*k,2)}, {v(A,2)}, {s(S_L2E,2)}")
            for k in range(10):
                e(f"v_exp_f32_e64 {v(T + 2*k)}, {v(T + 2*k)} clamp"); e(f"v_exp_f32_e64 {v(T + 2*k + 1)}, {v(T + 2*k + 1)} clamp")
            for (ct, hh) in items:
                A = acc(mt, ct) + 2*hh
                e(f"v_max_f32 {v(A)}, {s(S_EPS6)}, {v(A)}"); e(f"v_max_f32 {v(A+1)}, {s(S_EPS6)}, {v(A+1)}")
            for k, (ct, hh) in enumerate(items):
                A = acc(mt, ct) + 2*hh
                e(f"v_pk_add_f32 {v(A,2)}, {v(A,2)}, {v(T + 2*k,2)}")
        for pp in range(5):
            O = acc(mt, 2*pp); A0 = acc(mt, 2*pp); A1 = acc(mt, 2*pp + 1)
            e(f"v_cvt_pk_bf16_f32 {v(O)}, {v(A0)}, {v(A0+1)}")
            e(f"v_cvt_pk_bf16_f32 {v(O+1)}, {v(A0+2)}, {v(A0+3)}")
            e(f"v_cvt_pk_bf16_f32 {v(O+2)}, {v(A1)}, {v(A1+1)}")
            e(f"v_cvt_pk_bf16_f32 {v(O+3)}, {v(A1+2)}, {v(A1+3)}")
        if mt > 0:
            e(f"v_add_u32 v11, {20*1024}, v11")
        for pp in range(5):
            if pp < 4:
                e(f"buffer_store_dwordx4 {v(acc(mt,2*pp),4)}, v11, {s(S_WS,4)}, {s(S_T2)} offen offset:{pp*1024}")
            else:
                e(f"buffer_store_dwordx4 {v(acc(mt,2*pp),4)}, v11, {s(S_WS,4)}, {s(S_T3)} offen")
        e("s_nop 1")
    stamp(e, 5)
    if STAMP:
        e("s_waitcnt vmcnt(0)"); stamp(e, 6); stamp_flush(e, 7)
    e("s_endpgm")

KV_TILES = [(0,0),(0,1),(1,0),(1,1),(1,2),(2,1),(2,2),(2,3),(3,2),(3,3),(3,4),(4,3),(4,4)]

def epilogue_kv(e):
    MV = 16; RV = 32; CS = 48; T = 60
    e(f"s_lshl_b32 {s(S_T)}, {s(S_WAVE)}, 8")
    e(f"v_lshlrev_b32 v11, 4, {v(V_G)}")
    e(f"v_add_u32 v11, {s(S_T)}, v11")
    e(f"v_add_u32 v11, {LDS_STATS}, v11")
    for mt in range(4):
        e(f"ds_read_b128 {v(MV + 4*mt, 4)}, v11 offset:{mt*64}")
        e(f"ds_read_b128 {v(RV + 4*mt, 4)}, v11 offset:{1024 + mt*64}")
    e(f"v_lshlrev_b32 v12, 2, {v(V_I)}")
    e(f"v_add_u32 v12, {LDS_CS}, v12")
    e("s_waitcnt lgkmcnt(4)")
    for ct in range(10):
        e(f"ds_read_b32 {v(CS + ct)}, v12 offset:{ct*64}")
    e("s_waitcnt lgkmcnt(0)")
    def cs_mod(ct):
        if ct % 2 == 0: return v(CS + ct, 2), 0, 0
        return v(CS + ct - 1, 2), 1, 1
    for mt in range(4):
        kk, odd = divmod(mt, 2)
        items = [(ct, hh) for ct in range(5) for hh in range(2)]
        allit = [(ct, hh) for ct in range(10) for hh in range(2)]
        for (ct, hh) in allit:
            A = acc(mt, ct) + 2*hh
            c, o, oh = cs_mod(ct)
            e(f"v_pk_fma_f32 {v(A,2)}, {v(MV + 4*mt + 2*hh,2)}, {c}, {v(A,2)} op_sel:[0,{o},0] op_sel_hi:[1,{oh},1] neg_lo:[0,1,0] neg_hi:[0,1,0]")
        for (ct, hh) in items:
            A = acc(mt, ct) + 2*hh
            e(f"v_pk_fma_f32 {v(A,2)}, {v(A,2)}, {v(RV + 4*mt + 2*hh,2)}, {s(S_EPS6,2)}")
        for (ct, hh) in items:
            A = acc(mt, ct + 5) + 2*hh
            e(f"v_pk_mul_f32 {v(A,2)}, {v(A,2)}, {v(RV + 4*mt + 2*hh,2)}")
        for k, (ct, hh) in enumerate(items):
            A = acc(mt, ct) + 2*hh
            e(f"v_pk_mul_f32 {v(T + 2*k,2)}, {v(A,2)}, {s(S_L2E,2)}")
        for k in range(10):
            e(f"v_exp_f32_e64 {v(T + 2*k)}, {v(T + 2*k)} clamp"); e(f"v_exp_f32_e64 {v(T + 2*k + 1)}, {v(T + 2*k + 1)} clamp")
        for (ct, hh) in items:
            A = acc(mt, ct) + 2*hh
            e(f"v_max_f32 {v(A)}, {s(S_EPS6)}, {v(A)}"); e(f"v_max_f32 {v(A+1)}, {s(S_EPS6)}, {v(A+1)}")
        for k, (ct, hh) in enumerate(items):
            A = acc(mt, ct) + 2*hh
            e(f"v_pk_add_f32 {v(A,2)}, {v(A,2)}, {v(T + 2*k,2)}")
        for ct in range(10):
            A = acc(mt, ct); O = acc(2*kk, ct) + 2*odd
            e(f"v_cvt_pk_bf16_f32 {v(O)}, {v(A)}, {v(A+1)}")
            e(f"v_cvt_pk_bf16_f32 {v(O+1)}, {v(A+2)}, {v(A+3)}")
    free = [acc(1, ct) for ct in range(10)] + [acc(3, ct) for ct in range(10)]
    ONES = 16
    for r in range(4): e(f"v_mov_b32 {v(ONES + r)}, 0x3f803f80")
    e("s_nop 1")
    D = {}
    for n, (te, td) in enumerate(KV_TILES):
        D[(te, td)] = free[n]
        for kk in range(2):
            c = "0" if kk == 0 else v(free[n], 4)
            e(f"v_mfma_f32_16x16x32_bf16 {v(free[n],4)}, {v(acc(2*kk, 5 + te),4)}, {v(acc(2*kk, td),4)}, {c}")
    Z = {}
    for td in range(5):
        Z[td] = free[13 + td]
        for kk in range(2):
            c = "0" if kk == 0 else v(Z[td], 4)
            e(f"v_mfma_f32_16x16x32_bf16 {v(Z[td],4)}, {v(ONES,4)}, {v(acc(2*kk, td),4)}, {c}")
    e(f"s_mul_i32 {s(S_T)}, {s(S_WAVE)}, {18*1024}")
    e(f"v_lshlrev_b32 v11, 4, {v(V_LANE)}")
    e(f"v_add_u32 v11, {s(S_T)}, v11")
    e(f"v_add_u32 v11, {LDS_KVS}, v11")
    e("s_nop 4")
    for nn in range(18):
        e(f"ds_write_b128 v11, {v(free[nn],4)} offset:{nn*1024}")
    e("s_waitcnt lgkmcnt(0)")

def kv_final(e):
    TE = 0; TD = 0
    for n, (te, td) in enumerate(KV_TILES):
        TE |= te << (4*n); TD |= td << (4*n)
    e.label("L_kv_final")
    e("s_barrier")
    e(f"s_mul_i32 {s(S_T4)}, {s(S_SUB)}, 6720")
    e(f"s_add_u32 {s(S_T4)}, {s(S_T4)}, {WS_KV}")
    e(f"s_mov_b32 {s(S_CNT)}, {s(S_WAVE)}")
    e(f"v_lshlrev_b32 v16, 4, {v(V_LANE)}")
    e(f"v_add_u32 v16, {LDS_KVS}, v16")
    e.label("L_kvf_loop")
    e(f"s_lshl_b32 {s(S_T)}, {s(S_CNT)}, 10")
    e(f"v_add_u32 v17, {s(S_T)}, v16")
    for w in range(4):
        e(f"ds_read_b128 {v(20 + 4*w,4)}, v17 offset:{w*18*1024}")
    e(f"s_cmp_ge_u32 {s(S_CNT)}, 13"); e("s_cbranch_scc1 L_kvf_z")
    e(f"s_lshl_b32 {s(S_T)}, {s(S_CNT)}, 2")
    e(f"s_mov_b32 s68, {TE & 0xffffffff}"); e(f"s_mov_b32 s69, {TE >> 32}")
    e(f"s_lshr_b64 s[68:69], s[68:69], {s(S_T)}"); e(f"s_and_b32 {s(S_T+1)}, s68, 15")
    e(f"s_mov_b32 s68, {TD & 0xffffffff}"); e(f"s_mov_b32 s69, {TD >> 32}")
    e(f"s_lshr_b64 s[68:69], s[68:69], {s(S_T)}"); e(f"s_and_b32 {s(S_T+2)}, s68, 15")
    e(f"s_lshl_b32 {s(S_T+1)}, {s(S_T+1)}, 2"); e(f"s_lshl_b32 {s(S_T+2)}, {s(S_T+2)}, 4")
    e(f"v_add_u32 v11, {s(S_T+1)}, {v(V_G)}")
    e(f"v_mul_u32_u24 v12, 52, v11"); e(f"v_lshrrev_b32 v12, 8, v12")
    e(f"v_lshlrev_b32 v11, 2, v11"); e(f"v_sub_u32 v11, v11, v12"); e(f"v_mul_u32_u24 v11, 80, v11")
    e(f"v_add_u32 v13, {s(S_T+2)}, {v(V_I)}")
    e(f"v_mul_u32_u24 v14, 205, v13"); e(f"v_lshrrev_b32 v14, 12, v14")
    e(f"v_cmp_eq_u32 vcc, v12, v14")
    e(f"v_lshlrev_b32 v13, 2, v13")
    e(f"v_add_u32 v11, v11, v13")
    e(f"v_mov_b32 v12, 0x7ffffff0")
    e(f"v_cndmask_b32 v11, v12, v11, vcc")
    e("s_waitcnt lgkmcnt(0)")
    for h in range(2):
        e(f"v_pk_add_f32 {v(20+2*h,2)}, {v(20+2*h,2)}, {v(24+2*h,2)}")
        e(f"v_pk_add_f32 {v(28+2*h,2)}, {v(28+2*h,2)}, {v(32+2*h,2)}")
    for h in range(2):
        e(f"v_pk_add_f32 {v(20+2*h,2)}, {v(20+2*h,2)}, {v(28+2*h,2)}")
    for r in range(4):
        e(f"buffer_atomic_add_f32 {v(20 + r)}, v11, {s(S_WS,4)}, {s(S_T4)} offen offset:{80*r}")
    e("s_branch L_kvf_next")
    e.label("L_kvf_z")
    e(f"s_sub_u32 {s(S_T)}, {s(S_CNT)}, 13"); e(f"s_lshl_b32 {s(S_T)}, {s(S_T)}, 6")
    e(f"v_lshlrev_b32 v11, 2, {v(V_I)}")
    e(f"v_add_u32 v11, {s(S_T)}, v11")
    e(f"v_add_u32 v11, 6400, v11")
    e(f"v_cmp_eq_u32 vcc, 0, {v(V_G)}")
    e(f"v_mov_b32 v12, 0x7ffffff0")
    e("s_nop 0")
    e(f"v_cndmask_b32 v11, v12, v11, vcc")
    e("s_waitcnt lgkmcnt(0)")
    e("v_add_f32 v20, v20, v24"); e("v_add_f32 v28, v28, v32"); e("v_add_f32 v20, v20, v28")
    e(f"buffer_atomic_add_f32 v20, v11, {s(S_WS,4)}, {s(S_T4)} offen")
    e.label("L_kvf_next")
    e(f"s_add_u32 {s(S_CNT)}, {s(S_CNT)}, 8")
    e(f"s_cmp_lt_u32 {s(S_CNT)}, 18")
    e("s_cbranch_scc1 L_kvf_loop")
    e.label("L_k1_end2")
    if STAMP:
        stamp(e, 5)
        e("s_waitcnt vmcnt(0)"); stamp(e, 6); stamp_flush(e, 7)
    e.label("L_k1_end")
    e("s_endpgm")

def gen_k1(e, opts=None):
    opts = opts or {}
    global STAMP
    STAMP = opts.get("stamp", False)
    OPTS.clear(); OPTS.update(opts)
    e.raw(".globl k1_kernel"); e.raw(".p2align 8"); e.raw(".type k1_kernel,@function"); e.label("k1_kernel")
    setup_common(e)
    e(f"s_cmp_ge_u32 {s(S_WAVE)}, 4")
    e("s_cbranch_scc1 L_producers")
    consumer_setup(e)
    e(f"s_setprio {OPTS.get('cprio', 2)}")
    e(f"s_cmp_eq_u32 {s(S_TYPE)}, 1")
    e("s_cbranch_scc1 L_cons_kv")
    for w in range(4):
        if w < 3:
            e(f"s_cmp_eq_u32 {s(S_WAVE)}, {w}"); e(f"s_cbranch_scc0 L_sw_n{w}")
        consumer_loop(e, True, f"sw{w}", w)
        if w < 3:
            e("s_branch L_sw_done"); e.label(f"L_sw_n{w}")
    e.label("L_sw_done")
    e("s_barrier")
    stamp(e, 4)
    e(f"s_cmp_eq_u32 {s(S_TYPE)}, 0")
    e("s_cbranch_scc1 L_epi_q")
    epilogue_gu(e)
    e.label("L_epi_q")
    epilogue_q(e)
    e.label("L_cons_kv")
    for w in range(4):
        if w < 3:
            e(f"s_cmp_eq_u32 {s(S_WAVE)}, {w}"); e(f"s_cbranch_scc0 L_ns_n{w}")
        consumer_loop(e, False, f"ns{w}", w)
        if w < 3:
            e("s_branch L_ns_done"); e.label(f"L_ns_n{w}")
    e.label("L_ns_done")
    e("s_barrier")
    stamp(e, 4)
    epilogue_kv(e)
    kv_final(e)
    e.label("L_producers")
    e(f"s_cmp_eq_u32 {s(S_WAVE)}, 5"); e("s_cbranch_scc1 L_prod1")
    e(f"s_cmp_eq_u32 {s(S_WAVE)}, 6"); e("s_cbranch_scc1 L_prod2")
    e(f"s_cmp_eq_u32 {s(S_WAVE)}, 7"); e("s_cbranch_scc1 L_prod3")
    dma_wave(e, 0)
    e.label("L_prod1"); dma_wave(e, 1)
    e.label("L_prod2"); helper0(e, opts)
    e.label("L_prod3"); helper1(e, opts)
```

```python
from asmlib import *
import k1
from k1 import WS_PQ, WS_H, WS_KV, WS_WF, WS_USED

LDS_WAVE = 20480
ZBASE = 13440
LDS_TOTAL = 4 * LDS_WAVE
OPTS = {}
D = 3

S_X = 8; S_WS = 20; S_OUT = 24
S_RB = 28; S_CB = 29; S_W = 30; S_LB = 31
S_T = 32
S_BO = 40
S_HO = 41
S_CNT = 44
S_PQO = 45
S_EPS = 46

V_LANE = 1; V_I = 2; V_G = 3
V_HV = 9
V_ZA = 11
V_T = 12
V_HVM = 16
V_KVT = 20
V_HE = 128
V_NUM = 176
V_DEN = 216
V_RC = 228
V_TMP = 240
V_O = 64
A_ACC = 0
A_BUF = 80
A_PQ = 80 + 36*D
def acc(mt, ct): return A_ACC + (ct * 4 + mt) * 4
def bufA(k, mt): return A_BUF + 36*k + 4*mt
def bufB(k, ct): return A_BUF + 36*k + 16 + 4*ct

NUM = [(0,0),(1,0),(1,1),(2,0),(2,1),(3,1),(3,2),(4,1),(4,2),(5,2),(5,3),(6,2),(6,3),(7,3),(7,4),(8,3),(8,4),(9,4)]
DEN = [(0,0),(0,1),(0,2),(1,1),(1,2),(1,3),(1,4),(2,3),(2,4)]

def stamp(e, idx):
    if OPTS.get("stamp"):
        e(f"s_memtime {s(70 + 2*idx, 2)}")
        e("s_waitcnt lgkmcnt(0)")

def load_b(e, k):
    for ct in range(5):
        if ct < 4:
            e(f"buffer_load_dwordx4 {a(bufB(k, ct),4)}, {v(V_HV)}, {s(S_WS,4)}, {s(S_BO)} offen offset:{ct*1024}")
        else:
            e(f"s_add_u32 {s(S_T)}, {s(S_BO)}, 4096")
            e(f"buffer_load_dwordx4 {a(bufB(k, ct),4)}, {v(V_HV)}, {s(S_WS,4)}, {s(S_T)} offen")
    e(f"s_add_u32 {s(S_BO)}, {s(S_BO)}, {8*5120}")

def load_h(e, k):
    for mt in range(4):
        e(f"buffer_load_dwordx4 {a(bufA(k, mt),4)}, {v(V_HVM + mt)}, {s(S_WS,4)}, {s(S_HO)} offen")
    e(f"s_add_u32 {s(S_HO)}, {s(S_HO)}, 1024")

def load_pq(e, set_):
    for p in range(5):
        if p < 4:
            e(f"buffer_load_dwordx4 {a(A_PQ + set_*20 + 4*p,4)}, {v(V_HV)}, {s(S_WS,4)}, {s(S_PQO)} offen offset:{p*1024}")
        else:
            e(f"s_add_u32 {s(S_T)}, {s(S_PQO)}, 4096")
            e(f"buffer_load_dwordx4 {a(A_PQ + set_*20 + 4*p,4)}, {v(V_HV)}, {s(S_WS,4)}, {s(S_T)} offen")
    e(f"s_add_u32 {s(S_PQO)}, {s(S_PQO)}, {20*1024}")

def load_kv(e):
    e(f"s_mul_i32 {s(S_T)}, {s(S_W)}, 13440"); e(f"s_add_u32 {s(S_T)}, {s(S_T)}, {WS_KV}")
    for k in range(14):
        if k == 13:
            e(f"v_cmp_gt_u32 vcc, 8, {v(V_LANE)}"); e(f"s_and_saveexec_b64 s[36:37], vcc")
        e(f"s_add_u32 m0, {s(S_LB)}, {k*1024}")
        e(f"s_add_u32 {s(S_T+2)}, {s(S_T)}, {k*1024}")
        e(f"buffer_load_dwordx4 {v(V_HV)}, {s(S_WS,4)}, {s(S_T+2)} offen lds")
        if k == 13: e("s_mov_b64 exec, s[36:37]")

def mfma_step(e, k, a_from_lds=None):
    for ct in range(5):
        for mt in range(4):
            A = acc(mt, ct)
            bop = a(bufA(k, mt), 4) if a_from_lds is None else v(V_O + a_from_lds*16 + 4*mt, 4)
            e(f"v_mfma_f32_16x16x32_bf16 {a(A,4)}, {a(bufB(k, ct),4)}, {bop}, {a(A,4)}")

def precompute(e):
    for r in range(4): e(f"v_mov_b32 {v(V_TMP + r)}, 0")
    e(f"v_add_u32 {v(V_T)}, {s(S_LB)}, {v(V_HV)}")
    e(f"v_cmp_gt_u32 vcc, 44, {v(V_LANE)}"); e(f"s_and_saveexec_b64 s[36:37], vcc")
    e(f"ds_write_b128 {v(V_T)}, {v(V_TMP,4)} offset:{ZBASE}")
    e("s_mov_b64 exec, s[36:37]")
    e(f"v_lshlrev_b32 {v(V_T+3)}, 4, {v(V_G)}")
    for t in range(10):
        e(f"v_add_u32 {v(V_T)}, {16*t}, {v(V_I)}")
        e(f"v_mul_u32_u24 {v(V_HE + t)}, 205, {v(V_T)}"); e(f"v_lshrrev_b32 {v(V_HE + t)}, 12, {v(V_HE + t)}")
        e(f"v_sub_u32 {v(V_T)}, {v(V_T)}, {v(V_HE + t)}"); e(f"v_mul_u32_u24 {v(V_T)}, 80, {v(V_T)}")
        e(f"v_lshrrev_b32 {v(V_T+1)}, 2, {v(V_HE + t)}"); e(f"v_mul_u32_u24 {v(V_T+1)}, 320, {v(V_T+1)}")
        e(f"v_add3_u32 {v(V_T)}, {v(V_T)}, {v(V_T+1)}, {v(V_T+3)}")
        e(f"v_add_u32 {v(V_HE + 10 + t)}, {s(S_LB)}, {v(V_T)}")
    for wh in range(10):
        e(f"v_add_u32 {v(V_T)}, {4*wh}, {v(V_G)}")
        e(f"v_mul_u32_u24 {v(V_HE + 20 + wh)}, 52, {v(V_T)}"); e(f"v_lshrrev_b32 {v(V_HE + 20 + wh)}, 8, {v(V_HE + 20 + wh)}")
        e(f"v_lshrrev_b32 {v(V_T+1)}, 2, {v(V_HE + 20 + wh)}"); e(f"v_mul_u32_u24 {v(V_T+1)}, 6400, {v(V_T+1)}")
        e(f"v_add3_u32 {v(V_T+1)}, {v(V_T+1)}, {v(V_T+3)}, {s(S_LB)}")
        e(f"v_add_u32 {v(V_HE + 30 + wh)}, 6400, {v(V_T+1)}")
    for u in range(3):
        e(f"v_and_b32 {v(V_T)}, 3, {v(V_I)}"); e(f"v_lshlrev_b32 {v(V_T)}, 2, {v(V_T)}")
        e(f"v_lshrrev_b32 {v(V_T+1)}, 2, {v(V_I)}")
        e(f"v_add3_u32 {v(V_T)}, {v(V_T)}, {v(V_T+1)}, {16*u}")
        e(f"v_mul_u32_u24 {v(V_HE + 40 + u)}, 52, {v(V_T)}"); e(f"v_lshrrev_b32 {v(V_HE + 40 + u)}, 8, {v(V_HE + 40 + u)}")
    e(f"s_add_u32 {s(S_T)}, {s(S_LB)}, {ZBASE}")
    e(f"v_mov_b32 {v(V_ZA)}, {s(S_T)}")

def build_frags(e):
    lq = Queue(e, "lgkmcnt", 15)
    frs = [("n", t, w) for (t, w) in NUM] + [("d", u, w) for (u, w) in DEN]
    halves = []
    for fi, (kind, t, w) in enumerate(frs):
        for hf in range(2):
            wh = 2*w + hf
            hsrc = V_HE + t if kind == "n" else V_HE + 40 + t
            asrc = V_HE + 10 + t if kind == "n" else V_HE + 30 + wh
            halves.append((fi, hf, wh, hsrc, asrc))
    M = [48, 50, 52, 54]
    def cmp(hi):
        fi, hf, wh, hsrc, asrc = halves[hi]
        e(f"v_cmp_eq_u32 {s(M[hi % 4],2)}, {v(hsrc)}, {v(V_HE + 20 + wh)}")
    def rd(hi):
        fi, hf, wh, hsrc, asrc = halves[hi]
        tb = V_TMP + (fi % 2) * 8
        ad = V_T + (hi % 2)
        e(f"v_cndmask_b32 {v(ad)}, {v(V_ZA)}, {v(asrc)}, {s(M[hi % 4],2)}")
        e(f"ds_read_b128 {v(tb + 4*hf, 4)}, {v(ad)} offset:{64*wh}")
        lq.issue(("f", fi))
    def fin(fi):
        lq.wait(("f", fi))
        tb = V_TMP + (fi % 2) * 8
        R = V_KVT + 4*fi
        for k in range(4):
            e(f"v_cvt_pk_bf16_f32 {v(R + k)}, {v(tb + 2*k)}, {v(tb + 2*k + 1)}")
    n = len(halves)
    cmp(0); cmp(1); cmp(2)
    for hi in range(n):
        if hi + 3 < n: cmp(hi + 3)
        else: e("s_nop 0")
        rd(hi)
        fi, hf = halves[hi][0], halves[hi][1]
        if hf == 1 and fi >= 1: fin(fi - 1)
    fin(len(frs) - 1)

def o_compute(e, set_):
    PQ = A_PQ + set_*20
    for n_, (u, w) in enumerate(DEN):
        fi = 18 + n_
        first = (n_ == 0 or DEN[n_-1][0] != u)
        c = "0" if first else v(V_DEN + 4*u, 4)
        e(f"v_mfma_f32_16x16x32_bf16 {v(V_DEN + 4*u,4)}, {v(V_KVT + 4*fi,4)}, {a(PQ + 4*w,4)}, {c}")
    for fi, (t, w) in enumerate(NUM):
        first = (fi == 0 or NUM[fi-1][0] != t)
        c = "0" if first else v(V_NUM + 4*t, 4)
        e(f"v_mfma_f32_16x16x32_bf16 {v(V_NUM + 4*t,4)}, {v(V_KVT + 4*fi,4)}, {a(PQ + 4*w,4)}, {c}")
        if 2 <= fi < 12:
            t2 = fi - 2
            e(f"v_add_f32 {v(V_RC + t2)}, {s(S_EPS)}, {v(V_DEN + 4*(t2 >> 2) + (t2 & 3))}")
        if 4 <= fi < 14:
            t2 = fi - 4
            e(f"v_rcp_f32 {v(V_RC + t2)}, {v(V_RC + t2)}")

def o_finish(e):
    for p in range(5):
        for t in (2*p, 2*p + 1):
            N = V_NUM + 4*t
            r = V_RC + t
            if r % 2 == 0: pr, o, oh = v(r,2), 0, 0
            else: pr, o, oh = v(r-1,2), 1, 1
            e(f"v_pk_mul_f32 {v(N,2)}, {v(N,2)}, {pr} op_sel:[0,{o}] op_sel_hi:[1,{oh}]")
            e(f"v_pk_mul_f32 {v(N+2,2)}, {v(N+2,2)}, {pr} op_sel:[0,{o}] op_sel_hi:[1,{oh}]")
        O = V_NUM + 8*p
        e(f"v_cvt_pk_bf16_f32 {v(O)}, {v(O)}, {v(O+1)}")
        e(f"v_cvt_pk_bf16_f32 {v(O+1)}, {v(O+2)}, {v(O+3)}")
        e(f"v_cvt_pk_bf16_f32 {v(O+2)}, {v(O+4)}, {v(O+5)}")
        e(f"v_cvt_pk_bf16_f32 {v(O+3)}, {v(O+6)}, {v(O+7)}")
        e(f"ds_write_b128 {v(V_T+2)}, {v(O,4)} offset:{p*1024}")
    e(f"v_add_u32 {v(V_T+2)}, {5*1024}, {v(V_T+2)}")

def phase_a(e):
    stamp(e, 2)
    e("s_waitcnt lgkmcnt(0)")
    build_frags(e)
    stamp(e, 3)
    e(f"s_mov_b32 {s(S_EPS)}, {f32(1e-6)}")
    e(f"v_add_u32 {v(V_T+2)}, {s(S_LB)}, {v(V_HV)}")
    e(f"s_mov_b32 {s(S_CNT)}, 2")
    e.label("L_k2_oloop")
    for set_ in range(2):
        o_compute(e, set_)
        e(f"s_cmp_eq_u32 {s(S_CNT)}, 2"); e(f"s_cbranch_scc0 L_k2_nopq{set_}")
        load_pq(e, set_)
        e.label(f"L_k2_nopq{set_}")
        o_finish(e)
        if set_ == 0:
            e(f"s_cmp_eq_u32 {s(S_CNT)}, 1"); e("s_cbranch_scc0 L_k2_now1")
            e(f"s_waitcnt vmcnt(0)")
            e.label("L_k2_now1")
    e(f"s_sub_u32 {s(S_CNT)}, {s(S_CNT)}, 1")
    e(f"s_cmp_eq_u32 {s(S_CNT)}, 0"); e("s_cbranch_scc1 L_k2_odone")
    e("s_waitcnt vmcnt(5)")
    e("s_branch L_k2_oloop")
    e.label("L_k2_odone")
    stamp(e, 4)

def gen_k2(e, opts=None):
    opts = opts or {}
    OPTS.clear(); OPTS.update(opts)
    e.raw(".globl k2_kernel"); e.raw(".p2align 8"); e.raw(".type k2_kernel,@function"); e.label("k2_kernel")
    e("s_cmp_ge_u32 s2, 256")
    e("s_cbranch_scc1 L_k2_end")
    e("s_load_dwordx2 s[4:5], s[0:1], 0")
    e("s_load_dwordx2 s[50:51], s[0:1], 56")
    e("s_load_dwordx2 s[52:53], s[0:1], 72")
    if opts.get("stamp"): e(f"s_memtime {s(70,2)}"); e("s_memrealtime s[86:87]"); e("s_load_dwordx2 s[90:91], s[0:1], 64")
    e("v_lshrrev_b32 v4, 6, v0")
    e(f"v_and_b32 {v(V_LANE)}, 63, v0")
    e(f"v_readfirstlane_b32 {s(S_W)}, v4")
    e(f"v_and_b32 {v(V_I)}, 15, {v(V_LANE)}")
    e(f"v_lshrrev_b32 {v(V_G)}, 4, {v(V_LANE)}")
    e(f"s_and_b32 {s(S_T)}, s2, 7"); e(f"s_lshr_b32 {s(S_T+1)}, s2, 3")
    e(f"s_lshr_b32 {s(S_RB)}, {s(S_T)}, 1"); e(f"s_lshl_b32 {s(S_RB)}, {s(S_RB)}, 3")
    e(f"s_and_b32 {s(S_T+2)}, {s(S_T+1)}, 7"); e(f"s_add_u32 {s(S_RB)}, {s(S_RB)}, {s(S_T+2)}")
    e(f"s_and_b32 {s(S_CB)}, {s(S_T)}, 1"); e(f"s_lshl_b32 {s(S_CB)}, {s(S_CB)}, 2")
    e(f"s_lshr_b32 {s(S_T+2)}, {s(S_T+1)}, 3"); e(f"s_add_u32 {s(S_CB)}, {s(S_CB)}, {s(S_T+2)}")
    e(f"s_mul_i32 {s(S_LB)}, {s(S_W)}, {LDS_WAVE}")
    e(f"v_lshlrev_b32 {v(V_HV)}, 4, {v(V_LANE)}")
    for mt in range(4):
        e(f"v_add_u32 {v(V_HVM + mt)}, {mt*48*1024}, {v(V_HV)}")
    e(f"s_mul_i32 {s(S_PQO)}, {s(S_RB)}, {4*20*1024}"); e(f"s_mul_i32 {s(S_T)}, {s(S_W)}, {5*1024}")
    e(f"s_add_u32 {s(S_PQO)}, {s(S_PQO)}, {s(S_T)}"); e(f"s_add_u32 {s(S_PQO)}, {s(S_PQO)}, {WS_PQ}")
    e(f"s_mul_i32 {s(S_BO)}, {s(S_W)}, {12*8*5120}"); e(f"s_mul_i32 {s(S_T)}, {s(S_CB)}, 5120"); e(f"s_add_u32 {s(S_BO)}, {s(S_BO)}, {s(S_T)}")
    e(f"s_add_u32 {s(S_BO)}, {s(S_BO)}, {WS_WF}")
    e(f"s_mul_i32 {s(S_HO)}, {s(S_RB)}, {4*48*1024}"); e(f"s_mul_i32 {s(S_T)}, {s(S_W)}, {12*1024}")
    e(f"s_add_u32 {s(S_HO)}, {s(S_HO)}, {s(S_T)}"); e(f"s_add_u32 {s(S_HO)}, {s(S_HO)}, {WS_H}")
    e("s_waitcnt lgkmcnt(0)")
    e(f"s_mov_b32 {s(S_WS)}, s52"); e(f"s_mov_b32 {s(S_WS+1)}, s53"); e(f"s_mov_b32 {s(S_WS+2)}, {WS_USED if not opts.get('stamp') else 0x2000000}"); e(f"s_mov_b32 {s(S_WS+3)}, 0x20000")
    e(f"s_mov_b32 {s(S_X)}, s4"); e(f"s_mov_b32 {s(S_X+1)}, s5"); e(f"s_mov_b32 {s(S_X+2)}, 2621440"); e(f"s_mov_b32 {s(S_X+3)}, 0x20000")
    e(f"s_mov_b32 {s(S_OUT)}, s50"); e(f"s_mov_b32 {s(S_OUT+1)}, s51"); e(f"s_mov_b32 {s(S_OUT+2)}, 2621440"); e(f"s_mov_b32 {s(S_OUT+3)}, 0x20000")
    afirst = "s_cmp_lt_u32 {} , {}"
    nA = OPTS.get("nafirst", 2)
    e(f"s_cmp_lt_u32 {s(S_W)}, {nA}"); e("s_cbranch_scc0 L_k2_proF")
    load_kv(e); load_pq(e, 0); load_pq(e, 1)
    for k in range(D):
        load_b(e, k); load_h(e, k)
    stamp(e, 1)
    precompute(e)
    for r in range(80): e(f"v_accvgpr_write_b32 {a(A_ACC + r)}, 0")
    e(f"s_waitcnt vmcnt({9*D})")
    e("s_branch L_k2_A")
    e.label("L_k2_proF")
    for k in range(D):
        load_b(e, k); load_h(e, k)
    stamp(e, 1)
    for r in range(80): e(f"v_accvgpr_write_b32 {a(A_ACC + r)}, 0")
    e("s_branch L_k2_F")
    e.label("L_k2_A")
    phase_a(e)
    e(f"s_cmp_lt_u32 {s(S_W)}, {nA}"); e("s_cbranch_scc0 L_k2_T")
    e.label("L_k2_F")
    e(f"s_mov_b32 {s(S_CNT)}, 3")
    e.label("L_k2_floop")
    for k in range(D):
        e(f"s_waitcnt vmcnt({9*(D-1)})")
        mfma_step(e, k)
        load_b(e, k); load_h(e, k)
    e(f"s_sub_u32 {s(S_CNT)}, {s(S_CNT)}, 1")
    e(f"s_cmp_lg_u32 {s(S_CNT)}, 0"); e("s_cbranch_scc1 L_k2_floop")
    e(f"s_mul_i32 {s(S_BO)}, {s(S_W)}, {5*8*5120}"); e(f"s_mul_i32 {s(S_T)}, {s(S_CB)}, 5120"); e(f"s_add_u32 {s(S_BO)}, {s(S_BO)}, {s(S_T)}")
    e(f"s_add_u32 {s(S_BO)}, {s(S_BO)}, {WS_WF + 48*8*5120}")
    e(f"s_cmp_lt_u32 {s(S_W)}, {nA}"); e("s_cbranch_scc0 L_k2_tailF")
    for k in range(D):
        e(f"s_waitcnt vmcnt({(D-1-k)*9 + k*5})")
        mfma_step(e, k)
        load_b(e, k)
    stamp(e, 5)
    e("s_branch L_k2_T")
    e.label("L_k2_tailF")
    load_kv(e); load_pq(e, 0); load_pq(e, 1)
    for k in range(D):
        e(f"s_waitcnt vmcnt({(D-1-k)*9 + k*5 + 24})")
        mfma_step(e, k)
        load_b(e, k)
        if k == 0: precompute(e)
    stamp(e, 5)
    e("s_waitcnt vmcnt(15)")
    e("s_branch L_k2_A")
    e.label("L_k2_T")
    e(f"v_add_u32 {v(V_T+2)}, {s(S_LB)}, {v(V_HV)}")
    lq = Queue(e, "lgkmcnt", 15)
    def read_o(p):
        for mt in range(4):
            e(f"ds_read_b128 {v(V_O + (p % 2)*16 + 4*mt,4)}, {v(V_T+2)} offset:{(mt*5 + p)*1024}")
            lq.issue(("o", p))
    read_o(0)
    vmw = [10, 10, 10, 5, 0]
    for p in range(5):
        if p + 1 < 5: read_o(p + 1)
        e(f"s_waitcnt vmcnt({vmw[p]})")
        lq.wait(("o", p))
        mfma_step(e, p % D, a_from_lds=p % 2)
        if p + D < 5: load_b(e, p % D)
    stamp(e, 6)
    e("s_nop 7")
    e("s_barrier")
    e(f"s_mul_i32 {s(S_T)}, {s(S_W)}, {20*1024}")
    e(f"v_add_u32 {v(V_T)}, {s(S_T)}, {v(V_HV)}")
    e(f"s_lshl_b32 {s(S_T)}, {s(S_RB)}, 6"); e(f"s_lshl_b32 {s(S_T+1)}, {s(S_W)}, 4"); e(f"s_add_u32 {s(S_T)}, {s(S_T)}, {s(S_T+1)}")
    e(f"v_add_u32 {v(V_T+1)}, {s(S_T)}, {v(V_I)}"); e(f"v_mul_u32_u24 {v(V_T+1)}, 1280, {v(V_T+1)}")
    e(f"v_lshlrev_b32 {v(V_T+3)}, 3, {v(V_G)}"); e(f"v_add_u32 {v(V_T+1)}, {v(V_T+1)}, {v(V_T+3)}")
    e(f"s_mul_i32 {s(S_T+2)}, {s(S_CB)}, 160")
    for ct in range(5):
        e(f"buffer_load_dwordx2 {v(100 + 2*ct,2)}, {v(V_T+1)}, {s(S_X,4)}, {s(S_T+2)} offen offset:{ct*32}")
    for mt in range(4):
        for ct in range(5):
            e(f"ds_write_b128 {v(V_T)}, {a(acc(mt,ct),4)} offset:{(mt*5 + ct)*1024}")
    e("s_waitcnt lgkmcnt(0)")
    e("s_barrier")
    e(f"s_mul_i32 {s(S_T)}, {s(S_W)}, {5*1024}")
    e(f"v_add_u32 {v(V_T)}, {s(S_T)}, {v(V_HV)}")
    e(f"v_add_u32 {v(V_T+3)}, {2*20*1024}, {v(V_T)}")
    for ct in range(5):
        for ww in range(4):
            ad = V_T if ww < 2 else V_T + 3
            e(f"ds_read_b128 {v(20 + (ct*4 + ww)*4,4)}, {v(ad)} offset:{(ww % 2)*20*1024 + ct*1024}")
        if ct == 2: e("s_waitcnt lgkmcnt(0)")
    e("s_waitcnt vmcnt(0) lgkmcnt(0)")
    for ct in range(5):
        B = 20 + ct*16
        for h in range(2):
            e(f"v_pk_add_f32 {v(B+2*h,2)}, {v(B+2*h,2)}, {v(B+4+2*h,2)}")
            e(f"v_pk_add_f32 {v(B+8+2*h,2)}, {v(B+8+2*h,2)}, {v(B+12+2*h,2)}")
        X = 100 + 2*ct
        e(f"v_lshlrev_b32 {v(B+4)}, 16, {v(X)}"); e(f"v_and_b32 {v(B+5)}, 0xffff0000, {v(X)}")
        e(f"v_lshlrev_b32 {v(B+6)}, 16, {v(X+1)}"); e(f"v_and_b32 {v(B+7)}, 0xffff0000, {v(X+1)}")
        for h in range(2):
            e(f"v_pk_add_f32 {v(B+2*h,2)}, {v(B+2*h,2)}, {v(B+8+2*h,2)}")
        for h in range(2):
            e(f"v_pk_add_f32 {v(B+2*h,2)}, {v(B+2*h,2)}, {v(B+4+2*h,2)}")
        e(f"v_cvt_pk_bf16_f32 {v(B)}, {v(B)}, {v(B+1)}")
        e(f"v_cvt_pk_bf16_f32 {v(B+1)}, {v(B+2)}, {v(B+3)}")
        e(f"buffer_store_dwordx2 {v(B,2)}, {v(V_T+1)}, {s(S_OUT,4)}, {s(S_T+2)} offen offset:{ct*32}")
    if opts.get("stamp"):
        stamp(e, 7)
        e(f"s_lshl_b32 {s(S_T)}, s2, 3"); e(f"s_add_u32 {s(S_T)}, {s(S_T)}, {s(S_W)}"); e(f"s_lshl_b32 {s(S_T)}, {s(S_T)}, 6")
        e(f"s_add_u32 {s(S_T)}, {s(S_T)}, {0x1200000}")
        e(f"v_mov_b32 v14, 0")
        e("s_memrealtime s[88:89]"); e("s_waitcnt lgkmcnt(0)")
        for k in range(8):
            e(f"v_mov_b32 v15, {s(70 + 2*k)}")
            e(f"buffer_store_dword v15, v14, {s(S_WS,4)}, {s(S_T)} offen offset:{4*k}")
            e("s_nop 1")
        e(f"v_mov_b32 v15, s86"); e(f"buffer_store_dword v15, v14, {s(S_WS,4)}, {s(S_T)} offen offset:{4*8}"); e("s_nop 1")
        e(f"v_mov_b32 v15, s88"); e(f"buffer_store_dword v15, v14, {s(S_WS,4)}, {s(S_T)} offen offset:{4*9}"); e("s_nop 1")
    e.label("L_k2_end")
    e("s_endpgm")
```

```python
from asmlib import *
import math

NST = 10
NSLOT = 3
A_BYTES = 32768
BH = 10240
SLOT = A_BYTES + 2*BH
LDS_AUX = NSLOT * SLOT
LDS_STATS = LDS_AUX
LDS_CS = LDS_AUX + 2048
LDS_TOTAL = 163840
LDS_KVS = 0
LDS_RP = SLOT + 24576
WS_PQ = 0
WS_H = 2621440
WS_KV = WS_H + 6291456
WS_STATS = WS_KV + 65536
WS_WF = WS_STATS + 32768
WS_USED = WS_WF + 544*5120
LOG2E = 1.4426950408889634

S_X = 8; S_B0 = 12; S_B1 = 16; S_WS = 20; S_DBG = 24
S_RB = 26; S_CG = 27; S_WAVE = 28; S_TYPE = 29; S_SUB = 30; S_BSTR = 31
S_CB0 = 32; S_CB1 = 33; S_ROT = 34; S_SLOT = 35; S_CNT = 36
S_T = 37
S_EPS6 = 40
S_L2E = 42
S_AOFF = 56; S_BOFF = 57; S_M0S = 60; S_T2 = 61; S_T3 = 62; S_T4 = 63
S_EXS = 64
S_OK = 67
S_NONCE = 68

V_ACC = 96
def acc(mt, ct): return V_ACC + (ct * 4 + mt) * 4
V_X = 32
V_W = 64
V_XB = 2; V_WB = 3; V_XA = 4; V_WA = 6
V_LANE = 8; V_I = 9; V_G = 10
V_CSA = 80
V_ONES = 92

OPTS = {}
def SM():
    m = OPTS.get('smod', '')
    return (' ' + m.replace('_', ' ')) if m else ''
STAMP = False
WS_STAMP = 0x1000000
def stamp(e, idx):
    if STAMP:
        e(f"s_memtime {s(70 + 2*idx, 2)}")
        e("s_waitcnt lgkmcnt(0)")
def stamp_flush(e, n):
    if STAMP:
        e(f"s_lshl_b32 {s(S_T)}, s2, 3"); e(f"s_add_u32 {s(S_T)}, {s(S_T)}, {s(S_WAVE)}"); e(f"s_lshl_b32 {s(S_T)}, {s(S_T)}, 6")
        e(f"s_add_u32 {s(S_T)}, {s(S_T)}, {WS_STAMP}")
        e(f"v_mov_b32 v14, 0")
        e("s_memrealtime s[88:89]"); e("s_waitcnt lgkmcnt(0)")
        for k in range(n):
            e(f"v_mov_b32 v15, {s(70 + 2*k)}")
            e(f"buffer_store_dword v15, v14, {s(S_WS,4)}, {s(S_T)} offen offset:{4*k}")
            e("s_nop 1")
        e(f"v_mov_b32 v15, s86"); e(f"buffer_store_dword v15, v14, {s(S_WS,4)}, {s(S_T)} offen offset:{4*8}"); e("s_nop 1")
        e(f"v_mov_b32 v15, s88"); e(f"buffer_store_dword v15, v14, {s(S_WS,4)}, {s(S_T)} offen offset:{4*9}"); e("s_nop 1")

def cs_owned(w): return [ct for ct in (w, w + 4, w + 8) if ct < 10]

def wrap_slot(e, sreg):
    e(f"s_add_u32 {s(sreg)}, {s(sreg)}, {SLOT}")
    e(f"s_cmp_eq_u32 {s(sreg)}, {NSLOT*SLOT}")
    e(f"s_cselect_b32 {s(sreg)}, 0, {s(sreg)}")

def consumer_loop(e, swapped, tag, w):
    own = cs_owned(w) if not OPTS.get("nocolsum") else []
    RING = 4
    q = Queue(e, "lgkmcnt", 15)
    def rd_x(par, mt):
        if OPTS.get("nox"): return
        e(f"ds_read_b128 {v(V_X + par*16 + mt*4, 4)}, {v(V_XA + par)} offset:{mt*2048}")
        q.issue(("x", par, mt))
    def rd_w(f, part):
        if OPTS.get("now"): return
        ks, ct = divmod(f % 20, 10)
        half, c16 = divmod(ct, 5)
        off = half * BH + ks * 5120 + c16 * 32 + part * 1280
        ring = f % RING
        e(f"ds_read_b64_tr_b16 {v(V_W + ring*4 + part*2, 2)}, {v(V_WA)} offset:{off}")
        q.issue(("w", ring, part))
    def next_addr():
        e(f"v_add_u32 {v(V_XA)}, {s(S_SLOT)}, {v(V_XB)}")
        e(f"v_add_u32 {v(V_WA)}, {s(S_SLOT)}, {v(V_WB)}")
        e(f"v_xor_b32 {v(V_XA + 1)}, 64, {v(V_XA)}")
        wrap_slot(e, S_SLOT)
    sched = {G: [] for G in range(20)}
    sched[0] = [("w", 2, 0), ("w", 2, 1), ("w", 3, 0), ("w", 3, 1)]
    for G in range(1, 17): sched[G] = [("w", G + 3, 0), ("w", G + 3, 1)]
    for k, G in enumerate((4, 5, 6, 7)): sched[G].append(("x", 1, k))
    sched[18] = [("x", 0, 0), ("x", 0, 1), ("w", 20, 0), ("w", 20, 1)]
    sched[19] = [("x", 0, 2), ("x", 0, 3), ("w", 21, 0), ("w", 21, 1)]
    def do_read(r):
        if r[0] == "x": rd_x(r[1], r[2])
        else: rd_w(r[1], r[2])
    e(f"s_mov_b32 {s(S_SLOT)}, 0")
    stamp(e, 1)
    e("s_barrier")
    stamp(e, 2)
    next_addr()
    for G in (18, 19):
        for r in sched[G]: do_read(r)
    state0 = list(q.p)
    e(f"s_mov_b32 {s(S_CNT)}, {NST}")
    e.raw(".p2align 6")
    e.label(f"L_cloop_{tag}")
    for G in range(20):
        ks, ct = divmod(G, 10)
        ring = G % RING
        reads = list(sched[G])
        if G == 18:
            q.drain()
            e("s_barrier")
            next_addr()
        ri = 0
        for mt in range(4):
            q.wait(("w", ring, 0), ("w", ring, 1), ("x", ks, mt))
            A = acc(mt, ct)
            xo = v(V_X + ks*16 + mt*4, 4); wo = v(V_W + ring*4, 4)
            if OPTS.get("nomfma"): pass
            elif swapped: e(f"v_mfma_f32_16x16x32_bf16 {v(A,4)}, {wo}, {xo}, {v(A,4)}")
            else: e(f"v_mfma_f32_16x16x32_bf16 {v(A,4)}, {xo}, {wo}, {v(A,4)}")
            if mt == 3 and ct in own and not OPTS.get("nomfma"):
                C = V_CSA + 4*own.index(ct)
                if swapped: e(f"v_mfma_f32_16x16x32_bf16 {v(C,4)}, {wo}, {v(V_ONES,4)}, {v(C,4)}")
                else: e(f"v_mfma_f32_16x16x32_bf16 {v(C,4)}, {v(V_ONES,4)}, {wo}, {v(C,4)}")
            nrd = (len(reads) - ri + (3 - mt)) // (4 - mt)
            for _ in range(nrd):
                do_read(reads[ri]); ri += 1
        assert ri == len(reads)
    e(f"s_sub_u32 {s(S_CNT)}, {s(S_CNT)}, 1")
    e(f"s_cmp_lg_u32 {s(S_CNT)}, 0")
    e(f"s_cbranch_scc1 L_cloop_{tag}")
    assert q.p == state0, (q.p, state0)
    e("s_waitcnt lgkmcnt(0)")
    stamp(e, 3)
    if own:
        if swapped:
            e(f"v_lshlrev_b32 v11, 4, {v(V_G)}"); e(f"v_add_u32 v11, {LDS_CS}, v11")
            e(f"v_cmp_eq_u32 vcc, 0, {v(V_I)}")
        else:
            e(f"v_lshlrev_b32 v11, 2, {v(V_I)}"); e(f"v_add_u32 v11, {LDS_CS}, v11")
            e(f"v_cmp_eq_u32 vcc, 0, {v(V_G)}")
        e("s_nop 4")
        e(f"s_and_saveexec_b64 {s(S_EXS,2)}, vcc")
        for k, ct in enumerate(own):
            if swapped: e(f"ds_write_b128 v11, {v(V_CSA + 4*k,4)} offset:{ct*64}")
            else: e(f"ds_write_b32 v11, {v(V_CSA + 4*k)} offset:{ct*64}")
        e(f"s_mov_b64 exec, {s(S_EXS,2)}")
        e("s_waitcnt lgkmcnt(0)")

def setup_common(e):
    e("s_cmp_ge_u32 s2, 256")
    e("s_cbranch_scc1 L_k1_end")
    e("s_load_dwordx4 s[4:7], s[0:1], 0")
    e("s_load_dwordx4 s[48:51], s[0:1], 32")
    e("s_load_dwordx4 s[52:55], s[0:1], 64")
    if STAMP: e(f"s_memtime {s(70,2)}")
    if STAMP: e(f"s_memrealtime s[86:87]")
    e(f"v_lshrrev_b32 v1, 6, v0")
    e(f"v_and_b32 {v(V_LANE)}, 63, v0")
    e(f"v_readfirstlane_b32 {s(S_WAVE)}, v1")
    e(f"s_and_b32 {s(S_T)}, s2, 7")
    e(f"s_lshr_b32 {s(S_T+1)}, s2, 3")
    e(f"s_and_b32 {s(S_RB)}, {s(S_T)}, 1")
    e(f"s_lshl_b32 {s(S_RB)}, {s(S_RB)}, 2")
    e(f"s_and_b32 {s(S_T+2)}, {s(S_T+1)}, 3")
    e(f"s_add_u32 {s(S_RB)}, {s(S_RB)}, {s(S_T+2)}")
    e(f"s_lshr_b32 {s(S_CG)}, {s(S_T)}, 1")
    e(f"s_lshl_b32 {s(S_CG)}, {s(S_CG)}, 3")
    e(f"s_lshr_b32 {s(S_T+2)}, {s(S_T+1)}, 2")
    e(f"s_add_u32 {s(S_CG)}, {s(S_CG)}, {s(S_T+2)}")
    if OPTS.get("samet"):
        e(f"s_mov_b32 {s(S_RB)}, 0"); e(f"s_mov_b32 {s(S_CG)}, 12")
    e(f"v_and_b32 {v(V_I)}, 15, {v(V_LANE)}")
    e(f"v_lshrrev_b32 {v(V_G)}, 4, {v(V_LANE)}")
    e(f"s_mov_b32 {s(S_EPS6)}, {f32(1e-6)}"); e(f"s_mov_b32 {s(S_EPS6+1)}, {f32(1e-6)}")
    e(f"s_mov_b32 {s(S_L2E)}, {f32(LOG2E)}"); e(f"s_mov_b32 {s(S_L2E+1)}, {f32(LOG2E)}")
    e("s_waitcnt lgkmcnt(0)")
    e(f"s_mov_b32 {s(S_X)}, s4"); e(f"s_mov_b32 {s(S_X+1)}, s5"); e(f"s_mov_b32 {s(S_X+2)}, 2621440"); e(f"s_mov_b32 {s(S_X+3)}, 0x20000")
    e(f"s_mov_b32 {s(S_WS)}, s54"); e(f"s_mov_b32 {s(S_WS+1)}, s55"); e(f"s_mov_b32 {s(S_WS+2)}, {WS_USED if not STAMP else 0x2000000}"); e(f"s_mov_b32 {s(S_WS+3)}, 0x20000")
    e(f"s_mov_b32 {s(S_DBG)}, s52"); e(f"s_mov_b32 {s(S_DBG+1)}, s53")
    e(f"s_mov_b32 {s(S_B0+3)}, 0x20000"); e(f"s_mov_b32 {s(S_B1+3)}, 0x20000")
    e(f"s_mov_b32 {s(S_ROT)}, 0")
    e(f"s_cmp_ge_u32 {s(S_CG)}, 12"); e("s_cbranch_scc1 L_set_gu")
    e(f"s_mov_b32 {s(S_B0)}, s6"); e(f"s_mov_b32 {s(S_B0+1)}, s7"); e(f"s_mov_b32 {s(S_B0+2)}, 2457600")
    e(f"s_mov_b32 {s(S_B1)}, s6"); e(f"s_mov_b32 {s(S_B1+1)}, s7"); e(f"s_mov_b32 {s(S_B1+2)}, 2457600")
    e(f"s_mov_b32 {s(S_BSTR)}, 3840")
    e(f"s_cmp_ge_u32 {s(S_CG)}, 4"); e("s_cbranch_scc1 L_set_kv")
    e(f"s_mov_b32 {s(S_TYPE)}, 0"); e(f"s_mov_b32 {s(S_SUB)}, {s(S_CG)}")
    e(f"s_mul_i32 {s(S_CB0)}, {s(S_SUB)}, 320"); e(f"s_add_u32 {s(S_CB1)}, {s(S_CB0)}, 160")
    e("s_branch L_set_done")
    e.label("L_set_kv")
    e(f"s_mov_b32 {s(S_TYPE)}, 1"); e(f"s_sub_u32 {s(S_SUB)}, {s(S_CG)}, 4")
    e(f"s_mul_i32 {s(S_CB0)}, {s(S_SUB)}, 160"); e(f"s_add_u32 {s(S_CB1)}, {s(S_CB0)}, 2560"); e(f"s_add_u32 {s(S_CB0)}, {s(S_CB0)}, 1280")
    e("s_branch L_set_done")
    e.label("L_set_gu")
    e(f"s_mov_b32 {s(S_B0)}, s48"); e(f"s_mov_b32 {s(S_B0+1)}, s49"); e(f"s_mov_b32 {s(S_B0+2)}, 1966080")
    e(f"s_mov_b32 {s(S_B1)}, s50"); e(f"s_mov_b32 {s(S_B1+1)}, s51"); e(f"s_mov_b32 {s(S_B1+2)}, 1966080")
    e(f"s_mov_b32 {s(S_BSTR)}, 3072")
    e(f"s_mov_b32 {s(S_TYPE)}, 2"); e(f"s_sub_u32 {s(S_SUB)}, {s(S_CG)}, 12")
    e(f"s_mul_i32 {s(S_CB0)}, {s(S_SUB)}, 160"); e(f"s_mov_b32 {s(S_CB1)}, {s(S_CB0)}")
    e(f"s_and_b32 {s(S_ROT)}, {s(S_SUB)}, 1"); e(f"s_lshl_b32 {s(S_ROT)}, {s(S_ROT)}, 1")
    e.label("L_set_done")

def consumer_setup(e):
    e(f"v_and_b32 v11, 7, {v(V_I)}")
    e(f"v_xor_b32 v11, {v(V_G)}, v11")
    e(f"v_lshlrev_b32 v11, 4, v11")
    e(f"s_lshl_b32 {s(S_T)}, {s(S_WAVE)}, 13")
    e(f"v_lshlrev_b32 v12, 7, {v(V_I)}")
    e(f"v_add3_u32 {v(V_XB)}, v11, v12, {s(S_T)}")
    e(f"v_lshrrev_b32 v11, 1, {v(V_G)}")
    e(f"v_lshlrev_b32 v11, 4, v11")
    e(f"v_and_b32 v12, 1, {v(V_G)}")
    e(f"v_lshlrev_b32 v12, 2, v12")
    e(f"v_lshrrev_b32 v13, 2, {v(V_I)}")
    e(f"v_add3_u32 v11, v11, v12, v13")
    e(f"v_mul_u32_u24 v11, 160, v11")
    e(f"v_and_b32 v12, 3, {v(V_I)}")
    e(f"v_lshlrev_b32 v12, 3, v12")
    e(f"v_add_u32 v11, v11, v12")
    e(f"v_add_u32 {v(V_WB)}, {A_BYTES}, v11")
    for r in range(V_CSA, V_CSA + 12): e(f"v_mov_b32 {v(r)}, 0")
    for r in range(V_ONES, V_ONES + 4): e(f"v_mov_b32 {v(r)}, 0x3f803f80")
    for r in range(V_ACC, 256):
        e(f"v_mov_b32 {v(r)}, 0")

P_VA = 16
P_VB = 20
P_ONE = 26
P_SL = 100
P_POLL = 60
P_RES = 56
DBG_NONCE = 0
DBG_FLAG = 64

def div10(e, dst, src):
    e(f"v_mul_u32_u24 {v(dst)}, 205, {v(src)}")
    e(f"v_lshrrev_b32 {v(dst)}, 11, {v(dst)}")

def lane0(e, on=True):
    if on:
        e(f"v_cmp_eq_u32 vcc, 0, {v(V_LANE)}")
        e(f"s_and_saveexec_b64 {s(S_EXS,2)}, vcc")
    else:
        e(f"s_mov_b64 exec, {s(S_EXS,2)}")

def issue_a(e, q, d, slot_sgpr, slot_imm, tag):
    for a_ in range(16):
        off = d*16384 + a_*1024
        if slot_sgpr is None: e(f"s_mov_b32 m0, {slot_imm + off}")
        else: e(f"s_add_u32 m0, {s(slot_sgpr)}, {off}")
        e(f"s_add_u32 {s(S_T)}, {s(S_AOFF)}, {a_*8*1280}")
        e(f"buffer_load_dwordx4 {v(P_VA)}, {s(S_X,4)}, {s(S_T)} offen lds")
        q.issue(tag)
    e(f"s_add_u32 {s(S_AOFF)}, {s(S_AOFF)}, 128")

def issue_b(e, q, d, slot_sgpr, slot_imm, tag):
    for b in range(10):
        off = A_BYTES + d*BH + b*1024
        if b == 5: e(f"s_add_u32 {s(S_BOFF)}, {s(S_BOFF)}, {s(S_T4)}")
        if slot_sgpr is None: e(f"s_mov_b32 m0, {slot_imm + off}")
        else: e(f"s_add_u32 m0, {s(slot_sgpr)}, {off}")
        e("s_nop 0")
        e(f"buffer_load_dwordx4 {v(P_VB + b % 5)}, {s(S_B0,4)}, {s(S_BOFF)} offen lds")
        q.issue(tag)
    e(f"s_add_u32 {s(S_BOFF)}, {s(S_BOFF)}, {s(S_T4)}")

def issue_stage(e, q, d, slot_sgpr=None, slot_imm=None, tag=None):
    if OPTS.get("nodma") and slot_sgpr is not None: return
    issue_a(e, q, d, slot_sgpr, slot_imm, tag)
    issue_b(e, q, d, slot_sgpr, slot_imm, tag)

def dma_wave(e, d):
    if OPTS.get("dprio"): e(f"s_setprio {OPTS.get('dprio')}")
    q = Queue(e, "vmcnt", 63)
    n = 26
    if d == 1:
        for k in range(3): e(f"s_mov_b32 {s(S_B0+k)}, {s(S_B1+k)}")
        e(f"s_mov_b32 {s(S_CB0)}, {s(S_CB1)}")
    e(f"v_lshrrev_b32 v12, 3, {v(V_LANE)}")
    e(f"v_and_b32 v11, 7, {v(V_LANE)}")
    e(f"v_xor_b32 v11, v11, v12")
    e(f"v_lshlrev_b32 v11, 4, v11")
    e(f"v_mul_u32_u24 v12, 1280, v12")
    e(f"v_add_u32 {v(P_VA)}, v11, v12")
    e(f"s_mul_i32 {s(S_AOFF)}, {s(S_RB)}, {256*1280}")
    if d: e(f"s_add_u32 {s(S_AOFF)}, {s(S_AOFF)}, {128*1280}")
    stamp(e, 1)
    issue_a(e, q, d, None, 0, 0)
    for b in range(5):
        e(f"v_add_u32 v11, {64*b}, {v(V_LANE)}")
        div10(e, 12, 11)
        e(f"v_mul_u32_u24 v13, 10, v12")
        e(f"v_sub_u32 v13, v11, v13")
        e(f"v_add_u32 v13, {s(S_ROT)}, v13")
        e(f"v_cmp_le_u32 vcc, 10, v13")
        e(f"v_subrev_u32 v14, 10, v13")
        e(f"v_and_b32 v15, 0x13, v12")
        e(f"v_cndmask_b32 v13, v13, v14, vcc")
        e(f"v_and_b32 v14, 4, v12"); e(f"v_lshlrev_b32 v14, 1, v14"); e(f"v_or_b32 v15, v15, v14")
        e(f"v_and_b32 v14, 8, v12"); e(f"v_lshrrev_b32 v14, 1, v14"); e(f"v_or_b32 v15, v15, v14")
        e(f"v_mul_lo_u32 v15, v15, {s(S_BSTR)}")
        e(f"v_lshlrev_b32 v13, 4, v13")
        e(f"v_add_u32 {v(P_VB + b)}, v15, v13")
    e(f"s_mov_b32 {s(S_BOFF)}, {s(S_CB0)}")
    e(f"s_lshl_b32 {s(S_T4)}, {s(S_BSTR)}, 5")
    issue_b(e, q, d, None, 0, 0)
    stamp(e, 2)
    issue_stage(e, q, d, slot_imm=SLOT, tag=1)
    stamp(e, 3)
    q.wait(0)
    stamp(e, 5)
    e("s_barrier")
    issue_stage(e, q, d, slot_imm=2*SLOT, tag=2)
    e(f"s_mov_b32 {s(S_M0S)}, 0")
    e(f"s_mov_b32 {s(S_CNT)}, 7")
    e.label(f"L_dloop_{d}")
    e(f"s_waitcnt vmcnt({n})")
    e("s_barrier")
    q2 = Queue(e, "vmcnt", 63)
    issue_stage(e, q2, d, slot_sgpr=S_M0S, tag="x"); wrap_slot(e, S_M0S)
    e(f"s_sub_u32 {s(S_CNT)}, {s(S_CNT)}, 1")
    e(f"s_cmp_lg_u32 {s(S_CNT)}, 0")
    e(f"s_cbranch_scc1 L_dloop_{d}")
    e(f"s_waitcnt vmcnt({n})"); e("s_barrier")
    e(f"s_waitcnt vmcnt(0)"); e("s_barrier")
    e("s_barrier")
    e("s_barrier")
    e(f"s_cmp_eq_u32 {s(S_TYPE)}, 1")
    e(f"s_cbranch_scc1 L_kv_final")
    if STAMP:
        stamp(e, 4); stamp(e, 6); stamp_flush(e, 7)
    e("s_endpgm")

def stats4_load(e, row_sgpr):
    e(f"v_add_u32 v11, {s(row_sgpr)}, {v(V_G)}")
    e(f"v_mul_u32_u24 v11, 1280, v11")
    e(f"v_lshlrev_b32 v14, 4, {v(V_I)}")
    e(f"v_add_u32 v11, v11, v14")
    for k in range(5):
        e(f"buffer_load_dwordx4 {v(P_SL + 4*k, 4)}, v11, {s(S_X,4)}, 0 offen offset:{k*256}")

def stats4_compute(e):
    A = P_SL + 20
    for k in range(4): e(f"v_mov_b32 {v(A + k)}, 0")
    for d in range(20):
        e(f"v_dot2c_f32_bf16 {v(A + (d & 1))}, {v(P_SL + d)}, {v(P_ONE)}")
        e(f"v_dot2c_f32_bf16 {v(A + 2 + (d & 1))}, {v(P_SL + d)}, {v(P_SL + d)}")
    e("s_nop 2")
    e(f"v_add_f32 {v(A)}, {v(A)}, {v(A+1)}")
    e(f"v_add_f32 {v(A+2)}, {v(A+2)}, {v(A+3)}")
    for ctl in ("quad_perm:[1,0,3,2]", "quad_perm:[2,3,0,1]", "row_half_mirror", "row_mirror"):
        e("s_nop 0")
        e(f"v_add_f32_dpp {v(A)}, {v(A)}, {v(A)} {ctl} row_mask:0xf bank_mask:0xf")
        e(f"v_add_f32_dpp {v(A+2)}, {v(A+2)}, {v(A+2)} {ctl} row_mask:0xf bank_mask:0xf")
        e("s_nop 0")
    M = P_SL + 26
    e(f"v_mul_f32 {v(M)}, {f32(1.0/640)}, {v(A)}")
    e(f"v_mul_f32 {v(A+1)}, {v(M)}, {v(M)}")
    e(f"v_mul_f32 {v(A+2)}, {f32(1.0/640)}, {v(A+2)}")
    e(f"v_sub_f32 {v(A+2)}, {v(A+2)}, {v(A+1)}")
    e(f"v_max_f32 {v(A+2)}, 0, {v(A+2)}")
    e(f"v_add_f32 {v(A+2)}, {f32(1e-5)}, {v(A+2)}")
    e(f"v_rsq_f32 {v(M+1)}, {v(A+2)}")
    e("s_nop 0")

def write_stats_lds_from_pairs(e, R, tag):
    e(f"s_cmp_eq_u32 {s(S_TYPE)}, 1")
    e(f"s_cbranch_scc1 L_wsk_{tag}")
    e(f"v_lshlrev_b32 v13, 5, {v(V_LANE)}")
    e(f"v_add_u32 v13, {LDS_STATS}, v13")
    e(f"ds_write_b128 v13, {v(R,4)}")
    e(f"ds_write_b128 v13, {v(R+4,4)} offset:16")
    e(f"s_branch L_wsd_{tag}")
    e.label(f"L_wsk_{tag}")
    T = R + 8
    for k in range(4):
        e(f"v_mov_b32 {v(T + k)}, {v(R + 2*k)}")
        e(f"v_mov_b32 {v(T + 4 + k)}, {v(R + 2*k + 1)}")
    e(f"v_lshlrev_b32 v13, 4, {v(V_LANE)}")
    e(f"v_add_u32 v13, {LDS_STATS}, v13")
    e(f"ds_write_b128 v13, {v(T,4)}")
    e(f"ds_write_b128 v13, {v(T+4,4)} offset:1024")
    e.label(f"L_wsd_{tag}")

def fetch_stats(e):
    e(f"s_lshl_b32 {s(S_T)}, {s(S_RB)}, 12")
    e(f"s_add_u32 {s(S_T)}, {s(S_T)}, {WS_STATS}")
    e(f"v_lshlrev_b32 v11, 6, {v(V_LANE)}")
    for k in range(4):
        e(f"buffer_load_dwordx4 {v(P_SL + 4*k,4)}, v11, {s(S_WS,4)}, {s(S_T)} offen offset:{16*k} sc1")

def check_stats(e, tag):
    e(f"v_cmp_eq_u32 vcc, {s(S_NONCE)}, {v(P_SL + 1)}")
    e(f"s_mov_b64 s[92:93], vcc")
    for k in range(1, 8):
        e(f"v_cmp_eq_u32 vcc, {s(S_NONCE)}, {v(P_SL + 2*k + 1)}")
        e(f"s_and_b64 s[92:93], s[92:93], vcc")
    e(f"s_cmp_eq_u64 s[92:93], -1")
    e(f"s_cbranch_scc0 L_chk_no_{tag}")
    R = P_SL + 16
    for k in range(8):
        e(f"v_mov_b32 {v(R + k)}, {v(P_SL + 2*k)}")
    write_stats_lds_from_pairs(e, R, tag)
    e(f"s_mov_b32 {s(S_OK)}, 1")
    e.label(f"L_chk_no_{tag}")

def publish_stats(e, tag):
    e(f"v_lshlrev_b32 v13, 4, {v(V_G)}")
    e(f"s_lshl_b32 {s(S_T)}, {s(S_T3)}, 4"); e(f"s_add_u32 {s(S_T)}, {s(S_T)}, {WS_STATS}")
    e(f"v_mov_b32 v29, {s(S_NONCE)}"); e(f"v_mov_b32 v31, {s(S_NONCE)}")
    e(f"v_mov_b32 v33, {s(S_NONCE)}"); e(f"v_mov_b32 v35, {s(S_NONCE)}")
    e(f"v_mov_b32 v28, {v(P_RES)}"); e(f"v_mov_b32 v30, {v(P_RES+1)}")
    e(f"v_mov_b32 v32, {v(P_RES+2)}"); e(f"v_mov_b32 v34, {v(P_RES+3)}")
    e(f"v_cmp_eq_u32 vcc, 0, {v(V_I)}")
    e(f"s_and_saveexec_b64 {s(S_EXS,2)}, vcc")
    e(f"buffer_store_dwordx4 v[28:31], v13, {s(S_WS,4)}, {s(S_T)} offen sc1")
    e(f"buffer_store_dwordx4 v[32:35], v13, {s(S_WS,4)}, {s(S_T)} offen offset:64 sc1")
    e(f"s_mov_b64 exec, {s(S_EXS,2)}")

def poll_nonce(e):
    e(f"v_mov_b32 v11, 0")
    e(f"global_load_dword {v(P_POLL)}, v11, {s(S_DBG,2)} offset:{DBG_NONCE} sc1")

def try_publish(e, tag, repoll=True):
    e(f"s_cmp_lg_u32 {s(S_NONCE)}, 0"); e(f"s_cbranch_scc1 L_tp_{tag}")
    e("s_waitcnt vmcnt(0)")
    e(f"v_readfirstlane_b32 {s(S_NONCE)}, {v(P_POLL)}")
    e("s_nop 3")
    e(f"s_cmp_eq_u32 {s(S_NONCE)}, 0"); e(f"s_cbranch_scc1 L_tpr_{tag}")
    publish_stats(e, tag)
    e(f"s_branch L_tp_{tag}")
    e.label(f"L_tpr_{tag}")
    if repoll: poll_nonce(e)
    e.label(f"L_tp_{tag}")

def hbar(e, j):
    e("s_barrier")
    if OPTS.get("hstamp"):
        e("s_memtime s[90:91]"); e("s_waitcnt lgkmcnt(0)")
        e(f"v_writelane_b32 v62, s90, {j}")

def helper0(e, opts):
    e("s_cmp_eq_u32 s2, 0"); e("s_cbranch_scc0 L_h0_nononce")
    e("s_memrealtime s[92:93]"); e("s_waitcnt lgkmcnt(0)")
    e("s_or_b32 s92, s92, 1")
    e("v_mov_b32 v11, 0"); e("v_mov_b32 v12, s92")
    lane0(e)
    e(f"global_store_dword v11, v12, {s(S_DBG,2)} offset:{DBG_NONCE} sc1")
    lane0(e, False)
    e.label("L_h0_nononce")
    e(f"s_lshl_b32 {s(S_T)}, {s(S_RB)}, 8")
    e(f"s_lshl_b32 {s(S_T+1)}, {s(S_CG)}, 3")
    e(f"s_add_u32 {s(S_T3)}, {s(S_T)}, {s(S_T+1)}")
    stats4_load(e, S_T3)
    e(f"v_add_u32 v11, {4*1280}, v11")
    for k in range(5):
        e(f"buffer_load_dwordx4 {v(P_SL + 32 + 4*k, 4)}, v11, {s(S_X,4)}, 0 offen offset:{k*256}")
    e(f"v_mov_b32 {v(P_ONE)}, 0x3f803f80")
    e(f"s_mov_b32 {s(S_OK)}, 0"); e(f"s_mov_b32 {s(S_NONCE)}, 0")
    e("s_waitcnt vmcnt(5)")
    stats4_compute(e)
    e(f"v_mov_b32 {v(P_RES)}, {v(P_SL+26)}"); e(f"v_mov_b32 {v(P_RES+1)}, {v(P_SL+27)}")
    e("s_waitcnt vmcnt(0)")
    poll_nonce(e)
    for k in range(20): e(f"v_mov_b32 {v(P_SL + k)}, {v(P_SL + 32 + k)}")
    stats4_compute(e)
    e(f"v_mov_b32 {v(P_RES+2)}, {v(P_SL+26)}"); e(f"v_mov_b32 {v(P_RES+3)}, {v(P_SL+27)}")
    FJ = OPTS.get("fetchj", 5); CJ = OPTS.get("checkj", 8)
    for j in range(11):
        e("s_barrier")
        if j in (1, 2, 3, 4): try_publish(e, f"l{j}", repoll=(j < 4))
        if j == FJ: fetch_stats(e)
        if j == CJ:
            e("s_waitcnt vmcnt(0)")
            e(f"s_cmp_eq_u32 {s(S_NONCE)}, 0"); e("s_cbranch_scc1 L_h0_okA")
            if not opts.get("forcefb"): check_stats(e, "a")
            e(f"s_cmp_eq_u32 {s(S_OK)}, 1"); e("s_cbranch_scc1 L_h0_okA")
            fetch_stats(e)
            e.label("L_h0_okA")
        if j == 10:
            e(f"s_cmp_eq_u32 {s(S_OK)}, 1"); e("s_cbranch_scc1 L_h0_okB")
            e(f"s_cmp_eq_u32 {s(S_NONCE)}, 0"); e("s_cbranch_scc1 L_h0_okB")
            e("s_waitcnt vmcnt(0)")
            if not opts.get("forcefb"): check_stats(e, "b")
            e.label("L_h0_okB")
    e(f"s_cmp_eq_u32 {s(S_OK)}, 1"); e(f"s_cbranch_scc1 L_h0_done")
    e(f"s_cmp_eq_u32 {s(S_NONCE)}, 0"); e(f"s_cbranch_scc1 L_h0_fb")
    e(f"s_mov_b32 {s(S_CNT)}, {0 if opts.get('forcefb') else 200}")
    e.label("L_h0_spin")
    e(f"s_cmp_eq_u32 {s(S_CNT)}, 0"); e(f"s_cbranch_scc1 L_h0_fb")
    fetch_stats(e)
    e("s_waitcnt vmcnt(0)")
    check_stats(e, "c")
    e(f"s_sub_u32 {s(S_CNT)}, {s(S_CNT)}, 1")
    e(f"s_cmp_eq_u32 {s(S_OK)}, 1"); e(f"s_cbranch_scc1 L_h0_done")
    e("s_sleep 4")
    e("s_branch L_h0_spin")
    e.label("L_h0_fb")
    e(f"s_mov_b32 {s(S_CNT)}, 0")
    e.label("L_fb_loop")
    e(f"s_lshl_b32 {s(S_T)}, {s(S_RB)}, 8")
    e(f"s_lshl_b32 {s(S_T+1)}, {s(S_CNT)}, 2")
    e(f"s_add_u32 {s(S_T)}, {s(S_T)}, {s(S_T+1)}")
    stats4_load(e, S_T)
    e("s_waitcnt vmcnt(0)")
    stats4_compute(e)
    e(f"v_add_u32 v15, {s(S_T+1)}, {v(V_G)}")
    e(f"v_cmp_eq_u32 vcc, 0, {v(V_I)}")
    e(f"s_and_saveexec_b64 {s(S_EXS,2)}, vcc")
    e(f"s_cmp_eq_u32 {s(S_TYPE)}, 1")
    e(f"s_cbranch_scc1 L_fb_kv")
    e(f"v_lshlrev_b32 v13, 3, v15"); e(f"v_add_u32 v13, {LDS_STATS}, v13")
    e(f"ds_write_b64 v13, {v(P_SL + 26, 2)}")
    e(f"s_branch L_fb_n")
    e.label("L_fb_kv")
    e(f"v_lshlrev_b32 v13, 2, v15"); e(f"v_add_u32 v13, {LDS_STATS}, v13")
    e(f"ds_write_b32 v13, {v(P_SL + 26)}")
    e(f"ds_write_b32 v13, {v(P_SL + 27)} offset:1024")
    e.label("L_fb_n")
    e(f"s_mov_b64 exec, {s(S_EXS,2)}")
    e(f"s_add_u32 {s(S_CNT)}, {s(S_CNT)}, 1")
    e(f"s_cmp_lt_u32 {s(S_CNT)}, 64")
    e("s_cbranch_scc1 L_fb_loop")
    e.label("L_h0_done")
    e("s_waitcnt lgkmcnt(0)")
    e("s_barrier")
    e(f"s_cmp_eq_u32 {s(S_TYPE)}, 1")
    e(f"s_cbranch_scc1 L_kv_final")
    e("s_endpgm")

def repack_setup(e):
    for b in range(5):
        e(f"v_add_u32 v11, {64*b}, {v(V_LANE)}")
        div10(e, 12, 11)
        e(f"v_mul_u32_u24 v13, 10, v12"); e(f"v_sub_u32 v13, v11, v13")
        e(f"v_mul_u32_u24 v12, 1280, v12"); e(f"v_lshlrev_b32 v13, 4, v13")
        e(f"v_add_u32 {v(40 + b)}, v12, v13")
    e(f"v_lshlrev_b32 v11, 2, {v(V_G)}"); e(f"v_lshrrev_b32 v12, 2, {v(V_I)}"); e(f"v_add_u32 v11, v11, v12")
    e(f"v_mul_u32_u24 v11, 160, v11"); e(f"v_and_b32 v12, 3, {v(V_I)}"); e(f"v_lshlrev_b32 v12, 3, v12")
    e(f"v_add_u32 v11, v11, v12"); e(f"v_add_u32 v45, {LDS_RP}, v11")
    e(f"v_lshlrev_b32 v46, 4, {v(V_LANE)}")

def repack_issue(e):
    for r in range(3):
        e(f"s_add_u32 {s(S_T)}, s2, {256*r}")
        if r == 2:
            e(f"s_cmp_ge_u32 {s(S_T)}, 544"); e("s_cbranch_scc1 L_rp_i_done")
        e(f"s_lshr_b32 {s(S_T+1)}, {s(S_T)}, 3")
        e(f"s_and_b32 {s(S_T+2)}, {s(S_T)}, 7")
        e(f"s_mul_i32 {s(S_T+2)}, {s(S_T+2)}, 160")
        e(f"s_cmp_ge_u32 {s(S_T+1)}, 48")
        e(f"s_cbranch_scc1 L_rp_wo{r}")
        e(f"s_mul_i32 {s(S_T+1)}, {s(S_T+1)}, {32*1280}"); e(f"s_add_u32 {s(S_T+1)}, {s(S_T+1)}, {s(S_T+2)}")
        for b in range(5):
            e(f"s_mov_b32 m0, {LDS_RP + r*5120 + b*1024}"); e("s_nop 0")
            e(f"buffer_load_dwordx4 {v(40 + b)}, s[44:47], {s(S_T+1)} offen lds")
        e(f"s_branch L_rp_n{r}")
        e.label(f"L_rp_wo{r}")
        e(f"s_sub_u32 {s(S_T+1)}, {s(S_T+1)}, 48")
        e(f"s_mul_i32 {s(S_T+1)}, {s(S_T+1)}, {32*1280}"); e(f"s_add_u32 {s(S_T+1)}, {s(S_T+1)}, {s(S_T+2)}")
        for b in range(5):
            e(f"s_mov_b32 m0, {LDS_RP + r*5120 + b*1024}"); e("s_nop 0")
            e(f"buffer_load_dwordx4 {v(40 + b)}, s[48:51], {s(S_T+1)} offen lds")
        e.label(f"L_rp_n{r}")
    e.label("L_rp_i_done")

def repack_finish(e):
    e("s_waitcnt vmcnt(0)")
    for r in range(3):
        R = 64 + 20*r
        e(f"s_add_u32 {s(S_T)}, s2, {256*r}")
        if r == 2:
            e(f"s_cmp_ge_u32 {s(S_T)}, 544"); e("s_cbranch_scc1 L_rp_f_done")
        for ct in range(5):
            for part in range(2):
                e(f"ds_read_b64_tr_b16 {v(R + 4*ct + 2*part, 2)}, v45 offset:{r*5120 + ct*32 + part*2560}")
        e(f"s_mul_i32 {s(S_T)}, {s(S_T)}, 5120"); e(f"s_add_u32 {s(S_T)}, {s(S_T)}, {WS_WF}")
        e(f"s_add_u32 {s(S_T+1)}, {s(S_T)}, 4096")
        for ct in range(5):
            e(f"s_waitcnt lgkmcnt({2*(4-ct)})")
            if ct < 4: e(f"buffer_store_dwordx4 {v(R + 4*ct,4)}, v46, {s(S_WS,4)}, {s(S_T)} offen offset:{ct*1024}{SM()}")
            else: e(f"buffer_store_dwordx4 {v(R + 4*ct,4)}, v46, {s(S_WS,4)}, {s(S_T+1)} offen{SM()}")
    e.label("L_rp_f_done")

def helper1(e, opts):
    touch = OPTS.get("touch", 1)
    e("s_load_dwordx2 s[44:45], s[0:1], 48")
    e("s_load_dwordx2 s[48:49], s[0:1], 16")
    if touch:
        e(f"s_and_b32 {s(S_T+1)}, {s(S_RB)}, 3")
        e(f"v_and_b32 v20, 31, {v(V_LANE)}")
        e(f"v_lshlrev_b32 v21, 2, v20"); e(f"v_add_u32 v21, {s(S_T+1)}, v21"); e(f"v_mul_lo_u32 v21, v21, {s(S_BSTR)}")
        e(f"v_lshrrev_b32 v22, 5, {v(V_LANE)}"); e(f"v_lshlrev_b32 v22, 7, v22"); e(f"v_add_u32 v21, v21, v22")
        e(f"s_and_b32 {s(S_T+1)}, {s(S_CG)}, 7"); e(f"s_lshl_b32 {s(S_T+1)}, {s(S_T+1)}, 5")
        e(f"s_lshl_b32 {s(S_T+2)}, {s(S_RB)}, 8"); e(f"s_add_u32 {s(S_T+1)}, {s(S_T+1)}, {s(S_T+2)}")
        e(f"v_add_u32 v20, {s(S_T+1)}, v20"); e(f"v_mul_u32_u24 v20, 1280, v20"); e(f"v_add_u32 v20, v20, v22")
        e(f"s_lshl_b32 s54, {s(S_BSTR)}, 7")
        e(f"s_add_u32 {s(S_CB0)}, {s(S_CB0)}, s54"); e(f"s_add_u32 {s(S_CB1)}, {s(S_CB1)}, s54"); e(f"s_mov_b32 s52, 256")
    def trip():
        if not touch: return
        e(f"buffer_load_dword v24, v21, {s(S_B0,4)}, {s(S_CB0)} offen")
        e(f"buffer_load_dword v25, v21, {s(S_B1,4)}, {s(S_CB1)} offen")
        e(f"buffer_load_dword v26, v20, {s(S_X,4)}, s52 offen")
        e(f"s_add_u32 {s(S_CB0)}, {s(S_CB0)}, s54"); e(f"s_add_u32 {s(S_CB1)}, {s(S_CB1)}, s54"); e("s_add_u32 s52, s52, 256")
    tj = OPTS.get("tj", "s,0,2,4")
    tj = [x for x in str(tj).replace("x", ",").split(",")]
    if OPTS.get("tdelay"): e(f"s_sleep {OPTS.get('tdelay')}")
    for x in tj:
        if x == "s": trip()
    if not OPTS.get("norepack"): repack_setup(e)
    e("s_waitcnt lgkmcnt(0)")
    e("s_mov_b32 s46, 1966080"); e("s_mov_b32 s47, 0x20000")
    e("s_mov_b32 s50, 819200"); e("s_mov_b32 s51, 0x20000")
    e(f"s_cmp_eq_u32 {s(S_TYPE)}, 1"); e(f"s_cbranch_scc0 L_nozero")
    e(f"s_cmp_eq_u32 {s(S_RB)}, 0"); e(f"s_cbranch_scc0 L_nozero")
    for r in range(28, 32): e(f"v_mov_b32 {v(r)}, 0")
    e(f"s_mul_i32 {s(S_T)}, {s(S_SUB)}, 6720")
    e(f"s_add_u32 {s(S_T)}, {s(S_T)}, {WS_KV}")
    e(f"s_add_u32 {s(S_T2)}, {s(S_T)}, 4096")
    e(f"v_lshlrev_b32 v11, 4, {v(V_LANE)}")
    for k in range(7):
        if k == 6:
            e(f"v_cmp_gt_u32 vcc, 36, {v(V_LANE)}")
            e(f"s_and_saveexec_b64 {s(S_EXS,2)}, vcc")
        sreg = S_T if k < 4 else S_T2
        e(f"buffer_store_dwordx4 v[28:31], v11, {s(S_WS,4)}, {s(sreg)} offen offset:{(k % 4)*1024} sc1")
        if k == 6:
            e(f"s_mov_b64 exec, {s(S_EXS,2)}")
    e.label("L_nozero")
    for j in range(11):
        hbar(e, j)
        for x in tj:
            if x == str(j): trip()
        if j == OPTS.get("sigj", 6):
            e(f"s_cmp_eq_u32 {s(S_TYPE)}, 1"); e(f"s_cbranch_scc0 L_h1_nosig")
            e(f"s_cmp_eq_u32 {s(S_RB)}, 0"); e(f"s_cbranch_scc0 L_h1_nosig")
            e("s_waitcnt vmcnt(0)")
            e(f"s_lshl_b32 {s(S_T)}, {s(S_SUB)}, 2")
            e(f"v_mov_b32 v11, {s(S_T)}"); e(f"v_mov_b32 v12, 1")
            lane0(e); e(f"global_store_dword v11, v12, {s(S_DBG,2)} offset:{DBG_FLAG} sc1"); lane0(e, False)
            e.label("L_h1_nosig")
        if j == 8 and not OPTS.get("norepack"): repack_issue(e)
        if j == 9:
            e(f"s_cmp_eq_u32 {s(S_TYPE)}, 1"); e(f"s_cbranch_scc0 L_h1_np")
            e(f"s_lshl_b32 {s(S_T)}, {s(S_SUB)}, 2")
            e(f"v_mov_b32 v11, {s(S_T)}")
            e(f"global_load_dword {v(P_POLL)}, v11, {s(S_DBG,2)} offset:{DBG_FLAG} sc1")
            e.label("L_h1_np")
    if OPTS.get("hstamp"):
        e(f"s_lshl_b32 {s(S_T)}, s2, 3"); e(f"s_add_u32 {s(S_T)}, {s(S_T)}, 4"); e(f"s_lshl_b32 {s(S_T)}, {s(S_T)}, 8")
        e(f"s_add_u32 {s(S_T)}, {s(S_T)}, {WS_STAMP + 0x100000}")
        e(f"v_lshlrev_b32 v14, 2, {v(V_LANE)}")
        e(f"buffer_store_dword v62, v14, {s(S_WS,4)}, {s(S_T)} offen")
    e("s_barrier")
    if not OPTS.get("norepack"): repack_finish(e)
    e(f"s_cmp_eq_u32 {s(S_TYPE)}, 1")
    e(f"s_cbranch_scc0 L_h1_end")
    e("s_waitcnt vmcnt(0)")
    e(f"s_lshl_b32 {s(S_T)}, {s(S_SUB)}, 2")
    e(f"v_mov_b32 v11, {s(S_T)}")
    e.label("L_poll_flag")
    e(f"v_readfirstlane_b32 {s(S_T)}, {v(P_POLL)}")
    e("s_nop 3")
    e(f"s_cmp_eq_u32 {s(S_T)}, 0")
    e(f"s_cbranch_scc0 L_kv_final")
    e("s_sleep 2")
    e(f"global_load_dword {v(P_POLL)}, v11, {s(S_DBG,2)} offset:{DBG_FLAG} sc1")
    e("s_waitcnt vmcnt(0)")
    e("s_branch L_poll_flag")
    e.label("L_h1_end")
    e("s_endpgm")

def ep_load_swapped(e):
    e(f"s_lshl_b32 {s(S_T)}, {s(S_WAVE)}, 9")
    e(f"v_lshlrev_b32 v11, 3, {v(V_I)}")
    e(f"v_add_u32 v11, {s(S_T)}, v11")
    e(f"v_add_u32 v11, {LDS_STATS}, v11")
    for mt in range(4):
        e(f"ds_read_b64 {v(16 + 2*mt, 2)}, v11 offset:{mt*128}")
    e(f"v_lshlrev_b32 v12, 4, {v(V_G)}")
    e(f"v_add_u32 v12, {LDS_CS}, v12")
    for ct in range(10):
        e(f"ds_read_b128 {v(32 + 4*ct, 4)}, v12 offset:{ct*64}")
    e("s_waitcnt lgkmcnt(0)")

def epilogue_gu(e):
    ep_load_swapped(e)
    for mt in range(4):
        e(f"v_mul_f32 {v(24 + 2*mt)}, {f32(-LOG2E)}, {v(17 + 2*mt)}")
        e(f"v_mul_f32 {v(25 + 2*mt)}, {v(17 + 2*mt)}, {v(17 + 2*mt)}")
    for mt in range(4):
        e(f"v_rcp_f32 {v(25 + 2*mt)}, {v(25 + 2*mt)}")
    e(f"v_lshlrev_b32 v11, 4, {v(V_LANE)}")
    e(f"s_mul_i32 {s(S_T)}, {s(S_WAVE)}, {4*48*1024}")
    e(f"v_add_u32 v11, {s(S_T)}, v11")
    e(f"s_mul_i32 {s(S_T)}, {s(S_RB)}, {16*48*1024}")
    e(f"s_add_u32 {s(S_T)}, {s(S_T)}, {WS_H}")
    e(f"s_mul_i32 {s(S_T+1)}, {s(S_SUB)}, 5")
    e(f"s_add_u32 {s(S_T+2)}, {s(S_T+1)}, 1")
    e(f"s_lshr_b32 {s(S_T+2)}, {s(S_T+2)}, 1")
    e(f"s_lshl_b32 {s(S_T+2)}, {s(S_T+2)}, 10")
    e(f"s_add_u32 {s(S_T2)}, {s(S_T)}, {s(S_T+2)}")
    e(f"s_and_b32 {s(S_T3)}, {s(S_SUB)}, 1")
    e(f"s_cmp_eq_u32 {s(S_T3)}, 0")
    e(f"s_cselect_b32 {s(S_T3)}, 4, -1")
    e(f"s_add_u32 {s(S_T+1)}, {s(S_T+1)}, {s(S_T3)}")
    e(f"s_lshr_b32 {s(S_T+1)}, {s(S_T+1)}, 1")
    e(f"s_lshl_b32 {s(S_T+1)}, {s(S_T+1)}, 10")
    e(f"s_add_u32 {s(S_T3)}, {s(S_T)}, {s(S_T+1)}")
    e(f"s_and_b32 {s(S_T+1)}, {s(S_SUB)}, 1")
    e(f"s_lshl_b32 {s(S_T+1)}, {s(S_T+1)}, 3")
    e(f"s_add_u32 {s(S_T3)}, {s(S_T3)}, {s(S_T+1)}")
    T = 72
    for mt in range(4):
        MR = 16 + 2*mt; CI = 24 + 2*mt
        items = [(ct, hh) for ct in range(5) for hh in range(2)]
        for (ct, hh) in items:
            G = acc(mt, ct) + 2*hh; U = acc(mt, ct + 5) + 2*hh
            e(f"v_pk_fma_f32 {v(G,2)}, {v(32 + 4*ct + 2*hh,2)}, {v(MR,2)}, {v(G,2)} op_sel_hi:[1,0,1] neg_lo:[0,1,0] neg_hi:[0,1,0]")
            e(f"v_pk_fma_f32 {v(U,2)}, {v(32 + 4*(ct+5) + 2*hh,2)}, {v(MR,2)}, {v(U,2)} op_sel_hi:[1,0,1] neg_lo:[0,1,0] neg_hi:[0,1,0]")
        for k, (ct, hh) in enumerate(items):
            G = acc(mt, ct) + 2*hh
            e(f"v_pk_mul_f32 {v(T + 2*k,2)}, {v(G,2)}, {v(CI,2)} op_sel_hi:[1,0]")
        for k in range(10):
            e(f"v_exp_f32 {v(T + 2*k)}, {v(T + 2*k)}"); e(f"v_exp_f32 {v(T + 2*k + 1)}, {v(T + 2*k + 1)}")
        for k, (ct, hh) in enumerate(items):
            G = acc(mt, ct) + 2*hh; U = acc(mt, ct + 5) + 2*hh
            e(f"v_pk_mul_f32 {v(U,2)}, {v(G,2)}, {v(U,2)}")
        for k in range(10):
            e(f"v_pk_fma_f32 {v(T + 2*k,2)}, {v(T + 2*k,2)}, {v(CI,2)}, {v(CI,2)} op_sel:[0,1,1] op_sel_hi:[1,1,1]")
        for k in range(10):
            e(f"v_rcp_f32 {v(T + 2*k)}, {v(T + 2*k)}"); e(f"v_rcp_f32 {v(T + 2*k + 1)}, {v(T + 2*k + 1)}")
        e("s_nop 0")
        for k, (ct, hh) in enumerate(items):
            U = acc(mt, ct + 5) + 2*hh
            e(f"v_pk_mul_f32 {v(U,2)}, {v(U,2)}, {v(T + 2*k,2)}")
        for pp in range(2):
            O = acc(mt, 2*pp)
            for tt in range(2):
                U = acc(mt, 2*pp + tt + 5)
                e(f"v_cvt_pk_bf16_f32 {v(O + 2*tt)}, {v(U)}, {v(U+1)}")
                e(f"v_cvt_pk_bf16_f32 {v(O + 2*tt + 1)}, {v(U+2)}, {v(U+3)}")
        O = acc(mt, 4); U = acc(mt, 9)
        e(f"v_cvt_pk_bf16_f32 {v(O)}, {v(U)}, {v(U+1)}")
        e(f"v_cvt_pk_bf16_f32 {v(O+1)}, {v(U+2)}, {v(U+3)}")
        if mt > 0:
            e(f"v_add_u32 v11, {48*1024}, v11")
        e(f"s_cmp_eq_u32 {s(S_SUB)}, 19")
        e(f"s_cbranch_scc1 L_gu_skip{mt}")
        e(f"buffer_store_dwordx4 {v(acc(mt,0),4)}, v11, {s(S_WS,4)}, {s(S_T2)} offen{SM()}")
        e(f"buffer_store_dwordx4 {v(acc(mt,2),4)}, v11, {s(S_WS,4)}, {s(S_T2)} offen offset:1024{SM()}")
        e.label(f"L_gu_skip{mt}")
        e(f"buffer_store_dwordx2 {v(acc(mt,4),2)}, v11, {s(S_WS,4)}, {s(S_T3)} offen{SM()}")
        e("s_nop 1")
    stamp(e, 5)
    if STAMP:
        e("s_waitcnt vmcnt(0)"); stamp(e, 6); stamp_flush(e, 7)
    e("s_endpgm")

def epilogue_q(e):
    ep_load_swapped(e)
    e(f"v_lshlrev_b32 v11, 4, {v(V_LANE)}")
    e(f"s_mul_i32 {s(S_T)}, {s(S_WAVE)}, {4*20*1024}")
    e(f"v_add_u32 v11, {s(S_T)}, v11")
    e(f"s_mul_i32 {s(S_T)}, {s(S_RB)}, {16*20*1024}")
    e(f"s_mul_i32 {s(S_T+1)}, {s(S_SUB)}, {5*1024}")
    e(f"s_add_u32 {s(S_T2)}, {s(S_T)}, {s(S_T+1)}")
    e(f"s_add_u32 {s(S_T2)}, {s(S_T2)}, {WS_PQ}")
    e(f"s_add_u32 {s(S_T3)}, {s(S_T2)}, 4096")
    T = 72
    for mt in range(4):
        MR = 16 + 2*mt
        for grp in range(2):
            items = [(ct, hh) for ct in range(grp*5, grp*5 + 5) for hh in range(2)]
            for (ct, hh) in items:
                A = acc(mt, ct) + 2*hh
                e(f"v_pk_fma_f32 {v(A,2)}, {v(32 + 4*ct + 2*hh,2)}, {v(MR,2)}, {v(A,2)} op_sel_hi:[1,0,1] neg_lo:[0,1,0] neg_hi:[0,1,0]")
            for (ct, hh) in items:
                A = acc(mt, ct) + 2*hh
                e(f"v_pk_fma_f32 {v(A,2)}, {v(A,2)}, {v(MR,2)}, {s(S_EPS6,2)} op_sel:[0,1,0] op_sel_hi:[1,1,1]")
            for k, (ct, hh) in enumerate(items):
                A = acc(mt, ct) + 2*hh
                e(f"v_pk_mul_f32 {v(T + 2*k,2)}, {v(A,2)}, {s(S_L2E,2)}")
            for k in range(10):
                e(f"v_exp_f32_e64 {v(T + 2*k)}, {v(T + 2*k)} clamp"); e(f"v_exp_f32_e64 {v(T + 2*k + 1)}, {v(T + 2*k + 1)} clamp")
            for (ct, hh) in items:
                A = acc(mt, ct) + 2*hh
                e(f"v_max_f32 {v(A)}, {s(S_EPS6)}, {v(A)}"); e(f"v_max_f32 {v(A+1)}, {s(S_EPS6)}, {v(A+1)}")
            for k, (ct, hh) in enumerate(items):
                A = acc(mt, ct) + 2*hh
                e(f"v_pk_add_f32 {v(A,2)}, {v(A,2)}, {v(T + 2*k,2)}")
        for pp in range(5):
            O = acc(mt, 2*pp); A0 = acc(mt, 2*pp); A1 = acc(mt, 2*pp + 1)
            e(f"v_cvt_pk_bf16_f32 {v(O)}, {v(A0)}, {v(A0+1)}")
            e(f"v_cvt_pk_bf16_f32 {v(O+1)}, {v(A0+2)}, {v(A0+3)}")
            e(f"v_cvt_pk_bf16_f32 {v(O+2)}, {v(A1)}, {v(A1+1)}")
            e(f"v_cvt_pk_bf16_f32 {v(O+3)}, {v(A1+2)}, {v(A1+3)}")
        if mt > 0:
            e(f"v_add_u32 v11, {20*1024}, v11")
        for pp in range(5):
            if pp < 4:
                e(f"buffer_store_dwordx4 {v(acc(mt,2*pp),4)}, v11, {s(S_WS,4)}, {s(S_T2)} offen offset:{pp*1024}{SM()}")
            else:
                e(f"buffer_store_dwordx4 {v(acc(mt,2*pp),4)}, v11, {s(S_WS,4)}, {s(S_T3)} offen{SM()}")
        e("s_nop 1")
    stamp(e, 5)
    if STAMP:
        e("s_waitcnt vmcnt(0)"); stamp(e, 6); stamp_flush(e, 7)
    e("s_endpgm")

KV_TILES = [(0,0),(0,1),(1,0),(1,1),(1,2),(2,1),(2,2),(2,3),(3,2),(3,3),(3,4),(4,3),(4,4)]

def epilogue_kv(e):
    MV = 16; RV = 32; CS = 48; T = 60
    e(f"s_lshl_b32 {s(S_T)}, {s(S_WAVE)}, 8")
    e(f"v_lshlrev_b32 v11, 4, {v(V_G)}")
    e(f"v_add_u32 v11, {s(S_T)}, v11")
    e(f"v_add_u32 v11, {LDS_STATS}, v11")
    for mt in range(4):
        e(f"ds_read_b128 {v(MV + 4*mt, 4)}, v11 offset:{mt*64}")
        e(f"ds_read_b128 {v(RV + 4*mt, 4)}, v11 offset:{1024 + mt*64}")
    e(f"v_lshlrev_b32 v12, 2, {v(V_I)}")
    e(f"v_add_u32 v12, {LDS_CS}, v12")
    e("s_waitcnt lgkmcnt(4)")
    for ct in range(10):
        e(f"ds_read_b32 {v(CS + ct)}, v12 offset:{ct*64}")
    e("s_waitcnt lgkmcnt(0)")
    def cs_mod(ct):
        if ct % 2 == 0: return v(CS + ct, 2), 0, 0
        return v(CS + ct - 1, 2), 1, 1
    for mt in range(4):
        kk, odd = divmod(mt, 2)
        items = [(ct, hh) for ct in range(5) for hh in range(2)]
        allit = [(ct, hh) for ct in range(10) for hh in range(2)]
        for (ct, hh) in allit:
            A = acc(mt, ct) + 2*hh
            c, o, oh = cs_mod(ct)
            e(f"v_pk_fma_f32 {v(A,2)}, {v(MV + 4*mt + 2*hh,2)}, {c}, {v(A,2)} op_sel:[0,{o},0] op_sel_hi:[1,{oh},1] neg_lo:[0,1,0] neg_hi:[0,1,0]")
        for (ct, hh) in items:
            A = acc(mt, ct) + 2*hh
            e(f"v_pk_fma_f32 {v(A,2)}, {v(A,2)}, {v(RV + 4*mt + 2*hh,2)}, {s(S_EPS6,2)}")
        for (ct, hh) in items:
            A = acc(mt, ct + 5) + 2*hh
            e(f"v_pk_mul_f32 {v(A,2)}, {v(A,2)}, {v(RV + 4*mt + 2*hh,2)}")
        for k, (ct, hh) in enumerate(items):
            A = acc(mt, ct) + 2*hh
            e(f"v_pk_mul_f32 {v(T + 2*k,2)}, {v(A,2)}, {s(S_L2E,2)}")
        for k in range(10):
            e(f"v_exp_f32_e64 {v(T + 2*k)}, {v(T + 2*k)} clamp"); e(f"v_exp_f32_e64 {v(T + 2*k + 1)}, {v(T + 2*k + 1)} clamp")
        for (ct, hh) in items:
            A = acc(mt, ct) + 2*hh
            e(f"v_max_f32 {v(A)}, {s(S_EPS6)}, {v(A)}"); e(f"v_max_f32 {v(A+1)}, {s(S_EPS6)}, {v(A+1)}")
        for k, (ct, hh) in enumerate(items):
            A = acc(mt, ct) + 2*hh
            e(f"v_pk_add_f32 {v(A,2)}, {v(A,2)}, {v(T + 2*k,2)}")
        for ct in range(10):
            A = acc(mt, ct); O = acc(2*kk, ct) + 2*odd
            e(f"v_cvt_pk_bf16_f32 {v(O)}, {v(A)}, {v(A+1)}")
            e(f"v_cvt_pk_bf16_f32 {v(O+1)}, {v(A+2)}, {v(A+3)}")
    free = [acc(1, ct) for ct in range(10)] + [acc(3, ct) for ct in range(10)]
    ONES = 16
    for r in range(4): e(f"v_mov_b32 {v(ONES + r)}, 0x3f803f80")
    e("s_nop 1")
    D = {}
    for n, (te, td) in enumerate(KV_TILES):
        D[(te, td)] = free[n]
        for kk in range(2):
            c = "0" if kk == 0 else v(free[n], 4)
            e(f"v_mfma_f32_16x16x32_bf16 {v(free[n],4)}, {v(acc(2*kk, 5 + te),4)}, {v(acc(2*kk, td),4)}, {c}")
    Z = {}
    for td in range(5):
        Z[td] = free[13 + td]
        for kk in range(2):
            c = "0" if kk == 0 else v(Z[td], 4)
            e(f"v_mfma_f32_16x16x32_bf16 {v(Z[td],4)}, {v(ONES,4)}, {v(acc(2*kk, td),4)}, {c}")
    e(f"s_mul_i32 {s(S_T)}, {s(S_WAVE)}, {18*1024}")
    e(f"v_lshlrev_b32 v11, 4, {v(V_LANE)}")
    e(f"v_add_u32 v11, {s(S_T)}, v11")
    e(f"v_add_u32 v11, {LDS_KVS}, v11")
    e("s_nop 4")
    for nn in range(18):
        e(f"ds_write_b128 v11, {v(free[nn],4)} offset:{nn*1024}")
    e("s_waitcnt lgkmcnt(0)")

def kv_final(e):
    TE = 0; TD = 0
    for n, (te, td) in enumerate(KV_TILES):
        TE |= te << (4*n); TD |= td << (4*n)
    e.label("L_kv_final")
    e("s_barrier")
    e(f"s_mul_i32 {s(S_T4)}, {s(S_SUB)}, 6720")
    e(f"s_add_u32 {s(S_T4)}, {s(S_T4)}, {WS_KV}")
    e(f"s_mov_b32 {s(S_CNT)}, {s(S_WAVE)}")
    e(f"v_lshlrev_b32 v16, 4, {v(V_LANE)}")
    e(f"v_add_u32 v16, {LDS_KVS}, v16")
    e.label("L_kvf_loop")
    e(f"s_lshl_b32 {s(S_T)}, {s(S_CNT)}, 10")
    e(f"v_add_u32 v17, {s(S_T)}, v16")
    for w in range(4):
        e(f"ds_read_b128 {v(20 + 4*w,4)}, v17 offset:{w*18*1024}")
    e(f"s_cmp_ge_u32 {s(S_CNT)}, 13"); e("s_cbranch_scc1 L_kvf_z")
    e(f"s_lshl_b32 {s(S_T)}, {s(S_CNT)}, 2")
    e(f"s_mov_b32 s68, {TE & 0xffffffff}"); e(f"s_mov_b32 s69, {TE >> 32}")
    e(f"s_lshr_b64 s[68:69], s[68:69], {s(S_T)}"); e(f"s_and_b32 {s(S_T+1)}, s68, 15")
    e(f"s_mov_b32 s68, {TD & 0xffffffff}"); e(f"s_mov_b32 s69, {TD >> 32}")
    e(f"s_lshr_b64 s[68:69], s[68:69], {s(S_T)}"); e(f"s_and_b32 {s(S_T+2)}, s68, 15")
    e(f"s_lshl_b32 {s(S_T+1)}, {s(S_T+1)}, 2"); e(f"s_lshl_b32 {s(S_T+2)}, {s(S_T+2)}, 4")
    e(f"v_add_u32 v11, {s(S_T+1)}, {v(V_G)}")
    e(f"v_mul_u32_u24 v12, 52, v11"); e(f"v_lshrrev_b32 v12, 8, v12")
    e(f"v_lshlrev_b32 v11, 2, v11"); e(f"v_sub_u32 v11, v11, v12"); e(f"v_mul_u32_u24 v11, 80, v11")
    e(f"v_add_u32 v13, {s(S_T+2)}, {v(V_I)}")
    e(f"v_mul_u32_u24 v14, 205, v13"); e(f"v_lshrrev_b32 v14, 12, v14")
    e(f"v_cmp_eq_u32 vcc, v12, v14")
    e(f"v_lshlrev_b32 v13, 2, v13")
    e(f"v_add_u32 v11, v11, v13")
    e(f"v_mov_b32 v12, 0x7ffffff0")
    e(f"v_cndmask_b32 v11, v12, v11, vcc")
    e("s_waitcnt lgkmcnt(0)")
    for h in range(2):
        e(f"v_pk_add_f32 {v(20+2*h,2)}, {v(20+2*h,2)}, {v(24+2*h,2)}")
        e(f"v_pk_add_f32 {v(28+2*h,2)}, {v(28+2*h,2)}, {v(32+2*h,2)}")
    for h in range(2):
        e(f"v_pk_add_f32 {v(20+2*h,2)}, {v(20+2*h,2)}, {v(28+2*h,2)}")
    for r in range(4):
        e(f"buffer_atomic_add_f32 {v(20 + r)}, v11, {s(S_WS,4)}, {s(S_T4)} offen offset:{80*r}")
    e("s_branch L_kvf_next")
    e.label("L_kvf_z")
    e(f"s_sub_u32 {s(S_T)}, {s(S_CNT)}, 13"); e(f"s_lshl_b32 {s(S_T)}, {s(S_T)}, 6")
    e(f"v_lshlrev_b32 v11, 2, {v(V_I)}")
    e(f"v_add_u32 v11, {s(S_T)}, v11")
    e(f"v_add_u32 v11, 6400, v11")
    e(f"v_cmp_eq_u32 vcc, 0, {v(V_G)}")
    e(f"v_mov_b32 v12, 0x7ffffff0")
    e("s_nop 0")
    e(f"v_cndmask_b32 v11, v12, v11, vcc")
    e("s_waitcnt lgkmcnt(0)")
    e("v_add_f32 v20, v20, v24"); e("v_add_f32 v28, v28, v32"); e("v_add_f32 v20, v20, v28")
    e(f"buffer_atomic_add_f32 v20, v11, {s(S_WS,4)}, {s(S_T4)} offen")
    e.label("L_kvf_next")
    e(f"s_add_u32 {s(S_CNT)}, {s(S_CNT)}, 8")
    e(f"s_cmp_lt_u32 {s(S_CNT)}, 18")
    e("s_cbranch_scc1 L_kvf_loop")
    e.label("L_k1_end2")
    if STAMP:
        stamp(e, 5)
        e("s_waitcnt vmcnt(0)"); stamp(e, 6); stamp_flush(e, 7)
    e.label("L_k1_end")
    e("s_endpgm")

def gen_k1(e, opts=None):
    opts = opts or {}
    global STAMP
    STAMP = opts.get("stamp", False)
    OPTS.clear(); OPTS.update(opts)
    e.raw(".globl k1_kernel"); e.raw(".p2align 8"); e.raw(".type k1_kernel,@function"); e.label("k1_kernel")
    setup_common(e)
    e(f"s_cmp_ge_u32 {s(S_WAVE)}, 4")
    e("s_cbranch_scc1 L_producers")
    consumer_setup(e)
    e(f"s_setprio {OPTS.get('cprio', 2)}")
    e(f"s_cmp_eq_u32 {s(S_TYPE)}, 1")
    e("s_cbranch_scc1 L_cons_kv")
    for w in range(4):
        if w < 3:
            e(f"s_cmp_eq_u32 {s(S_WAVE)}, {w}"); e(f"s_cbranch_scc0 L_sw_n{w}")
        consumer_loop(e, True, f"sw{w}", w)
        if w < 3:
            e("s_branch L_sw_done"); e.label(f"L_sw_n{w}")
    e.label("L_sw_done")
    e("s_barrier")
    stamp(e, 4)
    e(f"s_cmp_eq_u32 {s(S_TYPE)}, 0")
    e("s_cbranch_scc1 L_epi_q")
    epilogue_gu(e)
    e.label("L_epi_q")
    epilogue_q(e)
    e.label("L_cons_kv")
    for w in range(4):
        if w < 3:
            e(f"s_cmp_eq_u32 {s(S_WAVE)}, {w}"); e(f"s_cbranch_scc0 L_ns_n{w}")
        consumer_loop(e, False, f"ns{w}", w)
        if w < 3:
            e("s_branch L_ns_done"); e.label(f"L_ns_n{w}")
    e.label("L_ns_done")
    e("s_barrier")
    stamp(e, 4)
    epilogue_kv(e)
    kv_final(e)
    e.label("L_producers")
    e(f"s_cmp_eq_u32 {s(S_WAVE)}, 5"); e("s_cbranch_scc1 L_prod1")
    e(f"s_cmp_eq_u32 {s(S_WAVE)}, 6"); e("s_cbranch_scc1 L_prod2")
    e(f"s_cmp_eq_u32 {s(S_WAVE)}, 7"); e("s_cbranch_scc1 L_prod3")
    dma_wave(e, 0)
    e.label("L_prod1"); dma_wave(e, 1)
    e.label("L_prod2"); helper0(e, opts)
    e.label("L_prod3"); helper1(e, opts)
```

```python
from asmlib import *
import k1
from k1 import WS_PQ, WS_H, WS_KV, WS_WF, WS_USED

LDS_WAVE = 20480
ZBASE = 13440
LDS_TOTAL = 4 * LDS_WAVE
OPTS = {}
D = 3

S_X = 8; S_WS = 20; S_OUT = 24
S_RB = 28; S_CB = 29; S_W = 30; S_LB = 31
S_T = 32
S_BO = 40
S_HO = 41
S_CNT = 44
S_PQO = 45
S_EPS = 46

V_LANE = 1; V_I = 2; V_G = 3
V_HV = 9
V_ZA = 11
V_T = 12
V_HVM = 16
V_KVT = 20
V_HE = 128
V_NUM = 176
V_DEN = 216
V_RC = 228
V_TMP = 240
V_O = 64
A_ACC = 0
A_BUF = 80
A_PQ = 80 + 36*D
def acc(mt, ct): return A_ACC + (ct * 4 + mt) * 4
NSET = 6
V_BUF = 20
def bufA(k, mt):
    return a(A_BUF + 36*k + 4*mt, 4) if k < 3 else v(V_BUF + 36*(k-3) + 4*mt, 4)
def bufB(k, ct):
    return a(A_BUF + 36*k + 16 + 4*ct, 4) if k < 3 else v(V_BUF + 36*(k-3) + 16 + 4*ct, 4)
V_NUM2 = 128
V_RC2 = 240
V_XR = 100
A_XR = 80 + 36*3 + 40

NUM = [(0,0),(1,0),(1,1),(2,0),(2,1),(3,1),(3,2),(4,1),(4,2),(5,2),(5,3),(6,2),(6,3),(7,3),(7,4),(8,3),(8,4),(9,4)]
DEN = [(0,0),(0,1),(0,2),(1,1),(1,2),(1,3),(1,4),(2,3),(2,4)]

def stamp(e, idx):
    if OPTS.get("stamp"):
        e(f"s_memtime {s(70 + 2*idx, 2)}")
        e("s_waitcnt lgkmcnt(0)")

def load_b(e, k):
    for ct in range(5):
        if ct < 4:
            e(f"buffer_load_dwordx4 {bufB(k, ct)}, {v(V_HV)}, {s(S_WS,4)}, {s(S_BO)} offen offset:{ct*1024}")
        else:
            e(f"s_add_u32 {s(S_T)}, {s(S_BO)}, 4096")
            e(f"buffer_load_dwordx4 {bufB(k, ct)}, {v(V_HV)}, {s(S_WS,4)}, {s(S_T)} offen")
    e(f"s_add_u32 {s(S_BO)}, {s(S_BO)}, {8*5120}")

def load_h(e, k):
    for mt in range(4):
        e(f"buffer_load_dwordx4 {bufA(k, mt)}, {v(V_HVM + mt)}, {s(S_WS,4)}, {s(S_HO)} offen")
    e(f"s_add_u32 {s(S_HO)}, {s(S_HO)}, 1024")

def load_pq(e, set_):
    for p in range(5):
        if p < 4:
            e(f"buffer_load_dwordx4 {a(A_PQ + set_*20 + 4*p,4)}, {v(V_HV)}, {s(S_WS,4)}, {s(S_PQO)} offen offset:{p*1024}")
        else:
            e(f"s_add_u32 {s(S_T)}, {s(S_PQO)}, 4096")
            e(f"buffer_load_dwordx4 {a(A_PQ + set_*20 + 4*p,4)}, {v(V_HV)}, {s(S_WS,4)}, {s(S_T)} offen")
    e(f"s_add_u32 {s(S_PQO)}, {s(S_PQO)}, {20*1024}")

def load_kv(e):
    e(f"s_mul_i32 {s(S_T)}, {s(S_W)}, 13440"); e(f"s_add_u32 {s(S_T)}, {s(S_T)}, {WS_KV}")
    for k in range(14):
        if k == 13:
            e(f"v_cmp_gt_u32 vcc, 8, {v(V_LANE)}"); e(f"s_and_saveexec_b64 s[36:37], vcc")
        e(f"s_add_u32 m0, {s(S_LB)}, {k*1024}")
        e(f"s_add_u32 {s(S_T+2)}, {s(S_T)}, {k*1024}")
        e(f"buffer_load_dwordx4 {v(V_HV)}, {s(S_WS,4)}, {s(S_T+2)} offen lds")
        if k == 13: e("s_mov_b64 exec, s[36:37]"); e("s_nop 3")

def capture(fn):
    t = Emit(); fn(t)
    chunks = []; cur = []
    for l in t.lines:
        cur.append(l.strip())
        op = l.split()[0]
        if op.startswith("buffer_") or op.startswith("ds_") or op.startswith("global_"):
            chunks.append(cur); cur = []
    if cur:
        if chunks: chunks[-1] += cur
        else: chunks.append(cur)
    return chunks

def mfma_step(e, k, a_from_lds=None, extra=None):
    extra = list(extra or [])
    n = len(extra); xi = 0
    idx = 0
    for ct in range(5):
        for mt in range(4):
            A = acc(mt, ct)
            bop = bufA(k, mt) if a_from_lds is None else v(V_O + a_from_lds*16 + 4*mt, 4)
            e(f"v_mfma_f32_16x16x32_bf16 {a(A,4)}, {bufB(k, ct)}, {bop}, {a(A,4)}")
            idx += 1
            want = (idx * n + 19) // 20 if n else 0
            while xi < want:
                for ins in extra[xi]: e(ins)
                xi += 1
    assert xi == n

def precompute(e):
    for r in range(4): e(f"v_mov_b32 {v(V_TMP + r)}, 0")
    e(f"v_add_u32 {v(V_T)}, {s(S_LB)}, {v(V_HV)}")
    e(f"v_cmp_gt_u32 vcc, 44, {v(V_LANE)}"); e(f"s_and_saveexec_b64 s[36:37], vcc")
    e(f"ds_write_b128 {v(V_T)}, {v(V_TMP,4)} offset:{ZBASE}")
    e("s_mov_b64 exec, s[36:37]")
    e(f"v_lshlrev_b32 {v(V_T+3)}, 4, {v(V_G)}")
    for t in range(10):
        e(f"v_add_u32 {v(V_T)}, {16*t}, {v(V_I)}")
        e(f"v_mul_u32_u24 {v(V_HE + t)}, 205, {v(V_T)}"); e(f"v_lshrrev_b32 {v(V_HE + t)}, 12, {v(V_HE + t)}")
        e(f"v_sub_u32 {v(V_T)}, {v(V_T)}, {v(V_HE + t)}"); e(f"v_mul_u32_u24 {v(V_T)}, 80, {v(V_T)}")
        e(f"v_lshrrev_b32 {v(V_T+1)}, 2, {v(V_HE + t)}"); e(f"v_mul_u32_u24 {v(V_T+1)}, 320, {v(V_T+1)}")
        e(f"v_add3_u32 {v(V_T)}, {v(V_T)}, {v(V_T+1)}, {v(V_T+3)}")
        e(f"v_add_u32 {v(V_HE + 10 + t)}, {s(S_LB)}, {v(V_T)}")
    for wh in range(10):
        e(f"v_add_u32 {v(V_T)}, {4*wh}, {v(V_G)}")
        e(f"v_mul_u32_u24 {v(V_HE + 20 + wh)}, 52, {v(V_T)}"); e(f"v_lshrrev_b32 {v(V_HE + 20 + wh)}, 8, {v(V_HE + 20 + wh)}")
        e(f"v_lshrrev_b32 {v(V_T+1)}, 2, {v(V_HE + 20 + wh)}"); e(f"v_mul_u32_u24 {v(V_T+1)}, 6400, {v(V_T+1)}")
        e(f"v_add3_u32 {v(V_T+1)}, {v(V_T+1)}, {v(V_T+3)}, {s(S_LB)}")
        e(f"v_add_u32 {v(V_HE + 30 + wh)}, 6400, {v(V_T+1)}")
    for u in range(3):
        e(f"v_and_b32 {v(V_T)}, 3, {v(V_I)}"); e(f"v_lshlrev_b32 {v(V_T)}, 2, {v(V_T)}")
        e(f"v_lshrrev_b32 {v(V_T+1)}, 2, {v(V_I)}")
        e(f"v_add3_u32 {v(V_T)}, {v(V_T)}, {v(V_T+1)}, {16*u}")
        e(f"v_mul_u32_u24 {v(V_HE + 40 + u)}, 52, {v(V_T)}"); e(f"v_lshrrev_b32 {v(V_HE + 40 + u)}, 8, {v(V_HE + 40 + u)}")
    e(f"s_add_u32 {s(S_T)}, {s(S_LB)}, {ZBASE}")
    e(f"v_mov_b32 {v(V_ZA)}, {s(S_T)}")

def build_frags(e):
    lq = Queue(e, "lgkmcnt", 15)
    frs = [("n", t, w) for (t, w) in NUM] + [("d", u, w) for (u, w) in DEN]
    halves = []
    for fi, (kind, t, w) in enumerate(frs):
        for hf in range(2):
            wh = 2*w + hf
            hsrc = V_HE + t if kind == "n" else V_HE + 40 + t
            asrc = V_HE + 10 + t if kind == "n" else V_HE + 30 + wh
            halves.append((fi, hf, wh, hsrc, asrc))
    M = [48, 50, 52, 54]
    def cmp(hi):
        fi, hf, wh, hsrc, asrc = halves[hi]
        e(f"v_cmp_eq_u32 {s(M[hi % 4],2)}, {v(hsrc)}, {v(V_HE + 20 + wh)}")
    def rd(hi):
        fi, hf, wh, hsrc, asrc = halves[hi]
        tb = V_TMP + (fi % 2) * 8
        ad = V_T + (hi % 2)
        e(f"v_cndmask_b32 {v(ad)}, {v(V_ZA)}, {v(asrc)}, {s(M[hi % 4],2)}")
        e(f"ds_read_b128 {v(tb + 4*hf, 4)}, {v(ad)} offset:{64*wh}")
        lq.issue(("f", fi))
    def fin(fi):
        lq.wait(("f", fi))
        tb = V_TMP + (fi % 2) * 8
        R = V_KVT + 4*fi
        for k in range(4):
            e(f"v_cvt_pk_bf16_f32 {v(R + k)}, {v(tb + 2*k)}, {v(tb + 2*k + 1)}")
    n = len(halves)
    cmp(0); cmp(1); cmp(2)
    for hi in range(n):
        if hi + 3 < n: cmp(hi + 3)
        else: e("s_nop 0")
        rd(hi)
        fi, hf = halves[hi][0], halves[hi][1]
        if hf == 1 and fi >= 1: fin(fi - 1)
    fin(len(frs) - 1)

def o_mfma_list(b):
    PQ = A_PQ + (b % 2)*20
    NUMb = V_NUM if b % 2 == 0 else V_NUM2
    RCb = V_RC if b % 2 == 0 else V_RC2
    M = []
    for n_, (u, w) in enumerate(DEN):
        fi = 18 + n_
        first = (n_ == 0 or DEN[n_-1][0] != u)
        c = "0" if first else v(V_DEN + 4*u, 4)
        M.append([f"v_mfma_f32_16x16x32_bf16 {v(V_DEN + 4*u,4)}, {v(V_KVT + 4*fi,4)}, {a(PQ + 4*w,4)}, {c}"])
    for fi, (t, w) in enumerate(NUM):
        first = (fi == 0 or NUM[fi-1][0] != t)
        c = "0" if first else v(NUMb + 4*t, 4)
        L = [f"v_mfma_f32_16x16x32_bf16 {v(NUMb + 4*t,4)}, {v(V_KVT + 4*fi,4)}, {a(PQ + 4*w,4)}, {c}"]
        if 3 <= fi < 13:
            t2 = fi - 3
            L.append(f"v_add_f32 {v(RCb + t2)}, {s(S_EPS)}, {v(V_DEN + 4*(t2 >> 2) + (t2 & 3))}")
        if 5 <= fi < 15:
            t2 = fi - 5
            L.append(f"v_rcp_f32 {v(RCb + t2)}, {v(RCb + t2)}")
        M.append(L)
    return M

def o_finish_list(b):
    NUMb = V_NUM if b % 2 == 0 else V_NUM2
    RCb = V_RC if b % 2 == 0 else V_RC2
    F = []
    for p in range(5):
        for t in (2*p, 2*p + 1):
            N = NUMb + 4*t
            r = RCb + t
            if r % 2 == 0: pr, o, oh = v(r,2), 0, 0
            else: pr, o, oh = v(r-1,2), 1, 1
            F.append(f"v_pk_mul_f32 {v(N,2)}, {v(N,2)}, {pr} op_sel:[0,{o}] op_sel_hi:[1,{oh}]")
            F.append(f"v_pk_mul_f32 {v(N+2,2)}, {v(N+2,2)}, {pr} op_sel:[0,{o}] op_sel_hi:[1,{oh}]")
        O = NUMb + 8*p
        F.append(f"v_cvt_pk_bf16_f32 {v(O)}, {v(O)}, {v(O+1)}")
        F.append(f"v_cvt_pk_bf16_f32 {v(O+1)}, {v(O+2)}, {v(O+3)}")
        F.append(f"v_cvt_pk_bf16_f32 {v(O+2)}, {v(O+4)}, {v(O+5)}")
        F.append(f"v_cvt_pk_bf16_f32 {v(O+3)}, {v(O+6)}, {v(O+7)}")
        F.append(f"ds_write_b128 {v(V_T+2)}, {v(O,4)} offset:{(b*5 + p)*1024}")
    return F

def phase_a(e):
    stamp(e, 2)
    e("s_waitcnt lgkmcnt(0)")
    build_frags(e)
    stamp(e, 3)
    e(f"s_mov_b32 {s(S_EPS)}, {f32(1e-6)}")
    e(f"v_add_u32 {v(V_T+2)}, {s(S_LB)}, {v(V_HV)}")
    for b in range(4):
        M = o_mfma_list(b)
        F = o_finish_list(b - 1) if b > 0 else []
        if b == 2: e("s_waitcnt vmcnt(5)")
        if b == 3: e("s_waitcnt vmcnt(0)")
        fi = 0
        for k, L in enumerate(M):
            for ins in L: e(ins)
            if k >= 1:
                n = (len(F) - fi + (len(M) - 1 - k)) // (len(M) - k)
                for _ in range(n):
                    e(F[fi]); fi += 1
        assert fi == len(F)
        if b < 2: load_pq(e, b % 2)
    e("s_nop 4")
    for ins in o_finish_list(3): e(ins)
    stamp(e, 4)

def gen_k2(e, opts=None):
    opts = opts or {}
    OPTS.clear(); OPTS.update(opts)
    e.raw(".globl k2_kernel"); e.raw(".p2align 8"); e.raw(".type k2_kernel,@function"); e.label("k2_kernel")
    e("s_cmp_ge_u32 s2, 256")
    e("s_cbranch_scc1 L_k2_end")
    e("s_load_dwordx2 s[4:5], s[0:1], 0")
    e("s_load_dwordx2 s[50:51], s[0:1], 56")
    e("s_load_dwordx2 s[52:53], s[0:1], 72")
    if opts.get("stamp"): e(f"s_memtime {s(70,2)}"); e("s_memrealtime s[86:87]"); e("s_load_dwordx2 s[90:91], s[0:1], 64")
    e("v_lshrrev_b32 v4, 6, v0")
    e(f"v_and_b32 {v(V_LANE)}, 63, v0")
    e(f"v_readfirstlane_b32 {s(S_W)}, v4")
    e(f"v_and_b32 {v(V_I)}, 15, {v(V_LANE)}")
    e(f"v_lshrrev_b32 {v(V_G)}, 4, {v(V_LANE)}")
    e(f"s_and_b32 {s(S_T)}, s2, 7"); e(f"s_lshr_b32 {s(S_T+1)}, s2, 3")
    e(f"s_lshr_b32 {s(S_RB)}, {s(S_T)}, 1"); e(f"s_lshl_b32 {s(S_RB)}, {s(S_RB)}, 3")
    e(f"s_and_b32 {s(S_T+2)}, {s(S_T+1)}, 7"); e(f"s_add_u32 {s(S_RB)}, {s(S_RB)}, {s(S_T+2)}")
    e(f"s_and_b32 {s(S_CB)}, {s(S_T)}, 1"); e(f"s_lshl_b32 {s(S_CB)}, {s(S_CB)}, 2")
    e(f"s_lshr_b32 {s(S_T+2)}, {s(S_T+1)}, 3"); e(f"s_add_u32 {s(S_CB)}, {s(S_CB)}, {s(S_T+2)}")
    if opts.get("k2same"):
        e(f"s_and_b32 {s(S_RB)}, {s(S_RB)}, {opts.get('k2same') - 1}"); e(f"s_mov_b32 {s(S_CB)}, 0")
    e(f"s_mul_i32 {s(S_LB)}, {s(S_W)}, {LDS_WAVE}")
    e(f"v_lshlrev_b32 {v(V_HV)}, 4, {v(V_LANE)}")
    for mt in range(4):
        e(f"v_add_u32 {v(V_HVM + mt)}, {mt*48*1024}, {v(V_HV)}")
    e(f"s_mul_i32 {s(S_PQO)}, {s(S_RB)}, {4*20*1024}"); e(f"s_mul_i32 {s(S_T)}, {s(S_W)}, {5*1024}")
    e(f"s_add_u32 {s(S_PQO)}, {s(S_PQO)}, {s(S_T)}"); e(f"s_add_u32 {s(S_PQO)}, {s(S_PQO)}, {WS_PQ}")
    e(f"s_mul_i32 {s(S_BO)}, {s(S_W)}, {12*8*5120}"); e(f"s_mul_i32 {s(S_T)}, {s(S_CB)}, 5120"); e(f"s_add_u32 {s(S_BO)}, {s(S_BO)}, {s(S_T)}")
    e(f"s_add_u32 {s(S_BO)}, {s(S_BO)}, {WS_WF}")
    e(f"s_mul_i32 {s(S_HO)}, {s(S_RB)}, {4*48*1024}"); e(f"s_mul_i32 {s(S_T)}, {s(S_W)}, {12*1024}")
    e(f"s_add_u32 {s(S_HO)}, {s(S_HO)}, {s(S_T)}"); e(f"s_add_u32 {s(S_HO)}, {s(S_HO)}, {WS_H}")
    e("s_waitcnt lgkmcnt(0)")
    e(f"s_mov_b32 {s(S_WS)}, s52"); e(f"s_mov_b32 {s(S_WS+1)}, s53"); e(f"s_mov_b32 {s(S_WS+2)}, {WS_USED if not opts.get('stamp') else 0x2000000}"); e(f"s_mov_b32 {s(S_WS+3)}, 0x20000")
    e(f"s_mov_b32 {s(S_X)}, s4"); e(f"s_mov_b32 {s(S_X+1)}, s5"); e(f"s_mov_b32 {s(S_X+2)}, 2621440"); e(f"s_mov_b32 {s(S_X+3)}, 0x20000")
    e(f"s_mov_b32 {s(S_OUT)}, s50"); e(f"s_mov_b32 {s(S_OUT+1)}, s51"); e(f"s_mov_b32 {s(S_OUT+2)}, 2621440"); e(f"s_mov_b32 {s(S_OUT+3)}, 0x20000")
    afirst = "s_cmp_lt_u32 {} , {}"
    nA = OPTS.get("nafirst", 2)
    def load_x():
        e(f"s_lshl_b32 {s(S_T)}, {s(S_RB)}, 6"); e(f"s_lshl_b32 {s(S_T+1)}, {s(S_W)}, 4"); e(f"s_add_u32 {s(S_T)}, {s(S_T)}, {s(S_T+1)}")
        e(f"v_add_u32 v10, {s(S_T)}, {v(V_I)}"); e(f"v_mul_u32_u24 v10, 1280, v10")
        e(f"v_lshlrev_b32 v4, 3, {v(V_G)}"); e(f"v_add_u32 v10, v10, v4")
        e(f"s_mul_i32 {s(S_T+2)}, {s(S_CB)}, 160")
        for ct in range(5):
            e(f"buffer_load_dwordx2 {a(A_XR + 2*ct,2)}, v10, {s(S_X,4)}, {s(S_T+2)} offen offset:{ct*32}")
    e(f"s_cmp_lt_u32 {s(S_W)}, {nA}"); e("s_cbranch_scc0 L_k2_proF")
    load_kv(e); load_pq(e, 0); load_pq(e, 1)
    for k in range(3):
        load_b(e, k); load_h(e, k)
    load_x()
    stamp(e, 1)
    precompute(e)
    for r in range(80): e(f"v_accvgpr_write_b32 {a(A_ACC + r)}, 0")
    e(f"s_waitcnt vmcnt({27 + 5})")
    e("s_branch L_k2_A")
    e.label("L_k2_proF")
    for k in range(NSET):
        load_b(e, k); load_h(e, k)
    load_x()
    stamp(e, 1)
    for r in range(80): e(f"v_accvgpr_write_b32 {a(A_ACC + r)}, 0")
    e("s_branch L_k2_F")
    e.label("L_k2_A")
    phase_a(e)
    e(f"s_cmp_lt_u32 {s(S_W)}, {nA}"); e("s_cbranch_scc0 L_k2_T")
    for k in range(3, NSET):
        load_b(e, k); load_h(e, k)
    e.label("L_k2_F")
    def reload_full(k): return capture(lambda t_: (load_b(t_, k), load_h(t_, k)))
    for t in range(6):
        e(f"s_waitcnt vmcnt({(5 - t)*9 + max(t - 1, 0)*9})")
        mfma_step(e, t, extra=reload_full(t - 1) if t >= 1 else None)
    def att_base(t_):
        t_(f"s_mul_i32 {s(S_BO)}, {s(S_W)}, {5*8*5120}"); t_(f"s_mul_i32 {s(S_T)}, {s(S_CB)}, 5120"); t_(f"s_add_u32 {s(S_BO)}, {s(S_BO)}, {s(S_T)}")
        t_(f"s_add_u32 {s(S_BO)}, {s(S_BO)}, {WS_WF + 48*8*5120}")
    def tail(extra):
        qq = []
        for t in range(6, 11): qq += [t] * 9
        for t in range(6, 12):
            idx = max(i for i, x in enumerate(qq) if x == t)
            e(f"s_waitcnt vmcnt({len(qq) - idx - 1})")
            qq = qq[idx + 1:]
            ch = []
            if t == 6:
                ch += reload_full(5); qq += [11] * 9
            for fn, cnt in extra.get(t, []):
                ch += capture(fn); qq += ["x"] * cnt
                assert len(qq) <= 63, len(qq)
            mfma_step(e, t % NSET, extra=ch)
        return qq
    def aB(k, first=False):
        def f(t_):
            if first: att_base(t_)
            load_b(t_, k)
        return f
    e(f"s_cmp_lt_u32 {s(S_W)}, {nA}"); e("s_cbranch_scc0 L_k2_tailF")
    tail({7: [(aB(0, True), 5)], 8: [(aB(1), 5)], 9: [(aB(2), 5)]})
    stamp(e, 5)
    e("s_branch L_k2_T")
    e.label("L_k2_tailF")
    tail({7: [(aB(0, True), 5), (lambda t_: load_kv(t_), 14)], 8: [(aB(1), 5)], 9: [(lambda t_: (load_pq(t_, 0), load_pq(t_, 1)), 10)], 10: [(aB(2), 5)]})
    precompute(e)
    stamp(e, 5)
    e("s_waitcnt vmcnt(5)")
    e("s_branch L_k2_A")
    e.label("L_k2_T")
    e(f"v_add_u32 {v(V_T+2)}, {s(S_LB)}, {v(V_HV)}")
    lq = Queue(e, "lgkmcnt", 15)
    def read_o(p):
        for mt in range(4):
            e(f"ds_read_b128 {v(V_O + (p % 2)*16 + 4*mt,4)}, {v(V_T+2)} offset:{(mt*5 + p)*1024}")
            lq.issue(("o", p))
    read_o(0)
    vmw = [10, 5, 5, 5, 0]
    for p in range(5):
        e(f"s_waitcnt vmcnt({vmw[p]})")
        lq.wait(("o", p))
        ch = []
        if p + 1 < 5:
            ch += capture(lambda t_: [t_(f"ds_read_b128 {v(V_O + ((p+1) % 2)*16 + 4*mt,4)}, {v(V_T+2)} offset:{(mt*5 + p + 1)*1024}") for mt in range(4)])
            for mt in range(4): lq.issue(("o", p + 1))
        if p >= 1 and p - 1 + D < 5: ch += capture(lambda t_: load_b(t_, (p - 1) % D))
        mfma_step(e, p % D, a_from_lds=p % 2, extra=ch)
    stamp(e, 6)
    e("s_nop 7")
    e("s_barrier")
    e(f"s_mul_i32 {s(S_T)}, {s(S_W)}, {20*1024}")
    e(f"v_add_u32 {v(V_T)}, {s(S_T)}, {v(V_HV)}")
    e(f"s_mul_i32 {s(S_T+2)}, {s(S_CB)}, 160")
    for mt in range(4):
        for ct in range(5):
            e(f"ds_write_b128 {v(V_T)}, {a(acc(mt,ct),4)} offset:{(mt*5 + ct)*1024}")
    e("s_waitcnt lgkmcnt(0)")
    e("s_barrier")
    e(f"s_mul_i32 {s(S_T)}, {s(S_W)}, {5*1024}")
    e(f"v_add_u32 {v(V_T)}, {s(S_T)}, {v(V_HV)}")
    e(f"v_add_u32 {v(V_T+3)}, {2*20*1024}, {v(V_T)}")
    for ct in range(5):
        for ww in range(4):
            ad = V_T if ww < 2 else V_T + 3
            e(f"ds_read_b128 {v(20 + (ct*4 + ww)*4,4)}, {v(ad)} offset:{(ww % 2)*20*1024 + ct*1024}")
        if ct == 2: e("s_waitcnt lgkmcnt(0)")
    e("s_waitcnt vmcnt(0) lgkmcnt(0)")
    for ct in range(5):
        B = 20 + ct*16
        for h in range(2):
            e(f"v_pk_add_f32 {v(B+2*h,2)}, {v(B+2*h,2)}, {v(B+4+2*h,2)}")
            e(f"v_pk_add_f32 {v(B+8+2*h,2)}, {v(B+8+2*h,2)}, {v(B+12+2*h,2)}")
        X = 100 + 2*ct
        e(f"v_accvgpr_read_b32 {v(X)}, {a(A_XR + 2*ct)}"); e(f"v_accvgpr_read_b32 {v(X+1)}, {a(A_XR + 2*ct + 1)}")
        e(f"v_lshlrev_b32 {v(B+4)}, 16, {v(X)}"); e(f"v_and_b32 {v(B+5)}, 0xffff0000, {v(X)}")
        e(f"v_lshlrev_b32 {v(B+6)}, 16, {v(X+1)}"); e(f"v_and_b32 {v(B+7)}, 0xffff0000, {v(X+1)}")
        for h in range(2):
            e(f"v_pk_add_f32 {v(B+2*h,2)}, {v(B+2*h,2)}, {v(B+8+2*h,2)}")
        for h in range(2):
            e(f"v_pk_add_f32 {v(B+2*h,2)}, {v(B+2*h,2)}, {v(B+4+2*h,2)}")
        e(f"v_cvt_pk_bf16_f32 {v(B)}, {v(B)}, {v(B+1)}")
        e(f"v_cvt_pk_bf16_f32 {v(B+1)}, {v(B+2)}, {v(B+3)}")
        e(f"buffer_store_dwordx2 {v(B,2)}, v10, {s(S_OUT,4)}, {s(S_T+2)} offen offset:{ct*32}")
    if opts.get("stamp"):
        stamp(e, 7)
        e(f"s_lshl_b32 {s(S_T)}, s2, 3"); e(f"s_add_u32 {s(S_T)}, {s(S_T)}, {s(S_W)}"); e(f"s_lshl_b32 {s(S_T)}, {s(S_T)}, 6")
        e(f"s_add_u32 {s(S_T)}, {s(S_T)}, {0x1200000}")
        e(f"v_mov_b32 v14, 0")
        e("s_memrealtime s[88:89]"); e("s_waitcnt lgkmcnt(0)")
        for k in range(8):
            e(f"v_mov_b32 v15, {s(70 + 2*k)}")
            e(f"buffer_store_dword v15, v14, {s(S_WS,4)}, {s(S_T)} offen offset:{4*k}")
            e("s_nop 1")
        e(f"v_mov_b32 v15, s86"); e(f"buffer_store_dword v15, v14, {s(S_WS,4)}, {s(S_T)} offen offset:{4*8}"); e("s_nop 1")
        e(f"v_mov_b32 v15, s88"); e(f"buffer_store_dword v15, v14, {s(S_WS,4)}, {s(S_T)} offen offset:{4*9}"); e("s_nop 1")
    e.label("L_k2_end")
    e("s_endpgm")
```

```python
from asmlib import *
import math

NST = 10
NSLOT = 3
A_BYTES = 32768
BH = 10240
SLOT = A_BYTES + 2*BH
LDS_AUX = NSLOT * SLOT
LDS_STATS = LDS_AUX
LDS_CS = LDS_AUX + 2048
LDS_TOTAL = 163840
LDS_KVS = 0
LDS_RP = SLOT + 24576
WS_PQ = 0
WS_H = 2621440
WS_KV = WS_H + 6291456
WS_STATS = WS_KV + 65536
WS_WF = WS_STATS + 32768
WS_USED = WS_WF + 544*5120
LOG2E = 1.4426950408889634

S_X = 8; S_B0 = 12; S_B1 = 16; S_WS = 20; S_DBG = 24
S_RB = 26; S_CG = 27; S_WAVE = 28; S_TYPE = 29; S_SUB = 30; S_BSTR = 31
S_CB0 = 32; S_CB1 = 33; S_ROT = 34; S_SLOT = 35; S_CNT = 36
S_T = 37
S_EPS6 = 40
S_L2E = 42
S_AOFF = 56; S_BOFF = 57; S_M0S = 60; S_T2 = 61; S_T3 = 62; S_T4 = 63
S_EXS = 64
S_OK = 67
S_NONCE = 68

V_ACC = 96
def acc(mt, ct): return V_ACC + (ct * 4 + mt) * 4
V_X = 32
V_W = 64
V_XB = 2; V_WB = 3; V_XA = 4; V_WA = 6
V_LANE = 8; V_I = 9; V_G = 10
V_CSA = 80
V_ONES = 92

OPTS = {}
def SM():
    m = OPTS.get('smod', '')
    return (' ' + m.replace('_', ' ')) if m else ''
STAMP = False
WS_STAMP = 0x1000000
def stamp(e, idx):
    if STAMP:
        e(f"s_memtime {s(70 + 2*idx, 2)}")
        e("s_waitcnt lgkmcnt(0)")
def stamp_flush(e, n):
    if STAMP:
        e(f"s_lshl_b32 {s(S_T)}, s2, 3"); e(f"s_add_u32 {s(S_T)}, {s(S_T)}, {s(S_WAVE)}"); e(f"s_lshl_b32 {s(S_T)}, {s(S_T)}, 6")
        e(f"s_add_u32 {s(S_T)}, {s(S_T)}, {WS_STAMP}")
        e(f"v_mov_b32 v14, 0")
        e("s_memrealtime s[88:89]"); e("s_waitcnt lgkmcnt(0)")
        for k in range(n):
            e(f"v_mov_b32 v15, {s(70 + 2*k)}")
            e(f"buffer_store_dword v15, v14, {s(S_WS,4)}, {s(S_T)} offen offset:{4*k}")
            e("s_nop 1")
        e(f"v_mov_b32 v15, s86"); e(f"buffer_store_dword v15, v14, {s(S_WS,4)}, {s(S_T)} offen offset:{4*8}"); e("s_nop 1")
        e(f"v_mov_b32 v15, s88"); e(f"buffer_store_dword v15, v14, {s(S_WS,4)}, {s(S_T)} offen offset:{4*9}"); e("s_nop 1")

def cs_owned(w): return [ct for ct in (w, w + 4, w + 8) if ct < 10]

def wrap_slot(e, sreg):
    e(f"s_add_u32 {s(sreg)}, {s(sreg)}, {SLOT}")
    e(f"s_cmp_eq_u32 {s(sreg)}, {NSLOT*SLOT}")
    e(f"s_cselect_b32 {s(sreg)}, 0, {s(sreg)}")

def consumer_loop(e, swapped, tag, w):
    own = cs_owned(w) if not OPTS.get("nocolsum") else []
    RING = 4
    q = Queue(e, "lgkmcnt", 15)
    def rd_x(par, mt):
        if OPTS.get("nox"): return
        e(f"ds_read_b128 {v(V_X + par*16 + mt*4, 4)}, {v(V_XA + par)} offset:{mt*2048}")
        q.issue(("x", par, mt))
    def rd_w(f, part):
        if OPTS.get("now"): return
        ks, ct = divmod(f % 20, 10)
        half, c16 = divmod(ct, 5)
        off = half * BH + ks * 5120 + c16 * 32 + part * 1280
        ring = f % RING
        e(f"ds_read_b64_tr_b16 {v(V_W + ring*4 + part*2, 2)}, {v(V_WA)} offset:{off}")
        q.issue(("w", ring, part))
    def next_addr():
        e(f"v_add_u32 {v(V_XA)}, {s(S_SLOT)}, {v(V_XB)}")
        e(f"v_add_u32 {v(V_WA)}, {s(S_SLOT)}, {v(V_WB)}")
        e(f"v_xor_b32 {v(V_XA + 1)}, 64, {v(V_XA)}")
        wrap_slot(e, S_SLOT)
    sched = {G: [] for G in range(20)}
    sched[0] = [("w", 2, 0), ("w", 2, 1), ("w", 3, 0), ("w", 3, 1)]
    for G in range(1, 17): sched[G] = [("w", G + 3, 0), ("w", G + 3, 1)]
    for k, G in enumerate((4, 5, 6, 7)): sched[G].append(("x", 1, k))
    sched[18] = [("x", 0, 0), ("x", 0, 1), ("w", 20, 0), ("w", 20, 1)]
    sched[19] = [("x", 0, 2), ("x", 0, 3), ("w", 21, 0), ("w", 21, 1)]
    def do_read(r):
        if r[0] == "x": rd_x(r[1], r[2])
        else: rd_w(r[1], r[2])
    e(f"s_mov_b32 {s(S_SLOT)}, 0")
    stamp(e, 1)
    e("s_barrier")
    stamp(e, 2)
    next_addr()
    for G in (18, 19):
        for r in sched[G]: do_read(r)
    state0 = list(q.p)
    e(f"s_mov_b32 {s(S_CNT)}, {NST}")
    e.raw(".p2align 6")
    e.label(f"L_cloop_{tag}")
    for G in range(20):
        ks, ct = divmod(G, 10)
        ring = G % RING
        reads = list(sched[G])
        if G == 18:
            q.drain()
            e("s_barrier")
            next_addr()
        ri = 0
        for mt in range(4):
            q.wait(("w", ring, 0), ("w", ring, 1), ("x", ks, mt))
            A = acc(mt, ct)
            xo = v(V_X + ks*16 + mt*4, 4); wo = v(V_W + ring*4, 4)
            if OPTS.get("nomfma"): pass
            elif swapped: e(f"v_mfma_f32_16x16x32_bf16 {v(A,4)}, {wo}, {xo}, {v(A,4)}")
            else: e(f"v_mfma_f32_16x16x32_bf16 {v(A,4)}, {xo}, {wo}, {v(A,4)}")
            if mt == 3 and ct in own and not OPTS.get("nomfma"):
                C = V_CSA + 4*own.index(ct)
                if swapped: e(f"v_mfma_f32_16x16x32_bf16 {v(C,4)}, {wo}, {v(V_ONES,4)}, {v(C,4)}")
                else: e(f"v_mfma_f32_16x16x32_bf16 {v(C,4)}, {v(V_ONES,4)}, {wo}, {v(C,4)}")
            nrd = (len(reads) - ri + (3 - mt)) // (4 - mt)
            for _ in range(nrd):
                do_read(reads[ri]); ri += 1
        assert ri == len(reads)
    e(f"s_sub_u32 {s(S_CNT)}, {s(S_CNT)}, 1")
    e(f"s_cmp_lg_u32 {s(S_CNT)}, 0")
    e(f"s_cbranch_scc1 L_cloop_{tag}")
    assert q.p == state0, (q.p, state0)
    e("s_waitcnt lgkmcnt(0)")
    stamp(e, 3)
    if own:
        if swapped:
            e(f"v_lshlrev_b32 v11, 4, {v(V_G)}"); e(f"v_add_u32 v11, {LDS_CS}, v11")
            e(f"v_cmp_eq_u32 vcc, 0, {v(V_I)}")
        else:
            e(f"v_lshlrev_b32 v11, 2, {v(V_I)}"); e(f"v_add_u32 v11, {LDS_CS}, v11")
            e(f"v_cmp_eq_u32 vcc, 0, {v(V_G)}")
        e("s_nop 4")
        e(f"s_and_saveexec_b64 {s(S_EXS,2)}, vcc")
        for k, ct in enumerate(own):
            if swapped: e(f"ds_write_b128 v11, {v(V_CSA + 4*k,4)} offset:{ct*64}")
            else: e(f"ds_write_b32 v11, {v(V_CSA + 4*k)} offset:{ct*64}")
        e(f"s_mov_b64 exec, {s(S_EXS,2)}")
        e("s_waitcnt lgkmcnt(0)")

def setup_pre(e):
    e("s_cmp_ge_u32 s2, 256")
    e("s_cbranch_scc1 L_k1_end")
    e("s_load_dwordx4 s[4:7], s[0:1], 0")
    e("s_load_dwordx4 s[48:51], s[0:1], 32")
    e("s_load_dwordx4 s[52:55], s[0:1], 64")
    if STAMP: e(f"s_memtime {s(70,2)}")
    if STAMP: e(f"s_memrealtime s[86:87]")
    e(f"v_lshrrev_b32 v1, 6, v0")
    e(f"v_and_b32 {v(V_LANE)}, 63, v0")
    e(f"v_readfirstlane_b32 {s(S_WAVE)}, v1")
    e(f"s_and_b32 {s(S_T)}, s2, 7")
    e(f"s_lshr_b32 {s(S_T+1)}, s2, 3")
    e(f"s_and_b32 {s(S_RB)}, {s(S_T)}, 1")
    e(f"s_lshl_b32 {s(S_RB)}, {s(S_RB)}, 2")
    e(f"s_and_b32 {s(S_T+2)}, {s(S_T+1)}, 3")
    e(f"s_add_u32 {s(S_RB)}, {s(S_RB)}, {s(S_T+2)}")
    e(f"s_lshr_b32 {s(S_T)}, {s(S_T)}, 1")
    e(f"s_lshr_b32 {s(S_T+1)}, {s(S_T+1)}, 2")
    e(f"s_lshl_b32 {s(S_CG)}, {s(S_T)}, 3"); e(f"s_add_u32 {s(S_CG)}, {s(S_CG)}, {s(S_T+1)}")
    e(f"s_mul_i32 {s(S_SUB)}, {s(S_T)}, 5"); e(f"s_add_u32 {s(S_SUB)}, {s(S_SUB)}, {s(S_T+1)}"); e(f"s_sub_u32 {s(S_SUB)}, {s(S_SUB)}, 3")
    e(f"s_mov_b32 {s(S_TYPE)}, 2")
    e(f"s_cmp_eq_u32 {s(S_T+1)}, 2")
    e(f"s_cselect_b32 {s(S_TYPE)}, 0, {s(S_TYPE)}"); e(f"s_cselect_b32 {s(S_SUB)}, {s(S_T)}, {s(S_SUB)}")
    e(f"s_lshl_b32 {s(S_T+2)}, {s(S_T)}, 1"); e(f"s_add_u32 {s(S_T+2)}, {s(S_T+2)}, {s(S_T+1)}")
    e(f"s_cmp_lt_u32 {s(S_T+1)}, 2")
    e(f"s_cselect_b32 {s(S_TYPE)}, 1, {s(S_TYPE)}"); e(f"s_cselect_b32 {s(S_SUB)}, {s(S_T+2)}, {s(S_SUB)}")
    e(f"s_mul_i32 {s(S_CB0)}, {s(S_SUB)}, 160")
    e(f"s_mov_b32 {s(S_CB1)}, {s(S_CB0)}")
    e(f"s_and_b32 {s(S_ROT)}, {s(S_SUB)}, 1"); e(f"s_lshl_b32 {s(S_ROT)}, {s(S_ROT)}, 1")
    e(f"s_cmp_eq_u32 {s(S_TYPE)}, 2")
    e(f"s_cselect_b32 {s(S_ROT)}, {s(S_ROT)}, 0")
    e(f"s_mov_b32 {s(S_BSTR)}, 3840"); e(f"s_mov_b32 {s(S_B0+2)}, 2457600")
    e(f"s_cselect_b32 {s(S_BSTR)}, 3072, {s(S_BSTR)}")
    e(f"s_cselect_b32 {s(S_B0+2)}, 1966080, {s(S_B0+2)}"); e(f"s_mov_b32 {s(S_B1+2)}, {s(S_B0+2)}")
    e(f"s_cmp_eq_u32 {s(S_TYPE)}, 1")
    e(f"s_cselect_b32 {s(S_T)}, 1280, 0"); e(f"s_cselect_b32 {s(S_T+1)}, 2560, 0")
    e(f"s_add_u32 {s(S_CB0)}, {s(S_CB0)}, {s(S_T)}"); e(f"s_add_u32 {s(S_CB1)}, {s(S_CB1)}, {s(S_T+1)}")
    e(f"s_cmp_eq_u32 {s(S_TYPE)}, 0")
    e(f"s_cselect_b32 {s(S_T)}, {s(S_CB0)}, 0"); e(f"s_cselect_b32 {s(S_T+1)}, 160, 0")
    e(f"s_add_u32 {s(S_CB0)}, {s(S_CB0)}, {s(S_T)}"); e(f"s_add_u32 {s(S_CB1)}, {s(S_CB1)}, {s(S_T)}"); e(f"s_add_u32 {s(S_CB1)}, {s(S_CB1)}, {s(S_T+1)}")
    e(f"s_mov_b32 {s(S_X+2)}, 2621440"); e(f"s_mov_b32 {s(S_X+3)}, 0x20000")
    e(f"s_mov_b32 {s(S_WS+2)}, {WS_USED if not STAMP else 0x2000000}"); e(f"s_mov_b32 {s(S_WS+3)}, 0x20000")
    e(f"s_mov_b32 {s(S_B0+3)}, 0x20000"); e(f"s_mov_b32 {s(S_B1+3)}, 0x20000")
    e(f"v_and_b32 {v(V_I)}, 15, {v(V_LANE)}")
    e(f"v_lshrrev_b32 {v(V_G)}, 4, {v(V_LANE)}")

def setup_post(e):
    e("s_waitcnt lgkmcnt(0)")
    e(f"s_mov_b32 {s(S_X)}, s4"); e(f"s_mov_b32 {s(S_X+1)}, s5")
    e(f"s_cmp_eq_u32 {s(S_TYPE)}, 2")
    e(f"s_cselect_b32 {s(S_B0)}, s48, s6"); e(f"s_cselect_b32 {s(S_B0+1)}, s49, s7")
    e(f"s_cselect_b32 {s(S_B1)}, s50, s6"); e(f"s_cselect_b32 {s(S_B1+1)}, s51, s7")
    e(f"s_mov_b32 {s(S_WS)}, s54"); e(f"s_mov_b32 {s(S_WS+1)}, s55")
    e(f"s_mov_b32 {s(S_DBG)}, s52"); e(f"s_mov_b32 {s(S_DBG+1)}, s53")

def consumer_setup(e):
    e(f"v_and_b32 v11, 7, {v(V_I)}")
    e(f"v_xor_b32 v11, {v(V_G)}, v11")
    e(f"v_lshlrev_b32 v11, 4, v11")
    e(f"s_lshl_b32 {s(S_T)}, {s(S_WAVE)}, 13")
    e(f"v_lshlrev_b32 v12, 7, {v(V_I)}")
    e(f"v_add3_u32 {v(V_XB)}, v11, v12, {s(S_T)}")
    e(f"v_lshrrev_b32 v11, 1, {v(V_G)}")
    e(f"v_lshlrev_b32 v11, 4, v11")
    e(f"v_and_b32 v12, 1, {v(V_G)}")
    e(f"v_lshlrev_b32 v12, 2, v12")
    e(f"v_lshrrev_b32 v13, 2, {v(V_I)}")
    e(f"v_add3_u32 v11, v11, v12, v13")
    e(f"v_mul_u32_u24 v11, 160, v11")
    e(f"v_and_b32 v12, 3, {v(V_I)}")
    e(f"v_lshlrev_b32 v12, 3, v12")
    e(f"v_add_u32 v11, v11, v12")
    e(f"v_add_u32 {v(V_WB)}, {A_BYTES}, v11")
    if OPTS.get("dry", 1):
        e("s_mov_b64 exec, 0")
        for ty, nm in ((2, "gu"), (0, "q"), (1, "kv")):
            if ty != 1: e(f"s_cmp_eq_u32 {s(S_TYPE)}, {ty}"); e(f"s_cbranch_scc0 L_dry_n{nm}")
            for w in range(4):
                if w < 3:
                    e(f"s_cmp_eq_u32 {s(S_WAVE)}, {w}"); e(f"s_cbranch_scc1 L_{nm}_b{w}")
                else: e(f"s_branch L_{nm}_b{w}")
            if ty != 1: e.label(f"L_dry_n{nm}")
    e.label("L_dry_ret")
    e("s_mov_b64 exec, -1")
    e("s_nop 3")
    for r in range(V_CSA, V_CSA + 12): e(f"v_mov_b32 {v(r)}, 0")
    for r in range(V_ONES, V_ONES + 4): e(f"v_mov_b32 {v(r)}, 0x3f803f80")
    for r in range(V_ACC, 256):
        e(f"v_mov_b32 {v(r)}, 0")

P_VA = 16
P_VB = 20
P_ONE = 26
P_SL = 100
P_POLL = 60
P_RES = 56
DBG_NONCE = 0
DBG_FLAG = 64

def div10(e, dst, src):
    e(f"v_mul_u32_u24 {v(dst)}, 205, {v(src)}")
    e(f"v_lshrrev_b32 {v(dst)}, 11, {v(dst)}")

def lane0(e, on=True):
    if on:
        e(f"v_cmp_eq_u32 vcc, 0, {v(V_LANE)}")
        e(f"s_and_saveexec_b64 {s(S_EXS,2)}, vcc")
    else:
        e(f"s_mov_b64 exec, {s(S_EXS,2)}")

S_DA = 58; S_DB = 59; S_MA = 44; S_MB = 45
def issue_a(e, q, tag):
    for a_ in range(16):
        e(f"s_add_u32 m0, {s(S_MA)}, {a_*1024}")
        e(f"s_add_u32 {s(S_T)}, {s(S_AOFF)}, {a_*8*1280}")
        e(f"buffer_load_dwordx4 {v(P_VA)}, {s(S_X,4)}, {s(S_T)} offen lds")
        q.issue(tag)
    e(f"s_add_u32 {s(S_AOFF)}, {s(S_AOFF)}, 128")

def issue_b(e, q, tag):
    for b in range(10):
        if b == 5: e(f"s_add_u32 {s(S_BOFF)}, {s(S_BOFF)}, {s(S_T4)}")
        e(f"s_add_u32 m0, {s(S_MB)}, {b*1024}")
        e("s_nop 0")
        e(f"buffer_load_dwordx4 {v(P_VB + b % 5)}, {s(S_B0,4)}, {s(S_BOFF)} offen lds")
        q.issue(tag)
    e(f"s_add_u32 {s(S_BOFF)}, {s(S_BOFF)}, {s(S_T4)}")

def set_slot(e, slot_sgpr=None, slot_imm=None):
    if slot_sgpr is None:
        e(f"s_add_u32 {s(S_MA)}, {s(S_DA)}, {slot_imm}"); e(f"s_add_u32 {s(S_MB)}, {s(S_DB)}, {slot_imm}")
    else:
        e(f"s_add_u32 {s(S_MA)}, {s(S_DA)}, {s(slot_sgpr)}"); e(f"s_add_u32 {s(S_MB)}, {s(S_DB)}, {s(slot_sgpr)}")

def issue_stage(e, q, slot_sgpr=None, slot_imm=None, tag=None):
    if OPTS.get("nodma") and slot_sgpr is not None: return
    set_slot(e, slot_sgpr, slot_imm)
    issue_a(e, q, tag)
    issue_b(e, q, tag)

def dma_wave(e):
    if OPTS.get("dprio"): e(f"s_setprio {OPTS.get('dprio')}")
    q = Queue(e, "vmcnt", 63)
    n = 26
    e(f"s_sub_u32 {s(S_T3)}, {s(S_WAVE)}, 4")
    e(f"s_lshl_b32 {s(S_DA)}, {s(S_T3)}, 14")
    e(f"s_mul_i32 {s(S_DB)}, {s(S_T3)}, {BH}"); e(f"s_add_u32 {s(S_DB)}, {s(S_DB)}, {A_BYTES}")
    e(f"v_lshrrev_b32 v12, 3, {v(V_LANE)}")
    e(f"v_and_b32 v11, 7, {v(V_LANE)}")
    e(f"v_xor_b32 v11, v11, v12")
    e(f"v_lshlrev_b32 v11, 4, v11")
    e(f"v_mul_u32_u24 v12, 1280, v12")
    e(f"v_add_u32 {v(P_VA)}, v11, v12")
    e(f"s_lshl_b32 {s(S_AOFF)}, {s(S_RB)}, 1"); e(f"s_add_u32 {s(S_AOFF)}, {s(S_AOFF)}, {s(S_T3)}")
    e(f"s_mul_i32 {s(S_AOFF)}, {s(S_AOFF)}, {128*1280}")
    for b in range(5):
        e(f"v_add_u32 v11, {64*b}, {v(V_LANE)}")
        div10(e, 12, 11)
        e(f"v_mul_u32_u24 v13, 10, v12")
        e(f"v_sub_u32 v13, v11, v13")
        e(f"v_add_u32 v13, {s(S_ROT)}, v13")
        e(f"v_cmp_le_u32 vcc, 10, v13")
        e(f"v_subrev_u32 v14, 10, v13")
        e(f"v_and_b32 v15, 0x13, v12")
        e(f"v_cndmask_b32 v13, v13, v14, vcc")
        e(f"v_and_b32 v14, 4, v12"); e(f"v_lshlrev_b32 v14, 1, v14"); e(f"v_or_b32 v15, v15, v14")
        e(f"v_and_b32 v14, 8, v12"); e(f"v_lshrrev_b32 v14, 1, v14"); e(f"v_or_b32 v15, v15, v14")
        e(f"v_mul_lo_u32 v15, v15, {s(S_BSTR)}")
        e(f"v_lshlrev_b32 v13, 4, v13")
        e(f"v_add_u32 {v(P_VB + b)}, v15, v13")
    e(f"s_cmp_eq_u32 {s(S_T3)}, 0")
    e(f"s_cselect_b32 {s(S_BOFF)}, {s(S_CB0)}, {s(S_CB1)}")
    e(f"s_lshl_b32 {s(S_T4)}, {s(S_BSTR)}, 5")
    setup_post(e)
    e(f"s_cmp_eq_u32 {s(S_T3)}, 0")
    e(f"s_cselect_b32 {s(S_B0)}, {s(S_B0)}, {s(S_B1)}"); e(f"s_cselect_b32 {s(S_B0+1)}, {s(S_B0+1)}, {s(S_B1+1)}")
    stamp(e, 1)
    issue_stage(e, q, slot_imm=0, tag=0)
    stamp(e, 2)
    if OPTS.get("npre", 2) == 2: issue_stage(e, q, slot_imm=SLOT, tag=1)
    stamp(e, 3)
    q.wait(0)
    stamp(e, 5)
    e("s_barrier")
    if OPTS.get("npre", 2) == 1: issue_stage(e, q, slot_imm=SLOT, tag=1)
    issue_stage(e, q, slot_imm=2*SLOT, tag=2)
    e(f"s_mov_b32 {s(S_M0S)}, 0")
    e(f"s_mov_b32 {s(S_CNT)}, 7")
    e.label(f"L_dloop")
    e(f"s_waitcnt vmcnt({n})")
    e("s_barrier")
    q2 = Queue(e, "vmcnt", 63)
    issue_stage(e, q2, slot_sgpr=S_M0S, tag="x"); wrap_slot(e, S_M0S)
    e(f"s_sub_u32 {s(S_CNT)}, {s(S_CNT)}, 1")
    e(f"s_cmp_lg_u32 {s(S_CNT)}, 0")
    e(f"s_cbranch_scc1 L_dloop")
    e(f"s_waitcnt vmcnt({n})"); e("s_barrier")
    e(f"s_waitcnt vmcnt(0)"); e("s_barrier")
    e("s_barrier")
    e("s_barrier")
    e(f"s_cmp_eq_u32 {s(S_TYPE)}, 1")
    e(f"s_cbranch_scc1 L_kv_final")
    if STAMP:
        stamp(e, 4); stamp(e, 6); stamp_flush(e, 7)
    e("s_endpgm")

def stats4_load(e, row_sgpr):
    e(f"v_add_u32 v11, {s(row_sgpr)}, {v(V_G)}")
    e(f"v_mul_u32_u24 v11, 1280, v11")
    e(f"v_lshlrev_b32 v14, 4, {v(V_I)}")
    e(f"v_add_u32 v11, v11, v14")
    for k in range(5):
        e(f"buffer_load_dwordx4 {v(P_SL + 4*k, 4)}, v11, {s(S_X,4)}, 0 offen offset:{k*256}")

def stats4_compute(e):
    A = P_SL + 20
    for k in range(4): e(f"v_mov_b32 {v(A + k)}, 0")
    for d in range(20):
        e(f"v_dot2c_f32_bf16 {v(A + (d & 1))}, {v(P_SL + d)}, {v(P_ONE)}")
        e(f"v_dot2c_f32_bf16 {v(A + 2 + (d & 1))}, {v(P_SL + d)}, {v(P_SL + d)}")
    e("s_nop 2")
    e(f"v_add_f32 {v(A)}, {v(A)}, {v(A+1)}")
    e(f"v_add_f32 {v(A+2)}, {v(A+2)}, {v(A+3)}")
    for ctl in ("quad_perm:[1,0,3,2]", "quad_perm:[2,3,0,1]", "row_half_mirror", "row_mirror"):
        e("s_nop 0")
        e(f"v_add_f32_dpp {v(A)}, {v(A)}, {v(A)} {ctl} row_mask:0xf bank_mask:0xf")
        e(f"v_add_f32_dpp {v(A+2)}, {v(A+2)}, {v(A+2)} {ctl} row_mask:0xf bank_mask:0xf")
        e("s_nop 0")
    M = P_SL + 26
    e(f"v_mul_f32 {v(M)}, {f32(1.0/640)}, {v(A)}")
    e(f"v_mul_f32 {v(A+1)}, {v(M)}, {v(M)}")
    e(f"v_mul_f32 {v(A+2)}, {f32(1.0/640)}, {v(A+2)}")
    e(f"v_sub_f32 {v(A+2)}, {v(A+2)}, {v(A+1)}")
    e(f"v_max_f32 {v(A+2)}, 0, {v(A+2)}")
    e(f"v_add_f32 {v(A+2)}, {f32(1e-5)}, {v(A+2)}")
    e(f"v_rsq_f32 {v(M+1)}, {v(A+2)}")
    e("s_nop 0")

def write_stats_lds_from_pairs(e, R, tag):
    e(f"s_cmp_eq_u32 {s(S_TYPE)}, 1")
    e(f"s_cbranch_scc1 L_wsk_{tag}")
    e(f"v_lshlrev_b32 v13, 5, {v(V_LANE)}")
    e(f"v_add_u32 v13, {LDS_STATS}, v13")
    e(f"ds_write_b128 v13, {v(R,4)}")
    e(f"ds_write_b128 v13, {v(R+4,4)} offset:16")
    e(f"s_branch L_wsd_{tag}")
    e.label(f"L_wsk_{tag}")
    T = R + 8
    for k in range(4):
        e(f"v_mov_b32 {v(T + k)}, {v(R + 2*k)}")
        e(f"v_mov_b32 {v(T + 4 + k)}, {v(R + 2*k + 1)}")
    e(f"v_lshlrev_b32 v13, 4, {v(V_LANE)}")
    e(f"v_add_u32 v13, {LDS_STATS}, v13")
    e(f"ds_write_b128 v13, {v(T,4)}")
    e(f"ds_write_b128 v13, {v(T+4,4)} offset:1024")
    e.label(f"L_wsd_{tag}")

def fetch_stats(e):
    e(f"s_lshl_b32 {s(S_T)}, {s(S_RB)}, 12")
    e(f"s_add_u32 {s(S_T)}, {s(S_T)}, {WS_STATS}")
    e(f"v_lshlrev_b32 v11, 6, {v(V_LANE)}")
    for k in range(4):
        e(f"buffer_load_dwordx4 {v(P_SL + 4*k,4)}, v11, {s(S_WS,4)}, {s(S_T)} offen offset:{16*k} sc1")

def check_stats(e, tag):
    e(f"v_cmp_eq_u32 vcc, {s(S_NONCE)}, {v(P_SL + 1)}")
    e(f"s_mov_b64 s[92:93], vcc")
    for k in range(1, 8):
        e(f"v_cmp_eq_u32 vcc, {s(S_NONCE)}, {v(P_SL + 2*k + 1)}")
        e(f"s_and_b64 s[92:93], s[92:93], vcc")
    e(f"s_cmp_eq_u64 s[92:93], -1")
    e(f"s_cbranch_scc0 L_chk_no_{tag}")
    R = P_SL + 16
    for k in range(8):
        e(f"v_mov_b32 {v(R + k)}, {v(P_SL + 2*k)}")
    write_stats_lds_from_pairs(e, R, tag)
    e(f"s_mov_b32 {s(S_OK)}, 1")
    e.label(f"L_chk_no_{tag}")

def publish_stats(e, tag):
    e(f"v_lshlrev_b32 v13, 4, {v(V_G)}")
    e(f"s_lshl_b32 {s(S_T)}, {s(S_T3)}, 4"); e(f"s_add_u32 {s(S_T)}, {s(S_T)}, {WS_STATS}")
    e(f"v_mov_b32 v29, {s(S_NONCE)}"); e(f"v_mov_b32 v31, {s(S_NONCE)}")
    e(f"v_mov_b32 v33, {s(S_NONCE)}"); e(f"v_mov_b32 v35, {s(S_NONCE)}")
    e(f"v_mov_b32 v28, {v(P_RES)}"); e(f"v_mov_b32 v30, {v(P_RES+1)}")
    e(f"v_mov_b32 v32, {v(P_RES+2)}"); e(f"v_mov_b32 v34, {v(P_RES+3)}")
    e(f"v_cmp_eq_u32 vcc, 0, {v(V_I)}")
    e(f"s_and_saveexec_b64 {s(S_EXS,2)}, vcc")
    e(f"buffer_store_dwordx4 v[28:31], v13, {s(S_WS,4)}, {s(S_T)} offen sc1")
    e(f"buffer_store_dwordx4 v[32:35], v13, {s(S_WS,4)}, {s(S_T)} offen offset:64 sc1")
    e(f"s_mov_b64 exec, {s(S_EXS,2)}")

def poll_nonce(e):
    e(f"v_mov_b32 v11, 0")
    e(f"global_load_dword {v(P_POLL)}, v11, {s(S_DBG,2)} offset:{DBG_NONCE} sc1")

def try_publish(e, tag, repoll=True):
    e(f"s_cmp_lg_u32 {s(S_NONCE)}, 0"); e(f"s_cbranch_scc1 L_tp_{tag}")
    e("s_waitcnt vmcnt(0)")
    e(f"v_readfirstlane_b32 {s(S_NONCE)}, {v(P_POLL)}")
    e("s_nop 3")
    e(f"s_cmp_eq_u32 {s(S_NONCE)}, 0"); e(f"s_cbranch_scc1 L_tpr_{tag}")
    publish_stats(e, tag)
    e(f"s_branch L_tp_{tag}")
    e.label(f"L_tpr_{tag}")
    if repoll: poll_nonce(e)
    e.label(f"L_tp_{tag}")

def hbar(e, j):
    e("s_barrier")
    if OPTS.get("hstamp"):
        e("s_memtime s[90:91]"); e("s_waitcnt lgkmcnt(0)")
        e(f"v_writelane_b32 v62, s90, {j}")

def helper0(e, opts):
    e("s_cmp_eq_u32 s2, 0"); e("s_cbranch_scc0 L_h0_nononce")
    e("s_memrealtime s[92:93]"); e("s_waitcnt lgkmcnt(0)")
    e("s_or_b32 s92, s92, 1")
    e("v_mov_b32 v11, 0"); e("v_mov_b32 v12, s92")
    lane0(e)
    e(f"global_store_dword v11, v12, {s(S_DBG,2)} offset:{DBG_NONCE} sc1")
    lane0(e, False)
    e.label("L_h0_nononce")
    e(f"s_lshl_b32 {s(S_T)}, {s(S_RB)}, 8")
    e(f"s_lshl_b32 {s(S_T+1)}, {s(S_CG)}, 3")
    e(f"s_add_u32 {s(S_T3)}, {s(S_T)}, {s(S_T+1)}")
    stats4_load(e, S_T3)
    e(f"v_add_u32 v11, {4*1280}, v11")
    for k in range(5):
        e(f"buffer_load_dwordx4 {v(P_SL + 32 + 4*k, 4)}, v11, {s(S_X,4)}, 0 offen offset:{k*256}")
    e(f"v_mov_b32 {v(P_ONE)}, 0x3f803f80")
    e(f"s_mov_b32 {s(S_OK)}, 0"); e(f"s_mov_b32 {s(S_NONCE)}, 0")
    LATE = OPTS.get("statlate", 0)
    def do_stats():
        e("s_waitcnt vmcnt(5)")
        stats4_compute(e)
        e(f"v_mov_b32 {v(P_RES)}, {v(P_SL+26)}"); e(f"v_mov_b32 {v(P_RES+1)}, {v(P_SL+27)}")
        e("s_waitcnt vmcnt(0)")
        poll_nonce(e)
        for k in range(20): e(f"v_mov_b32 {v(P_SL + k)}, {v(P_SL + 32 + k)}")
        stats4_compute(e)
        e(f"v_mov_b32 {v(P_RES+2)}, {v(P_SL+26)}"); e(f"v_mov_b32 {v(P_RES+3)}, {v(P_SL+27)}")
    def do_stats_a():
        e("s_waitcnt vmcnt(5)")
        stats4_compute(e)
        e(f"v_mov_b32 {v(P_RES)}, {v(P_SL+26)}"); e(f"v_mov_b32 {v(P_RES+1)}, {v(P_SL+27)}")
        e("s_waitcnt vmcnt(0)")
        poll_nonce(e)
    def do_stats_b():
        for k in range(20): e(f"v_mov_b32 {v(P_SL + k)}, {v(P_SL + 32 + k)}")
        stats4_compute(e)
        e(f"v_mov_b32 {v(P_RES+2)}, {v(P_SL+26)}"); e(f"v_mov_b32 {v(P_RES+3)}, {v(P_SL+27)}")
    if not LATE: do_stats()
    FJ = OPTS.get("fetchj", 5); CJ = OPTS.get("checkj", 8)
    for j in range(11):
        e("s_barrier")
        if j == 0 and LATE: do_stats_a()
        if j == 1 and LATE: do_stats_b()
        pj = (2, 3, 4) if LATE else (1, 2, 3, 4)
        if j in pj: try_publish(e, f"l{j}", repoll=(j < 4))
        if j == FJ: fetch_stats(e)
        if j == CJ:
            e("s_waitcnt vmcnt(0)")
            e(f"s_cmp_eq_u32 {s(S_NONCE)}, 0"); e("s_cbranch_scc1 L_h0_okA")
            if not opts.get("forcefb"): check_stats(e, "a")
            e(f"s_cmp_eq_u32 {s(S_OK)}, 1"); e("s_cbranch_scc1 L_h0_okA")
            fetch_stats(e)
            e.label("L_h0_okA")
        if j == 10:
            e(f"s_cmp_eq_u32 {s(S_OK)}, 1"); e("s_cbranch_scc1 L_h0_okB")
            e(f"s_cmp_eq_u32 {s(S_NONCE)}, 0"); e("s_cbranch_scc1 L_h0_okB")
            e("s_waitcnt vmcnt(0)")
            if not opts.get("forcefb"): check_stats(e, "b")
            e.label("L_h0_okB")
    e(f"s_cmp_eq_u32 {s(S_OK)}, 1"); e(f"s_cbranch_scc1 L_h0_done")
    e(f"s_cmp_eq_u32 {s(S_NONCE)}, 0"); e(f"s_cbranch_scc1 L_h0_fb")
    e(f"s_mov_b32 {s(S_CNT)}, {0 if opts.get('forcefb') else 200}")
    e.label("L_h0_spin")
    e(f"s_cmp_eq_u32 {s(S_CNT)}, 0"); e(f"s_cbranch_scc1 L_h0_fb")
    fetch_stats(e)
    e("s_waitcnt vmcnt(0)")
    check_stats(e, "c")
    e(f"s_sub_u32 {s(S_CNT)}, {s(S_CNT)}, 1")
    e(f"s_cmp_eq_u32 {s(S_OK)}, 1"); e(f"s_cbranch_scc1 L_h0_done")
    e("s_sleep 4")
    e("s_branch L_h0_spin")
    e.label("L_h0_fb")
    e(f"s_mov_b32 {s(S_CNT)}, 0")
    e.label("L_fb_loop")
    e(f"s_lshl_b32 {s(S_T)}, {s(S_RB)}, 8")
    e(f"s_lshl_b32 {s(S_T+1)}, {s(S_CNT)}, 2")
    e(f"s_add_u32 {s(S_T)}, {s(S_T)}, {s(S_T+1)}")
    stats4_load(e, S_T)
    e("s_waitcnt vmcnt(0)")
    stats4_compute(e)
    e(f"v_add_u32 v15, {s(S_T+1)}, {v(V_G)}")
    e(f"v_cmp_eq_u32 vcc, 0, {v(V_I)}")
    e(f"s_and_saveexec_b64 {s(S_EXS,2)}, vcc")
    e(f"s_cmp_eq_u32 {s(S_TYPE)}, 1")
    e(f"s_cbranch_scc1 L_fb_kv")
    e(f"v_lshlrev_b32 v13, 3, v15"); e(f"v_add_u32 v13, {LDS_STATS}, v13")
    e(f"ds_write_b64 v13, {v(P_SL + 26, 2)}")
    e(f"s_branch L_fb_n")
    e.label("L_fb_kv")
    e(f"v_lshlrev_b32 v13, 2, v15"); e(f"v_add_u32 v13, {LDS_STATS}, v13")
    e(f"ds_write_b32 v13, {v(P_SL + 26)}")
    e(f"ds_write_b32 v13, {v(P_SL + 27)} offset:1024")
    e.label("L_fb_n")
    e(f"s_mov_b64 exec, {s(S_EXS,2)}")
    e(f"s_add_u32 {s(S_CNT)}, {s(S_CNT)}, 1")
    e(f"s_cmp_lt_u32 {s(S_CNT)}, 64")
    e("s_cbranch_scc1 L_fb_loop")
    e.label("L_h0_done")
    e("s_waitcnt lgkmcnt(0)")
    e("s_barrier")
    e(f"s_cmp_eq_u32 {s(S_TYPE)}, 1")
    e(f"s_cbranch_scc1 L_kv_final")
    e("s_endpgm")

def repack_setup(e):
    for b in range(5):
        e(f"v_add_u32 v11, {64*b}, {v(V_LANE)}")
        div10(e, 12, 11)
        e(f"v_mul_u32_u24 v13, 10, v12"); e(f"v_sub_u32 v13, v11, v13")
        e(f"v_mul_u32_u24 v12, 1280, v12"); e(f"v_lshlrev_b32 v13, 4, v13")
        e(f"v_add_u32 {v(40 + b)}, v12, v13")
    e(f"v_lshlrev_b32 v11, 2, {v(V_G)}"); e(f"v_lshrrev_b32 v12, 2, {v(V_I)}"); e(f"v_add_u32 v11, v11, v12")
    e(f"v_mul_u32_u24 v11, 160, v11"); e(f"v_and_b32 v12, 3, {v(V_I)}"); e(f"v_lshlrev_b32 v12, 3, v12")
    e(f"v_add_u32 v11, v11, v12"); e(f"v_add_u32 v45, {LDS_RP}, v11")
    e(f"v_lshlrev_b32 v46, 4, {v(V_LANE)}")

def repack_issue(e):
    for r in range(3):
        e(f"s_add_u32 {s(S_T)}, s2, {256*r}")
        if r == 2:
            e(f"s_cmp_ge_u32 {s(S_T)}, 544"); e("s_cbranch_scc1 L_rp_i_done")
        e(f"s_lshr_b32 {s(S_T+1)}, {s(S_T)}, 3")
        e(f"s_and_b32 {s(S_T+2)}, {s(S_T)}, 7")
        e(f"s_mul_i32 {s(S_T+2)}, {s(S_T+2)}, 160")
        e(f"s_cmp_ge_u32 {s(S_T+1)}, 48")
        e(f"s_cbranch_scc1 L_rp_wo{r}")
        e(f"s_mul_i32 {s(S_T+1)}, {s(S_T+1)}, {32*1280}"); e(f"s_add_u32 {s(S_T+1)}, {s(S_T+1)}, {s(S_T+2)}")
        for b in range(5):
            e(f"s_mov_b32 m0, {LDS_RP + r*5120 + b*1024}"); e("s_nop 0")
            e(f"buffer_load_dwordx4 {v(40 + b)}, s[44:47], {s(S_T+1)} offen lds")
        e(f"s_branch L_rp_n{r}")
        e.label(f"L_rp_wo{r}")
        e(f"s_sub_u32 {s(S_T+1)}, {s(S_T+1)}, 48")
        e(f"s_mul_i32 {s(S_T+1)}, {s(S_T+1)}, {32*1280}"); e(f"s_add_u32 {s(S_T+1)}, {s(S_T+1)}, {s(S_T+2)}")
        for b in range(5):
            e(f"s_mov_b32 m0, {LDS_RP + r*5120 + b*1024}"); e("s_nop 0")
            e(f"buffer_load_dwordx4 {v(40 + b)}, s[48:51], {s(S_T+1)} offen lds")
        e.label(f"L_rp_n{r}")
    e.label("L_rp_i_done")

def repack_finish(e):
    e("s_waitcnt vmcnt(0)")
    for r in range(3):
        R = 64 + 20*r
        e(f"s_add_u32 {s(S_T)}, s2, {256*r}")
        if r == 2:
            e(f"s_cmp_ge_u32 {s(S_T)}, 544"); e("s_cbranch_scc1 L_rp_f_done")
        for ct in range(5):
            for part in range(2):
                e(f"ds_read_b64_tr_b16 {v(R + 4*ct + 2*part, 2)}, v45 offset:{r*5120 + ct*32 + part*2560}")
        e(f"s_mul_i32 {s(S_T)}, {s(S_T)}, 5120"); e(f"s_add_u32 {s(S_T)}, {s(S_T)}, {WS_WF}")
        e(f"s_add_u32 {s(S_T+1)}, {s(S_T)}, 4096")
        for ct in range(5):
            e(f"s_waitcnt lgkmcnt({2*(4-ct)})")
            if ct < 4: e(f"buffer_store_dwordx4 {v(R + 4*ct,4)}, v46, {s(S_WS,4)}, {s(S_T)} offen offset:{ct*1024}{SM()}")
            else: e(f"buffer_store_dwordx4 {v(R + 4*ct,4)}, v46, {s(S_WS,4)}, {s(S_T+1)} offen{SM()}")
    e.label("L_rp_f_done")

def helper1(e, opts):
    touch = OPTS.get("touch", 1)
    if OPTS.get("codepf"):
        e("s_getpc_b64 s[90:91]")
        e.label("L_pc_here")
        e(f"s_sub_u32 s90, s90, L_pc_here-k1_kernel"); e("s_subb_u32 s91, s91, 0")
        e(f"v_lshlrev_b32 v30, 7, {v(V_LANE)}")
        for k in range(OPTS.get("codepf")):
            e(f"global_load_dword v31, v30, s[90:91]")
            e(f"v_add_u32 v30, 8192, v30")
    e("s_load_dwordx2 s[44:45], s[0:1], 48")
    e("s_load_dwordx2 s[48:49], s[0:1], 16")
    if touch:
        e(f"s_and_b32 {s(S_T+1)}, {s(S_RB)}, 3")
        e(f"v_and_b32 v20, 31, {v(V_LANE)}")
        e(f"v_lshlrev_b32 v21, 2, v20"); e(f"v_add_u32 v21, {s(S_T+1)}, v21"); e(f"v_mul_lo_u32 v21, v21, {s(S_BSTR)}")
        e(f"v_lshrrev_b32 v22, 5, {v(V_LANE)}"); e(f"v_lshlrev_b32 v22, 7, v22"); e(f"v_add_u32 v21, v21, v22")
        e(f"s_and_b32 {s(S_T+1)}, {s(S_CG)}, 7"); e(f"s_lshl_b32 {s(S_T+1)}, {s(S_T+1)}, 5")
        e(f"s_lshl_b32 {s(S_T+2)}, {s(S_RB)}, 8"); e(f"s_add_u32 {s(S_T+1)}, {s(S_T+1)}, {s(S_T+2)}")
        e(f"v_add_u32 v20, {s(S_T+1)}, v20"); e(f"v_mul_u32_u24 v20, 1280, v20"); e(f"v_add_u32 v20, v20, v22")
        e(f"s_lshl_b32 s54, {s(S_BSTR)}, 7")
        e(f"s_add_u32 {s(S_CB0)}, {s(S_CB0)}, s54"); e(f"s_add_u32 {s(S_CB1)}, {s(S_CB1)}, s54"); e(f"s_mov_b32 s52, 256")
    def trip():
        if not touch: return
        e(f"buffer_load_dword v24, v21, {s(S_B0,4)}, {s(S_CB0)} offen")
        e(f"buffer_load_dword v25, v21, {s(S_B1,4)}, {s(S_CB1)} offen")
        e(f"buffer_load_dword v26, v20, {s(S_X,4)}, s52 offen")
        e(f"s_add_u32 {s(S_CB0)}, {s(S_CB0)}, s54"); e(f"s_add_u32 {s(S_CB1)}, {s(S_CB1)}, s54"); e("s_add_u32 s52, s52, 256")
    tj = OPTS.get("tj", "s,0,2,4")
    tj = [x for x in str(tj).replace("x", ",").split(",")]
    if OPTS.get("tdelay"): e(f"s_sleep {OPTS.get('tdelay')}")
    for x in tj:
        if x == "s": trip()
    if not OPTS.get("norepack"): repack_setup(e)
    e("s_waitcnt lgkmcnt(0)")
    e("s_mov_b32 s46, 1966080"); e("s_mov_b32 s47, 0x20000")
    e("s_mov_b32 s50, 819200"); e("s_mov_b32 s51, 0x20000")
    e(f"s_cmp_eq_u32 {s(S_TYPE)}, 1"); e(f"s_cbranch_scc0 L_nozero")
    e(f"s_cmp_eq_u32 {s(S_RB)}, 0"); e(f"s_cbranch_scc0 L_nozero")
    for r in range(28, 32): e(f"v_mov_b32 {v(r)}, 0")
    e(f"s_mul_i32 {s(S_T)}, {s(S_SUB)}, 6720")
    e(f"s_add_u32 {s(S_T)}, {s(S_T)}, {WS_KV}")
    e(f"s_add_u32 {s(S_T2)}, {s(S_T)}, 4096")
    e(f"v_lshlrev_b32 v11, 4, {v(V_LANE)}")
    for k in range(7):
        if k == 6:
            e(f"v_cmp_gt_u32 vcc, 36, {v(V_LANE)}")
            e(f"s_and_saveexec_b64 {s(S_EXS,2)}, vcc")
        sreg = S_T if k < 4 else S_T2
        e(f"buffer_store_dwordx4 v[28:31], v11, {s(S_WS,4)}, {s(sreg)} offen offset:{(k % 4)*1024} sc1")
        if k == 6:
            e(f"s_mov_b64 exec, {s(S_EXS,2)}")
    e.label("L_nozero")
    for j in range(11):
        hbar(e, j)
        for x in tj:
            if x == str(j): trip()
        if j == OPTS.get("sigj", 6):
            e(f"s_cmp_eq_u32 {s(S_TYPE)}, 1"); e(f"s_cbranch_scc0 L_h1_nosig")
            e(f"s_cmp_eq_u32 {s(S_RB)}, 0"); e(f"s_cbranch_scc0 L_h1_nosig")
            e("s_waitcnt vmcnt(0)")
            e(f"s_lshl_b32 {s(S_T)}, {s(S_SUB)}, 2")
            e(f"v_mov_b32 v11, {s(S_T)}"); e(f"v_mov_b32 v12, 1")
            lane0(e); e(f"global_store_dword v11, v12, {s(S_DBG,2)} offset:{DBG_FLAG} sc1"); lane0(e, False)
            e.label("L_h1_nosig")
        if j == 8 and not OPTS.get("norepack"): repack_issue(e)
        if j == 9:
            e(f"s_cmp_eq_u32 {s(S_TYPE)}, 1"); e(f"s_cbranch_scc0 L_h1_np")
            e(f"s_lshl_b32 {s(S_T)}, {s(S_SUB)}, 2")
            e(f"v_mov_b32 v11, {s(S_T)}")
            e(f"global_load_dword {v(P_POLL)}, v11, {s(S_DBG,2)} offset:{DBG_FLAG} sc1")
            e.label("L_h1_np")
    if OPTS.get("hstamp"):
        e(f"s_lshl_b32 {s(S_T)}, s2, 3"); e(f"s_add_u32 {s(S_T)}, {s(S_T)}, 4"); e(f"s_lshl_b32 {s(S_T)}, {s(S_T)}, 8")
        e(f"s_add_u32 {s(S_T)}, {s(S_T)}, {WS_STAMP + 0x100000}")
        e(f"v_lshlrev_b32 v14, 2, {v(V_LANE)}")
        e(f"buffer_store_dword v62, v14, {s(S_WS,4)}, {s(S_T)} offen")
    e("s_barrier")
    if not OPTS.get("norepack"): repack_finish(e)
    e(f"s_cmp_eq_u32 {s(S_TYPE)}, 1")
    e(f"s_cbranch_scc0 L_h1_end")
    e("s_waitcnt vmcnt(0)")
    e(f"s_lshl_b32 {s(S_T)}, {s(S_SUB)}, 2")
    e(f"v_mov_b32 v11, {s(S_T)}")
    e.label("L_poll_flag")
    e(f"v_readfirstlane_b32 {s(S_T)}, {v(P_POLL)}")
    e("s_nop 3")
    e(f"s_cmp_eq_u32 {s(S_T)}, 0")
    e(f"s_cbranch_scc0 L_kv_final")
    e("s_sleep 2")
    e(f"global_load_dword {v(P_POLL)}, v11, {s(S_DBG,2)} offset:{DBG_FLAG} sc1")
    e("s_waitcnt vmcnt(0)")
    e("s_branch L_poll_flag")
    e.label("L_h1_end")
    e("s_endpgm")

def ep_load_swapped(e):
    e(f"s_lshl_b32 {s(S_T)}, {s(S_WAVE)}, 9")
    e(f"v_lshlrev_b32 v11, 3, {v(V_I)}")
    e(f"v_add_u32 v11, {s(S_T)}, v11")
    e(f"v_add_u32 v11, {LDS_STATS}, v11")
    for mt in range(4):
        e(f"ds_read_b64 {v(16 + 2*mt, 2)}, v11 offset:{mt*128}")
    e(f"v_lshlrev_b32 v12, 4, {v(V_G)}")
    e(f"v_add_u32 v12, {LDS_CS}, v12")
    for ct in range(10):
        e(f"ds_read_b128 {v(32 + 4*ct, 4)}, v12 offset:{ct*64}")
    e("s_waitcnt lgkmcnt(0)")

def epilogue_gu(e):
    ep_load_swapped(e)
    for mt in range(4):
        e(f"v_mul_f32 {v(24 + 2*mt)}, {f32(-LOG2E)}, {v(17 + 2*mt)}")
        e(f"v_mul_f32 {v(25 + 2*mt)}, {v(17 + 2*mt)}, {v(17 + 2*mt)}")
    for mt in range(4):
        e(f"v_rcp_f32 {v(25 + 2*mt)}, {v(25 + 2*mt)}")
    e(f"v_lshlrev_b32 v11, 4, {v(V_LANE)}")
    e(f"s_mul_i32 {s(S_T)}, {s(S_WAVE)}, {4*48*1024}")
    e(f"v_add_u32 v11, {s(S_T)}, v11")
    e(f"s_mul_i32 {s(S_T)}, {s(S_RB)}, {16*48*1024}")
    e(f"s_add_u32 {s(S_T)}, {s(S_T)}, {WS_H}")
    e(f"s_mul_i32 {s(S_T+1)}, {s(S_SUB)}, 5")
    e(f"s_add_u32 {s(S_T+2)}, {s(S_T+1)}, 1")
    e(f"s_lshr_b32 {s(S_T+2)}, {s(S_T+2)}, 1")
    e(f"s_lshl_b32 {s(S_T+2)}, {s(S_T+2)}, 10")
    e(f"s_add_u32 {s(S_T2)}, {s(S_T)}, {s(S_T+2)}")
    e(f"s_and_b32 {s(S_T3)}, {s(S_SUB)}, 1")
    e(f"s_cmp_eq_u32 {s(S_T3)}, 0")
    e(f"s_cselect_b32 {s(S_T3)}, 4, -1")
    e(f"s_add_u32 {s(S_T+1)}, {s(S_T+1)}, {s(S_T3)}")
    e(f"s_lshr_b32 {s(S_T+1)}, {s(S_T+1)}, 1")
    e(f"s_lshl_b32 {s(S_T+1)}, {s(S_T+1)}, 10")
    e(f"s_add_u32 {s(S_T3)}, {s(S_T)}, {s(S_T+1)}")
    e(f"s_and_b32 {s(S_T+1)}, {s(S_SUB)}, 1")
    e(f"s_lshl_b32 {s(S_T+1)}, {s(S_T+1)}, 3")
    e(f"s_add_u32 {s(S_T3)}, {s(S_T3)}, {s(S_T+1)}")
    T = 72
    for mt in range(4):
        e.label(f"L_gu_b{mt}")
        MR = 16 + 2*mt; CI = 24 + 2*mt
        items = [(ct, hh) for ct in range(5) for hh in range(2)]
        for (ct, hh) in items:
            G = acc(mt, ct) + 2*hh; U = acc(mt, ct + 5) + 2*hh
            e(f"v_pk_fma_f32 {v(G,2)}, {v(32 + 4*ct + 2*hh,2)}, {v(MR,2)}, {v(G,2)} op_sel_hi:[1,0,1] neg_lo:[0,1,0] neg_hi:[0,1,0]")
            e(f"v_pk_fma_f32 {v(U,2)}, {v(32 + 4*(ct+5) + 2*hh,2)}, {v(MR,2)}, {v(U,2)} op_sel_hi:[1,0,1] neg_lo:[0,1,0] neg_hi:[0,1,0]")
        for k, (ct, hh) in enumerate(items):
            G = acc(mt, ct) + 2*hh
            e(f"v_pk_mul_f32 {v(T + 2*k,2)}, {v(G,2)}, {v(CI,2)} op_sel_hi:[1,0]")
        for k in range(10):
            e(f"v_exp_f32 {v(T + 2*k)}, {v(T + 2*k)}"); e(f"v_exp_f32 {v(T + 2*k + 1)}, {v(T + 2*k + 1)}")
        for k, (ct, hh) in enumerate(items):
            G = acc(mt, ct) + 2*hh; U = acc(mt, ct + 5) + 2*hh
            e(f"v_pk_mul_f32 {v(U,2)}, {v(G,2)}, {v(U,2)}")
        for k in range(10):
            e(f"v_pk_fma_f32 {v(T + 2*k,2)}, {v(T + 2*k,2)}, {v(CI,2)}, {v(CI,2)} op_sel:[0,1,1] op_sel_hi:[1,1,1]")
        for k in range(10):
            e(f"v_rcp_f32 {v(T + 2*k)}, {v(T + 2*k)}"); e(f"v_rcp_f32 {v(T + 2*k + 1)}, {v(T + 2*k + 1)}")
        e("s_nop 0")
        for k, (ct, hh) in enumerate(items):
            U = acc(mt, ct + 5) + 2*hh
            e(f"v_pk_mul_f32 {v(U,2)}, {v(U,2)}, {v(T + 2*k,2)}")
        for pp in range(2):
            O = acc(mt, 2*pp)
            for tt in range(2):
                U = acc(mt, 2*pp + tt + 5)
                e(f"v_cvt_pk_bf16_f32 {v(O + 2*tt)}, {v(U)}, {v(U+1)}")
                e(f"v_cvt_pk_bf16_f32 {v(O + 2*tt + 1)}, {v(U+2)}, {v(U+3)}")
        O = acc(mt, 4); U = acc(mt, 9)
        e(f"v_cvt_pk_bf16_f32 {v(O)}, {v(U)}, {v(U+1)}")
        e(f"v_cvt_pk_bf16_f32 {v(O+1)}, {v(U+2)}, {v(U+3)}")
        e("s_cbranch_execz L_dry_ret")
        if mt > 0:
            e(f"v_add_u32 v11, {48*1024}, v11")
        e(f"s_cmp_eq_u32 {s(S_SUB)}, 19")
        e(f"s_cbranch_scc1 L_gu_skip{mt}")
        e(f"buffer_store_dwordx4 {v(acc(mt,0),4)}, v11, {s(S_WS,4)}, {s(S_T2)} offen{SM()}")
        e(f"buffer_store_dwordx4 {v(acc(mt,2),4)}, v11, {s(S_WS,4)}, {s(S_T2)} offen offset:1024{SM()}")
        e.label(f"L_gu_skip{mt}")
        e(f"buffer_store_dwordx2 {v(acc(mt,4),2)}, v11, {s(S_WS,4)}, {s(S_T3)} offen{SM()}")
        e("s_nop 1")
    stamp(e, 5)
    if STAMP:
        e("s_waitcnt vmcnt(0)"); stamp(e, 6); stamp_flush(e, 7)
    e("s_endpgm")

def epilogue_q(e):
    ep_load_swapped(e)
    e(f"v_lshlrev_b32 v11, 4, {v(V_LANE)}")
    e(f"s_mul_i32 {s(S_T)}, {s(S_WAVE)}, {4*20*1024}")
    e(f"v_add_u32 v11, {s(S_T)}, v11")
    e(f"s_mul_i32 {s(S_T)}, {s(S_RB)}, {16*20*1024}")
    e(f"s_mul_i32 {s(S_T+1)}, {s(S_SUB)}, {5*1024}")
    e(f"s_add_u32 {s(S_T2)}, {s(S_T)}, {s(S_T+1)}")
    e(f"s_add_u32 {s(S_T2)}, {s(S_T2)}, {WS_PQ}")
    e(f"s_add_u32 {s(S_T3)}, {s(S_T2)}, 4096")
    T = 72
    for mt in range(4):
        e.label(f"L_q_b{mt}")
        MR = 16 + 2*mt
        for grp in range(2):
            items = [(ct, hh) for ct in range(grp*5, grp*5 + 5) for hh in range(2)]
            for (ct, hh) in items:
                A = acc(mt, ct) + 2*hh
                e(f"v_pk_fma_f32 {v(A,2)}, {v(32 + 4*ct + 2*hh,2)}, {v(MR,2)}, {v(A,2)} op_sel_hi:[1,0,1] neg_lo:[0,1,0] neg_hi:[0,1,0]")
            for (ct, hh) in items:
                A = acc(mt, ct) + 2*hh
                e(f"v_pk_fma_f32 {v(A,2)}, {v(A,2)}, {v(MR,2)}, {s(S_EPS6,2)} op_sel:[0,1,0] op_sel_hi:[1,1,1]")
            for k, (ct, hh) in enumerate(items):
                A = acc(mt, ct) + 2*hh
                e(f"v_pk_mul_f32 {v(T + 2*k,2)}, {v(A,2)}, {s(S_L2E,2)}")
            for k in range(10):
                e(f"v_exp_f32_e64 {v(T + 2*k)}, {v(T + 2*k)} clamp"); e(f"v_exp_f32_e64 {v(T + 2*k + 1)}, {v(T + 2*k + 1)} clamp")
            for (ct, hh) in items:
                A = acc(mt, ct) + 2*hh
                e(f"v_max_f32 {v(A)}, {s(S_EPS6)}, {v(A)}"); e(f"v_max_f32 {v(A+1)}, {s(S_EPS6)}, {v(A+1)}")
            for k, (ct, hh) in enumerate(items):
                A = acc(mt, ct) + 2*hh
                e(f"v_pk_add_f32 {v(A,2)}, {v(A,2)}, {v(T + 2*k,2)}")
        for pp in range(5):
            O = acc(mt, 2*pp); A0 = acc(mt, 2*pp); A1 = acc(mt, 2*pp + 1)
            e(f"v_cvt_pk_bf16_f32 {v(O)}, {v(A0)}, {v(A0+1)}")
            e(f"v_cvt_pk_bf16_f32 {v(O+1)}, {v(A0+2)}, {v(A0+3)}")
            e(f"v_cvt_pk_bf16_f32 {v(O+2)}, {v(A1)}, {v(A1+1)}")
            e(f"v_cvt_pk_bf16_f32 {v(O+3)}, {v(A1+2)}, {v(A1+3)}")
        e("s_cbranch_execz L_dry_ret")
        if mt > 0:
            e(f"v_add_u32 v11, {20*1024}, v11")
        for pp in range(5):
            if pp < 4:
                e(f"buffer_store_dwordx4 {v(acc(mt,2*pp),4)}, v11, {s(S_WS,4)}, {s(S_T2)} offen offset:{pp*1024}{SM()}")
            else:
                e(f"buffer_store_dwordx4 {v(acc(mt,2*pp),4)}, v11, {s(S_WS,4)}, {s(S_T3)} offen{SM()}")
        e("s_nop 1")
    stamp(e, 5)
    if STAMP:
        e("s_waitcnt vmcnt(0)"); stamp(e, 6); stamp_flush(e, 7)
    e("s_endpgm")

KV_TILES = [(0,0),(0,1),(1,0),(1,1),(1,2),(2,1),(2,2),(2,3),(3,2),(3,3),(3,4),(4,3),(4,4)]

def epilogue_kv(e):
    MV = 16; RV = 32; CS = 48; T = 60
    e(f"s_lshl_b32 {s(S_T)}, {s(S_WAVE)}, 8")
    e(f"v_lshlrev_b32 v11, 4, {v(V_G)}")
    e(f"v_add_u32 v11, {s(S_T)}, v11")
    e(f"v_add_u32 v11, {LDS_STATS}, v11")
    for mt in range(4):
        e(f"ds_read_b128 {v(MV + 4*mt, 4)}, v11 offset:{mt*64}")
        e(f"ds_read_b128 {v(RV + 4*mt, 4)}, v11 offset:{1024 + mt*64}")
    e(f"v_lshlrev_b32 v12, 2, {v(V_I)}")
    e(f"v_add_u32 v12, {LDS_CS}, v12")
    e("s_waitcnt lgkmcnt(4)")
    for ct in range(10):
        e(f"ds_read_b32 {v(CS + ct)}, v12 offset:{ct*64}")
    e("s_waitcnt lgkmcnt(0)")
    def cs_mod(ct):
        if ct % 2 == 0: return v(CS + ct, 2), 0, 0
        return v(CS + ct - 1, 2), 1, 1
    for mt in range(4):
        e.label(f"L_kv_b{mt}")
        kk, odd = divmod(mt, 2)
        items = [(ct, hh) for ct in range(5) for hh in range(2)]
        allit = [(ct, hh) for ct in range(10) for hh in range(2)]
        for (ct, hh) in allit:
            A = acc(mt, ct) + 2*hh
            c, o, oh = cs_mod(ct)
            e(f"v_pk_fma_f32 {v(A,2)}, {v(MV + 4*mt + 2*hh,2)}, {c}, {v(A,2)} op_sel:[0,{o},0] op_sel_hi:[1,{oh},1] neg_lo:[0,1,0] neg_hi:[0,1,0]")
        for (ct, hh) in items:
            A = acc(mt, ct) + 2*hh
            e(f"v_pk_fma_f32 {v(A,2)}, {v(A,2)}, {v(RV + 4*mt + 2*hh,2)}, {s(S_EPS6,2)}")
        for (ct, hh) in items:
            A = acc(mt, ct + 5) + 2*hh
            e(f"v_pk_mul_f32 {v(A,2)}, {v(A,2)}, {v(RV + 4*mt + 2*hh,2)}")
        for k, (ct, hh) in enumerate(items):
            A = acc(mt, ct) + 2*hh
            e(f"v_pk_mul_f32 {v(T + 2*k,2)}, {v(A,2)}, {s(S_L2E,2)}")
        for k in range(10):
            e(f"v_exp_f32_e64 {v(T + 2*k)}, {v(T + 2*k)} clamp"); e(f"v_exp_f32_e64 {v(T + 2*k + 1)}, {v(T + 2*k + 1)} clamp")
        for (ct, hh) in items:
            A = acc(mt, ct) + 2*hh
            e(f"v_max_f32 {v(A)}, {s(S_EPS6)}, {v(A)}"); e(f"v_max_f32 {v(A+1)}, {s(S_EPS6)}, {v(A+1)}")
        for k, (ct, hh) in enumerate(items):
            A = acc(mt, ct) + 2*hh
            e(f"v_pk_add_f32 {v(A,2)}, {v(A,2)}, {v(T + 2*k,2)}")
        for ct in range(10):
            A = acc(mt, ct); O = acc(2*kk, ct) + 2*odd
            e(f"v_cvt_pk_bf16_f32 {v(O)}, {v(A)}, {v(A+1)}")
            e(f"v_cvt_pk_bf16_f32 {v(O+1)}, {v(A+2)}, {v(A+3)}")
        if mt < 3: e("s_cbranch_execz L_dry_ret")
    free = [acc(1, ct) for ct in range(10)] + [acc(3, ct) for ct in range(10)]
    ONES = 16
    for r in range(4): e(f"v_mov_b32 {v(ONES + r)}, 0x3f803f80")
    e("s_nop 1")
    D = {}
    for n, (te, td) in enumerate(KV_TILES):
        D[(te, td)] = free[n]
        for kk in range(2):
            c = "0" if kk == 0 else v(free[n], 4)
            e(f"v_mfma_f32_16x16x32_bf16 {v(free[n],4)}, {v(acc(2*kk, 5 + te),4)}, {v(acc(2*kk, td),4)}, {c}")
    Z = {}
    for td in range(5):
        Z[td] = free[13 + td]
        for kk in range(2):
            c = "0" if kk == 0 else v(Z[td], 4)
            e(f"v_mfma_f32_16x16x32_bf16 {v(Z[td],4)}, {v(ONES,4)}, {v(acc(2*kk, td),4)}, {c}")
    e(f"s_mul_i32 {s(S_T)}, {s(S_WAVE)}, {18*1024}")
    e(f"v_lshlrev_b32 v11, 4, {v(V_LANE)}")
    e(f"v_add_u32 v11, {s(S_T)}, v11")
    e(f"v_add_u32 v11, {LDS_KVS}, v11")
    e("s_nop 4")
    e("s_cbranch_execz L_dry_ret")
    for nn in range(18):
        e(f"ds_write_b128 v11, {v(free[nn],4)} offset:{nn*1024}")
    e("s_waitcnt lgkmcnt(0)")

def kv_final(e):
    TE = 0; TD = 0
    for n, (te, td) in enumerate(KV_TILES):
        TE |= te << (4*n); TD |= td << (4*n)
    e.label("L_kv_final")
    e("s_barrier")
    e(f"s_mul_i32 {s(S_T4)}, {s(S_SUB)}, 6720")
    e(f"s_add_u32 {s(S_T4)}, {s(S_T4)}, {WS_KV}")
    e(f"s_mov_b32 {s(S_CNT)}, {s(S_WAVE)}")
    e(f"v_lshlrev_b32 v16, 4, {v(V_LANE)}")
    e(f"v_add_u32 v16, {LDS_KVS}, v16")
    e.label("L_kvf_loop")
    e(f"s_lshl_b32 {s(S_T)}, {s(S_CNT)}, 10")
    e(f"v_add_u32 v17, {s(S_T)}, v16")
    for w in range(4):
        e(f"ds_read_b128 {v(20 + 4*w,4)}, v17 offset:{w*18*1024}")
    e(f"s_cmp_ge_u32 {s(S_CNT)}, 13"); e("s_cbranch_scc1 L_kvf_z")
    e(f"s_lshl_b32 {s(S_T)}, {s(S_CNT)}, 2")
    e(f"s_mov_b32 s68, {TE & 0xffffffff}"); e(f"s_mov_b32 s69, {TE >> 32}")
    e(f"s_lshr_b64 s[68:69], s[68:69], {s(S_T)}"); e(f"s_and_b32 {s(S_T+1)}, s68, 15")
    e(f"s_mov_b32 s68, {TD & 0xffffffff}"); e(f"s_mov_b32 s69, {TD >> 32}")
    e(f"s_lshr_b64 s[68:69], s[68:69], {s(S_T)}"); e(f"s_and_b32 {s(S_T+2)}, s68, 15")
    e(f"s_lshl_b32 {s(S_T+1)}, {s(S_T+1)}, 2"); e(f"s_lshl_b32 {s(S_T+2)}, {s(S_T+2)}, 4")
    e(f"v_add_u32 v11, {s(S_T+1)}, {v(V_G)}")
    e(f"v_mul_u32_u24 v12, 52, v11"); e(f"v_lshrrev_b32 v12, 8, v12")
    e(f"v_lshlrev_b32 v11, 2, v11"); e(f"v_sub_u32 v11, v11, v12"); e(f"v_mul_u32_u24 v11, 80, v11")
    e(f"v_add_u32 v13, {s(S_T+2)}, {v(V_I)}")
    e(f"v_mul_u32_u24 v14, 205, v13"); e(f"v_lshrrev_b32 v14, 12, v14")
    e(f"v_cmp_eq_u32 vcc, v12, v14")
    e(f"v_lshlrev_b32 v13, 2, v13")
    e(f"v_add_u32 v11, v11, v13")
    e(f"v_mov_b32 v12, 0x7ffffff0")
    e(f"v_cndmask_b32 v11, v12, v11, vcc")
    e("s_waitcnt lgkmcnt(0)")
    for h in range(2):
        e(f"v_pk_add_f32 {v(20+2*h,2)}, {v(20+2*h,2)}, {v(24+2*h,2)}")
        e(f"v_pk_add_f32 {v(28+2*h,2)}, {v(28+2*h,2)}, {v(32+2*h,2)}")
    for h in range(2):
        e(f"v_pk_add_f32 {v(20+2*h,2)}, {v(20+2*h,2)}, {v(28+2*h,2)}")
    for r in range(4):
        e(f"buffer_atomic_add_f32 {v(20 + r)}, v11, {s(S_WS,4)}, {s(S_T4)} offen offset:{80*r}")
    e("s_branch L_kvf_next")
    e.label("L_kvf_z")
    e(f"s_sub_u32 {s(S_T)}, {s(S_CNT)}, 13"); e(f"s_lshl_b32 {s(S_T)}, {s(S_T)}, 6")
    e(f"v_lshlrev_b32 v11, 2, {v(V_I)}")
    e(f"v_add_u32 v11, {s(S_T)}, v11")
    e(f"v_add_u32 v11, 6400, v11")
    e(f"v_cmp_eq_u32 vcc, 0, {v(V_G)}")
    e(f"v_mov_b32 v12, 0x7ffffff0")
    e("s_nop 0")
    e(f"v_cndmask_b32 v11, v12, v11, vcc")
    e("s_waitcnt lgkmcnt(0)")
    e("v_add_f32 v20, v20, v24"); e("v_add_f32 v28, v28, v32"); e("v_add_f32 v20, v20, v28")
    e(f"buffer_atomic_add_f32 v20, v11, {s(S_WS,4)}, {s(S_T4)} offen")
    e.label("L_kvf_next")
    e(f"s_add_u32 {s(S_CNT)}, {s(S_CNT)}, 8")
    e(f"s_cmp_lt_u32 {s(S_CNT)}, 18")
    e("s_cbranch_scc1 L_kvf_loop")
    e.label("L_k1_end2")
    if STAMP:
        stamp(e, 5)
        e("s_waitcnt vmcnt(0)"); stamp(e, 6); stamp_flush(e, 7)
    e.label("L_k1_end")
    e("s_endpgm")

def gen_k1(e, opts=None):
    opts = opts or {}
    global STAMP
    STAMP = opts.get("stamp", False)
    OPTS.clear(); OPTS.update(opts)
    e.raw(".globl k1_kernel"); e.raw(".p2align 8"); e.raw(".type k1_kernel,@function"); e.label("k1_kernel")
    setup_pre(e)
    e(f"s_cmp_lt_u32 {s(S_WAVE)}, 4"); e("s_cbranch_scc1 L_consumers")
    e(f"s_cmp_ge_u32 {s(S_WAVE)}, 6"); e("s_cbranch_scc1 L_helpers")
    dma_wave(e)
    e.label("L_helpers")
    setup_post(e)
    e(f"s_cmp_eq_u32 {s(S_WAVE)}, 7"); e("s_cbranch_scc1 L_prod3")
    helper0(e, opts)
    e.label("L_prod3"); helper1(e, opts)
    e.label("L_consumers")
    consumer_setup(e)
    e(f"s_mov_b32 {s(S_EPS6)}, {f32(1e-6)}"); e(f"s_mov_b32 {s(S_EPS6+1)}, {f32(1e-6)}")
    e(f"s_mov_b32 {s(S_L2E)}, {f32(LOG2E)}"); e(f"s_mov_b32 {s(S_L2E+1)}, {f32(LOG2E)}")
    setup_post(e)
    e(f"s_setprio {OPTS.get('cprio', 2)}")
    e(f"s_cmp_eq_u32 {s(S_TYPE)}, 1")
    e("s_cbranch_scc1 L_cons_kv")
    for w in range(4):
        if w < 3:
            e(f"s_cmp_eq_u32 {s(S_WAVE)}, {w}"); e(f"s_cbranch_scc0 L_sw_n{w}")
        consumer_loop(e, True, f"sw{w}", w)
        if w < 3:
            e("s_branch L_sw_done"); e.label(f"L_sw_n{w}")
    e.label("L_sw_done")
    e("s_barrier")
    stamp(e, 4)
    e(f"s_cmp_eq_u32 {s(S_TYPE)}, 0")
    e("s_cbranch_scc1 L_epi_q")
    epilogue_gu(e)
    e.label("L_epi_q")
    epilogue_q(e)
    e.label("L_cons_kv")
    for w in range(4):
        if w < 3:
            e(f"s_cmp_eq_u32 {s(S_WAVE)}, {w}"); e(f"s_cbranch_scc0 L_ns_n{w}")
        consumer_loop(e, False, f"ns{w}", w)
        if w < 3:
            e("s_branch L_ns_done"); e.label(f"L_ns_n{w}")
    e.label("L_ns_done")
    e("s_barrier")
    stamp(e, 4)
    epilogue_kv(e)
    kv_final(e)
```

```python
from asmlib import *
import k1
from k1 import WS_PQ, WS_H, WS_KV, WS_WF, WS_USED

LDS_WAVE = 20480
ZBASE = 13440
LDS_TOTAL = 8 * LDS_WAVE
OPTS = {}
BLOCK = 512
NVGPR = 256

S_X = 8; S_WS = 20; S_OUT = 24
S_RB = 28; S_CB = 29; S_W = 30; S_LB = 31
S_T = 32
S_BO = 40; S_HO = 41; S_WV = 42; S_PQO = 45; S_EPS = 46

V_LANE = 1; V_I = 2; V_G = 3
V_HV = 9
V_T = 12
V_ACC = 176
def acc(mt, ct): return V_ACC + (ct * 4 + mt) * 4
V_HVM = 16
V_W = 20
V_H = 64
NH = 6
def bufA(k, mt): return v(V_H + 16*k + 4*mt, 4)
def bufW(k, ct): return v(V_W + 20*k + 4*ct, 4)
V_ZA = 11
V_KVT = 20
V_HE = 128
V_PQ = 128
V_NUM = 176
V_DEN = 216
V_RC = 228
V_TMP = 240
A_PQ0 = 128
V_PQS = 4
V_TB = [128, 148, 20, 40, 60]
V_O = 80

NUM = [(0,0),(1,0),(1,1),(2,0),(2,1),(3,1),(3,2),(4,1),(4,2),(5,2),(5,3),(6,2),(6,3),(7,3),(7,4),(8,3),(8,4),(9,4)]
DEN = [(0,0),(0,1),(0,2),(1,1),(1,2),(1,3),(1,4),(2,3),(2,4)]

def stamp(e, idx):
    if OPTS.get("stamp"):
        e(f"s_memtime {s(70 + 2*idx, 2)}")
        e("s_waitcnt lgkmcnt(0)")

def capture(fn):
    t = Emit(); fn(t)
    chunks = []; cur = []
    for l in t.lines:
        cur.append(l.strip())
        op = l.split()[0]
        if op.startswith("buffer_") or op.startswith("ds_") or op.startswith("global_"):
            chunks.append(cur); cur = []
    if cur:
        if chunks: chunks[-1] += cur
        else: chunks.append(cur)
    return [c for c in chunks if c]

def mfma_step(e, wop, aop, extra=None, first=False, nomfma=False, noextra=False):
    extra = list(extra or []) if not noextra else []
    n = len(extra); xi = 0; idx = 0
    for ct in range(5):
        for mt in range(4):
            A = acc(mt, ct)
            c = "0" if first else v(A, 4)
            if not nomfma: e(f"v_mfma_f32_16x16x32_bf16 {v(A,4)}, {wop(ct)}, {aop(mt)}, {c}")
            idx += 1
            want = (idx * n + 19) // 20 if n else 0
            while xi < want:
                for ins in extra[xi]: e(ins)
                xi += 1
    assert xi == n

def f_load_b(e, j):
    if OPTS.get("fnob"): return
    for ct in range(5):
        e(f"s_add_u32 m0, {s(S_LB)}, {(j % 4)*5120 + ct*1024}")
        e(f"s_add_u32 {s(S_T)}, {s(S_BO)}, {ct*1024}")
        e(f"buffer_load_dwordx4 {v(V_HV)}, {s(S_WS,4)}, {s(S_T)} offen lds")
    e(f"s_add_u32 {s(S_BO)}, {s(S_BO)}, {8*5120}")

def f_load_h(e, k):
    if OPTS.get("fnoh"): return
    for mt in range(4):
        e(f"buffer_load_dwordx4 {bufA(k, mt)}, {v(V_HVM + mt)}, {s(S_WS,4)}, {s(S_HO)} offen")
    e(f"s_add_u32 {s(S_HO)}, {s(S_HO)}, 1024")

def f_read_w(e, k, j):
    if OPTS.get("fnow"): return
    for ct in range(5):
        e(f"ds_read_b128 {bufW(k, ct)}, {v(V_T+2)} offset:{(j % 4)*5120 + ct*1024}")

def f_wave(e):
    for mt in range(4):
        e(f"v_add_u32 {v(V_HVM + mt)}, {mt*48*1024}, {v(V_HV)}")
    NF = OPTS.get("nf", 9)
    e(f"s_mul_i32 {s(S_BO)}, {s(S_W)}, {NF*8*5120}"); e(f"s_mul_i32 {s(S_T)}, {s(S_CB)}, 5120"); e(f"s_add_u32 {s(S_BO)}, {s(S_BO)}, {s(S_T)}")
    e(f"s_add_u32 {s(S_BO)}, {s(S_BO)}, {WS_WF}")
    e(f"s_mul_i32 {s(S_HO)}, {s(S_RB)}, {4*48*1024}"); e(f"s_mul_i32 {s(S_T)}, {s(S_W)}, {NF*1024}")
    e(f"s_add_u32 {s(S_HO)}, {s(S_HO)}, {s(S_T)}"); e(f"s_add_u32 {s(S_HO)}, {s(S_HO)}, {WS_H}")
    e(f"v_add_u32 {v(V_T+2)}, {s(S_LB)}, {v(V_HV)}")
    post_args(e)
    if OPTS.get("fdelay"): e(f"s_sleep {OPTS.get('fdelay')}")
    q = Queue(e, "vmcnt", 63); lq = Queue(e, "lgkmcnt", 15)
    def qi(tag, n):
        for _ in range(n): q.issue(tag)
    for kind, t in [("b",0),("h",0),("b",1),("h",1),("b",2),("h",2),("b",3),("h",3),("h",4),("h",5)]:
        if kind == "b": f_load_b(e, t); qi(("b", t), 5)
        else: f_load_h(e, t); qi(("h", t), 4)
    stamp(e, 1)
    q.wait(("b", 0))
    f_read_w(e, 0, 0)
    for _ in range(5): lq.issue(("w", 0))
    for t in range(NF):
        ch = []; pv = []; pl = []
        if t + 1 < NF: q.wait(("b", t + 1))
        q.wait(("h", t))
        lq.wait(("w", t % 2))
        if t + 1 < NF:
            ch += capture(lambda t_: f_read_w(t_, (t + 1) % 2, t + 1)); pl += [("w", (t + 1) % 2)] * 5
        if t + 4 < NF:
            ch += capture(lambda t_: f_load_b(t_, t + 4)); pv += [("b", t + 4)] * 5
        if t >= 1 and t - 1 + NH < NF:
            ch += capture(lambda t_: f_load_h(t_, (t - 1) % NH)); pv += [("h", t - 1 + NH)] * 4
        for x in pl: lq.issue(x)
        for x in pv: q.issue(x)
        mfma_step(e, lambda ct: bufW(t % 2, ct), lambda mt: bufA(t % NH, mt), extra=ch, first=(t == 0), nomfma=OPTS.get("fnomfma"))
        if t == 0: stamp(e, 2)
    stamp(e, 5)

def load_pq(e, set_):
    R = V_PQSET[set_]
    for p in range(5):
        if p < 4:
            e(f"buffer_load_dwordx4 {v(R + 4*p,4)}, {v(V_HV)}, {s(S_WS,4)}, {s(S_PQO)} offen offset:{p*1024}")
        else:
            e(f"s_add_u32 {s(S_T)}, {s(S_PQO)}, 4096")
            e(f"buffer_load_dwordx4 {v(R + 4*p,4)}, {v(V_HV)}, {s(S_WS,4)}, {s(S_T)} offen")
    e(f"s_add_u32 {s(S_PQO)}, {s(S_PQO)}, {20*1024}")

def load_kv(e):
    e(f"s_mul_i32 {s(S_T)}, {s(S_W)}, 13440"); e(f"s_add_u32 {s(S_T)}, {s(S_T)}, {WS_KV}")
    for k in range(14):
        if k == 13:
            e(f"v_cmp_gt_u32 vcc, 8, {v(V_LANE)}"); e(f"s_and_saveexec_b64 s[36:37], vcc")
        e(f"s_add_u32 m0, {s(S_LB)}, {k*1024}")
        e(f"s_add_u32 {s(S_T+2)}, {s(S_T)}, {k*1024}")
        e(f"buffer_load_dwordx4 {v(V_HV)}, {s(S_WS,4)}, {s(S_T+2)} offen lds")
        if k == 13: e("s_mov_b64 exec, s[36:37]")

def load_tb(e, j):
    R = V_TB[j]
    for ct in range(5):
        if ct < 4:
            e(f"buffer_load_dwordx4 {v(R + 4*ct,4)}, {v(V_HV)}, {s(S_WS,4)}, {s(S_BO)} offen offset:{ct*1024}")
        else:
            e(f"s_add_u32 {s(S_T)}, {s(S_BO)}, 4096")
            e(f"buffer_load_dwordx4 {v(R + 4*ct,4)}, {v(V_HV)}, {s(S_WS,4)}, {s(S_T)} offen")
    e(f"s_add_u32 {s(S_BO)}, {s(S_BO)}, {8*5120}")

V_PQSET = [176, 196]
V_NUM = 128
V_DEN = 216
V_RC = 228
V_TB = [128, 148, 20, 40, 60]

def precompute(e):
    for r in range(4): e(f"v_mov_b32 {v(V_TMP + r)}, 0")
    e(f"v_add_u32 {v(V_T)}, {s(S_LB)}, {v(V_HV)}")
    e(f"v_cmp_gt_u32 vcc, 44, {v(V_LANE)}"); e(f"s_and_saveexec_b64 s[36:37], vcc")
    e(f"ds_write_b128 {v(V_T)}, {v(V_TMP,4)} offset:{ZBASE}")
    e("s_mov_b64 exec, s[36:37]")
    e(f"v_lshlrev_b32 {v(V_T+3)}, 4, {v(V_G)}")
    for t in range(10):
        e(f"v_add_u32 {v(V_T)}, {16*t}, {v(V_I)}")
        e(f"v_mul_u32_u24 {v(V_HE + t)}, 205, {v(V_T)}"); e(f"v_lshrrev_b32 {v(V_HE + t)}, 12, {v(V_HE + t)}")
        e(f"v_sub_u32 {v(V_T)}, {v(V_T)}, {v(V_HE + t)}"); e(f"v_mul_u32_u24 {v(V_T)}, 80, {v(V_T)}")
        e(f"v_lshrrev_b32 {v(V_T+1)}, 2, {v(V_HE + t)}"); e(f"v_mul_u32_u24 {v(V_T+1)}, 320, {v(V_T+1)}")
        e(f"v_add3_u32 {v(V_T)}, {v(V_T)}, {v(V_T+1)}, {v(V_T+3)}")
        e(f"v_add_u32 {v(V_HE + 10 + t)}, {s(S_LB)}, {v(V_T)}")
    for wh in range(10):
        e(f"v_add_u32 {v(V_T)}, {4*wh}, {v(V_G)}")
        e(f"v_mul_u32_u24 {v(V_HE + 20 + wh)}, 52, {v(V_T)}"); e(f"v_lshrrev_b32 {v(V_HE + 20 + wh)}, 8, {v(V_HE + 20 + wh)}")
        e(f"v_lshrrev_b32 {v(V_T+1)}, 2, {v(V_HE + 20 + wh)}"); e(f"v_mul_u32_u24 {v(V_T+1)}, 6400, {v(V_T+1)}")
        e(f"v_add3_u32 {v(V_T+1)}, {v(V_T+1)}, {v(V_T+3)}, {s(S_LB)}")
        e(f"v_add_u32 {v(V_HE + 30 + wh)}, 6400, {v(V_T+1)}")
    for u in range(3):
        e(f"v_and_b32 {v(V_T)}, 3, {v(V_I)}"); e(f"v_lshlrev_b32 {v(V_T)}, 2, {v(V_T)}")
        e(f"v_lshrrev_b32 {v(V_T+1)}, 2, {v(V_I)}")
        e(f"v_add3_u32 {v(V_T)}, {v(V_T)}, {v(V_T+1)}, {16*u}")
        e(f"v_mul_u32_u24 {v(V_HE + 40 + u)}, 52, {v(V_T)}"); e(f"v_lshrrev_b32 {v(V_HE + 40 + u)}, 8, {v(V_HE + 40 + u)}")
    e(f"s_add_u32 {s(S_T)}, {s(S_LB)}, {ZBASE}")
    e(f"v_mov_b32 {v(V_ZA)}, {s(S_T)}")

def build_frags(e):
    lq = Queue(e, "lgkmcnt", 15)
    frs = [("n", t, w) for (t, w) in NUM] + [("d", u, w) for (u, w) in DEN]
    halves = []
    for fi, (kind, t, w) in enumerate(frs):
        for hf in range(2):
            wh = 2*w + hf
            hsrc = V_HE + t if kind == "n" else V_HE + 40 + t
            asrc = V_HE + 10 + t if kind == "n" else V_HE + 30 + wh
            halves.append((fi, hf, wh, hsrc, asrc))
    M = [48, 50, 52, 54]
    def cmp(hi):
        fi, hf, wh, hsrc, asrc = halves[hi]
        e(f"v_cmp_eq_u32 {s(M[hi % 4],2)}, {v(hsrc)}, {v(V_HE + 20 + wh)}")
    def rd(hi):
        fi, hf, wh, hsrc, asrc = halves[hi]
        tb = V_TMP + (fi % 2) * 8
        ad = V_T + (hi % 2)
        e(f"v_cndmask_b32 {v(ad)}, {v(V_ZA)}, {v(asrc)}, {s(M[hi % 4],2)}")
        e(f"ds_read_b128 {v(tb + 4*hf, 4)}, {v(ad)} offset:{64*wh}")
        lq.issue(("f", fi))
    def fin(fi):
        lq.wait(("f", fi))
        tb = V_TMP + (fi % 2) * 8
        R = V_KVT + 4*fi
        for k in range(4):
            e(f"v_cvt_pk_bf16_f32 {v(R + k)}, {v(tb + 2*k)}, {v(tb + 2*k + 1)}")
    n = len(halves)
    cmp(0); cmp(1); cmp(2)
    for hi in range(n):
        if hi + 3 < n: cmp(hi + 3)
        else: e("s_nop 0")
        rd(hi)
        fi, hf = halves[hi][0], halves[hi][1]
        if hf == 1 and fi >= 1: fin(fi - 1)
    fin(len(frs) - 1)

def o_block(e, b):
    PQ = V_PQSET[b % 2]
    den = {}
    for n_, (u, w) in enumerate(DEN): den.setdefault(u, []).append((18 + n_, w))
    num = {}
    for fi, (t, w) in enumerate(NUM): num.setdefault(t, []).append((fi, w))
    seq = []
    def D(u, k): fi, w = den[u][k]; return (V_DEN + 4*u, fi, w, k == 0)
    def N(t, k): fi, w = num[t][k]; return (V_NUM + 4*t, fi, w, k == 0)
    seq += [D(0,0), D(1,0), D(2,0), N(0,0), N(1,0), N(2,0), N(3,0)]
    seq += [D(0,1), D(1,1), D(2,1), N(4,0), N(5,0), N(6,0), N(7,0)]
    seq += [D(0,2), D(1,2), N(8,0), N(9,0), N(1,1), N(2,1), N(3,1)]
    seq += [D(1,3), N(4,1), N(5,1), N(6,1), N(7,1), N(8,1)]
    assert len(seq) == 27
    if OPTS.get("zeroc"):
        for r in list(range(V_NUM, V_NUM + 40)) + list(range(V_DEN, V_DEN + 12)): e(f"v_mov_b32 {v(r)}, 0")
        e("s_nop 1")
    for (dst, fi, w, first) in seq:
        c = "0" if (first and not OPTS.get("zeroc")) else v(dst, 4)
        e(f"v_mfma_f32_16x16x32_bf16 {v(dst,4)}, {v(V_KVT + 4*fi,4)}, {v(PQ + 4*w,4)}, {c}")
    if b < 2 and OPTS.get("pqearly", 1): pass
def o_rc(e):
    for t2 in range(10): e(f"v_add_f32 {v(V_RC + t2)}, {s(S_EPS)}, {v(V_DEN + 4*(t2 >> 2) + (t2 & 3))}")
    for t2 in range(10): e(f"v_rcp_f32 {v(V_RC + t2)}, {v(V_RC + t2)}")

def o_finish(e, b):
    n1 = OPTS.get("nop_pm", 0); n2 = OPTS.get("nop_dw", 0)
    for p in range(5):
        for t in (2*p, 2*p + 1):
            N = V_NUM + 4*t
            r = V_RC + t
            if r % 2 == 0: pr, o, oh = v(r,2), 0, 0
            else: pr, o, oh = v(r-1,2), 1, 1
            if OPTS.get("nopk", 1):
                for k in range(4): e(f"v_mul_f32 {v(N+k)}, {v(N+k)}, {v(r)}")
            else:
                e(f"v_pk_mul_f32 {v(N,2)}, {v(N,2)}, {pr} op_sel:[0,{o}] op_sel_hi:[1,{oh}]")
                e(f"v_pk_mul_f32 {v(N+2,2)}, {v(N+2,2)}, {pr} op_sel:[0,{o}] op_sel_hi:[1,{oh}]")
        if n1: e(f"s_nop {n1}")
        O = V_NUM + 8*p
        e(f"v_cvt_pk_bf16_f32 {v(O)}, {v(O)}, {v(O+1)}")
        e(f"v_cvt_pk_bf16_f32 {v(O+1)}, {v(O+2)}, {v(O+3)}")
        e(f"v_cvt_pk_bf16_f32 {v(O+2)}, {v(O+4)}, {v(O+5)}")
        e(f"v_cvt_pk_bf16_f32 {v(O+3)}, {v(O+6)}, {v(O+7)}")
        if n2: e(f"s_nop {n2}")
        e(f"ds_write_b128 {v(V_T+2)}, {v(O,4)} offset:{(b*5 + p)*1024}")

def a_wave(e):
    e(f"s_mul_i32 {s(S_PQO)}, {s(S_RB)}, {4*20*1024}"); e(f"s_mul_i32 {s(S_T)}, {s(S_W)}, {5*1024}")
    e(f"s_add_u32 {s(S_PQO)}, {s(S_PQO)}, {s(S_T)}"); e(f"s_add_u32 {s(S_PQO)}, {s(S_PQO)}, {WS_PQ}")
    e(f"s_mul_i32 {s(S_BO)}, {s(S_W)}, {5*8*5120}"); e(f"s_mul_i32 {s(S_T)}, {s(S_CB)}, 5120"); e(f"s_add_u32 {s(S_BO)}, {s(S_BO)}, {s(S_T)}")
    e(f"s_add_u32 {s(S_BO)}, {s(S_BO)}, {WS_WF + 48*8*5120}")
    post_args(e)
    q = Queue(e, "vmcnt", 63); lq = Queue(e, "lgkmcnt", 15)
    def qi(tag, n):
        for _ in range(n): q.issue(tag)
    load_kv(e); qi("kv", 14)
    load_pq(e, 0); qi(("pq", 0), 5)
    load_pq(e, 1); qi(("pq", 1), 5)
    stamp(e, 1)
    precompute(e)
    if OPTS.get("kvall", 1): q.drain()
    else: q.wait("kv")
    stamp(e, 2)
    e("s_waitcnt lgkmcnt(0)")
    build_frags(e)
    stamp(e, 3)
    e(f"s_mov_b32 {s(S_EPS)}, {f32(1e-6)}")
    e(f"v_add_u32 {v(V_T+2)}, {s(S_LB)}, {v(V_HV)}")
    for b in range(4):
        q.wait(("pq", b))
        o_block(e, b)
        if OPTS.get("drainA"):
            e("s_nop 7"); e(f"v_mov_b32 v5, {v(V_NUM + 4*8)}"); e(f"v_mov_b32 v5, {v(V_NUM + 4*7)}")
        if b < 2:
            load_pq(e, b % 2); qi(("pq", b + 2), 5)
        e("s_nop 7")
        if OPTS.get("longnop"):
            for _ in range(OPTS.get("longnop")): e("s_nop 15")
        o_rc(e)
        e("s_nop 1")
        o_finish(e, b)
    stamp(e, 4)
    e("s_nop 1")
    if OPTS.get("fixa"): e("s_waitcnt lgkmcnt(0)")
    for j in range(5):
        load_tb(e, j); qi(("tb", j), 5)
    def read_o(t):
        return [f"ds_read_b128 {v(V_O + (t % 2)*16 + 4*mt,4)}, {v(V_T+2)} offset:{(mt*5 + t)*1024}" for mt in range(4)]
    for ins in read_o(0): e(ins)
    for _ in range(4): lq.issue(("o", 0))
    NF = OPTS.get("nf", 9); NX = 12 - NF
    XH = [112, 96, 80, 112, 96]
    def xb(t_, k):
        if k == 0:
            t_(f"s_mul_i32 {s(S_BO)}, {s(S_W)}, {NX*8*5120}"); t_(f"s_mul_i32 {s(S_T)}, {s(S_CB)}, 5120"); t_(f"s_add_u32 {s(S_BO)}, {s(S_BO)}, {s(S_T)}")
            t_(f"s_add_u32 {s(S_BO)}, {s(S_BO)}, {WS_WF + 4*NF*8*5120}")
        R = V_TB[k]
        for ct in range(5):
            if ct < 4: t_(f"buffer_load_dwordx4 {v(R + 4*ct,4)}, {v(V_HV)}, {s(S_WS,4)}, {s(S_BO)} offen offset:{ct*1024}")
            else:
                t_(f"s_add_u32 {s(S_T)}, {s(S_BO)}, 4096")
                t_(f"buffer_load_dwordx4 {v(R + 4*ct,4)}, {v(V_HV)}, {s(S_WS,4)}, {s(S_T)} offen")
        t_(f"s_add_u32 {s(S_BO)}, {s(S_BO)}, {8*5120}")
    def xh(t_, k):
        if k == 0:
            t_(f"s_mul_i32 {s(S_HO)}, {s(S_RB)}, {4*48*1024}"); t_(f"s_mul_i32 {s(S_T)}, {s(S_W)}, {NX*1024}")
            t_(f"s_add_u32 {s(S_HO)}, {s(S_HO)}, {s(S_T)}"); t_(f"s_add_u32 {s(S_HO)}, {s(S_HO)}, {WS_H + 4*NF*1024}")
        for mt in range(4):
            t_(f"s_add_u32 {s(S_T)}, {s(S_HO)}, {mt*48*1024}")
            t_(f"buffer_load_dwordx4 {v(XH[k] + 4*mt,4)}, {v(V_HV)}, {s(S_WS,4)}, {s(S_T)} offen")
        t_(f"s_add_u32 {s(S_HO)}, {s(S_HO)}, 1024")
    for t in range(5 + NX):
        ch = []
        if t < 5:
            q.wait(("tb", t)); lq.wait(("o", t))
            if t + 1 < 5:
                ch += [[ins] for ins in read_o(t + 1)]
                for _ in range(4): lq.issue(("o", t + 1))
        else:
            q.wait(("xb", t - 5), ("xh", t - 5))
        pend = []
        k = t - 1
        if 0 <= k < NX:
            ch += capture(lambda t_: xb(t_, k)); pend += [("xb", k)] * 5
        if t == 1 and NX >= 1: ch += capture(lambda t_: xh(t_, 0)); pend += [("xh", 0)] * 4
        if t == 4 and NX >= 2: ch += capture(lambda t_: xh(t_, 1)); pend += [("xh", 1)] * 4
        if t == 5 and NX >= 3: ch += capture(lambda t_: xh(t_, 2)); pend += [("xh", 2)] * 4
        if t == 6 and NX >= 4: ch += capture(lambda t_: xh(t_, 3)); pend += [("xh", 3)] * 4
        if t == 7 and NX >= 5: ch += capture(lambda t_: xh(t_, 4)); pend += [("xh", 4)] * 4
        for x in pend: q.issue(x)
        if t < 5:
            mfma_step(e, lambda ct: v(V_TB[t] + 4*ct, 4), lambda mt: v(V_O + (t % 2)*16 + 4*mt, 4), extra=ch, first=(t == 0))
        else:
            mfma_step(e, lambda ct: v(V_TB[t - 5] + 4*ct, 4), lambda mt: v(XH[t - 5] + 4*mt, 4), extra=ch)
    stamp(e, 5)

def post_args(e):
    e("s_waitcnt lgkmcnt(0)")
    e(f"s_mov_b32 {s(S_WS)}, s52"); e(f"s_mov_b32 {s(S_WS+1)}, s53")
    e(f"s_mov_b32 {s(S_X)}, s4"); e(f"s_mov_b32 {s(S_X+1)}, s5")
    e(f"s_mov_b32 {s(S_OUT)}, s50"); e(f"s_mov_b32 {s(S_OUT+1)}, s51")

def gen_k2(e, opts=None):
    opts = opts or {}
    OPTS.clear(); OPTS.update(opts)
    e.raw(".globl k2_kernel"); e.raw(".p2align 8"); e.raw(".type k2_kernel,@function"); e.label("k2_kernel")
    e("s_cmp_ge_u32 s2, 256")
    e("s_cbranch_scc1 L_k2_end")
    e("s_load_dwordx2 s[4:5], s[0:1], 0")
    e("s_load_dwordx2 s[50:51], s[0:1], 56")
    e("s_load_dwordx2 s[52:53], s[0:1], 72")
    if opts.get("stamp"): e(f"s_memtime {s(70,2)}"); e("s_memrealtime s[86:87]")
    e("v_lshrrev_b32 v4, 6, v0")
    e(f"v_and_b32 {v(V_LANE)}, 63, v0")
    e(f"v_readfirstlane_b32 {s(S_WV)}, v4")
    e(f"v_and_b32 {v(V_I)}, 15, {v(V_LANE)}")
    e(f"v_lshrrev_b32 {v(V_G)}, 4, {v(V_LANE)}")
    e(f"s_and_b32 {s(S_T)}, s2, 7"); e(f"s_lshr_b32 {s(S_T+1)}, s2, 3")
    e(f"s_lshr_b32 {s(S_RB)}, {s(S_T)}, 1"); e(f"s_lshl_b32 {s(S_RB)}, {s(S_RB)}, 3")
    e(f"s_and_b32 {s(S_T+2)}, {s(S_T+1)}, 7"); e(f"s_add_u32 {s(S_RB)}, {s(S_RB)}, {s(S_T+2)}")
    e(f"s_and_b32 {s(S_CB)}, {s(S_T)}, 1"); e(f"s_lshl_b32 {s(S_CB)}, {s(S_CB)}, 2")
    e(f"s_lshr_b32 {s(S_T+2)}, {s(S_T+1)}, 3"); e(f"s_add_u32 {s(S_CB)}, {s(S_CB)}, {s(S_T+2)}")
    e(f"s_and_b32 {s(S_W)}, {s(S_WV)}, 3")
    e(f"s_mul_i32 {s(S_LB)}, {s(S_WV)}, {LDS_WAVE}")
    e(f"v_lshlrev_b32 {v(V_HV)}, 4, {v(V_LANE)}")
    e(f"s_mov_b32 {s(S_WS+2)}, {WS_USED if not opts.get('stamp') else 0x2000000}"); e(f"s_mov_b32 {s(S_WS+3)}, 0x20000")
    e(f"s_mov_b32 {s(S_X+2)}, 2621440"); e(f"s_mov_b32 {s(S_X+3)}, 0x20000")
    e(f"s_mov_b32 {s(S_OUT+2)}, 2621440"); e(f"s_mov_b32 {s(S_OUT+3)}, 0x20000")
    aw = OPTS.get("awfirst", 1)
    e(f"s_cmp_lt_u32 {s(S_WV)}, 4"); e(f"s_cbranch_scc{0 if aw else 1} L_k2_F")
    if OPTS.get("aprio"): e(f"s_setprio {OPTS.get('aprio')}")
    if OPTS.get("noA"):
        post_args(e)
        for r in range(80): e(f"v_mov_b32 {v(V_ACC + r)}, 0")
    else: a_wave(e)
    e("s_branch L_k2_R")
    e.label("L_k2_F")
    if OPTS.get("fprio"): e(f"s_setprio {OPTS.get('fprio')}")
    if OPTS.get("ftest"):
        post_args(e)
        e(f"v_add_u32 {v(V_T+2)}, {s(S_LB)}, {v(V_HV)}")
        e("s_mov_b32 s60, 40")
        e.label("L_ft")
        k = OPTS.get("ftest")
        for i in range(20):
            if k == 1: e(f"v_mfma_f32_16x16x32_bf16 {v(V_ACC + 4*i,4)}, {v(20,4)}, {v(64,4)}, {v(V_ACC + 4*i,4)}")
            if k == 2: e(f"ds_read_b128 {v(20 + 4*(i % 8),4)}, {v(V_T+2)} offset:{(i % 16)*1024}"); e("s_nop 3")
            if k == 3: e(f"v_pk_mul_f32 {v(20 + 2*i,2)}, {v(64,2)}, {v(66,2)}"); e(f"v_fma_f32 {v(100 + i)}, v64, v65, v66"); e("s_nop 1")
        if k == 2: e("s_waitcnt lgkmcnt(0)")
        e("s_sub_u32 s60, s60, 1"); e("s_cmp_lg_u32 s60, 0"); e("s_cbranch_scc1 L_ft")
        for r in range(80): e(f"v_mov_b32 {v(V_ACC + r)}, 0")
    elif OPTS.get("noF"):
        post_args(e)
        for r in range(80): e(f"v_mov_b32 {v(V_ACC + r)}, 0")
    else: f_wave(e)
    e.label("L_k2_R")
    e(f"s_lshl_b32 {s(S_T)}, {s(S_RB)}, 6"); e(f"s_lshl_b32 {s(S_T+1)}, {s(S_W)}, 4"); e(f"s_add_u32 {s(S_T)}, {s(S_T)}, {s(S_T+1)}")
    e(f"v_add_u32 v10, {s(S_T)}, {v(V_I)}"); e(f"v_mul_u32_u24 v10, 1280, v10")
    e(f"v_lshlrev_b32 v4, 3, {v(V_G)}"); e(f"v_add_u32 v10, v10, v4")
    e(f"s_lshr_b32 {s(S_T+3)}, {s(S_WV)}, 2")
    e(f"s_mul_i32 {s(S_T+2)}, {s(S_CB)}, 160"); e(f"s_mul_i32 {s(S_T+4)}, {s(S_T+3)}, 96"); e(f"s_add_u32 {s(S_T+2)}, {s(S_T+2)}, {s(S_T+4)}")
    for k in range(3):
        e(f"buffer_load_dwordx2 {v(150 + 2*k,2)}, v10, {s(S_X,4)}, {s(S_T+2)} offen offset:{k*32}")
    e("s_waitcnt lgkmcnt(0)")
    e(f"v_add_u32 {v(V_T)}, {s(S_LB)}, {v(V_HV)}")
    e("s_nop 4")
    for mt in range(4):
        for ct in range(5):
            e(f"ds_write_b128 {v(V_T)}, {v(acc(mt,ct),4)} offset:{(mt*5 + ct)*1024}")
        if mt == 1: e("s_waitcnt lgkmcnt(4)")
    e(f"s_mul_i32 {s(S_T)}, {s(S_W)}, 5120"); e(f"s_mul_i32 {s(S_T+4)}, {s(S_T+3)}, 3072"); e(f"s_add_u32 {s(S_T)}, {s(S_T)}, {s(S_T+4)}")
    e(f"v_add_u32 v4, {s(S_T)}, {v(V_HV)}")
    e(f"v_add_u32 v5, {3*LDS_WAVE}, v4"); e(f"v_add_u32 v6, {6*LDS_WAVE}, v4")
    e("s_waitcnt lgkmcnt(0)")
    stamp(e, 6)
    e("s_barrier")
    if OPTS.get("fstamp"): stamp(e, 1)
    def rd(k):
        for ww in range(8):
            ad = 4 + ww // 3
            e(f"ds_read_b128 {v(20 + k*32 + ww*4,4)}, {v(ad)} offset:{(ww % 3)*LDS_WAVE + k*1024}")
    def fin(k):
        B = 20 + k*32
        if OPTS.get("sumA") or OPTS.get("sumF"):
            zs = range(4, 8) if OPTS.get("sumA") else range(0, 4)
            for ww in zs:
                for r in range(4): e(f"v_mov_b32 {v(B + ww*4 + r)}, 0")
        for h in range(2):
            for a_ in range(4):
                e(f"v_pk_add_f32 {v(B+8*a_+2*h,2)}, {v(B+8*a_+2*h,2)}, {v(B+8*a_+4+2*h,2)}")
        X = 150 + 2*k
        e(f"v_lshlrev_b32 {v(B+4)}, 16, {v(X)}"); e(f"v_and_b32 {v(B+5)}, 0xffff0000, {v(X)}")
        e(f"v_lshlrev_b32 {v(B+6)}, 16, {v(X+1)}"); e(f"v_and_b32 {v(B+7)}, 0xffff0000, {v(X+1)}")
        for h in range(2):
            e(f"v_pk_add_f32 {v(B+2*h,2)}, {v(B+2*h,2)}, {v(B+8+2*h,2)}")
            e(f"v_pk_add_f32 {v(B+16+2*h,2)}, {v(B+16+2*h,2)}, {v(B+24+2*h,2)}")
        for h in range(2):
            e(f"v_pk_add_f32 {v(B+16+2*h,2)}, {v(B+16+2*h,2)}, {v(B+4+2*h,2)}")
        for h in range(2):
            e(f"v_pk_add_f32 {v(B+2*h,2)}, {v(B+2*h,2)}, {v(B+16+2*h,2)}")
        e(f"v_cvt_pk_bf16_f32 {v(B)}, {v(B)}, {v(B+1)}")
        e(f"v_cvt_pk_bf16_f32 {v(B+1)}, {v(B+2)}, {v(B+3)}")
        e(f"buffer_store_dwordx2 {v(B,2)}, v10, {s(S_OUT,4)}, {s(S_T+2)} offen offset:{k*32}")
    rd(0)
    e("s_waitcnt lgkmcnt(2)")
    rd(1)
    e("s_waitcnt vmcnt(0) lgkmcnt(8)")
    if OPTS.get("fstamp"): stamp(e, 2)
    e(f"s_cmp_eq_u32 {s(S_T+3)}, 0"); e("s_cbranch_scc0 L_k2_h1")
    fin(0)
    if OPTS.get("fstamp"): stamp(e, 3)
    e("s_waitcnt lgkmcnt(2)")
    rd(2)
    e("s_waitcnt lgkmcnt(8)")
    fin(1)
    e("s_waitcnt lgkmcnt(0)")
    fin(2)
    e("s_branch L_k2_fin")
    e.label("L_k2_h1")
    fin(0)
    e("s_waitcnt lgkmcnt(0)")
    fin(1)
    e.label("L_k2_fin")
    if opts.get("stamp"):
        stamp(e, 7)
        e(f"s_lshl_b32 {s(S_T)}, s2, 3"); e(f"s_add_u32 {s(S_T)}, {s(S_T)}, {s(S_WV)}"); e(f"s_lshl_b32 {s(S_T)}, {s(S_T)}, 6")
        e(f"s_add_u32 {s(S_T)}, {s(S_T)}, {0x1200000}")
        e(f"v_mov_b32 v14, 0")
        e("s_memrealtime s[88:89]"); e("s_waitcnt lgkmcnt(0)")
        for k in range(8):
            e(f"v_mov_b32 v15, {s(70 + 2*k)}")
            e(f"buffer_store_dword v15, v14, {s(S_WS,4)}, {s(S_T)} offen offset:{4*k}")
            e("s_nop 1")
        e(f"v_mov_b32 v15, s86"); e(f"buffer_store_dword v15, v14, {s(S_WS,4)}, {s(S_T)} offen offset:{4*8}"); e("s_nop 1")
        e(f"v_mov_b32 v15, s88"); e(f"buffer_store_dword v15, v14, {s(S_WS,4)}, {s(S_T)} offen offset:{4*9}"); e("s_nop 1")
    e.label("L_k2_end")
    e("s_endpgm")
```

```python
from asmlib import *
import math

NST = 10
NSLOT = 3
A_BYTES = 32768
BH = 10240
SLOT = A_BYTES + 2*BH
LDS_AUX = NSLOT * SLOT
LDS_STATS = LDS_AUX
LDS_CS = LDS_AUX + 2048
LDS_TOTAL = 163840
LDS_KVS = 0
LDS_RP = SLOT + 24576
WS_PQ = 0
WS_H = 2621440
WS_KV = WS_H + 6291456
WS_STATS = WS_KV + 65536
WS_WF = WS_STATS + 32768
WS_USED = WS_WF + 544*5120
LOG2E = 1.4426950408889634

S_X = 8; S_B0 = 12; S_B1 = 16; S_WS = 20; S_DBG = 24
S_RB = 26; S_CG = 27; S_WAVE = 28; S_TYPE = 29; S_SUB = 30; S_BSTR = 31
S_CB0 = 32; S_CB1 = 33; S_ROT = 34; S_SLOT = 35; S_CNT = 36
S_T = 37
S_EPS6 = 40
S_L2E = 42
S_AOFF = 56; S_BOFF = 57; S_M0S = 60; S_T2 = 61; S_T3 = 62; S_T4 = 63
S_EXS = 64
S_OK = 67
S_NONCE = 68

V_ACC = 96
def acc(mt, ct): return V_ACC + (ct * 4 + mt) * 4
V_X = 32
V_W = 64
V_XB = 2; V_WB = 3; V_XA = 4; V_WA = 6
V_LANE = 8; V_I = 9; V_G = 10
V_CSA = 80
V_ONES = 92

OPTS = {}
def SM():
    m = OPTS.get('smod', '')
    return (' ' + m.replace('_', ' ')) if m else ''
STAMP = False
WS_STAMP = 0x1000000
def stamp(e, idx):
    if STAMP:
        e(f"s_memtime {s(70 + 2*idx, 2)}")
        e("s_waitcnt lgkmcnt(0)")
def stamp_flush(e, n):
    if STAMP:
        e(f"s_lshl_b32 {s(S_T)}, s2, 3"); e(f"s_add_u32 {s(S_T)}, {s(S_T)}, {s(S_WAVE)}"); e(f"s_lshl_b32 {s(S_T)}, {s(S_T)}, 6")
        e(f"s_add_u32 {s(S_T)}, {s(S_T)}, {WS_STAMP}")
        e(f"v_mov_b32 v14, 0")
        e("s_memrealtime s[88:89]"); e("s_waitcnt lgkmcnt(0)")
        for k in range(n):
            e(f"v_mov_b32 v15, {s(70 + 2*k)}")
            e(f"buffer_store_dword v15, v14, {s(S_WS,4)}, {s(S_T)} offen offset:{4*k}")
            e("s_nop 1")
        e(f"v_mov_b32 v15, s86"); e(f"buffer_store_dword v15, v14, {s(S_WS,4)}, {s(S_T)} offen offset:{4*8}"); e("s_nop 1")
        e(f"v_mov_b32 v15, s88"); e(f"buffer_store_dword v15, v14, {s(S_WS,4)}, {s(S_T)} offen offset:{4*9}"); e("s_nop 1")

def cs_owned(w): return [ct for ct in (w, w + 4, w + 8) if ct < 10]

def wrap_slot(e, sreg):
    e(f"s_add_u32 {s(sreg)}, {s(sreg)}, {SLOT}")
    e(f"s_cmp_eq_u32 {s(sreg)}, {NSLOT*SLOT}")
    e(f"s_cselect_b32 {s(sreg)}, 0, {s(sreg)}")

def consumer_loop(e, swapped, tag, w):
    own = cs_owned(w) if not OPTS.get("nocolsum") else []
    RING = 4
    q = Queue(e, "lgkmcnt", 15)
    def rd_x(par, mt):
        if OPTS.get("nox"): return
        e(f"ds_read_b128 {v(V_X + par*16 + mt*4, 4)}, {v(V_XA + par)} offset:{mt*2048}")
        q.issue(("x", par, mt))
    def rd_w(f, part):
        if OPTS.get("now"): return
        ks, ct = divmod(f % 20, 10)
        half, c16 = divmod(ct, 5)
        off = half * BH + ks * 5120 + c16 * 32 + part * 1280
        ring = f % RING
        e(f"ds_read_b64_tr_b16 {v(V_W + ring*4 + part*2, 2)}, {v(V_WA)} offset:{off}")
        q.issue(("w", ring, part))
    def next_addr():
        e(f"v_add_u32 {v(V_XA)}, {s(S_SLOT)}, {v(V_XB)}")
        e(f"v_add_u32 {v(V_WA)}, {s(S_SLOT)}, {v(V_WB)}")
        e(f"v_xor_b32 {v(V_XA + 1)}, 64, {v(V_XA)}")
        wrap_slot(e, S_SLOT)
    sched = {G: [] for G in range(20)}
    sched[0] = [("w", 2, 0), ("w", 2, 1), ("w", 3, 0), ("w", 3, 1)]
    for G in range(1, 17): sched[G] = [("w", G + 3, 0), ("w", G + 3, 1)]
    for k, G in enumerate((4, 5, 6, 7)): sched[G].append(("x", 1, k))
    sched[18] = [("x", 0, 0), ("x", 0, 1), ("w", 20, 0), ("w", 20, 1)]
    sched[19] = [("x", 0, 2), ("x", 0, 3), ("w", 21, 0), ("w", 21, 1)]
    def do_read(r):
        if r[0] == "x": rd_x(r[1], r[2])
        else: rd_w(r[1], r[2])
    e(f"s_mov_b32 {s(S_SLOT)}, 0")
    stamp(e, 1)
    e("s_barrier")
    stamp(e, 2)
    next_addr()
    for G in (18, 19):
        for r in sched[G]: do_read(r)
    state0 = list(q.p)
    e(f"s_mov_b32 {s(S_CNT)}, {NST}")
    e.raw(".p2align 6")
    e.label(f"L_cloop_{tag}")
    for G in range(20):
        ks, ct = divmod(G, 10)
        ring = G % RING
        reads = list(sched[G])
        if G == 18:
            q.drain()
            e("s_barrier")
            next_addr()
        ri = 0
        for mt in range(4):
            q.wait(("w", ring, 0), ("w", ring, 1), ("x", ks, mt))
            A = acc(mt, ct)
            xo = v(V_X + ks*16 + mt*4, 4); wo = v(V_W + ring*4, 4)
            if OPTS.get("nomfma"): pass
            elif swapped: e(f"v_mfma_f32_16x16x32_bf16 {v(A,4)}, {wo}, {xo}, {v(A,4)}")
            else: e(f"v_mfma_f32_16x16x32_bf16 {v(A,4)}, {xo}, {wo}, {v(A,4)}")
            if mt == 3 and ct in own and not OPTS.get("nomfma"):
                C = V_CSA + 4*own.index(ct)
                if swapped: e(f"v_mfma_f32_16x16x32_bf16 {v(C,4)}, {wo}, {v(V_ONES,4)}, {v(C,4)}")
                else: e(f"v_mfma_f32_16x16x32_bf16 {v(C,4)}, {v(V_ONES,4)}, {wo}, {v(C,4)}")
            nrd = (len(reads) - ri + (3 - mt)) // (4 - mt)
            for _ in range(nrd):
                do_read(reads[ri]); ri += 1
        assert ri == len(reads)
    e(f"s_sub_u32 {s(S_CNT)}, {s(S_CNT)}, 1")
    e(f"s_cmp_lg_u32 {s(S_CNT)}, 0")
    e(f"s_cbranch_scc1 L_cloop_{tag}")
    assert q.p == state0, (q.p, state0)
    e("s_waitcnt lgkmcnt(0)")
    stamp(e, 3)
    if own:
        if swapped:
            e(f"v_lshlrev_b32 v11, 4, {v(V_G)}"); e(f"v_add_u32 v11, {LDS_CS}, v11")
            e(f"v_cmp_eq_u32 vcc, 0, {v(V_I)}")
        else:
            e(f"v_lshlrev_b32 v11, 2, {v(V_I)}"); e(f"v_add_u32 v11, {LDS_CS}, v11")
            e(f"v_cmp_eq_u32 vcc, 0, {v(V_G)}")
        e("s_nop 4")
        e(f"s_and_saveexec_b64 {s(S_EXS,2)}, vcc")
        for k, ct in enumerate(own):
            if swapped: e(f"ds_write_b128 v11, {v(V_CSA + 4*k,4)} offset:{ct*64}")
            else: e(f"ds_write_b32 v11, {v(V_CSA + 4*k)} offset:{ct*64}")
        e(f"s_mov_b64 exec, {s(S_EXS,2)}")
        e("s_waitcnt lgkmcnt(0)")

def setup_pre(e):
    e("s_cmp_ge_u32 s2, 256")
    e("s_cbranch_scc1 L_k1_end")
    e("s_load_dwordx4 s[4:7], s[0:1], 0")
    e("s_load_dwordx4 s[48:51], s[0:1], 32")
    e("s_load_dwordx4 s[52:55], s[0:1], 64")
    if STAMP: e(f"s_memtime {s(70,2)}")
    if STAMP: e(f"s_memrealtime s[86:87]")
    e(f"v_lshrrev_b32 v1, 6, v0")
    e(f"v_and_b32 {v(V_LANE)}, 63, v0")
    e(f"v_readfirstlane_b32 {s(S_WAVE)}, v1")
    e(f"s_and_b32 {s(S_T)}, s2, 7")
    e(f"s_lshr_b32 {s(S_T+1)}, s2, 3")
    e(f"s_and_b32 {s(S_RB)}, {s(S_T)}, 1")
    e(f"s_lshl_b32 {s(S_RB)}, {s(S_RB)}, 2")
    e(f"s_and_b32 {s(S_T+2)}, {s(S_T+1)}, 3")
    e(f"s_add_u32 {s(S_RB)}, {s(S_RB)}, {s(S_T+2)}")
    e(f"s_lshr_b32 {s(S_T)}, {s(S_T)}, 1")
    e(f"s_lshr_b32 {s(S_T+1)}, {s(S_T+1)}, 2")
    e(f"s_lshl_b32 {s(S_CG)}, {s(S_T)}, 3"); e(f"s_add_u32 {s(S_CG)}, {s(S_CG)}, {s(S_T+1)}")
    e(f"s_mul_i32 {s(S_SUB)}, {s(S_T)}, 5"); e(f"s_add_u32 {s(S_SUB)}, {s(S_SUB)}, {s(S_T+1)}"); e(f"s_sub_u32 {s(S_SUB)}, {s(S_SUB)}, 3")
    e(f"s_mov_b32 {s(S_TYPE)}, 2")
    e(f"s_cmp_eq_u32 {s(S_T+1)}, 2")
    e(f"s_cselect_b32 {s(S_TYPE)}, 0, {s(S_TYPE)}"); e(f"s_cselect_b32 {s(S_SUB)}, {s(S_T)}, {s(S_SUB)}")
    e(f"s_lshl_b32 {s(S_T+2)}, {s(S_T)}, 1"); e(f"s_add_u32 {s(S_T+2)}, {s(S_T+2)}, {s(S_T+1)}")
    e(f"s_cmp_lt_u32 {s(S_T+1)}, 2")
    e(f"s_cselect_b32 {s(S_TYPE)}, 1, {s(S_TYPE)}"); e(f"s_cselect_b32 {s(S_SUB)}, {s(S_T+2)}, {s(S_SUB)}")
    e(f"s_mul_i32 {s(S_CB0)}, {s(S_SUB)}, 160")
    e(f"s_mov_b32 {s(S_CB1)}, {s(S_CB0)}")
    e(f"s_and_b32 {s(S_ROT)}, {s(S_SUB)}, 1"); e(f"s_lshl_b32 {s(S_ROT)}, {s(S_ROT)}, 1")
    e(f"s_cmp_eq_u32 {s(S_TYPE)}, 2")
    e(f"s_cselect_b32 {s(S_ROT)}, {s(S_ROT)}, 0")
    e(f"s_mov_b32 {s(S_BSTR)}, 3840"); e(f"s_mov_b32 {s(S_B0+2)}, 2457600")
    e(f"s_cselect_b32 {s(S_BSTR)}, 3072, {s(S_BSTR)}")
    e(f"s_cselect_b32 {s(S_B0+2)}, 1966080, {s(S_B0+2)}"); e(f"s_mov_b32 {s(S_B1+2)}, {s(S_B0+2)}")
    e(f"s_cmp_eq_u32 {s(S_TYPE)}, 1")
    e(f"s_cselect_b32 {s(S_T)}, 1280, 0"); e(f"s_cselect_b32 {s(S_T+1)}, 2560, 0")
    e(f"s_add_u32 {s(S_CB0)}, {s(S_CB0)}, {s(S_T)}"); e(f"s_add_u32 {s(S_CB1)}, {s(S_CB1)}, {s(S_T+1)}")
    e(f"s_cmp_eq_u32 {s(S_TYPE)}, 0")
    e(f"s_cselect_b32 {s(S_T)}, {s(S_CB0)}, 0"); e(f"s_cselect_b32 {s(S_T+1)}, 160, 0")
    e(f"s_add_u32 {s(S_CB0)}, {s(S_CB0)}, {s(S_T)}"); e(f"s_add_u32 {s(S_CB1)}, {s(S_CB1)}, {s(S_T)}"); e(f"s_add_u32 {s(S_CB1)}, {s(S_CB1)}, {s(S_T+1)}")
    e(f"s_mov_b32 {s(S_X+2)}, 2621440"); e(f"s_mov_b32 {s(S_X+3)}, 0x20000")
    e(f"s_mov_b32 {s(S_WS+2)}, {WS_USED if not STAMP else 0x2000000}"); e(f"s_mov_b32 {s(S_WS+3)}, 0x20000")
    e(f"s_mov_b32 {s(S_B0+3)}, 0x20000"); e(f"s_mov_b32 {s(S_B1+3)}, 0x20000")
    e(f"v_and_b32 {v(V_I)}, 15, {v(V_LANE)}")
    e(f"v_lshrrev_b32 {v(V_G)}, 4, {v(V_LANE)}")

def setup_post(e):
    e("s_waitcnt lgkmcnt(0)")
    e(f"s_mov_b32 {s(S_X)}, s4"); e(f"s_mov_b32 {s(S_X+1)}, s5")
    e(f"s_cmp_eq_u32 {s(S_TYPE)}, 2")
    e(f"s_cselect_b32 {s(S_B0)}, s48, s6"); e(f"s_cselect_b32 {s(S_B0+1)}, s49, s7")
    e(f"s_cselect_b32 {s(S_B1)}, s50, s6"); e(f"s_cselect_b32 {s(S_B1+1)}, s51, s7")
    e(f"s_mov_b32 {s(S_WS)}, s54"); e(f"s_mov_b32 {s(S_WS+1)}, s55")
    e(f"s_mov_b32 {s(S_DBG)}, s52"); e(f"s_mov_b32 {s(S_DBG+1)}, s53")

def consumer_setup(e):
    e(f"v_and_b32 v11, 7, {v(V_I)}")
    e(f"v_xor_b32 v11, {v(V_G)}, v11")
    e(f"v_lshlrev_b32 v11, 4, v11")
    e(f"s_lshl_b32 {s(S_T)}, {s(S_WAVE)}, 13")
    e(f"v_lshlrev_b32 v12, 7, {v(V_I)}")
    e(f"v_add3_u32 {v(V_XB)}, v11, v12, {s(S_T)}")
    e(f"v_lshrrev_b32 v11, 1, {v(V_G)}")
    e(f"v_lshlrev_b32 v11, 4, v11")
    e(f"v_and_b32 v12, 1, {v(V_G)}")
    e(f"v_lshlrev_b32 v12, 2, v12")
    e(f"v_lshrrev_b32 v13, 2, {v(V_I)}")
    e(f"v_add3_u32 v11, v11, v12, v13")
    e(f"v_mul_u32_u24 v11, 160, v11")
    e(f"v_and_b32 v12, 3, {v(V_I)}")
    e(f"v_lshlrev_b32 v12, 3, v12")
    e(f"v_add_u32 v11, v11, v12")
    e(f"v_add_u32 {v(V_WB)}, {A_BYTES}, v11")
    if OPTS.get("dry", 1):
        e("s_mov_b64 exec, 0")
        for ty, nm in ((2, "gu"), (0, "q"), (1, "kv")):
            if ty != 1: e(f"s_cmp_eq_u32 {s(S_TYPE)}, {ty}"); e(f"s_cbranch_scc0 L_dry_n{nm}")
            for w in range(4):
                if w < 3:
                    e(f"s_cmp_eq_u32 {s(S_WAVE)}, {w}"); e(f"s_cbranch_scc1 L_{nm}_b{w}")
                else: e(f"s_branch L_{nm}_b{w}")
            if ty != 1: e.label(f"L_dry_n{nm}")
    e.label("L_dry_ret")
    e("s_mov_b64 exec, -1")
    e("s_nop 3")
    for r in range(V_CSA, V_CSA + 12): e(f"v_mov_b32 {v(r)}, 0")
    for r in range(V_ONES, V_ONES + 4): e(f"v_mov_b32 {v(r)}, 0x3f803f80")
    for r in range(V_ACC, 256):
        e(f"v_mov_b32 {v(r)}, 0")

P_VA = 16
P_VB = 20
P_ONE = 26
P_SL = 100
P_POLL = 60
P_RES = 56
DBG_NONCE = 0
DBG_FLAG = 64

def div10(e, dst, src):
    e(f"v_mul_u32_u24 {v(dst)}, 205, {v(src)}")
    e(f"v_lshrrev_b32 {v(dst)}, 11, {v(dst)}")

def lane0(e, on=True):
    if on:
        e(f"v_cmp_eq_u32 vcc, 0, {v(V_LANE)}")
        e(f"s_and_saveexec_b64 {s(S_EXS,2)}, vcc")
    else:
        e(f"s_mov_b64 exec, {s(S_EXS,2)}")

S_DA = 58; S_DB = 59; S_MA = 44; S_MB = 45
def issue_a(e, q, tag):
    for a_ in range(16):
        e(f"s_add_u32 m0, {s(S_MA)}, {a_*1024}")
        e(f"s_add_u32 {s(S_T)}, {s(S_AOFF)}, {a_*8*1280}")
        e(f"buffer_load_dwordx4 {v(P_VA)}, {s(S_X,4)}, {s(S_T)} offen lds")
        q.issue(tag)
    e(f"s_add_u32 {s(S_AOFF)}, {s(S_AOFF)}, 128")

def issue_b(e, q, tag):
    for b in range(10):
        if b == 5: e(f"s_add_u32 {s(S_BOFF)}, {s(S_BOFF)}, {s(S_T4)}")
        e(f"s_add_u32 m0, {s(S_MB)}, {b*1024}")
        e("s_nop 0")
        e(f"buffer_load_dwordx4 {v(P_VB + b % 5)}, {s(S_B0,4)}, {s(S_BOFF)} offen lds")
        q.issue(tag)
    e(f"s_add_u32 {s(S_BOFF)}, {s(S_BOFF)}, {s(S_T4)}")

def set_slot(e, slot_sgpr=None, slot_imm=None):
    if slot_sgpr is None:
        e(f"s_add_u32 {s(S_MA)}, {s(S_DA)}, {slot_imm}"); e(f"s_add_u32 {s(S_MB)}, {s(S_DB)}, {slot_imm}")
    else:
        e(f"s_add_u32 {s(S_MA)}, {s(S_DA)}, {s(slot_sgpr)}"); e(f"s_add_u32 {s(S_MB)}, {s(S_DB)}, {s(slot_sgpr)}")

def issue_stage(e, q, slot_sgpr=None, slot_imm=None, tag=None):
    if OPTS.get("nodma") and slot_sgpr is not None: return
    set_slot(e, slot_sgpr, slot_imm)
    issue_a(e, q, tag)
    issue_b(e, q, tag)

def dma_wave(e):
    if OPTS.get("dprio", 3): e(f"s_setprio {OPTS.get('dprio', 3)}")
    q = Queue(e, "vmcnt", 63)
    n = 26
    e(f"s_sub_u32 {s(S_T3)}, {s(S_WAVE)}, 4")
    e(f"s_lshl_b32 {s(S_DA)}, {s(S_T3)}, 14")
    e(f"s_mul_i32 {s(S_DB)}, {s(S_T3)}, {BH}"); e(f"s_add_u32 {s(S_DB)}, {s(S_DB)}, {A_BYTES}")
    e(f"v_lshrrev_b32 v12, 3, {v(V_LANE)}")
    e(f"v_and_b32 v11, 7, {v(V_LANE)}")
    e(f"v_xor_b32 v11, v11, v12")
    e(f"v_lshlrev_b32 v11, 4, v11")
    e(f"v_mul_u32_u24 v12, 1280, v12")
    e(f"v_add_u32 {v(P_VA)}, v11, v12")
    e(f"s_lshl_b32 {s(S_AOFF)}, {s(S_RB)}, 1"); e(f"s_add_u32 {s(S_AOFF)}, {s(S_AOFF)}, {s(S_T3)}")
    e(f"s_mul_i32 {s(S_AOFF)}, {s(S_AOFF)}, {128*1280}")
    for b in range(5):
        e(f"v_add_u32 v11, {64*b}, {v(V_LANE)}")
        div10(e, 12, 11)
        e(f"v_mul_u32_u24 v13, 10, v12")
        e(f"v_sub_u32 v13, v11, v13")
        e(f"v_add_u32 v13, {s(S_ROT)}, v13")
        e(f"v_cmp_le_u32 vcc, 10, v13")
        e(f"v_subrev_u32 v14, 10, v13")
        e(f"v_and_b32 v15, 0x13, v12")
        e(f"v_cndmask_b32 v13, v13, v14, vcc")
        e(f"v_and_b32 v14, 4, v12"); e(f"v_lshlrev_b32 v14, 1, v14"); e(f"v_or_b32 v15, v15, v14")
        e(f"v_and_b32 v14, 8, v12"); e(f"v_lshrrev_b32 v14, 1, v14"); e(f"v_or_b32 v15, v15, v14")
        e(f"v_mul_lo_u32 v15, v15, {s(S_BSTR)}")
        e(f"v_lshlrev_b32 v13, 4, v13")
        e(f"v_add_u32 {v(P_VB + b)}, v15, v13")
    e(f"s_cmp_eq_u32 {s(S_T3)}, 0")
    e(f"s_cselect_b32 {s(S_BOFF)}, {s(S_CB0)}, {s(S_CB1)}")
    e(f"s_lshl_b32 {s(S_T4)}, {s(S_BSTR)}, 5")
    setup_post(e)
    e(f"s_cmp_eq_u32 {s(S_T3)}, 0")
    e(f"s_cselect_b32 {s(S_B0)}, {s(S_B0)}, {s(S_B1)}"); e(f"s_cselect_b32 {s(S_B0+1)}, {s(S_B0+1)}, {s(S_B1+1)}")
    stamp(e, 1)
    issue_stage(e, q, slot_imm=0, tag=0)
    stamp(e, 2)
    NPRE = OPTS.get("npre", 2)
    if NPRE == 2: issue_stage(e, q, slot_imm=SLOT, tag=1)
    if NPRE == 3:
        set_slot(e, None, SLOT); issue_b(e, q, 1)
    if NPRE == 4:
        set_slot(e, None, SLOT); issue_a(e, q, 1)
    stamp(e, 3)
    q.wait(0)
    stamp(e, 5)
    e("s_barrier")
    if NPRE == 1: issue_stage(e, q, slot_imm=SLOT, tag=1)
    if NPRE == 3: issue_a(e, q, 1)
    if NPRE == 4: issue_b(e, q, 1)
    issue_stage(e, q, slot_imm=2*SLOT, tag=2)
    e(f"s_mov_b32 {s(S_M0S)}, 0")
    e(f"s_mov_b32 {s(S_CNT)}, 7")
    e.label(f"L_dloop")
    e(f"s_waitcnt vmcnt({n})")
    e("s_barrier")
    q2 = Queue(e, "vmcnt", 63)
    issue_stage(e, q2, slot_sgpr=S_M0S, tag="x"); wrap_slot(e, S_M0S)
    e(f"s_sub_u32 {s(S_CNT)}, {s(S_CNT)}, 1")
    e(f"s_cmp_lg_u32 {s(S_CNT)}, 0")
    e(f"s_cbranch_scc1 L_dloop")
    e(f"s_waitcnt vmcnt({n})"); e("s_barrier")
    e(f"s_waitcnt vmcnt(0)"); e("s_barrier")
    e("s_barrier")
    e("s_barrier")
    e(f"s_cmp_eq_u32 {s(S_TYPE)}, 1")
    e(f"s_cbranch_scc1 L_kv_final")
    if STAMP:
        stamp(e, 4); stamp(e, 6); stamp_flush(e, 7)
    e("s_endpgm")

def stats4_load(e, row_sgpr):
    e(f"v_add_u32 v11, {s(row_sgpr)}, {v(V_G)}")
    e(f"v_mul_u32_u24 v11, 1280, v11")
    e(f"v_lshlrev_b32 v14, 4, {v(V_I)}")
    e(f"v_add_u32 v11, v11, v14")
    for k in range(5):
        e(f"buffer_load_dwordx4 {v(P_SL + 4*k, 4)}, v11, {s(S_X,4)}, 0 offen offset:{k*256}")

def stats4_compute(e):
    A = P_SL + 20
    for k in range(4): e(f"v_mov_b32 {v(A + k)}, 0")
    for d in range(20):
        e(f"v_dot2c_f32_bf16 {v(A + (d & 1))}, {v(P_SL + d)}, {v(P_ONE)}")
        e(f"v_dot2c_f32_bf16 {v(A + 2 + (d & 1))}, {v(P_SL + d)}, {v(P_SL + d)}")
    e("s_nop 2")
    e(f"v_add_f32 {v(A)}, {v(A)}, {v(A+1)}")
    e(f"v_add_f32 {v(A+2)}, {v(A+2)}, {v(A+3)}")
    for ctl in ("quad_perm:[1,0,3,2]", "quad_perm:[2,3,0,1]", "row_half_mirror", "row_mirror"):
        e("s_nop 0")
        e(f"v_add_f32_dpp {v(A)}, {v(A)}, {v(A)} {ctl} row_mask:0xf bank_mask:0xf")
        e(f"v_add_f32_dpp {v(A+2)}, {v(A+2)}, {v(A+2)} {ctl} row_mask:0xf bank_mask:0xf")
        e("s_nop 0")
    M = P_SL + 26
    e(f"v_mul_f32 {v(M)}, {f32(1.0/640)}, {v(A)}")
    e(f"v_mul_f32 {v(A+1)}, {v(M)}, {v(M)}")
    e(f"v_mul_f32 {v(A+2)}, {f32(1.0/640)}, {v(A+2)}")
    e(f"v_sub_f32 {v(A+2)}, {v(A+2)}, {v(A+1)}")
    e(f"v_max_f32 {v(A+2)}, 0, {v(A+2)}")
    e(f"v_add_f32 {v(A+2)}, {f32(1e-5)}, {v(A+2)}")
    e(f"v_rsq_f32 {v(M+1)}, {v(A+2)}")
    e("s_nop 0")

def write_stats_lds_from_pairs(e, R, tag):
    e(f"s_cmp_eq_u32 {s(S_TYPE)}, 1")
    e(f"s_cbranch_scc1 L_wsk_{tag}")
    e(f"v_lshlrev_b32 v13, 5, {v(V_LANE)}")
    e(f"v_add_u32 v13, {LDS_STATS}, v13")
    e(f"ds_write_b128 v13, {v(R,4)}")
    e(f"ds_write_b128 v13, {v(R+4,4)} offset:16")
    e(f"s_branch L_wsd_{tag}")
    e.label(f"L_wsk_{tag}")
    T = R + 8
    for k in range(4):
        e(f"v_mov_b32 {v(T + k)}, {v(R + 2*k)}")
        e(f"v_mov_b32 {v(T + 4 + k)}, {v(R + 2*k + 1)}")
    e(f"v_lshlrev_b32 v13, 4, {v(V_LANE)}")
    e(f"v_add_u32 v13, {LDS_STATS}, v13")
    e(f"ds_write_b128 v13, {v(T,4)}")
    e(f"ds_write_b128 v13, {v(T+4,4)} offset:1024")
    e.label(f"L_wsd_{tag}")

def fetch_stats(e):
    e(f"s_lshl_b32 {s(S_T)}, {s(S_RB)}, 12")
    e(f"s_add_u32 {s(S_T)}, {s(S_T)}, {WS_STATS}")
    e(f"v_lshlrev_b32 v11, 6, {v(V_LANE)}")
    for k in range(4):
        e(f"buffer_load_dwordx4 {v(P_SL + 4*k,4)}, v11, {s(S_WS,4)}, {s(S_T)} offen offset:{16*k} sc1")

def check_stats(e, tag):
    e(f"v_cmp_eq_u32 vcc, {s(S_NONCE)}, {v(P_SL + 1)}")
    e(f"s_mov_b64 s[92:93], vcc")
    for k in range(1, 8):
        e(f"v_cmp_eq_u32 vcc, {s(S_NONCE)}, {v(P_SL + 2*k + 1)}")
        e(f"s_and_b64 s[92:93], s[92:93], vcc")
    e(f"s_cmp_eq_u64 s[92:93], -1")
    e(f"s_cbranch_scc0 L_chk_no_{tag}")
    R = P_SL + 16
    for k in range(8):
        e(f"v_mov_b32 {v(R + k)}, {v(P_SL + 2*k)}")
    write_stats_lds_from_pairs(e, R, tag)
    e(f"s_mov_b32 {s(S_OK)}, 1")
    e.label(f"L_chk_no_{tag}")

def publish_stats(e, tag):
    e(f"v_lshlrev_b32 v13, 4, {v(V_G)}")
    e(f"s_lshl_b32 {s(S_T)}, {s(S_T3)}, 4"); e(f"s_add_u32 {s(S_T)}, {s(S_T)}, {WS_STATS}")
    e(f"v_mov_b32 v29, {s(S_NONCE)}"); e(f"v_mov_b32 v31, {s(S_NONCE)}")
    e(f"v_mov_b32 v33, {s(S_NONCE)}"); e(f"v_mov_b32 v35, {s(S_NONCE)}")
    e(f"v_mov_b32 v28, {v(P_RES)}"); e(f"v_mov_b32 v30, {v(P_RES+1)}")
    e(f"v_mov_b32 v32, {v(P_RES+2)}"); e(f"v_mov_b32 v34, {v(P_RES+3)}")
    e(f"v_cmp_eq_u32 vcc, 0, {v(V_I)}")
    e(f"s_and_saveexec_b64 {s(S_EXS,2)}, vcc")
    e(f"buffer_store_dwordx4 v[28:31], v13, {s(S_WS,4)}, {s(S_T)} offen sc1")
    e(f"buffer_store_dwordx4 v[32:35], v13, {s(S_WS,4)}, {s(S_T)} offen offset:64 sc1")
    e(f"s_mov_b64 exec, {s(S_EXS,2)}")

def poll_nonce(e):
    e(f"v_mov_b32 v11, 0")
    e(f"global_load_dword {v(P_POLL)}, v11, {s(S_DBG,2)} offset:{DBG_NONCE} sc1")

def try_publish(e, tag, repoll=True):
    e(f"s_cmp_lg_u32 {s(S_NONCE)}, 0"); e(f"s_cbranch_scc1 L_tp_{tag}")
    e("s_waitcnt vmcnt(0)")
    e(f"v_readfirstlane_b32 {s(S_NONCE)}, {v(P_POLL)}")
    e("s_nop 3")
    e(f"s_cmp_eq_u32 {s(S_NONCE)}, 0"); e(f"s_cbranch_scc1 L_tpr_{tag}")
    publish_stats(e, tag)
    e(f"s_branch L_tp_{tag}")
    e.label(f"L_tpr_{tag}")
    if repoll: poll_nonce(e)
    e.label(f"L_tp_{tag}")

def hbar(e, j):
    e("s_barrier")
    if OPTS.get("hstamp"):
        e("s_memtime s[90:91]"); e("s_waitcnt lgkmcnt(0)")
        e(f"v_writelane_b32 v62, s90, {j}")

def helper0(e, opts):
    e("s_cmp_eq_u32 s2, 0"); e("s_cbranch_scc0 L_h0_nononce")
    e("s_memrealtime s[92:93]"); e("s_waitcnt lgkmcnt(0)")
    e("s_or_b32 s92, s92, 1")
    e("v_mov_b32 v11, 0"); e("v_mov_b32 v12, s92")
    lane0(e)
    e(f"global_store_dword v11, v12, {s(S_DBG,2)} offset:{DBG_NONCE} sc1")
    lane0(e, False)
    e.label("L_h0_nononce")
    e(f"s_lshl_b32 {s(S_T)}, {s(S_RB)}, 8")
    e(f"s_lshl_b32 {s(S_T+1)}, {s(S_CG)}, 3")
    e(f"s_add_u32 {s(S_T3)}, {s(S_T)}, {s(S_T+1)}")
    stats4_load(e, S_T3)
    e(f"v_add_u32 v11, {4*1280}, v11")
    for k in range(5):
        e(f"buffer_load_dwordx4 {v(P_SL + 32 + 4*k, 4)}, v11, {s(S_X,4)}, 0 offen offset:{k*256}")
    e(f"v_mov_b32 {v(P_ONE)}, 0x3f803f80")
    e(f"s_mov_b32 {s(S_OK)}, 0"); e(f"s_mov_b32 {s(S_NONCE)}, 0")
    LATE = OPTS.get("statlate", 0)
    def do_stats():
        e("s_waitcnt vmcnt(5)")
        stats4_compute(e)
        e(f"v_mov_b32 {v(P_RES)}, {v(P_SL+26)}"); e(f"v_mov_b32 {v(P_RES+1)}, {v(P_SL+27)}")
        e("s_waitcnt vmcnt(0)")
        poll_nonce(e)
        for k in range(20): e(f"v_mov_b32 {v(P_SL + k)}, {v(P_SL + 32 + k)}")
        stats4_compute(e)
        e(f"v_mov_b32 {v(P_RES+2)}, {v(P_SL+26)}"); e(f"v_mov_b32 {v(P_RES+3)}, {v(P_SL+27)}")
    def do_stats_a():
        e("s_waitcnt vmcnt(5)")
        stats4_compute(e)
        e(f"v_mov_b32 {v(P_RES)}, {v(P_SL+26)}"); e(f"v_mov_b32 {v(P_RES+1)}, {v(P_SL+27)}")
        e("s_waitcnt vmcnt(0)")
        poll_nonce(e)
    def do_stats_b():
        for k in range(20): e(f"v_mov_b32 {v(P_SL + k)}, {v(P_SL + 32 + k)}")
        stats4_compute(e)
        e(f"v_mov_b32 {v(P_RES+2)}, {v(P_SL+26)}"); e(f"v_mov_b32 {v(P_RES+3)}, {v(P_SL+27)}")
    if not LATE: do_stats()
    FJ = OPTS.get("fetchj", 5); CJ = OPTS.get("checkj", 8)
    for j in range(11):
        e("s_barrier")
        if j == 0 and LATE: do_stats_a()
        if j == 1 and LATE: do_stats_b()
        pj = (2, 3, 4) if LATE else (1, 2, 3, 4)
        if j in pj: try_publish(e, f"l{j}", repoll=(j < 4))
        if j == FJ: fetch_stats(e)
        if j == CJ:
            e("s_waitcnt vmcnt(0)")
            e(f"s_cmp_eq_u32 {s(S_NONCE)}, 0"); e("s_cbranch_scc1 L_h0_okA")
            if not opts.get("forcefb"): check_stats(e, "a")
            e(f"s_cmp_eq_u32 {s(S_OK)}, 1"); e("s_cbranch_scc1 L_h0_okA")
            fetch_stats(e)
            e.label("L_h0_okA")
        if j == 10:
            e(f"s_cmp_eq_u32 {s(S_OK)}, 1"); e("s_cbranch_scc1 L_h0_okB")
            e(f"s_cmp_eq_u32 {s(S_NONCE)}, 0"); e("s_cbranch_scc1 L_h0_okB")
            e("s_waitcnt vmcnt(0)")
            if not opts.get("forcefb"): check_stats(e, "b")
            e.label("L_h0_okB")
    e(f"s_cmp_eq_u32 {s(S_OK)}, 1"); e(f"s_cbranch_scc1 L_h0_done")
    e(f"s_cmp_eq_u32 {s(S_NONCE)}, 0"); e(f"s_cbranch_scc1 L_h0_fb")
    e(f"s_mov_b32 {s(S_CNT)}, {0 if opts.get('forcefb') else 200}")
    e.label("L_h0_spin")
    e(f"s_cmp_eq_u32 {s(S_CNT)}, 0"); e(f"s_cbranch_scc1 L_h0_fb")
    fetch_stats(e)
    e("s_waitcnt vmcnt(0)")
    check_stats(e, "c")
    e(f"s_sub_u32 {s(S_CNT)}, {s(S_CNT)}, 1")
    e(f"s_cmp_eq_u32 {s(S_OK)}, 1"); e(f"s_cbranch_scc1 L_h0_done")
    e("s_sleep 4")
    e("s_branch L_h0_spin")
    e.label("L_h0_fb")
    e(f"s_mov_b32 {s(S_CNT)}, 0")
    e.label("L_fb_loop")
    e(f"s_lshl_b32 {s(S_T)}, {s(S_RB)}, 8")
    e(f"s_lshl_b32 {s(S_T+1)}, {s(S_CNT)}, 2")
    e(f"s_add_u32 {s(S_T)}, {s(S_T)}, {s(S_T+1)}")
    stats4_load(e, S_T)
    e("s_waitcnt vmcnt(0)")
    stats4_compute(e)
    e(f"v_add_u32 v15, {s(S_T+1)}, {v(V_G)}")
    e(f"v_cmp_eq_u32 vcc, 0, {v(V_I)}")
    e(f"s_and_saveexec_b64 {s(S_EXS,2)}, vcc")
    e(f"s_cmp_eq_u32 {s(S_TYPE)}, 1")
    e(f"s_cbranch_scc1 L_fb_kv")
    e(f"v_lshlrev_b32 v13, 3, v15"); e(f"v_add_u32 v13, {LDS_STATS}, v13")
    e(f"ds_write_b64 v13, {v(P_SL + 26, 2)}")
    e(f"s_branch L_fb_n")
    e.label("L_fb_kv")
    e(f"v_lshlrev_b32 v13, 2, v15"); e(f"v_add_u32 v13, {LDS_STATS}, v13")
    e(f"ds_write_b32 v13, {v(P_SL + 26)}")
    e(f"ds_write_b32 v13, {v(P_SL + 27)} offset:1024")
    e.label("L_fb_n")
    e(f"s_mov_b64 exec, {s(S_EXS,2)}")
    e(f"s_add_u32 {s(S_CNT)}, {s(S_CNT)}, 1")
    e(f"s_cmp_lt_u32 {s(S_CNT)}, 64")
    e("s_cbranch_scc1 L_fb_loop")
    e.label("L_h0_done")
    e("s_waitcnt lgkmcnt(0)")
    e("s_barrier")
    e(f"s_cmp_eq_u32 {s(S_TYPE)}, 1")
    e(f"s_cbranch_scc1 L_kv_final")
    e("s_endpgm")

def repack_setup(e):
    for b in range(5):
        e(f"v_add_u32 v11, {64*b}, {v(V_LANE)}")
        div10(e, 12, 11)
        e(f"v_mul_u32_u24 v13, 10, v12"); e(f"v_sub_u32 v13, v11, v13")
        e(f"v_mul_u32_u24 v12, 1280, v12"); e(f"v_lshlrev_b32 v13, 4, v13")
        e(f"v_add_u32 {v(40 + b)}, v12, v13")
    e(f"v_lshlrev_b32 v11, 2, {v(V_G)}"); e(f"v_lshrrev_b32 v12, 2, {v(V_I)}"); e(f"v_add_u32 v11, v11, v12")
    e(f"v_mul_u32_u24 v11, 160, v11"); e(f"v_and_b32 v12, 3, {v(V_I)}"); e(f"v_lshlrev_b32 v12, 3, v12")
    e(f"v_add_u32 v11, v11, v12"); e(f"v_add_u32 v45, {LDS_RP}, v11")
    e(f"v_lshlrev_b32 v46, 4, {v(V_LANE)}")

def repack_issue(e):
    for r in range(3):
        e(f"s_add_u32 {s(S_T)}, s2, {256*r}")
        if r == 2:
            e(f"s_cmp_ge_u32 {s(S_T)}, 544"); e("s_cbranch_scc1 L_rp_i_done")
        e(f"s_lshr_b32 {s(S_T+1)}, {s(S_T)}, 3")
        e(f"s_and_b32 {s(S_T+2)}, {s(S_T)}, 7")
        e(f"s_mul_i32 {s(S_T+2)}, {s(S_T+2)}, 160")
        e(f"s_cmp_ge_u32 {s(S_T+1)}, 48")
        e(f"s_cbranch_scc1 L_rp_wo{r}")
        e(f"s_mul_i32 {s(S_T+1)}, {s(S_T+1)}, {32*1280}"); e(f"s_add_u32 {s(S_T+1)}, {s(S_T+1)}, {s(S_T+2)}")
        for b in range(5):
            e(f"s_mov_b32 m0, {LDS_RP + r*5120 + b*1024}"); e("s_nop 0")
            e(f"buffer_load_dwordx4 {v(40 + b)}, s[44:47], {s(S_T+1)} offen lds")
        e(f"s_branch L_rp_n{r}")
        e.label(f"L_rp_wo{r}")
        e(f"s_sub_u32 {s(S_T+1)}, {s(S_T+1)}, 48")
        e(f"s_mul_i32 {s(S_T+1)}, {s(S_T+1)}, {32*1280}"); e(f"s_add_u32 {s(S_T+1)}, {s(S_T+1)}, {s(S_T+2)}")
        for b in range(5):
            e(f"s_mov_b32 m0, {LDS_RP + r*5120 + b*1024}"); e("s_nop 0")
            e(f"buffer_load_dwordx4 {v(40 + b)}, s[48:51], {s(S_T+1)} offen lds")
        e.label(f"L_rp_n{r}")
    e.label("L_rp_i_done")

def repack_finish(e):
    e("s_waitcnt vmcnt(0)")
    for r in range(3):
        R = 64 + 20*r
        e(f"s_add_u32 {s(S_T)}, s2, {256*r}")
        if r == 2:
            e(f"s_cmp_ge_u32 {s(S_T)}, 544"); e("s_cbranch_scc1 L_rp_f_done")
        for ct in range(5):
            for part in range(2):
                e(f"ds_read_b64_tr_b16 {v(R + 4*ct + 2*part, 2)}, v45 offset:{r*5120 + ct*32 + part*2560}")
        e(f"s_mul_i32 {s(S_T)}, {s(S_T)}, 5120"); e(f"s_add_u32 {s(S_T)}, {s(S_T)}, {WS_WF}")
        e(f"s_add_u32 {s(S_T+1)}, {s(S_T)}, 4096")
        for ct in range(5):
            e(f"s_waitcnt lgkmcnt({2*(4-ct)})")
            if ct < 4: e(f"buffer_store_dwordx4 {v(R + 4*ct,4)}, v46, {s(S_WS,4)}, {s(S_T)} offen offset:{ct*1024}{SM()}")
            else: e(f"buffer_store_dwordx4 {v(R + 4*ct,4)}, v46, {s(S_WS,4)}, {s(S_T+1)} offen{SM()}")
    e.label("L_rp_f_done")

def helper1(e, opts):
    touch = OPTS.get("touch", 1)
    if OPTS.get("codepf"):
        e("s_getpc_b64 s[90:91]")
        e.label("L_pc_here")
        e(f"s_sub_u32 s90, s90, L_pc_here-k1_kernel"); e("s_subb_u32 s91, s91, 0")
        e(f"v_lshlrev_b32 v30, 7, {v(V_LANE)}")
        for k in range(OPTS.get("codepf")):
            e(f"global_load_dword v31, v30, s[90:91]")
            e(f"v_add_u32 v30, 8192, v30")
    e("s_load_dwordx2 s[44:45], s[0:1], 48")
    e("s_load_dwordx2 s[48:49], s[0:1], 16")
    if touch:
        e(f"s_and_b32 {s(S_T+1)}, {s(S_RB)}, 3")
        e(f"v_and_b32 v20, 31, {v(V_LANE)}")
        e(f"v_lshlrev_b32 v21, 2, v20"); e(f"v_add_u32 v21, {s(S_T+1)}, v21"); e(f"v_mul_lo_u32 v21, v21, {s(S_BSTR)}")
        e(f"v_lshrrev_b32 v22, 5, {v(V_LANE)}"); e(f"v_lshlrev_b32 v22, 7, v22"); e(f"v_add_u32 v21, v21, v22")
        e(f"s_and_b32 {s(S_T+1)}, {s(S_CG)}, 7"); e(f"s_lshl_b32 {s(S_T+1)}, {s(S_T+1)}, 5")
        e(f"s_lshl_b32 {s(S_T+2)}, {s(S_RB)}, 8"); e(f"s_add_u32 {s(S_T+1)}, {s(S_T+1)}, {s(S_T+2)}")
        e(f"v_add_u32 v20, {s(S_T+1)}, v20"); e(f"v_mul_u32_u24 v20, 1280, v20"); e(f"v_add_u32 v20, v20, v22")
        e(f"s_lshl_b32 s54, {s(S_BSTR)}, 7")
        e(f"s_add_u32 {s(S_CB0)}, {s(S_CB0)}, s54"); e(f"s_add_u32 {s(S_CB1)}, {s(S_CB1)}, s54"); e(f"s_mov_b32 s52, 256")
    def trip():
        if not touch: return
        e(f"buffer_load_dword v24, v21, {s(S_B0,4)}, {s(S_CB0)} offen")
        e(f"buffer_load_dword v25, v21, {s(S_B1,4)}, {s(S_CB1)} offen")
        e(f"buffer_load_dword v26, v20, {s(S_X,4)}, s52 offen")
        e(f"s_add_u32 {s(S_CB0)}, {s(S_CB0)}, s54"); e(f"s_add_u32 {s(S_CB1)}, {s(S_CB1)}, s54"); e("s_add_u32 s52, s52, 256")
    tj = OPTS.get("tj", "s,0,2,4")
    tj = [x for x in str(tj).replace("x", ",").split(",")]
    if OPTS.get("tdelay"): e(f"s_sleep {OPTS.get('tdelay')}")
    for x in tj:
        if x == "s": trip()
    if not OPTS.get("norepack"): repack_setup(e)
    e("s_waitcnt lgkmcnt(0)")
    e("s_mov_b32 s46, 1966080"); e("s_mov_b32 s47, 0x20000")
    e("s_mov_b32 s50, 819200"); e("s_mov_b32 s51, 0x20000")
    e(f"s_cmp_eq_u32 {s(S_TYPE)}, 1"); e(f"s_cbranch_scc0 L_nozero")
    e(f"s_cmp_eq_u32 {s(S_RB)}, 0"); e(f"s_cbranch_scc0 L_nozero")
    for r in range(28, 32): e(f"v_mov_b32 {v(r)}, 0")
    e(f"s_mul_i32 {s(S_T)}, {s(S_SUB)}, 6720")
    e(f"s_add_u32 {s(S_T)}, {s(S_T)}, {WS_KV}")
    e(f"s_add_u32 {s(S_T2)}, {s(S_T)}, 4096")
    e(f"v_lshlrev_b32 v11, 4, {v(V_LANE)}")
    for k in range(7):
        if k == 6:
            e(f"v_cmp_gt_u32 vcc, 36, {v(V_LANE)}")
            e(f"s_and_saveexec_b64 {s(S_EXS,2)}, vcc")
        sreg = S_T if k < 4 else S_T2
        e(f"buffer_store_dwordx4 v[28:31], v11, {s(S_WS,4)}, {s(sreg)} offen offset:{(k % 4)*1024} sc1")
        if k == 6:
            e(f"s_mov_b64 exec, {s(S_EXS,2)}")
    e.label("L_nozero")
    for j in range(11):
        hbar(e, j)
        for x in tj:
            if x == str(j): trip()
        if j == OPTS.get("sigj", 6):
            e(f"s_cmp_eq_u32 {s(S_TYPE)}, 1"); e(f"s_cbranch_scc0 L_h1_nosig")
            e(f"s_cmp_eq_u32 {s(S_RB)}, 0"); e(f"s_cbranch_scc0 L_h1_nosig")
            e("s_waitcnt vmcnt(0)")
            e(f"s_lshl_b32 {s(S_T)}, {s(S_SUB)}, 2")
            e(f"v_mov_b32 v11, {s(S_T)}"); e(f"v_mov_b32 v12, 1")
            lane0(e); e(f"global_store_dword v11, v12, {s(S_DBG,2)} offset:{DBG_FLAG} sc1"); lane0(e, False)
            e.label("L_h1_nosig")
        if j == 8 and not OPTS.get("norepack"): repack_issue(e)
        if j == 9:
            e(f"s_cmp_eq_u32 {s(S_TYPE)}, 1"); e(f"s_cbranch_scc0 L_h1_np")
            e(f"s_lshl_b32 {s(S_T)}, {s(S_SUB)}, 2")
            e(f"v_mov_b32 v11, {s(S_T)}")
            e(f"global_load_dword {v(P_POLL)}, v11, {s(S_DBG,2)} offset:{DBG_FLAG} sc1")
            e.label("L_h1_np")
    if OPTS.get("hstamp"):
        e(f"s_lshl_b32 {s(S_T)}, s2, 3"); e(f"s_add_u32 {s(S_T)}, {s(S_T)}, 4"); e(f"s_lshl_b32 {s(S_T)}, {s(S_T)}, 8")
        e(f"s_add_u32 {s(S_T)}, {s(S_T)}, {WS_STAMP + 0x100000}")
        e(f"v_lshlrev_b32 v14, 2, {v(V_LANE)}")
        e(f"buffer_store_dword v62, v14, {s(S_WS,4)}, {s(S_T)} offen")
    e("s_barrier")
    if not OPTS.get("norepack"): repack_finish(e)
    e(f"s_cmp_eq_u32 {s(S_TYPE)}, 1")
    e(f"s_cbranch_scc0 L_h1_end")
    e("s_waitcnt vmcnt(0)")
    e(f"s_lshl_b32 {s(S_T)}, {s(S_SUB)}, 2")
    e(f"v_mov_b32 v11, {s(S_T)}")
    e.label("L_poll_flag")
    e(f"v_readfirstlane_b32 {s(S_T)}, {v(P_POLL)}")
    e("s_nop 3")
    e(f"s_cmp_eq_u32 {s(S_T)}, 0")
    e(f"s_cbranch_scc0 L_kv_final")
    e("s_sleep 2")
    e(f"global_load_dword {v(P_POLL)}, v11, {s(S_DBG,2)} offset:{DBG_FLAG} sc1")
    e("s_waitcnt vmcnt(0)")
    e("s_branch L_poll_flag")
    e.label("L_h1_end")
    e("s_endpgm")

def ep_load_swapped(e):
    e(f"s_lshl_b32 {s(S_T)}, {s(S_WAVE)}, 9")
    e(f"v_lshlrev_b32 v11, 3, {v(V_I)}")
    e(f"v_add_u32 v11, {s(S_T)}, v11")
    e(f"v_add_u32 v11, {LDS_STATS}, v11")
    for mt in range(4):
        e(f"ds_read_b64 {v(16 + 2*mt, 2)}, v11 offset:{mt*128}")
    e(f"v_lshlrev_b32 v12, 4, {v(V_G)}")
    e(f"v_add_u32 v12, {LDS_CS}, v12")
    for ct in range(10):
        e(f"ds_read_b128 {v(32 + 4*ct, 4)}, v12 offset:{ct*64}")
    e("s_waitcnt lgkmcnt(0)")

def epilogue_gu(e):
    ep_load_swapped(e)
    for mt in range(4):
        e(f"v_mul_f32 {v(24 + 2*mt)}, {f32(-LOG2E)}, {v(17 + 2*mt)}")
        e(f"v_mul_f32 {v(25 + 2*mt)}, {v(17 + 2*mt)}, {v(17 + 2*mt)}")
    for mt in range(4):
        e(f"v_rcp_f32 {v(25 + 2*mt)}, {v(25 + 2*mt)}")
    e(f"v_lshlrev_b32 v11, 4, {v(V_LANE)}")
    e(f"s_mul_i32 {s(S_T)}, {s(S_WAVE)}, {4*48*1024}")
    e(f"v_add_u32 v11, {s(S_T)}, v11")
    e(f"s_mul_i32 {s(S_T)}, {s(S_RB)}, {16*48*1024}")
    e(f"s_add_u32 {s(S_T)}, {s(S_T)}, {WS_H}")
    e(f"s_mul_i32 {s(S_T+1)}, {s(S_SUB)}, 5")
    e(f"s_add_u32 {s(S_T+2)}, {s(S_T+1)}, 1")
    e(f"s_lshr_b32 {s(S_T+2)}, {s(S_T+2)}, 1")
    e(f"s_lshl_b32 {s(S_T+2)}, {s(S_T+2)}, 10")
    e(f"s_add_u32 {s(S_T2)}, {s(S_T)}, {s(S_T+2)}")
    e(f"s_and_b32 {s(S_T3)}, {s(S_SUB)}, 1")
    e(f"s_cmp_eq_u32 {s(S_T3)}, 0")
    e(f"s_cselect_b32 {s(S_T3)}, 4, -1")
    e(f"s_add_u32 {s(S_T+1)}, {s(S_T+1)}, {s(S_T3)}")
    e(f"s_lshr_b32 {s(S_T+1)}, {s(S_T+1)}, 1")
    e(f"s_lshl_b32 {s(S_T+1)}, {s(S_T+1)}, 10")
    e(f"s_add_u32 {s(S_T3)}, {s(S_T)}, {s(S_T+1)}")
    e(f"s_and_b32 {s(S_T+1)}, {s(S_SUB)}, 1")
    e(f"s_lshl_b32 {s(S_T+1)}, {s(S_T+1)}, 3")
    e(f"s_add_u32 {s(S_T3)}, {s(S_T3)}, {s(S_T+1)}")
    T = 72
    for mt in range(4):
        e.label(f"L_gu_b{mt}")
        MR = 16 + 2*mt; CI = 24 + 2*mt
        items = [(ct, hh) for ct in range(5) for hh in range(2)]
        for (ct, hh) in items:
            G = acc(mt, ct) + 2*hh; U = acc(mt, ct + 5) + 2*hh
            e(f"v_pk_fma_f32 {v(G,2)}, {v(32 + 4*ct + 2*hh,2)}, {v(MR,2)}, {v(G,2)} op_sel_hi:[1,0,1] neg_lo:[0,1,0] neg_hi:[0,1,0]")
            e(f"v_pk_fma_f32 {v(U,2)}, {v(32 + 4*(ct+5) + 2*hh,2)}, {v(MR,2)}, {v(U,2)} op_sel_hi:[1,0,1] neg_lo:[0,1,0] neg_hi:[0,1,0]")
        for k, (ct, hh) in enumerate(items):
            G = acc(mt, ct) + 2*hh
            e(f"v_pk_mul_f32 {v(T + 2*k,2)}, {v(G,2)}, {v(CI,2)} op_sel_hi:[1,0]")
        for k in range(10):
            e(f"v_exp_f32 {v(T + 2*k)}, {v(T + 2*k)}"); e(f"v_exp_f32 {v(T + 2*k + 1)}, {v(T + 2*k + 1)}")
        for k, (ct, hh) in enumerate(items):
            G = acc(mt, ct) + 2*hh; U = acc(mt, ct + 5) + 2*hh
            e(f"v_pk_mul_f32 {v(U,2)}, {v(G,2)}, {v(U,2)}")
        for k in range(10):
            e(f"v_pk_fma_f32 {v(T + 2*k,2)}, {v(T + 2*k,2)}, {v(CI,2)}, {v(CI,2)} op_sel:[0,1,1] op_sel_hi:[1,1,1]")
        for k in range(10):
            e(f"v_rcp_f32 {v(T + 2*k)}, {v(T + 2*k)}"); e(f"v_rcp_f32 {v(T + 2*k + 1)}, {v(T + 2*k + 1)}")
        e("s_nop 0")
        for k, (ct, hh) in enumerate(items):
            U = acc(mt, ct + 5) + 2*hh
            e(f"v_pk_mul_f32 {v(U,2)}, {v(U,2)}, {v(T + 2*k,2)}")
        for pp in range(2):
            O = acc(mt, 2*pp)
            for tt in range(2):
                U = acc(mt, 2*pp + tt + 5)
                e(f"v_cvt_pk_bf16_f32 {v(O + 2*tt)}, {v(U)}, {v(U+1)}")
                e(f"v_cvt_pk_bf16_f32 {v(O + 2*tt + 1)}, {v(U+2)}, {v(U+3)}")
        O = acc(mt, 4); U = acc(mt, 9)
        e(f"v_cvt_pk_bf16_f32 {v(O)}, {v(U)}, {v(U+1)}")
        e(f"v_cvt_pk_bf16_f32 {v(O+1)}, {v(U+2)}, {v(U+3)}")
        e("s_cbranch_execz L_dry_ret")
        if mt > 0:
            e(f"v_add_u32 v11, {48*1024}, v11")
        e(f"s_cmp_eq_u32 {s(S_SUB)}, 19")
        e(f"s_cbranch_scc1 L_gu_skip{mt}")
        e(f"buffer_store_dwordx4 {v(acc(mt,0),4)}, v11, {s(S_WS,4)}, {s(S_T2)} offen{SM()}")
        e(f"buffer_store_dwordx4 {v(acc(mt,2),4)}, v11, {s(S_WS,4)}, {s(S_T2)} offen offset:1024{SM()}")
        e.label(f"L_gu_skip{mt}")
        e(f"buffer_store_dwordx2 {v(acc(mt,4),2)}, v11, {s(S_WS,4)}, {s(S_T3)} offen{SM()}")
        e("s_nop 1")
    stamp(e, 5)
    if STAMP:
        e("s_waitcnt vmcnt(0)"); stamp(e, 6); stamp_flush(e, 7)
    e("s_endpgm")

def epilogue_q(e):
    ep_load_swapped(e)
    e(f"v_lshlrev_b32 v11, 4, {v(V_LANE)}")
    e(f"s_mul_i32 {s(S_T)}, {s(S_WAVE)}, {4*20*1024}")
    e(f"v_add_u32 v11, {s(S_T)}, v11")
    e(f"s_mul_i32 {s(S_T)}, {s(S_RB)}, {16*20*1024}")
    e(f"s_mul_i32 {s(S_T+1)}, {s(S_SUB)}, {5*1024}")
    e(f"s_add_u32 {s(S_T2)}, {s(S_T)}, {s(S_T+1)}")
    e(f"s_add_u32 {s(S_T2)}, {s(S_T2)}, {WS_PQ}")
    e(f"s_add_u32 {s(S_T3)}, {s(S_T2)}, 4096")
    T = 72
    for mt in range(4):
        e.label(f"L_q_b{mt}")
        MR = 16 + 2*mt
        for grp in range(2):
            items = [(ct, hh) for ct in range(grp*5, grp*5 + 5) for hh in range(2)]
            for (ct, hh) in items:
                A = acc(mt, ct) + 2*hh
                e(f"v_pk_fma_f32 {v(A,2)}, {v(32 + 4*ct + 2*hh,2)}, {v(MR,2)}, {v(A,2)} op_sel_hi:[1,0,1] neg_lo:[0,1,0] neg_hi:[0,1,0]")
            for (ct, hh) in items:
                A = acc(mt, ct) + 2*hh
                e(f"v_pk_fma_f32 {v(A,2)}, {v(A,2)}, {v(MR,2)}, {s(S_EPS6,2)} op_sel:[0,1,0] op_sel_hi:[1,1,1]")
            for k, (ct, hh) in enumerate(items):
                A = acc(mt, ct) + 2*hh
                e(f"v_pk_mul_f32 {v(T + 2*k,2)}, {v(A,2)}, {s(S_L2E,2)}")
            for k in range(10):
                e(f"v_exp_f32_e64 {v(T + 2*k)}, {v(T + 2*k)} clamp"); e(f"v_exp_f32_e64 {v(T + 2*k + 1)}, {v(T + 2*k + 1)} clamp")
            for (ct, hh) in items:
                A = acc(mt, ct) + 2*hh
                e(f"v_max_f32 {v(A)}, {s(S_EPS6)}, {v(A)}"); e(f"v_max_f32 {v(A+1)}, {s(S_EPS6)}, {v(A+1)}")
            for k, (ct, hh) in enumerate(items):
                A = acc(mt, ct) + 2*hh
                e(f"v_pk_add_f32 {v(A,2)}, {v(A,2)}, {v(T + 2*k,2)}")
        for pp in range(5):
            O = acc(mt, 2*pp); A0 = acc(mt, 2*pp); A1 = acc(mt, 2*pp + 1)
            e(f"v_cvt_pk_bf16_f32 {v(O)}, {v(A0)}, {v(A0+1)}")
            e(f"v_cvt_pk_bf16_f32 {v(O+1)}, {v(A0+2)}, {v(A0+3)}")
            e(f"v_cvt_pk_bf16_f32 {v(O+2)}, {v(A1)}, {v(A1+1)}")
            e(f"v_cvt_pk_bf16_f32 {v(O+3)}, {v(A1+2)}, {v(A1+3)}")
        e("s_cbranch_execz L_dry_ret")
        if mt > 0:
            e(f"v_add_u32 v11, {20*1024}, v11")
        for pp in range(5):
            if pp < 4:
                e(f"buffer_store_dwordx4 {v(acc(mt,2*pp),4)}, v11, {s(S_WS,4)}, {s(S_T2)} offen offset:{pp*1024}{SM()}")
            else:
                e(f"buffer_store_dwordx4 {v(acc(mt,2*pp),4)}, v11, {s(S_WS,4)}, {s(S_T3)} offen{SM()}")
        e("s_nop 1")
    stamp(e, 5)
    if STAMP:
        e("s_waitcnt vmcnt(0)"); stamp(e, 6); stamp_flush(e, 7)
    e("s_endpgm")

KV_TILES = [(0,0),(0,1),(1,0),(1,1),(1,2),(2,1),(2,2),(2,3),(3,2),(3,3),(3,4),(4,3),(4,4)]

def epilogue_kv(e):
    MV = 16; RV = 32; CS = 48; T = 60
    e(f"s_lshl_b32 {s(S_T)}, {s(S_WAVE)}, 8")
    e(f"v_lshlrev_b32 v11, 4, {v(V_G)}")
    e(f"v_add_u32 v11, {s(S_T)}, v11")
    e(f"v_add_u32 v11, {LDS_STATS}, v11")
    e(f"v_lshlrev_b32 v12, 2, {v(V_I)}")
    e(f"v_add_u32 v12, {LDS_CS}, v12")
    e(f"ds_read_b128 {v(MV, 4)}, v11"); e(f"ds_read_b128 {v(RV, 4)}, v11 offset:1024")
    for ct in range(10):
        e(f"ds_read_b32 {v(CS + ct)}, v12 offset:{ct*64}")
    e("s_waitcnt lgkmcnt(6)")
    for mt in range(1, 4):
        e(f"ds_read_b128 {v(MV + 4*mt, 4)}, v11 offset:{mt*64}")
        e(f"ds_read_b128 {v(RV + 4*mt, 4)}, v11 offset:{1024 + mt*64}")
    e("s_waitcnt lgkmcnt(6)")
    def cs_mod(ct):
        if ct % 2 == 0: return v(CS + ct, 2), 0, 0
        return v(CS + ct - 1, 2), 1, 1
    DQ = [acc(1, n) for n in range(10)] + [80, 84, 88] + [acc(3, td) for td in range(5)]
    def kv_mfma(n, kk):
        te, td = KV_TILES[n]
        c = "0" if kk == 0 else v(DQ[n], 4)
        return f"v_mfma_f32_16x16x32_bf16 {v(DQ[n],4)}, {v(acc(2*kk, 5 + te),4)}, {v(acc(2*kk, td),4)}, {c}"
    for mt in range(4):
        e.label(f"L_kv_b{mt}")
        if mt == 1: e("s_waitcnt lgkmcnt(0)")
        kk, odd = divmod(mt, 2)
        items = [(ct, hh) for ct in range(5) for hh in range(2)]
        allit = [(ct, hh) for ct in range(10) for hh in range(2)]
        L = []
        for (ct, hh) in allit:
            A = acc(mt, ct) + 2*hh
            c, o, oh = cs_mod(ct)
            L.append(f"v_pk_fma_f32 {v(A,2)}, {v(MV + 4*mt + 2*hh,2)}, {c}, {v(A,2)} op_sel:[0,{o},0] op_sel_hi:[1,{oh},1] neg_lo:[0,1,0] neg_hi:[0,1,0]")
        for (ct, hh) in items:
            A = acc(mt, ct) + 2*hh
            L.append(f"v_pk_fma_f32 {v(A,2)}, {v(A,2)}, {v(RV + 4*mt + 2*hh,2)}, {s(S_EPS6,2)}")
        for (ct, hh) in items:
            A = acc(mt, ct + 5) + 2*hh
            L.append(f"v_pk_mul_f32 {v(A,2)}, {v(A,2)}, {v(RV + 4*mt + 2*hh,2)}")
        for k, (ct, hh) in enumerate(items):
            A = acc(mt, ct) + 2*hh
            L.append(f"v_pk_mul_f32 {v(T + 2*k,2)}, {v(A,2)}, {s(S_L2E,2)}")
        for k in range(10):
            L.append(f"v_exp_f32_e64 {v(T + 2*k)}, {v(T + 2*k)} clamp"); L.append(f"v_exp_f32_e64 {v(T + 2*k + 1)}, {v(T + 2*k + 1)} clamp")
        for (ct, hh) in items:
            A = acc(mt, ct) + 2*hh
            L.append(f"v_max_f32 {v(A)}, {s(S_EPS6)}, {v(A)}"); L.append(f"v_max_f32 {v(A+1)}, {s(S_EPS6)}, {v(A+1)}")
        for k, (ct, hh) in enumerate(items):
            A = acc(mt, ct) + 2*hh
            L.append(f"v_pk_add_f32 {v(A,2)}, {v(A,2)}, {v(T + 2*k,2)}")
        for ct in range(10):
            A = acc(mt, ct); O = acc(2*kk, ct) + 2*odd
            L.append(f"v_cvt_pk_bf16_f32 {v(O)}, {v(A)}, {v(A+1)}")
            L.append(f"v_cvt_pk_bf16_f32 {v(O+1)}, {v(A+2)}, {v(A+3)}")
        if mt == 2 and not OPTS.get("kvnoil"):
            M = [kv_mfma(n, 0) for n in range(13)]
            lo = 50
            out = L[:lo]; rest = L[lo:lo + 40]
            for k, ins in enumerate(rest):
                out.append(ins)
                if k % 3 == 2 and M: out.append(M.pop(0))
            out += M + L[lo + 40:]
            L = out
        for ins in L: e(ins)
        if mt < 3: e("s_cbranch_execz L_dry_ret")
    if OPTS.get("kvstamp"): stamp(e, 1)
    e("s_nop 1")
    if OPTS.get("kvnoil"):
        for n in range(13): e(kv_mfma(n, 0))
    for td in range(5):
        e(f"v_mfma_f32_16x16x32_bf16 {v(DQ[13 + td],4)}, {v(V_ONES,4)}, {v(acc(0, td),4)}, 0")
    for n in range(13): e(kv_mfma(n, 1))
    for td in range(5):
        e(f"v_mfma_f32_16x16x32_bf16 {v(DQ[13 + td],4)}, {v(V_ONES,4)}, {v(acc(2, td),4)}, {v(DQ[13 + td],4)}")
    e(f"s_mul_i32 {s(S_T)}, {s(S_WAVE)}, {18*1024}")
    e(f"v_lshlrev_b32 v11, 4, {v(V_LANE)}")
    e(f"v_add_u32 v11, {s(S_T)}, v11")
    e(f"v_add_u32 v11, {LDS_KVS}, v11")
    e("s_cbranch_execz L_dry_ret")
    e("s_nop 2")
    for nn in range(18):
        if nn == 13: e("s_nop 3")
        e(f"ds_write_b128 v11, {v(DQ[nn],4)} offset:{nn*1024}")
        if nn == 11: e("s_waitcnt lgkmcnt(4)")

def kv_addr(e, dst, tag):
    TE = 0; TD = 0
    for n, (te, td) in enumerate(KV_TILES):
        TE |= te << (4*n); TD |= td << (4*n)
    e(f"s_cmp_ge_u32 {s(S_CNT)}, 13"); e(f"s_cbranch_scc1 L_kva_z{tag}")
    e(f"s_lshl_b32 {s(S_T)}, {s(S_CNT)}, 2")
    e(f"s_mov_b32 s68, {TE & 0xffffffff}"); e(f"s_mov_b32 s69, {TE >> 32}")
    e(f"s_lshr_b64 s[68:69], s[68:69], {s(S_T)}"); e(f"s_and_b32 {s(S_T+1)}, s68, 15")
    e(f"s_mov_b32 s68, {TD & 0xffffffff}"); e(f"s_mov_b32 s69, {TD >> 32}")
    e(f"s_lshr_b64 s[68:69], s[68:69], {s(S_T)}"); e(f"s_and_b32 {s(S_T+2)}, s68, 15")
    e(f"s_lshl_b32 {s(S_T+1)}, {s(S_T+1)}, 2"); e(f"s_lshl_b32 {s(S_T+2)}, {s(S_T+2)}, 4")
    e(f"v_add_u32 v11, {s(S_T+1)}, {v(V_G)}")
    e(f"v_mul_u32_u24 v12, 52, v11"); e(f"v_lshrrev_b32 v12, 8, v12")
    e(f"v_lshlrev_b32 v11, 2, v11"); e(f"v_sub_u32 v11, v11, v12"); e(f"v_mul_u32_u24 v11, 80, v11")
    e(f"v_add_u32 v13, {s(S_T+2)}, {v(V_I)}")
    e(f"v_mul_u32_u24 v14, 205, v13"); e(f"v_lshrrev_b32 v14, 12, v14")
    e(f"v_cmp_eq_u32 vcc, v12, v14")
    e(f"v_lshlrev_b32 v13, 2, v13")
    e(f"v_add_u32 v11, v11, v13")
    e(f"v_mov_b32 v12, 0x7ffffff0")
    e(f"v_cndmask_b32 {v(dst)}, v12, v11, vcc")
    e(f"s_branch L_kva_d{tag}")
    e.label(f"L_kva_z{tag}")
    e(f"s_sub_u32 {s(S_T)}, {s(S_CNT)}, 13"); e(f"s_lshl_b32 {s(S_T)}, {s(S_T)}, 6")
    e(f"v_lshlrev_b32 v11, 2, {v(V_I)}")
    e(f"v_add_u32 v11, {s(S_T)}, v11")
    e(f"v_add_u32 v11, 6400, v11")
    e(f"v_cmp_eq_u32 vcc, 0, {v(V_G)}")
    e(f"v_mov_b32 v12, 0x7ffffff0")
    e("s_nop 0")
    e(f"v_cndmask_b32 {v(dst)}, v12, v11, vcc")
    e.label(f"L_kva_d{tag}")

def kv_final(e):
    if OPTS.get("kvstamp"): stamp(e, 2)
    e.label("L_kv_final")
    e("v_mov_b32 v42, 0x7ffffff0")
    for k in range(3):
        e(f"s_add_u32 {s(S_CNT)}, {s(S_WAVE)}, {8*k}")
        if k == 2:
            e(f"s_cmp_lt_u32 {s(S_CNT)}, 18"); e("s_cbranch_scc0 L_kva_skip")
        kv_addr(e, 40 + k, str(k))
    e.label("L_kva_skip")
    e(f"s_mul_i32 {s(S_T4)}, {s(S_SUB)}, 6720")
    e(f"s_add_u32 {s(S_T4)}, {s(S_T4)}, {WS_KV}")
    e(f"s_lshl_b32 {s(S_T)}, {s(S_WAVE)}, 10")
    e(f"v_lshlrev_b32 v16, 4, {v(V_LANE)}")
    e(f"v_add_u32 v16, {s(S_T)}, v16")
    e(f"v_add_u32 v16, {LDS_KVS}, v16")
    e(f"v_add_u32 v17, {2*18*1024}, v16")
    e("s_waitcnt lgkmcnt(0)")
    e("s_barrier")
    if OPTS.get("kvstamp"): stamp(e, 3)
    def rd(k):
        for w in range(4):
            e(f"ds_read_b128 {v(44 + 16*k + 4*w,4)}, {'v16' if w < 2 else 'v17'} offset:{(w % 2)*18*1024 + k*8192}")
    def summ(k, nreg):
        B = 44 + 16*k
        if nreg == 4:
            for h in range(2):
                e(f"v_add_f32 {v(B+2*h)}, {v(B+2*h)}, {v(B+4+2*h)}"); e(f"v_add_f32 {v(B+2*h+1)}, {v(B+2*h+1)}, {v(B+5+2*h)}")
                e(f"v_add_f32 {v(B+8+2*h)}, {v(B+8+2*h)}, {v(B+12+2*h)}"); e(f"v_add_f32 {v(B+9+2*h)}, {v(B+9+2*h)}, {v(B+13+2*h)}")
            for r in range(4): e(f"v_add_f32 {v(B+r)}, {v(B+r)}, {v(B+8+r)}")
            for r in range(4):
                e(f"buffer_atomic_add_f32 {v(B + r)}, {v(40 + k)}, {s(S_WS,4)}, {s(S_T4)} offen offset:{80*r}")
        else:
            e(f"v_add_f32 {v(B)}, {v(B)}, {v(B+4)}"); e(f"v_add_f32 {v(B+8)}, {v(B+8)}, {v(B+12)}"); e(f"v_add_f32 {v(B)}, {v(B)}, {v(B+8)}")
            e(f"buffer_atomic_add_f32 {v(B)}, {v(40 + k)}, {s(S_WS,4)}, {s(S_T4)} offen")
    rd(0); rd(1)
    e(f"s_cmp_lt_u32 {s(S_WAVE)}, 2"); e("s_cbranch_scc0 L_kvf_no2")
    rd(2)
    e.label("L_kvf_no2")
    e("s_waitcnt lgkmcnt(0)")
    summ(0, 4)
    e(f"s_cmp_lt_u32 {s(S_WAVE)}, 5"); e("s_cbranch_scc0 L_kvf_z1")
    summ(1, 4)
    e("s_branch L_kvf_t2")
    e.label("L_kvf_z1")
    summ(1, 1)
    e.label("L_kvf_t2")
    e(f"s_cmp_lt_u32 {s(S_WAVE)}, 2"); e("s_cbranch_scc0 L_k1_end2")
    summ(2, 1)
    e.label("L_k1_end2")
    if STAMP:
        stamp(e, 5)
        e("s_waitcnt vmcnt(0)"); stamp(e, 6); stamp_flush(e, 7)
    e.label("L_k1_end")
    e("s_endpgm")

def gen_k1(e, opts=None):
    opts = opts or {}
    global STAMP
    STAMP = opts.get("stamp", False)
    OPTS.clear(); OPTS.update(opts)
    e.raw(".globl k1_kernel"); e.raw(".p2align 8"); e.raw(".type k1_kernel,@function"); e.label("k1_kernel")
    setup_pre(e)
    e(f"s_cmp_lt_u32 {s(S_WAVE)}, 4"); e("s_cbranch_scc1 L_consumers")
    e(f"s_cmp_ge_u32 {s(S_WAVE)}, 6"); e("s_cbranch_scc1 L_helpers")
    dma_wave(e)
    e.label("L_helpers")
    if OPTS.get("hprio", 3): e(f"s_setprio {OPTS.get('hprio', 3)}")
    setup_post(e)
    e(f"s_cmp_eq_u32 {s(S_WAVE)}, 7"); e("s_cbranch_scc1 L_prod3")
    helper0(e, opts)
    e.label("L_prod3"); helper1(e, opts)
    e.label("L_consumers")
    consumer_setup(e)
    e(f"s_mov_b32 {s(S_EPS6)}, {f32(1e-6)}"); e(f"s_mov_b32 {s(S_EPS6+1)}, {f32(1e-6)}")
    e(f"s_mov_b32 {s(S_L2E)}, {f32(LOG2E)}"); e(f"s_mov_b32 {s(S_L2E+1)}, {f32(LOG2E)}")
    setup_post(e)
    e(f"s_setprio {OPTS.get('cprio', 2)}")
    e(f"s_cmp_eq_u32 {s(S_TYPE)}, 1")
    e("s_cbranch_scc1 L_cons_kv")
    for w in range(4):
        if w < 3:
            e(f"s_cmp_eq_u32 {s(S_WAVE)}, {w}"); e(f"s_cbranch_scc0 L_sw_n{w}")
        consumer_loop(e, True, f"sw{w}", w)
        if w < 3:
            e("s_branch L_sw_done"); e.label(f"L_sw_n{w}")
    e.label("L_sw_done")
    e("s_barrier")
    stamp(e, 4)
    e(f"s_cmp_eq_u32 {s(S_TYPE)}, 0")
    e("s_cbranch_scc1 L_epi_q")
    epilogue_gu(e)
    e.label("L_epi_q")
    epilogue_q(e)
    e.label("L_cons_kv")
    for w in range(4):
        if w < 3:
            e(f"s_cmp_eq_u32 {s(S_WAVE)}, {w}"); e(f"s_cbranch_scc0 L_ns_n{w}")
        consumer_loop(e, False, f"ns{w}", w)
        if w < 3:
            e("s_branch L_ns_done"); e.label(f"L_ns_n{w}")
    e.label("L_ns_done")
    e("s_barrier")
    stamp(e, 4)
    epilogue_kv(e)
    kv_final(e)
```

```python
from asmlib import *
import k1
from k1 import WS_PQ, WS_H, WS_KV, WS_WF, WS_USED

LDS_WAVE = 20480
ZBASE = 13440
LDS_TOTAL = 8 * LDS_WAVE
OPTS = {}
BLOCK = 512
NVGPR = 256

S_X = 8; S_WS = 20; S_OUT = 24
S_RB = 28; S_CB = 29; S_W = 30; S_LB = 31
S_T = 32
S_BO = 40; S_HO = 41; S_WV = 42; S_PQO = 45; S_EPS = 46

V_LANE = 1; V_I = 2; V_G = 3
V_HV = 9
V_T = 12
V_ACC = 176
def acc(mt, ct): return V_ACC + (ct * 4 + mt) * 4
V_HVM = 16
V_W = 20
V_H = 64
NH = 6
def bufA(k, mt): return v(V_H + 16*k + 4*mt, 4)
def bufW(k, ct): return v(V_W + 20*k + 4*ct, 4)
V_ZA = 11
V_KVT = 20
V_HE = 128
V_PQ = 128
V_NUM = 176
V_DEN = 216
V_RC = 228
V_TMP = 240
A_PQ0 = 128
V_PQS = 4
V_TB = [128, 148, 20, 40, 60]
V_O = 80

NUM = [(0,0),(1,0),(1,1),(2,0),(2,1),(3,1),(3,2),(4,1),(4,2),(5,2),(5,3),(6,2),(6,3),(7,3),(7,4),(8,3),(8,4),(9,4)]
DEN = [(0,0),(0,1),(0,2),(1,1),(1,2),(1,3),(1,4),(2,3),(2,4)]

def stamp(e, idx):
    if OPTS.get("stamp"):
        e(f"s_memtime {s(70 + 2*idx, 2)}")
        e("s_waitcnt lgkmcnt(0)")

def capture(fn):
    t = Emit(); fn(t)
    chunks = []; cur = []
    for l in t.lines:
        cur.append(l.strip())
        op = l.split()[0]
        if op.startswith("buffer_") or op.startswith("ds_") or op.startswith("global_"):
            chunks.append(cur); cur = []
    if cur:
        if chunks: chunks[-1] += cur
        else: chunks.append(cur)
    return [c for c in chunks if c]

def mfma_step(e, wop, aop, extra=None, first=False, nomfma=False, noextra=False):
    extra = list(extra or []) if not noextra else []
    n = len(extra); xi = 0; idx = 0
    for ct in range(5):
        for mt in range(4):
            A = acc(mt, ct)
            c = "0" if first else v(A, 4)
            if not nomfma: e(f"v_mfma_f32_16x16x32_bf16 {v(A,4)}, {wop(ct)}, {aop(mt)}, {c}")
            idx += 1
            want = (idx * n + 19) // 20 if n else 0
            while xi < want:
                for ins in extra[xi]: e(ins)
                xi += 1
    assert xi == n

def f_load_b(e, j):
    if OPTS.get("fnob"): return
    for ct in range(5):
        e(f"s_add_u32 m0, {s(S_LB)}, {(j % 4)*5120 + ct*1024}")
        e(f"s_add_u32 {s(S_T)}, {s(S_BO)}, {ct*1024}")
        e(f"buffer_load_dwordx4 {v(V_HV)}, {s(S_WS,4)}, {s(S_T)} offen lds")
    e(f"s_add_u32 {s(S_BO)}, {s(S_BO)}, {8*5120}")

def f_load_h(e, k):
    if OPTS.get("fnoh"): return
    for mt in range(4):
        e(f"buffer_load_dwordx4 {bufA(k, mt)}, {v(V_HVM + mt)}, {s(S_WS,4)}, {s(S_HO)} offen")
    e(f"s_add_u32 {s(S_HO)}, {s(S_HO)}, 1024")

def f_read_w(e, k, j):
    if OPTS.get("fnow"): return
    for ct in range(5):
        e(f"ds_read_b128 {bufW(k, ct)}, {v(V_T+2)} offset:{(j % 4)*5120 + ct*1024}")

def f_wave(e):
    for mt in range(4):
        e(f"v_add_u32 {v(V_HVM + mt)}, {mt*48*1024}, {v(V_HV)}")
    NF = OPTS.get("nf", 9)
    e(f"s_mul_i32 {s(S_BO)}, {s(S_W)}, {NF*8*5120}"); e(f"s_mul_i32 {s(S_T)}, {s(S_CB)}, 5120"); e(f"s_add_u32 {s(S_BO)}, {s(S_BO)}, {s(S_T)}")
    e(f"s_add_u32 {s(S_BO)}, {s(S_BO)}, {WS_WF}")
    e(f"s_mul_i32 {s(S_HO)}, {s(S_RB)}, {4*48*1024}"); e(f"s_mul_i32 {s(S_T)}, {s(S_W)}, {NF*1024}")
    e(f"s_add_u32 {s(S_HO)}, {s(S_HO)}, {s(S_T)}"); e(f"s_add_u32 {s(S_HO)}, {s(S_HO)}, {WS_H}")
    e(f"v_add_u32 {v(V_T+2)}, {s(S_LB)}, {v(V_HV)}")
    post_args(e)
    if OPTS.get("fdelay"): e(f"s_sleep {OPTS.get('fdelay')}")
    q = Queue(e, "vmcnt", 63); lq = Queue(e, "lgkmcnt", 15)
    def qi(tag, n):
        for _ in range(n): q.issue(tag)
    items = [("b",0),("h",0),("b",1),("h",1),("b",2),("h",2),("b",3),("h",3),("h",4),("h",5)]
    npf = OPTS.get("npf", 10)
    for kind, t in items[:npf]:
        if kind == "b": f_load_b(e, t); qi(("b", t), 5)
        else: f_load_h(e, t); qi(("h", t), 4)
    late = items[npf:]
    stamp(e, 1)
    q.wait(("b", 0))
    f_read_w(e, 0, 0)
    for _ in range(5): lq.issue(("w", 0))
    for t in range(NF):
        ch = []; pv = []; pl = []
        if t + 1 < NF: q.wait(("b", t + 1))
        q.wait(("h", t))
        lq.wait(("w", t % 2))
        if t + 1 < NF:
            ch += capture(lambda t_: f_read_w(t_, (t + 1) % 2, t + 1)); pl += [("w", (t + 1) % 2)] * 5
        for _ in range(3):
            if late:
                kind, tt = late.pop(0)
                if kind == "b": ch += capture(lambda t_, tt=tt: f_load_b(t_, tt)); pv += [("b", tt)] * 5
                else: ch += capture(lambda t_, tt=tt: f_load_h(t_, tt)); pv += [("h", tt)] * 4
        if t + 4 < NF:
            ch += capture(lambda t_: f_load_b(t_, t + 4)); pv += [("b", t + 4)] * 5
        if t >= 1 and t - 1 + NH < NF:
            ch += capture(lambda t_: f_load_h(t_, (t - 1) % NH)); pv += [("h", t - 1 + NH)] * 4
        for x in pl: lq.issue(x)
        for x in pv: q.issue(x)
        mfma_step(e, lambda ct: bufW(t % 2, ct), lambda mt: bufA(t % NH, mt), extra=ch, first=(t == 0), nomfma=OPTS.get("fnomfma"))
        if t == 0: stamp(e, 2)
    stamp(e, 5)

def load_pq(e, set_):
    R = V_PQSET[set_]
    for p in range(5):
        if p < 4:
            e(f"buffer_load_dwordx4 {v(R + 4*p,4)}, {v(V_HV)}, {s(S_WS,4)}, {s(S_PQO)} offen offset:{p*1024}")
        else:
            e(f"s_add_u32 {s(S_T)}, {s(S_PQO)}, 4096")
            e(f"buffer_load_dwordx4 {v(R + 4*p,4)}, {v(V_HV)}, {s(S_WS,4)}, {s(S_T)} offen")
    e(f"s_add_u32 {s(S_PQO)}, {s(S_PQO)}, {20*1024}")

def load_kv(e):
    e(f"s_mul_i32 {s(S_T)}, {s(S_W)}, 13440"); e(f"s_add_u32 {s(S_T)}, {s(S_T)}, {WS_KV}")
    for k in range(14):
        if k == 13:
            e(f"v_cmp_gt_u32 vcc, 8, {v(V_LANE)}"); e(f"s_and_saveexec_b64 s[36:37], vcc")
        e(f"s_add_u32 m0, {s(S_LB)}, {k*1024}")
        e(f"s_add_u32 {s(S_T+2)}, {s(S_T)}, {k*1024}")
        e(f"buffer_load_dwordx4 {v(V_HV)}, {s(S_WS,4)}, {s(S_T+2)} offen lds")
        if k == 13: e("s_mov_b64 exec, s[36:37]")

def load_tb(e, j):
    R = V_TB[j]
    for ct in range(5):
        if ct < 4:
            e(f"buffer_load_dwordx4 {v(R + 4*ct,4)}, {v(V_HV)}, {s(S_WS,4)}, {s(S_BO)} offen offset:{ct*1024}")
        else:
            e(f"s_add_u32 {s(S_T)}, {s(S_BO)}, 4096")
            e(f"buffer_load_dwordx4 {v(R + 4*ct,4)}, {v(V_HV)}, {s(S_WS,4)}, {s(S_T)} offen")
    e(f"s_add_u32 {s(S_BO)}, {s(S_BO)}, {8*5120}")

V_PQSET = [176, 196]
V_NUM = 128
V_DEN = 216
V_RC = 228
V_TB = [20, 40, 60, 128, 148]

def precompute(e):
    for r in range(4): e(f"v_mov_b32 {v(V_TMP + r)}, 0")
    e(f"v_add_u32 {v(V_T)}, {s(S_LB)}, {v(V_HV)}")
    e(f"v_cmp_gt_u32 vcc, 44, {v(V_LANE)}"); e(f"s_and_saveexec_b64 s[36:37], vcc")
    e(f"ds_write_b128 {v(V_T)}, {v(V_TMP,4)} offset:{ZBASE}")
    e("s_mov_b64 exec, s[36:37]")
    e(f"v_lshlrev_b32 {v(V_T+3)}, 4, {v(V_G)}")
    for t in range(10):
        e(f"v_add_u32 {v(V_T)}, {16*t}, {v(V_I)}")
        e(f"v_mul_u32_u24 {v(V_HE + t)}, 205, {v(V_T)}"); e(f"v_lshrrev_b32 {v(V_HE + t)}, 12, {v(V_HE + t)}")
        e(f"v_sub_u32 {v(V_T)}, {v(V_T)}, {v(V_HE + t)}"); e(f"v_mul_u32_u24 {v(V_T)}, 80, {v(V_T)}")
        e(f"v_lshrrev_b32 {v(V_T+1)}, 2, {v(V_HE + t)}"); e(f"v_mul_u32_u24 {v(V_T+1)}, 320, {v(V_T+1)}")
        e(f"v_add3_u32 {v(V_T)}, {v(V_T)}, {v(V_T+1)}, {v(V_T+3)}")
        e(f"v_add_u32 {v(V_HE + 10 + t)}, {s(S_LB)}, {v(V_T)}")
    for wh in range(10):
        e(f"v_add_u32 {v(V_T)}, {4*wh}, {v(V_G)}")
        e(f"v_mul_u32_u24 {v(V_HE + 20 + wh)}, 52, {v(V_T)}"); e(f"v_lshrrev_b32 {v(V_HE + 20 + wh)}, 8, {v(V_HE + 20 + wh)}")
        e(f"v_lshrrev_b32 {v(V_T+1)}, 2, {v(V_HE + 20 + wh)}"); e(f"v_mul_u32_u24 {v(V_T+1)}, 6400, {v(V_T+1)}")
        e(f"v_add3_u32 {v(V_T+1)}, {v(V_T+1)}, {v(V_T+3)}, {s(S_LB)}")
        e(f"v_add_u32 {v(V_HE + 30 + wh)}, 6400, {v(V_T+1)}")
    for u in range(3):
        e(f"v_and_b32 {v(V_T)}, 3, {v(V_I)}"); e(f"v_lshlrev_b32 {v(V_T)}, 2, {v(V_T)}")
        e(f"v_lshrrev_b32 {v(V_T+1)}, 2, {v(V_I)}")
        e(f"v_add3_u32 {v(V_T)}, {v(V_T)}, {v(V_T+1)}, {16*u}")
        e(f"v_mul_u32_u24 {v(V_HE + 40 + u)}, 52, {v(V_T)}"); e(f"v_lshrrev_b32 {v(V_HE + 40 + u)}, 8, {v(V_HE + 40 + u)}")
    e(f"s_add_u32 {s(S_T)}, {s(S_LB)}, {ZBASE}")
    e(f"v_mov_b32 {v(V_ZA)}, {s(S_T)}")

def build_frags(e):
    lq = Queue(e, "lgkmcnt", 15)
    frs = [("n", t, w) for (t, w) in NUM] + [("d", u, w) for (u, w) in DEN]
    halves = []
    for fi, (kind, t, w) in enumerate(frs):
        for hf in range(2):
            wh = 2*w + hf
            hsrc = V_HE + t if kind == "n" else V_HE + 40 + t
            asrc = V_HE + 10 + t if kind == "n" else V_HE + 30 + wh
            halves.append((fi, hf, wh, hsrc, asrc))
    M = [48, 50, 52, 54]
    def cmp(hi):
        fi, hf, wh, hsrc, asrc = halves[hi]
        e(f"v_cmp_eq_u32 {s(M[hi % 4],2)}, {v(hsrc)}, {v(V_HE + 20 + wh)}")
    def rd(hi):
        fi, hf, wh, hsrc, asrc = halves[hi]
        tb = V_TMP + (fi % 2) * 8
        ad = V_T + (hi % 2)
        e(f"v_cndmask_b32 {v(ad)}, {v(V_ZA)}, {v(asrc)}, {s(M[hi % 4],2)}")
        e(f"ds_read_b128 {v(tb + 4*hf, 4)}, {v(ad)} offset:{64*wh}")
        lq.issue(("f", fi))
    def fin(fi):
        lq.wait(("f", fi))
        tb = V_TMP + (fi % 2) * 8
        R = V_KVT + 4*fi
        for k in range(4):
            e(f"v_cvt_pk_bf16_f32 {v(R + k)}, {v(tb + 2*k)}, {v(tb + 2*k + 1)}")
    n = len(halves)
    cmp(0); cmp(1); cmp(2)
    for hi in range(n):
        if hi + 3 < n: cmp(hi + 3)
        else: e("s_nop 0")
        rd(hi)
        fi, hf = halves[hi][0], halves[hi][1]
        if hf == 1 and fi >= 1: fin(fi - 1)
    fin(len(frs) - 1)

def o_block(e, b):
    PQ = V_PQSET[b % 2]
    den = {}
    for n_, (u, w) in enumerate(DEN): den.setdefault(u, []).append((18 + n_, w))
    num = {}
    for fi, (t, w) in enumerate(NUM): num.setdefault(t, []).append((fi, w))
    seq = []
    def D(u, k): fi, w = den[u][k]; return (V_DEN + 4*u, fi, w, k == 0)
    def N(t, k): fi, w = num[t][k]; return (V_NUM + 4*t, fi, w, k == 0)
    seq += [D(0,0), D(1,0), D(2,0), N(0,0), N(1,0), N(2,0), N(3,0)]
    seq += [D(0,1), D(1,1), D(2,1), N(4,0), N(5,0), N(6,0), N(7,0)]
    seq += [D(0,2), D(1,2), N(8,0), N(9,0), N(1,1), N(2,1), N(3,1)]
    seq += [D(1,3), N(4,1), N(5,1), N(6,1), N(7,1), N(8,1)]
    assert len(seq) == 27
    if OPTS.get("zeroc"):
        for r in list(range(V_NUM, V_NUM + 40)) + list(range(V_DEN, V_DEN + 12)): e(f"v_mov_b32 {v(r)}, 0")
        e("s_nop 1")
    for (dst, fi, w, first) in seq:
        c = "0" if (first and not OPTS.get("zeroc")) else v(dst, 4)
        e(f"v_mfma_f32_16x16x32_bf16 {v(dst,4)}, {v(V_KVT + 4*fi,4)}, {v(PQ + 4*w,4)}, {c}")
    if b < 2 and OPTS.get("pqearly", 1): pass
def o_rc(e):
    for t2 in range(10): e(f"v_add_f32 {v(V_RC + t2)}, {s(S_EPS)}, {v(V_DEN + 4*(t2 >> 2) + (t2 & 3))}")
    for t2 in range(10): e(f"v_rcp_f32 {v(V_RC + t2)}, {v(V_RC + t2)}")

def o_finish(e, b):
    n1 = OPTS.get("nop_pm", 0); n2 = OPTS.get("nop_dw", 0)
    for p in range(5):
        for t in (2*p, 2*p + 1):
            N = V_NUM + 4*t
            r = V_RC + t
            if r % 2 == 0: pr, o, oh = v(r,2), 0, 0
            else: pr, o, oh = v(r-1,2), 1, 1
            if OPTS.get("nopk", 1):
                for k in range(4): e(f"v_mul_f32 {v(N+k)}, {v(N+k)}, {v(r)}")
            else:
                e(f"v_pk_mul_f32 {v(N,2)}, {v(N,2)}, {pr} op_sel:[0,{o}] op_sel_hi:[1,{oh}]")
                e(f"v_pk_mul_f32 {v(N+2,2)}, {v(N+2,2)}, {pr} op_sel:[0,{o}] op_sel_hi:[1,{oh}]")
        if n1: e(f"s_nop {n1}")
        O = V_NUM + 8*p
        e(f"v_cvt_pk_bf16_f32 {v(O)}, {v(O)}, {v(O+1)}")
        e(f"v_cvt_pk_bf16_f32 {v(O+1)}, {v(O+2)}, {v(O+3)}")
        e(f"v_cvt_pk_bf16_f32 {v(O+2)}, {v(O+4)}, {v(O+5)}")
        e(f"v_cvt_pk_bf16_f32 {v(O+3)}, {v(O+6)}, {v(O+7)}")
        if n2: e(f"s_nop {n2}")
        e(f"ds_write_b128 {v(V_T+2)}, {v(O,4)} offset:{(b*5 + p)*1024}")

def a_wave(e):
    e(f"s_mul_i32 {s(S_PQO)}, {s(S_RB)}, {4*20*1024}"); e(f"s_mul_i32 {s(S_T)}, {s(S_W)}, {5*1024}")
    e(f"s_add_u32 {s(S_PQO)}, {s(S_PQO)}, {s(S_T)}"); e(f"s_add_u32 {s(S_PQO)}, {s(S_PQO)}, {WS_PQ}")
    e(f"s_mul_i32 {s(S_BO)}, {s(S_W)}, {5*8*5120}"); e(f"s_mul_i32 {s(S_T)}, {s(S_CB)}, 5120"); e(f"s_add_u32 {s(S_BO)}, {s(S_BO)}, {s(S_T)}")
    e(f"s_add_u32 {s(S_BO)}, {s(S_BO)}, {WS_WF + 48*8*5120}")
    post_args(e)
    q = Queue(e, "vmcnt", 63); lq = Queue(e, "lgkmcnt", 15)
    def qi(tag, n):
        for _ in range(n): q.issue(tag)
    load_kv(e); qi("kv", 14)
    load_pq(e, 0); qi(("pq", 0), 5)
    load_pq(e, 1); qi(("pq", 1), 5)
    stamp(e, 1)
    precompute(e)
    if OPTS.get("kvall", 1): q.drain()
    else: q.wait("kv")
    stamp(e, 2)
    e("s_waitcnt lgkmcnt(0)")
    build_frags(e)
    stamp(e, 3)
    e(f"s_mov_b32 {s(S_EPS)}, {f32(1e-6)}")
    e(f"v_add_u32 {v(V_T+2)}, {s(S_LB)}, {v(V_HV)}")
    for b in range(4):
        q.wait(("pq", b))
        o_block(e, b)
        if OPTS.get("drainA"):
            e("s_nop 7"); e(f"v_mov_b32 v5, {v(V_NUM + 4*8)}"); e(f"v_mov_b32 v5, {v(V_NUM + 4*7)}")
        if b < 2:
            load_pq(e, b % 2); qi(("pq", b + 2), 5)
        if b == 3:
            for j in range(3):
                load_tb(e, j); qi(("tb", j), 5)
        e("s_nop 7")
        if OPTS.get("longnop"):
            for _ in range(OPTS.get("longnop")): e("s_nop 15")
        o_rc(e)
        e("s_nop 1")
        o_finish(e, b)
    stamp(e, 4)
    e("s_nop 1")
    if OPTS.get("fixa"): e("s_waitcnt lgkmcnt(0)")
    for j in range(3, 5):
        load_tb(e, j); qi(("tb", j), 5)
    def read_o(t):
        return [f"ds_read_b128 {v(V_O + (t % 2)*16 + 4*mt,4)}, {v(V_T+2)} offset:{(mt*5 + t)*1024}" for mt in range(4)]
    for ins in read_o(0): e(ins)
    for _ in range(4): lq.issue(("o", 0))
    NF = OPTS.get("nf", 9); NX = 12 - NF
    XH = [112, 96, 80, 112, 96]
    def xb(t_, k):
        if k == 0:
            t_(f"s_mul_i32 {s(S_BO)}, {s(S_W)}, {NX*8*5120}"); t_(f"s_mul_i32 {s(S_T)}, {s(S_CB)}, 5120"); t_(f"s_add_u32 {s(S_BO)}, {s(S_BO)}, {s(S_T)}")
            t_(f"s_add_u32 {s(S_BO)}, {s(S_BO)}, {WS_WF + 4*NF*8*5120}")
        R = V_TB[k]
        for ct in range(5):
            if ct < 4: t_(f"buffer_load_dwordx4 {v(R + 4*ct,4)}, {v(V_HV)}, {s(S_WS,4)}, {s(S_BO)} offen offset:{ct*1024}")
            else:
                t_(f"s_add_u32 {s(S_T)}, {s(S_BO)}, 4096")
                t_(f"buffer_load_dwordx4 {v(R + 4*ct,4)}, {v(V_HV)}, {s(S_WS,4)}, {s(S_T)} offen")
        t_(f"s_add_u32 {s(S_BO)}, {s(S_BO)}, {8*5120}")
    def xh(t_, k):
        if k == 0:
            t_(f"s_mul_i32 {s(S_HO)}, {s(S_RB)}, {4*48*1024}"); t_(f"s_mul_i32 {s(S_T)}, {s(S_W)}, {NX*1024}")
            t_(f"s_add_u32 {s(S_HO)}, {s(S_HO)}, {s(S_T)}"); t_(f"s_add_u32 {s(S_HO)}, {s(S_HO)}, {WS_H + 4*NF*1024}")
        for mt in range(4):
            t_(f"s_add_u32 {s(S_T)}, {s(S_HO)}, {mt*48*1024}")
            t_(f"buffer_load_dwordx4 {v(XH[k] + 4*mt,4)}, {v(V_HV)}, {s(S_WS,4)}, {s(S_T)} offen")
        t_(f"s_add_u32 {s(S_HO)}, {s(S_HO)}, 1024")
    for t in range(5 + NX):
        ch = []
        if t < 5:
            q.wait(("tb", t)); lq.wait(("o", t))
            if t + 1 < 5:
                ch += [[ins] for ins in read_o(t + 1)]
                for _ in range(4): lq.issue(("o", t + 1))
        else:
            q.wait(("xb", t - 5), ("xh", t - 5))
        pend = []
        k = t - 1
        if 0 <= k < NX:
            ch += capture(lambda t_: xb(t_, k)); pend += [("xb", k)] * 5
        if t == 1 and NX >= 1: ch += capture(lambda t_: xh(t_, 0)); pend += [("xh", 0)] * 4
        if t == 4 and NX >= 2: ch += capture(lambda t_: xh(t_, 1)); pend += [("xh", 1)] * 4
        if t == 5 and NX >= 3: ch += capture(lambda t_: xh(t_, 2)); pend += [("xh", 2)] * 4
        if t == 6 and NX >= 4: ch += capture(lambda t_: xh(t_, 3)); pend += [("xh", 3)] * 4
        if t == 7 and NX >= 5: ch += capture(lambda t_: xh(t_, 4)); pend += [("xh", 4)] * 4
        for x in pend: q.issue(x)
        if t < 5:
            mfma_step(e, lambda ct: v(V_TB[t] + 4*ct, 4), lambda mt: v(V_O + (t % 2)*16 + 4*mt, 4), extra=ch, first=(t == 0))
        else:
            mfma_step(e, lambda ct: v(V_TB[t - 5] + 4*ct, 4), lambda mt: v(XH[t - 5] + 4*mt, 4), extra=ch)
    stamp(e, 5)

def post_args(e):
    e("s_waitcnt lgkmcnt(0)")
    e(f"s_mov_b32 {s(S_WS)}, s52"); e(f"s_mov_b32 {s(S_WS+1)}, s53")
    e(f"s_mov_b32 {s(S_X)}, s4"); e(f"s_mov_b32 {s(S_X+1)}, s5")
    e(f"s_mov_b32 {s(S_OUT)}, s50"); e(f"s_mov_b32 {s(S_OUT+1)}, s51")

def gen_k2(e, opts=None):
    opts = opts or {}
    OPTS.clear(); OPTS.update(opts)
    e.raw(".globl k2_kernel"); e.raw(".p2align 8"); e.raw(".type k2_kernel,@function"); e.label("k2_kernel")
    e("s_cmp_ge_u32 s2, 256")
    e("s_cbranch_scc1 L_k2_end")
    e("s_load_dwordx2 s[4:5], s[0:1], 0")
    e("s_load_dwordx2 s[50:51], s[0:1], 56")
    e("s_load_dwordx2 s[52:53], s[0:1], 72")
    if opts.get("stamp"): e(f"s_memtime {s(70,2)}"); e("s_memrealtime s[86:87]")
    e("v_lshrrev_b32 v4, 6, v0")
    e(f"v_and_b32 {v(V_LANE)}, 63, v0")
    e(f"v_readfirstlane_b32 {s(S_WV)}, v4")
    e(f"v_and_b32 {v(V_I)}, 15, {v(V_LANE)}")
    e(f"v_lshrrev_b32 {v(V_G)}, 4, {v(V_LANE)}")
    e(f"s_and_b32 {s(S_T)}, s2, 7"); e(f"s_lshr_b32 {s(S_T+1)}, s2, 3")
    e(f"s_lshr_b32 {s(S_RB)}, {s(S_T)}, 1"); e(f"s_lshl_b32 {s(S_RB)}, {s(S_RB)}, 3")
    e(f"s_and_b32 {s(S_T+2)}, {s(S_T+1)}, 7"); e(f"s_add_u32 {s(S_RB)}, {s(S_RB)}, {s(S_T+2)}")
    e(f"s_and_b32 {s(S_CB)}, {s(S_T)}, 1"); e(f"s_lshl_b32 {s(S_CB)}, {s(S_CB)}, 2")
    e(f"s_lshr_b32 {s(S_T+2)}, {s(S_T+1)}, 3"); e(f"s_add_u32 {s(S_CB)}, {s(S_CB)}, {s(S_T+2)}")
    e(f"s_and_b32 {s(S_W)}, {s(S_WV)}, 3")
    e(f"s_mul_i32 {s(S_LB)}, {s(S_WV)}, {LDS_WAVE}")
    e(f"v_lshlrev_b32 {v(V_HV)}, 4, {v(V_LANE)}")
    e(f"s_mov_b32 {s(S_WS+2)}, {WS_USED if not opts.get('stamp') else 0x2000000}"); e(f"s_mov_b32 {s(S_WS+3)}, 0x20000")
    e(f"s_mov_b32 {s(S_X+2)}, 2621440"); e(f"s_mov_b32 {s(S_X+3)}, 0x20000")
    e(f"s_mov_b32 {s(S_OUT+2)}, 2621440"); e(f"s_mov_b32 {s(S_OUT+3)}, 0x20000")
    aw = OPTS.get("awfirst", 1)
    e(f"s_cmp_lt_u32 {s(S_WV)}, 4"); e(f"s_cbranch_scc{0 if aw else 1} L_k2_F")
    if OPTS.get("aprio"): e(f"s_setprio {OPTS.get('aprio')}")
    if OPTS.get("noA"):
        post_args(e)
        for r in range(80): e(f"v_mov_b32 {v(V_ACC + r)}, 0")
    else: a_wave(e)
    e("s_branch L_k2_R")
    e.label("L_k2_F")
    if OPTS.get("fprio"): e(f"s_setprio {OPTS.get('fprio')}")
    if OPTS.get("ftest"):
        post_args(e)
        e(f"v_add_u32 {v(V_T+2)}, {s(S_LB)}, {v(V_HV)}")
        e("s_mov_b32 s60, 40")
        e.label("L_ft")
        k = OPTS.get("ftest")
        for i in range(20):
            if k == 1: e(f"v_mfma_f32_16x16x32_bf16 {v(V_ACC + 4*i,4)}, {v(20,4)}, {v(64,4)}, {v(V_ACC + 4*i,4)}")
            if k == 2: e(f"ds_read_b128 {v(20 + 4*(i % 8),4)}, {v(V_T+2)} offset:{(i % 16)*1024}"); e("s_nop 3")
            if k == 3: e(f"v_pk_mul_f32 {v(20 + 2*i,2)}, {v(64,2)}, {v(66,2)}"); e(f"v_fma_f32 {v(100 + i)}, v64, v65, v66"); e("s_nop 1")
        if k == 2: e("s_waitcnt lgkmcnt(0)")
        e("s_sub_u32 s60, s60, 1"); e("s_cmp_lg_u32 s60, 0"); e("s_cbranch_scc1 L_ft")
        for r in range(80): e(f"v_mov_b32 {v(V_ACC + r)}, 0")
    elif OPTS.get("noF"):
        post_args(e)
        for r in range(80): e(f"v_mov_b32 {v(V_ACC + r)}, 0")
    else: f_wave(e)
    e.label("L_k2_R")
    e(f"s_lshl_b32 {s(S_T)}, {s(S_RB)}, 6"); e(f"s_lshl_b32 {s(S_T+1)}, {s(S_W)}, 4"); e(f"s_add_u32 {s(S_T)}, {s(S_T)}, {s(S_T+1)}")
    e(f"v_add_u32 v10, {s(S_T)}, {v(V_I)}"); e(f"v_mul_u32_u24 v10, 1280, v10")
    e(f"v_lshlrev_b32 v4, 3, {v(V_G)}"); e(f"v_add_u32 v10, v10, v4")
    e(f"s_lshr_b32 {s(S_T+3)}, {s(S_WV)}, 2")
    e(f"s_mul_i32 {s(S_T+2)}, {s(S_CB)}, 160"); e(f"s_mul_i32 {s(S_T+4)}, {s(S_T+3)}, 96"); e(f"s_add_u32 {s(S_T+2)}, {s(S_T+2)}, {s(S_T+4)}")
    for k in range(3):
        e(f"buffer_load_dwordx2 {v(150 + 2*k,2)}, v10, {s(S_X,4)}, {s(S_T+2)} offen offset:{k*32}")
    e("s_waitcnt lgkmcnt(0)")
    e(f"v_add_u32 {v(V_T)}, {s(S_LB)}, {v(V_HV)}")
    e("s_nop 4")
    for mt in range(4):
        for ct in range(5):
            e(f"ds_write_b128 {v(V_T)}, {v(acc(mt,ct),4)} offset:{(mt*5 + ct)*1024}")
        if mt == 1: e("s_waitcnt lgkmcnt(4)")
    e(f"s_mul_i32 {s(S_T)}, {s(S_W)}, 5120"); e(f"s_mul_i32 {s(S_T+4)}, {s(S_T+3)}, 3072"); e(f"s_add_u32 {s(S_T)}, {s(S_T)}, {s(S_T+4)}")
    e(f"v_add_u32 v4, {s(S_T)}, {v(V_HV)}")
    e(f"v_add_u32 v5, {3*LDS_WAVE}, v4"); e(f"v_add_u32 v6, {6*LDS_WAVE}, v4")
    e("s_waitcnt lgkmcnt(0)")
    stamp(e, 6)
    e("s_barrier")
    if OPTS.get("fstamp"): stamp(e, 1)
    def rd(k):
        for ww in range(8):
            ad = 4 + ww // 3
            e(f"ds_read_b128 {v(20 + k*32 + ww*4,4)}, {v(ad)} offset:{(ww % 3)*LDS_WAVE + k*1024}")
    def fin(k):
        B = 20 + k*32
        if OPTS.get("sumA") or OPTS.get("sumF"):
            zs = range(4, 8) if OPTS.get("sumA") else range(0, 4)
            for ww in zs:
                for r in range(4): e(f"v_mov_b32 {v(B + ww*4 + r)}, 0")
        for h in range(2):
            for a_ in range(4):
                e(f"v_pk_add_f32 {v(B+8*a_+2*h,2)}, {v(B+8*a_+2*h,2)}, {v(B+8*a_+4+2*h,2)}")
        X = 150 + 2*k
        e(f"v_lshlrev_b32 {v(B+4)}, 16, {v(X)}"); e(f"v_and_b32 {v(B+5)}, 0xffff0000, {v(X)}")
        e(f"v_lshlrev_b32 {v(B+6)}, 16, {v(X+1)}"); e(f"v_and_b32 {v(B+7)}, 0xffff0000, {v(X+1)}")
        for h in range(2):
            e(f"v_pk_add_f32 {v(B+2*h,2)}, {v(B+2*h,2)}, {v(B+8+2*h,2)}")
            e(f"v_pk_add_f32 {v(B+16+2*h,2)}, {v(B+16+2*h,2)}, {v(B+24+2*h,2)}")
        for h in range(2):
            e(f"v_pk_add_f32 {v(B+16+2*h,2)}, {v(B+16+2*h,2)}, {v(B+4+2*h,2)}")
        for h in range(2):
            e(f"v_pk_add_f32 {v(B+2*h,2)}, {v(B+2*h,2)}, {v(B+16+2*h,2)}")
        e(f"v_cvt_pk_bf16_f32 {v(B)}, {v(B)}, {v(B+1)}")
        e(f"v_cvt_pk_bf16_f32 {v(B+1)}, {v(B+2)}, {v(B+3)}")
        e(f"buffer_store_dwordx2 {v(B,2)}, v10, {s(S_OUT,4)}, {s(S_T+2)} offen offset:{k*32}")
    rd(0)
    e("s_waitcnt lgkmcnt(2)")
    rd(1)
    e("s_waitcnt vmcnt(0) lgkmcnt(8)")
    if OPTS.get("fstamp"): stamp(e, 2)
    e(f"s_cmp_eq_u32 {s(S_T+3)}, 0"); e("s_cbranch_scc0 L_k2_h1")
    fin(0)
    if OPTS.get("fstamp"): stamp(e, 3)
    e("s_waitcnt lgkmcnt(2)")
    rd(2)
    e("s_waitcnt lgkmcnt(8)")
    fin(1)
    e("s_waitcnt lgkmcnt(0)")
    fin(2)
    e("s_branch L_k2_fin")
    e.label("L_k2_h1")
    fin(0)
    e("s_waitcnt lgkmcnt(0)")
    fin(1)
    e.label("L_k2_fin")
    if opts.get("stamp"):
        stamp(e, 7)
        e(f"s_lshl_b32 {s(S_T)}, s2, 3"); e(f"s_add_u32 {s(S_T)}, {s(S_T)}, {s(S_WV)}"); e(f"s_lshl_b32 {s(S_T)}, {s(S_T)}, 6")
        e(f"s_add_u32 {s(S_T)}, {s(S_T)}, {0x1200000}")
        e(f"v_mov_b32 v14, 0")
        e("s_memrealtime s[88:89]"); e("s_waitcnt lgkmcnt(0)")
        for k in range(8):
            e(f"v_mov_b32 v15, {s(70 + 2*k)}")
            e(f"buffer_store_dword v15, v14, {s(S_WS,4)}, {s(S_T)} offen offset:{4*k}")
            e("s_nop 1")
        e(f"v_mov_b32 v15, s86"); e(f"buffer_store_dword v15, v14, {s(S_WS,4)}, {s(S_T)} offen offset:{4*8}"); e("s_nop 1")
        e(f"v_mov_b32 v15, s88"); e(f"buffer_store_dword v15, v14, {s(S_WS,4)}, {s(S_T)} offen offset:{4*9}"); e("s_nop 1")
    e.label("L_k2_end")
    e("s_endpgm")
```

```python
from asmlib import *
import k1
from k1 import WS_PQ, WS_H, WS_KV, WS_WF, WS_USED

LDS_WAVE = 20480
ZBASE = 13440
LDS_TOTAL = 8 * LDS_WAVE
OPTS = {}
BLOCK = 512
NVGPR = 256

S_X = 8; S_WS = 20; S_OUT = 24
S_RB = 28; S_CB = 29; S_W = 30; S_LB = 31
S_T = 32
S_BO = 40; S_HO = 41; S_WV = 42; S_PQO = 45; S_EPS = 46

V_LANE = 1; V_I = 2; V_G = 3
V_HV = 9
V_T = 12
V_ACC = 176
def acc(mt, ct): return V_ACC + (ct * 4 + mt) * 4
V_HVM = 16
V_W = 20
V_H = 64
NH = 6
def bufA(k, mt): return v(V_H + 16*k + 4*mt, 4)
def bufW(k, ct): return v(V_W + 20*k + 4*ct, 4)
V_ZA = 11
V_KVT = 20
V_HE = 128
V_PQ = 128
V_NUM = 176
V_DEN = 216
V_RC = 228
V_TMP = 240
A_PQ0 = 128
V_PQS = 4
V_TB = [128, 148, 20, 40, 60]
V_O = 80

NUM = [(0,0),(1,0),(1,1),(2,0),(2,1),(3,1),(3,2),(4,1),(4,2),(5,2),(5,3),(6,2),(6,3),(7,3),(7,4),(8,3),(8,4),(9,4)]
DEN = [(0,0),(0,1),(0,2),(1,1),(1,2),(1,3),(1,4),(2,3),(2,4)]

def stamp(e, idx):
    if OPTS.get("stamp"):
        e(f"s_memtime {s(70 + 2*idx, 2)}")
        e("s_waitcnt lgkmcnt(0)")

def capture(fn):
    t = Emit(); fn(t)
    chunks = []; cur = []
    for l in t.lines:
        cur.append(l.strip())
        op = l.split()[0]
        if op.startswith("buffer_") or op.startswith("ds_") or op.startswith("global_"):
            chunks.append(cur); cur = []
    if cur:
        if chunks: chunks[-1] += cur
        else: chunks.append(cur)
    return [c for c in chunks if c]

def mfma_step(e, wop, aop, extra=None, first=False, nomfma=False, noextra=False):
    extra = list(extra or []) if not noextra else []
    n = len(extra); xi = 0; idx = 0
    for ct in range(5):
        for mt in range(4):
            A = acc(mt, ct)
            c = "0" if first else v(A, 4)
            if not nomfma: e(f"v_mfma_f32_16x16x32_bf16 {v(A,4)}, {wop(ct)}, {aop(mt)}, {c}")
            idx += 1
            want = (idx * n + 19) // 20 if n else 0
            while xi < want:
                for ins in extra[xi]: e(ins)
                xi += 1
    assert xi == n

def f_load_b(e, j):
    if OPTS.get("fnob"): return
    for ct in range(5):
        e(f"s_add_u32 m0, {s(S_LB)}, {(j % 4)*5120 + ct*1024}")
        e(f"s_add_u32 {s(S_T)}, {s(S_BO)}, {ct*1024}")
        e(f"buffer_load_dwordx4 {v(V_HV)}, {s(S_WS,4)}, {s(S_T)} offen lds")
    e(f"s_add_u32 {s(S_BO)}, {s(S_BO)}, {8*5120}")

def f_load_h(e, k):
    if OPTS.get("fnoh"): return
    for mt in range(4):
        e(f"buffer_load_dwordx4 {bufA(k, mt)}, {v(V_HVM + mt)}, {s(S_WS,4)}, {s(S_HO)} offen")
    e(f"s_add_u32 {s(S_HO)}, {s(S_HO)}, 1024")

def f_read_w(e, k, j):
    if OPTS.get("fnow"): return
    for ct in range(5):
        e(f"ds_read_b128 {bufW(k, ct)}, {v(V_T+2)} offset:{(j % 4)*5120 + ct*1024}")

def f_wave(e):
    for mt in range(4):
        e(f"v_add_u32 {v(V_HVM + mt)}, {mt*48*1024}, {v(V_HV)}")
    NF = OPTS.get("nf", 9)
    e(f"s_mul_i32 {s(S_BO)}, {s(S_W)}, {NF*8*5120}"); e(f"s_mul_i32 {s(S_T)}, {s(S_CB)}, 5120"); e(f"s_add_u32 {s(S_BO)}, {s(S_BO)}, {s(S_T)}")
    e(f"s_add_u32 {s(S_BO)}, {s(S_BO)}, {WS_WF}")
    e(f"s_mul_i32 {s(S_HO)}, {s(S_RB)}, {4*48*1024}"); e(f"s_mul_i32 {s(S_T)}, {s(S_W)}, {NF*1024}")
    e(f"s_add_u32 {s(S_HO)}, {s(S_HO)}, {s(S_T)}"); e(f"s_add_u32 {s(S_HO)}, {s(S_HO)}, {WS_H}")
    e(f"v_add_u32 {v(V_T+2)}, {s(S_LB)}, {v(V_HV)}")
    post_args(e)
    if OPTS.get("fdelay"): e(f"s_sleep {OPTS.get('fdelay')}")
    q = Queue(e, "vmcnt", 63); lq = Queue(e, "lgkmcnt", 15)
    def qi(tag, n):
        for _ in range(n): q.issue(tag)
    items = [("b",0),("h",0),("b",1),("h",1),("b",2),("h",2),("b",3),("h",3),("h",4),("h",5)]
    npf = OPTS.get("npf", 10)
    for kind, t in items[:npf]:
        if kind == "b": f_load_b(e, t); qi(("b", t), 5)
        else: f_load_h(e, t); qi(("h", t), 4)
    late = items[npf:]
    stamp(e, 1)
    q.wait(("b", 0))
    f_read_w(e, 0, 0)
    for _ in range(5): lq.issue(("w", 0))
    for t in range(NF):
        ch = []; pv = []; pl = []
        if t + 1 < NF: q.wait(("b", t + 1))
        q.wait(("h", t))
        lq.wait(("w", t % 2))
        if t + 1 < NF:
            ch += capture(lambda t_: f_read_w(t_, (t + 1) % 2, t + 1)); pl += [("w", (t + 1) % 2)] * 5
        for _ in range(3):
            if late:
                kind, tt = late.pop(0)
                if kind == "b": ch += capture(lambda t_, tt=tt: f_load_b(t_, tt)); pv += [("b", tt)] * 5
                else: ch += capture(lambda t_, tt=tt: f_load_h(t_, tt)); pv += [("h", tt)] * 4
        if t + 4 < NF:
            ch += capture(lambda t_: f_load_b(t_, t + 4)); pv += [("b", t + 4)] * 5
        if t >= 1 and t - 1 + NH < NF:
            ch += capture(lambda t_: f_load_h(t_, (t - 1) % NH)); pv += [("h", t - 1 + NH)] * 4
        for x in pl: lq.issue(x)
        for x in pv: q.issue(x)
        mfma_step(e, lambda ct: bufW(t % 2, ct), lambda mt: bufA(t % NH, mt), extra=ch, first=(t == 0), nomfma=OPTS.get("fnomfma"))
        if t == 0: stamp(e, 2)
    stamp(e, 5)

def load_pq(e, set_):
    R = V_PQSET[set_]
    for p in range(5):
        if p < 4:
            e(f"buffer_load_dwordx4 {v(R + 4*p,4)}, {v(V_HV)}, {s(S_WS,4)}, {s(S_PQO)} offen offset:{p*1024}")
        else:
            e(f"s_add_u32 {s(S_T)}, {s(S_PQO)}, 4096")
            e(f"buffer_load_dwordx4 {v(R + 4*p,4)}, {v(V_HV)}, {s(S_WS,4)}, {s(S_T)} offen")
    e(f"s_add_u32 {s(S_PQO)}, {s(S_PQO)}, {20*1024}")

def load_kv(e):
    e(f"s_mul_i32 {s(S_T)}, {s(S_W)}, 13440"); e(f"s_add_u32 {s(S_T)}, {s(S_T)}, {WS_KV}")
    for k in range(14):
        if k == 13:
            e(f"v_cmp_gt_u32 vcc, 8, {v(V_LANE)}"); e(f"s_and_saveexec_b64 s[36:37], vcc")
        e(f"s_add_u32 m0, {s(S_LB)}, {k*1024}")
        e(f"s_add_u32 {s(S_T+2)}, {s(S_T)}, {k*1024}")
        e(f"buffer_load_dwordx4 {v(V_HV)}, {s(S_WS,4)}, {s(S_T+2)} offen lds")
        if k == 13: e("s_mov_b64 exec, s[36:37]")

def load_tb(e, j):
    R = V_TB[j]
    for ct in range(5):
        if ct < 4:
            e(f"buffer_load_dwordx4 {v(R + 4*ct,4)}, {v(V_HV)}, {s(S_WS,4)}, {s(S_BO)} offen offset:{ct*1024}")
        else:
            e(f"s_add_u32 {s(S_T)}, {s(S_BO)}, 4096")
            e(f"buffer_load_dwordx4 {v(R + 4*ct,4)}, {v(V_HV)}, {s(S_WS,4)}, {s(S_T)} offen")
    e(f"s_add_u32 {s(S_BO)}, {s(S_BO)}, {8*5120}")

V_PQSET = [176, 196]
V_NUM = 128
V_DEN = 216
V_RC = 228
V_TB = [20, 40, 60, 128, 148]

def precompute(e):
    for r in range(4): e(f"v_mov_b32 {v(V_TMP + r)}, 0")
    e(f"v_add_u32 {v(V_T)}, {s(S_LB)}, {v(V_HV)}")
    e(f"v_cmp_gt_u32 vcc, 44, {v(V_LANE)}"); e(f"s_and_saveexec_b64 s[36:37], vcc")
    e(f"ds_write_b128 {v(V_T)}, {v(V_TMP,4)} offset:{ZBASE}")
    e("s_mov_b64 exec, s[36:37]")
    e(f"v_lshlrev_b32 {v(V_T+3)}, 4, {v(V_G)}")
    for t in range(10):
        e(f"v_add_u32 {v(V_T)}, {16*t}, {v(V_I)}")
        e(f"v_mul_u32_u24 {v(V_HE + t)}, 205, {v(V_T)}"); e(f"v_lshrrev_b32 {v(V_HE + t)}, 12, {v(V_HE + t)}")
        e(f"v_sub_u32 {v(V_T)}, {v(V_T)}, {v(V_HE + t)}"); e(f"v_mul_u32_u24 {v(V_T)}, 80, {v(V_T)}")
        e(f"v_lshrrev_b32 {v(V_T+1)}, 2, {v(V_HE + t)}"); e(f"v_mul_u32_u24 {v(V_T+1)}, 320, {v(V_T+1)}")
        e(f"v_add3_u32 {v(V_T)}, {v(V_T)}, {v(V_T+1)}, {v(V_T+3)}")
        e(f"v_add_u32 {v(V_HE + 10 + t)}, {s(S_LB)}, {v(V_T)}")
    for wh in range(10):
        e(f"v_add_u32 {v(V_T)}, {4*wh}, {v(V_G)}")
        e(f"v_mul_u32_u24 {v(V_HE + 20 + wh)}, 52, {v(V_T)}"); e(f"v_lshrrev_b32 {v(V_HE + 20 + wh)}, 8, {v(V_HE + 20 + wh)}")
        e(f"v_lshrrev_b32 {v(V_T+1)}, 2, {v(V_HE + 20 + wh)}"); e(f"v_mul_u32_u24 {v(V_T+1)}, 6400, {v(V_T+1)}")
        e(f"v_add3_u32 {v(V_T+1)}, {v(V_T+1)}, {v(V_T+3)}, {s(S_LB)}")
        e(f"v_add_u32 {v(V_HE + 30 + wh)}, 6400, {v(V_T+1)}")
    for u in range(3):
        e(f"v_and_b32 {v(V_T)}, 3, {v(V_I)}"); e(f"v_lshlrev_b32 {v(V_T)}, 2, {v(V_T)}")
        e(f"v_lshrrev_b32 {v(V_T+1)}, 2, {v(V_I)}")
        e(f"v_add3_u32 {v(V_T)}, {v(V_T)}, {v(V_T+1)}, {16*u}")
        e(f"v_mul_u32_u24 {v(V_HE + 40 + u)}, 52, {v(V_T)}"); e(f"v_lshrrev_b32 {v(V_HE + 40 + u)}, 8, {v(V_HE + 40 + u)}")
    e(f"s_add_u32 {s(S_T)}, {s(S_LB)}, {ZBASE}")
    e(f"v_mov_b32 {v(V_ZA)}, {s(S_T)}")

def build_frags(e):
    lq = Queue(e, "lgkmcnt", 15)
    frs = [("n", t, w) for (t, w) in NUM] + [("d", u, w) for (u, w) in DEN]
    halves = []
    for fi, (kind, t, w) in enumerate(frs):
        for hf in range(2):
            wh = 2*w + hf
            hsrc = V_HE + t if kind == "n" else V_HE + 40 + t
            asrc = V_HE + 10 + t if kind == "n" else V_HE + 30 + wh
            halves.append((fi, hf, wh, hsrc, asrc))
    M = [48, 50, 52, 54]
    def cmp(hi):
        fi, hf, wh, hsrc, asrc = halves[hi]
        e(f"v_cmp_eq_u32 {s(M[hi % 4],2)}, {v(hsrc)}, {v(V_HE + 20 + wh)}")
    def rd(hi):
        fi, hf, wh, hsrc, asrc = halves[hi]
        tb = V_TMP + (fi % 2) * 8
        ad = V_T + (hi % 2)
        e(f"v_cndmask_b32 {v(ad)}, {v(V_ZA)}, {v(asrc)}, {s(M[hi % 4],2)}")
        e(f"ds_read_b128 {v(tb + 4*hf, 4)}, {v(ad)} offset:{64*wh}")
        lq.issue(("f", fi))
    def fin(fi):
        lq.wait(("f", fi))
        tb = V_TMP + (fi % 2) * 8
        R = V_KVT + 4*fi
        for k in range(4):
            e(f"v_cvt_pk_bf16_f32 {v(R + k)}, {v(tb + 2*k)}, {v(tb + 2*k + 1)}")
    n = len(halves)
    cmp(0); cmp(1); cmp(2)
    for hi in range(n):
        if hi + 3 < n: cmp(hi + 3)
        else: e("s_nop 0")
        rd(hi)
        fi, hf = halves[hi][0], halves[hi][1]
        if hf == 1 and fi >= 1: fin(fi - 1)
    fin(len(frs) - 1)

def o_block(e, b):
    PQ = V_PQSET[b % 2]
    den = {}
    for n_, (u, w) in enumerate(DEN): den.setdefault(u, []).append((18 + n_, w))
    num = {}
    for fi, (t, w) in enumerate(NUM): num.setdefault(t, []).append((fi, w))
    seq = []
    def D(u, k): fi, w = den[u][k]; return (V_DEN + 4*u, fi, w, k == 0)
    def N(t, k): fi, w = num[t][k]; return (V_NUM + 4*t, fi, w, k == 0)
    seq += [D(0,0), D(1,0), D(2,0), N(0,0), N(1,0), N(2,0), N(3,0)]
    seq += [D(0,1), D(1,1), D(2,1), N(4,0), N(5,0), N(6,0), N(7,0)]
    seq += [D(0,2), D(1,2), N(8,0), N(9,0), N(1,1), N(2,1), N(3,1)]
    seq += [D(1,3), N(4,1), N(5,1), N(6,1), N(7,1), N(8,1)]
    assert len(seq) == 27
    if OPTS.get("zeroc"):
        for r in list(range(V_NUM, V_NUM + 40)) + list(range(V_DEN, V_DEN + 12)): e(f"v_mov_b32 {v(r)}, 0")
        e("s_nop 1")
    for (dst, fi, w, first) in seq:
        c = "0" if (first and not OPTS.get("zeroc")) else v(dst, 4)
        e(f"v_mfma_f32_16x16x32_bf16 {v(dst,4)}, {v(V_KVT + 4*fi,4)}, {v(PQ + 4*w,4)}, {c}")
    if b < 2 and OPTS.get("pqearly", 1): pass
def o_rc(e):
    for t2 in range(10): e(f"v_add_f32 {v(V_RC + t2)}, {s(S_EPS)}, {v(V_DEN + 4*(t2 >> 2) + (t2 & 3))}")
    for t2 in range(10): e(f"v_rcp_f32 {v(V_RC + t2)}, {v(V_RC + t2)}")

def o_finish(e, b):
    n1 = OPTS.get("nop_pm", 0); n2 = OPTS.get("nop_dw", 0)
    for p in range(5):
        for t in (2*p, 2*p + 1):
            N = V_NUM + 4*t
            r = V_RC + t
            if r % 2 == 0: pr, o, oh = v(r,2), 0, 0
            else: pr, o, oh = v(r-1,2), 1, 1
            if OPTS.get("nopk", 1):
                for k in range(4): e(f"v_mul_f32 {v(N+k)}, {v(N+k)}, {v(r)}")
            else:
                e(f"v_pk_mul_f32 {v(N,2)}, {v(N,2)}, {pr} op_sel:[0,{o}] op_sel_hi:[1,{oh}]")
                e(f"v_pk_mul_f32 {v(N+2,2)}, {v(N+2,2)}, {pr} op_sel:[0,{o}] op_sel_hi:[1,{oh}]")
        if n1: e(f"s_nop {n1}")
        O = V_NUM + 8*p
        e(f"v_cvt_pk_bf16_f32 {v(O)}, {v(O)}, {v(O+1)}")
        e(f"v_cvt_pk_bf16_f32 {v(O+1)}, {v(O+2)}, {v(O+3)}")
        e(f"v_cvt_pk_bf16_f32 {v(O+2)}, {v(O+4)}, {v(O+5)}")
        e(f"v_cvt_pk_bf16_f32 {v(O+3)}, {v(O+6)}, {v(O+7)}")
        if n2: e(f"s_nop {n2}")
        e(f"ds_write_b128 {v(V_T+2)}, {v(O,4)} offset:{(b*5 + p)*1024}")

def a_wave(e):
    e(f"s_mul_i32 {s(S_PQO)}, {s(S_RB)}, {4*20*1024}"); e(f"s_mul_i32 {s(S_T)}, {s(S_W)}, {5*1024}")
    e(f"s_add_u32 {s(S_PQO)}, {s(S_PQO)}, {s(S_T)}"); e(f"s_add_u32 {s(S_PQO)}, {s(S_PQO)}, {WS_PQ}")
    e(f"s_mul_i32 {s(S_BO)}, {s(S_W)}, {5*8*5120}"); e(f"s_mul_i32 {s(S_T)}, {s(S_CB)}, 5120"); e(f"s_add_u32 {s(S_BO)}, {s(S_BO)}, {s(S_T)}")
    e(f"s_add_u32 {s(S_BO)}, {s(S_BO)}, {WS_WF + 48*8*5120}")
    post_args(e)
    q = Queue(e, "vmcnt", 63); lq = Queue(e, "lgkmcnt", 15)
    def qi(tag, n):
        for _ in range(n): q.issue(tag)
    load_kv(e); qi("kv", 14)
    load_pq(e, 0); qi(("pq", 0), 5)
    load_pq(e, 1); qi(("pq", 1), 5)
    stamp(e, 1)
    precompute(e)
    if OPTS.get("kvall", 1): q.drain()
    else: q.wait("kv")
    stamp(e, 2)
    e("s_waitcnt lgkmcnt(0)")
    build_frags(e)
    stamp(e, 3)
    e(f"s_mov_b32 {s(S_EPS)}, {f32(1e-6)}")
    e(f"v_add_u32 {v(V_T+2)}, {s(S_LB)}, {v(V_HV)}")
    for b in range(4):
        q.wait(("pq", b))
        o_block(e, b)
        if OPTS.get("drainA"):
            e("s_nop 7"); e(f"v_mov_b32 v5, {v(V_NUM + 4*8)}"); e(f"v_mov_b32 v5, {v(V_NUM + 4*7)}")
        if b < 2:
            load_pq(e, b % 2); qi(("pq", b + 2), 5)
        if b == 3:
            for j in range(3):
                load_tb(e, j); qi(("tb", j), 5)
        e("s_nop 7")
        if OPTS.get("longnop"):
            for _ in range(OPTS.get("longnop")): e("s_nop 15")
        o_rc(e)
        e("s_nop 1")
        o_finish(e, b)
    stamp(e, 4)
    e("s_nop 1")
    if OPTS.get("fixa"): e("s_waitcnt lgkmcnt(0)")
    for j in range(3, 5):
        load_tb(e, j); qi(("tb", j), 5)
    def read_o(t):
        return [f"ds_read_b128 {v(V_O + (t % 2)*16 + 4*mt,4)}, {v(V_T+2)} offset:{(mt*5 + t)*1024}" for mt in range(4)]
    for ins in read_o(0): e(ins)
    for _ in range(4): lq.issue(("o", 0))
    NF = OPTS.get("nf", 9); NX = 12 - NF
    XH = [112, 96, 80, 112, 96]
    def xb(t_, k):
        if k == 0:
            t_(f"s_mul_i32 {s(S_BO)}, {s(S_W)}, {NX*8*5120}"); t_(f"s_mul_i32 {s(S_T)}, {s(S_CB)}, 5120"); t_(f"s_add_u32 {s(S_BO)}, {s(S_BO)}, {s(S_T)}")
            t_(f"s_add_u32 {s(S_BO)}, {s(S_BO)}, {WS_WF + 4*NF*8*5120}")
        R = V_TB[k]
        for ct in range(5):
            if ct < 4: t_(f"buffer_load_dwordx4 {v(R + 4*ct,4)}, {v(V_HV)}, {s(S_WS,4)}, {s(S_BO)} offen offset:{ct*1024}")
            else:
                t_(f"s_add_u32 {s(S_T)}, {s(S_BO)}, 4096")
                t_(f"buffer_load_dwordx4 {v(R + 4*ct,4)}, {v(V_HV)}, {s(S_WS,4)}, {s(S_T)} offen")
        t_(f"s_add_u32 {s(S_BO)}, {s(S_BO)}, {8*5120}")
    def xh(t_, k):
        if k == 0:
            t_(f"s_mul_i32 {s(S_HO)}, {s(S_RB)}, {4*48*1024}"); t_(f"s_mul_i32 {s(S_T)}, {s(S_W)}, {NX*1024}")
            t_(f"s_add_u32 {s(S_HO)}, {s(S_HO)}, {s(S_T)}"); t_(f"s_add_u32 {s(S_HO)}, {s(S_HO)}, {WS_H + 4*NF*1024}")
        for mt in range(4):
            t_(f"s_add_u32 {s(S_T)}, {s(S_HO)}, {mt*48*1024}")
            t_(f"buffer_load_dwordx4 {v(XH[k] + 4*mt,4)}, {v(V_HV)}, {s(S_WS,4)}, {s(S_T)} offen")
        t_(f"s_add_u32 {s(S_HO)}, {s(S_HO)}, 1024")
    for t in range(5 + NX):
        ch = []
        if t < 5:
            q.wait(("tb", t)); lq.wait(("o", t))
            if t + 1 < 5:
                ch += [[ins] for ins in read_o(t + 1)]
                for _ in range(4): lq.issue(("o", t + 1))
        else:
            q.wait(("xb", t - 5), ("xh", t - 5))
        pend = []
        k = t - 1
        if 0 <= k < NX:
            ch += capture(lambda t_: xb(t_, k)); pend += [("xb", k)] * 5
        if t == 1 and NX >= 1: ch += capture(lambda t_: xh(t_, 0)); pend += [("xh", 0)] * 4
        if t == 4 and NX >= 2: ch += capture(lambda t_: xh(t_, 1)); pend += [("xh", 1)] * 4
        if t == 5 and NX >= 3: ch += capture(lambda t_: xh(t_, 2)); pend += [("xh", 2)] * 4
        if t == 6 and NX >= 4: ch += capture(lambda t_: xh(t_, 3)); pend += [("xh", 3)] * 4
        if t == 7 and NX >= 5: ch += capture(lambda t_: xh(t_, 4)); pend += [("xh", 4)] * 4
        for x in pend: q.issue(x)
        if t < 5:
            mfma_step(e, lambda ct: v(V_TB[t] + 4*ct, 4), lambda mt: v(V_O + (t % 2)*16 + 4*mt, 4), extra=ch, first=(t == 0))
        else:
            mfma_step(e, lambda ct: v(V_TB[t - 5] + 4*ct, 4), lambda mt: v(XH[t - 5] + 4*mt, 4), extra=ch)
    stamp(e, 5)

def post_args(e):
    e("s_waitcnt lgkmcnt(0)")
    e(f"s_mov_b32 {s(S_WS)}, s52"); e(f"s_mov_b32 {s(S_WS+1)}, s53")
    e(f"s_mov_b32 {s(S_X)}, s4"); e(f"s_mov_b32 {s(S_X+1)}, s5")
    e(f"s_mov_b32 {s(S_OUT)}, s50"); e(f"s_mov_b32 {s(S_OUT+1)}, s51")

def gen_k2(e, opts=None):
    opts = opts or {}
    OPTS.clear(); OPTS.update(opts)
    e.raw(".globl k2_kernel"); e.raw(".p2align 8"); e.raw(".type k2_kernel,@function"); e.label("k2_kernel")
    e("s_cmp_ge_u32 s2, 256")
    e("s_cbranch_scc1 L_k2_end")
    e("s_load_dwordx2 s[4:5], s[0:1], 0")
    e("s_load_dwordx2 s[50:51], s[0:1], 56")
    e("s_load_dwordx2 s[52:53], s[0:1], 72")
    if opts.get("stamp"): e(f"s_memtime {s(70,2)}"); e("s_memrealtime s[86:87]")
    e("v_lshrrev_b32 v4, 6, v0")
    e(f"v_and_b32 {v(V_LANE)}, 63, v0")
    e(f"v_readfirstlane_b32 {s(S_WV)}, v4")
    e(f"v_and_b32 {v(V_I)}, 15, {v(V_LANE)}")
    e(f"v_lshrrev_b32 {v(V_G)}, 4, {v(V_LANE)}")
    e(f"s_and_b32 {s(S_T)}, s2, 7"); e(f"s_lshr_b32 {s(S_T+1)}, s2, 3")
    e(f"s_lshr_b32 {s(S_RB)}, {s(S_T)}, 1"); e(f"s_lshl_b32 {s(S_RB)}, {s(S_RB)}, 3")
    e(f"s_and_b32 {s(S_T+2)}, {s(S_T+1)}, 7"); e(f"s_add_u32 {s(S_RB)}, {s(S_RB)}, {s(S_T+2)}")
    e(f"s_and_b32 {s(S_CB)}, {s(S_T)}, 1"); e(f"s_lshl_b32 {s(S_CB)}, {s(S_CB)}, 2")
    e(f"s_lshr_b32 {s(S_T+2)}, {s(S_T+1)}, 3"); e(f"s_add_u32 {s(S_CB)}, {s(S_CB)}, {s(S_T+2)}")
    e(f"s_and_b32 {s(S_W)}, {s(S_WV)}, 3")
    e(f"s_mul_i32 {s(S_LB)}, {s(S_WV)}, {LDS_WAVE}")
    e(f"v_lshlrev_b32 {v(V_HV)}, 4, {v(V_LANE)}")
    e(f"s_mov_b32 {s(S_WS+2)}, {WS_USED if not opts.get('stamp') else 0x2000000}"); e(f"s_mov_b32 {s(S_WS+3)}, 0x20000")
    e(f"s_mov_b32 {s(S_X+2)}, 2621440"); e(f"s_mov_b32 {s(S_X+3)}, 0x20000")
    e(f"s_mov_b32 {s(S_OUT+2)}, 2621440"); e(f"s_mov_b32 {s(S_OUT+3)}, 0x20000")
    aw = OPTS.get("awfirst", 1)
    e(f"s_cmp_lt_u32 {s(S_WV)}, 4"); e(f"s_cbranch_scc{0 if aw else 1} L_k2_F")
    if OPTS.get("aprio"): e(f"s_setprio {OPTS.get('aprio')}")
    if OPTS.get("noA"):
        post_args(e)
        for r in range(80): e(f"v_mov_b32 {v(V_ACC + r)}, 0")
    else: a_wave(e)
    e("s_branch L_k2_R")
    e.label("L_k2_F")
    if OPTS.get("fprio"): e(f"s_setprio {OPTS.get('fprio')}")
    if OPTS.get("ftest"):
        post_args(e)
        e(f"v_add_u32 {v(V_T+2)}, {s(S_LB)}, {v(V_HV)}")
        e("s_mov_b32 s60, 40")
        e.label("L_ft")
        k = OPTS.get("ftest")
        for i in range(20):
            if k == 1: e(f"v_mfma_f32_16x16x32_bf16 {v(V_ACC + 4*i,4)}, {v(20,4)}, {v(64,4)}, {v(V_ACC + 4*i,4)}")
            if k == 2: e(f"ds_read_b128 {v(20 + 4*(i % 8),4)}, {v(V_T+2)} offset:{(i % 16)*1024}"); e("s_nop 3")
            if k == 3: e(f"v_pk_mul_f32 {v(20 + 2*i,2)}, {v(64,2)}, {v(66,2)}"); e(f"v_fma_f32 {v(100 + i)}, v64, v65, v66"); e("s_nop 1")
        if k == 2: e("s_waitcnt lgkmcnt(0)")
        e("s_sub_u32 s60, s60, 1"); e("s_cmp_lg_u32 s60, 0"); e("s_cbranch_scc1 L_ft")
        for r in range(80): e(f"v_mov_b32 {v(V_ACC + r)}, 0")
    elif OPTS.get("noF"):
        post_args(e)
        for r in range(80): e(f"v_mov_b32 {v(V_ACC + r)}, 0")
    else: f_wave(e)
    e.label("L_k2_R")
    e(f"s_lshl_b32 {s(S_T)}, {s(S_RB)}, 6"); e(f"s_lshl_b32 {s(S_T+1)}, {s(S_W)}, 4"); e(f"s_add_u32 {s(S_T)}, {s(S_T)}, {s(S_T+1)}")
    e(f"v_add_u32 v10, {s(S_T)}, {v(V_I)}"); e(f"v_mul_u32_u24 v10, 1280, v10")
    e(f"v_lshlrev_b32 v4, 3, {v(V_G)}"); e(f"v_add_u32 v10, v10, v4")
    e(f"s_lshr_b32 {s(S_T+3)}, {s(S_WV)}, 2")
    e(f"s_mul_i32 {s(S_T+2)}, {s(S_CB)}, 160"); e(f"s_mul_i32 {s(S_T+4)}, {s(S_T+3)}, 96"); e(f"s_add_u32 {s(S_T+2)}, {s(S_T+2)}, {s(S_T+4)}")
    for k in range(3):
        e(f"buffer_load_dwordx2 {v(150 + 2*k,2)}, v10, {s(S_X,4)}, {s(S_T+2)} offen offset:{k*32}")
    e("s_waitcnt lgkmcnt(0)")
    e(f"v_add_u32 {v(V_T)}, {s(S_LB)}, {v(V_HV)}")
    e("s_nop 4")
    for mt in range(4):
        for ct in range(5):
            e(f"ds_write_b128 {v(V_T)}, {v(acc(mt,ct),4)} offset:{(mt*5 + ct)*1024}")
        if mt == 1: e("s_waitcnt lgkmcnt(4)")
    e(f"s_mul_i32 {s(S_T)}, {s(S_W)}, 5120"); e(f"s_mul_i32 {s(S_T+4)}, {s(S_T+3)}, 3072"); e(f"s_add_u32 {s(S_T)}, {s(S_T)}, {s(S_T+4)}")
    e(f"v_add_u32 v4, {s(S_T)}, {v(V_HV)}")
    e(f"v_add_u32 v5, {3*LDS_WAVE}, v4"); e(f"v_add_u32 v6, {6*LDS_WAVE}, v4")
    e("s_waitcnt lgkmcnt(0)")
    stamp(e, 6)
    e("s_barrier")
    if OPTS.get("fstamp"): stamp(e, 1)
    def rd(k):
        for ww in range(8):
            ad = 4 + ww // 3
            e(f"ds_read_b128 {v(20 + k*32 + ww*4,4)}, {v(ad)} offset:{(ww % 3)*LDS_WAVE + k*1024}")
    def fin(k):
        B = 20 + k*32
        if OPTS.get("sumA") or OPTS.get("sumF"):
            zs = range(4, 8) if OPTS.get("sumA") else range(0, 4)
            for ww in zs:
                for r in range(4): e(f"v_mov_b32 {v(B + ww*4 + r)}, 0")
        for h in range(2):
            for a_ in range(4):
                e(f"v_pk_add_f32 {v(B+8*a_+2*h,2)}, {v(B+8*a_+2*h,2)}, {v(B+8*a_+4+2*h,2)}")
        X = 150 + 2*k
        e(f"v_lshlrev_b32 {v(B+4)}, 16, {v(X)}"); e(f"v_and_b32 {v(B+5)}, 0xffff0000, {v(X)}")
        e(f"v_lshlrev_b32 {v(B+6)}, 16, {v(X+1)}"); e(f"v_and_b32 {v(B+7)}, 0xffff0000, {v(X+1)}")
        for h in range(2):
            e(f"v_pk_add_f32 {v(B+2*h,2)}, {v(B+2*h,2)}, {v(B+8+2*h,2)}")
            e(f"v_pk_add_f32 {v(B+16+2*h,2)}, {v(B+16+2*h,2)}, {v(B+24+2*h,2)}")
        for h in range(2):
            e(f"v_pk_add_f32 {v(B+16+2*h,2)}, {v(B+16+2*h,2)}, {v(B+4+2*h,2)}")
        for h in range(2):
            e(f"v_pk_add_f32 {v(B+2*h,2)}, {v(B+2*h,2)}, {v(B+16+2*h,2)}")
        e(f"v_cvt_pk_bf16_f32 {v(B)}, {v(B)}, {v(B+1)}")
        e(f"v_cvt_pk_bf16_f32 {v(B+1)}, {v(B+2)}, {v(B+3)}")
        e(f"buffer_store_dwordx2 {v(B,2)}, v10, {s(S_OUT,4)}, {s(S_T+2)} offen offset:{k*32}")
    rd(0)
    e("s_waitcnt lgkmcnt(2)")
    rd(1)
    e("s_waitcnt vmcnt(0) lgkmcnt(8)")
    if OPTS.get("fstamp"): stamp(e, 2)
    e(f"s_cmp_eq_u32 {s(S_T+3)}, 0"); e("s_cbranch_scc0 L_k2_h1")
    fin(0)
    if OPTS.get("fstamp"): stamp(e, 3)
    e("s_waitcnt lgkmcnt(2)")
    rd(2)
    e("s_waitcnt lgkmcnt(8)")
    fin(1)
    e("s_waitcnt lgkmcnt(0)")
    fin(2)
    e("s_branch L_k2_fin")
    e.label("L_k2_h1")
    fin(0)
    e("s_waitcnt lgkmcnt(0)")
    fin(1)
    e.label("L_k2_fin")
    if opts.get("stamp"):
        stamp(e, 7)
        e(f"s_lshl_b32 {s(S_T)}, s2, 3"); e(f"s_add_u32 {s(S_T)}, {s(S_T)}, {s(S_WV)}"); e(f"s_lshl_b32 {s(S_T)}, {s(S_T)}, 6")
        e(f"s_add_u32 {s(S_T)}, {s(S_T)}, {0x1200000}")
        e(f"v_mov_b32 v14, 0")
        e("s_memrealtime s[88:89]"); e("s_waitcnt lgkmcnt(0)")
        for k in range(8):
            e(f"v_mov_b32 v15, {s(70 + 2*k)}")
            e(f"buffer_store_dword v15, v14, {s(S_WS,4)}, {s(S_T)} offen offset:{4*k}")
            e("s_nop 1")
        e(f"v_mov_b32 v15, s86"); e(f"buffer_store_dword v15, v14, {s(S_WS,4)}, {s(S_T)} offen offset:{4*8}"); e("s_nop 1")
        e(f"v_mov_b32 v15, s88"); e(f"buffer_store_dword v15, v14, {s(S_WS,4)}, {s(S_T)} offen offset:{4*9}"); e("s_nop 1")
    if opts.get("probe"):
        pr = opts.get("probe")
        e("s_cmp_eq_u32 s2, 0"); e("s_cbranch_scc0 L_k2_end")
        e(f"s_cmp_eq_u32 {s(S_WV)}, 0"); e("s_cbranch_scc0 L_k2_end")
        e("s_waitcnt vmcnt(0)")
        e(f"v_lshlrev_b32 v20, 11, {v(V_LANE)}")
        e(f"s_mov_b32 s60, {0x1000000}")
        for k in range(4):
            e(f"buffer_load_dwordx2 v[{22+2*k}:{23+2*k}], v20, {s(S_WS,4)}, s60 offen offset:{32 + 512*k}")
        e("s_waitcnt vmcnt(0)")
        e("v_min_u32 v22, v22, v24"); e("v_min_u32 v26, v26, v28"); e("v_min_u32 v22, v22, v26")
        e("v_max_u32 v23, v23, v25"); e("v_max_u32 v27, v27, v29"); e("v_max_u32 v23, v23, v27")
        e("s_mov_b32 s61, -1"); e("s_mov_b32 s62, 0")
        for ln in range(64):
            e(f"v_readlane_b32 s63, v22, {ln}"); e(f"v_readlane_b32 s64, v23, {ln}"); e("s_nop 0")
            e("s_min_u32 s61, s61, s63"); e("s_max_u32 s62, s62, s64")
        e("s_memrealtime s[66:67]"); e("s_waitcnt lgkmcnt(0)")
        if pr == 1: e("s_sub_u32 s65, s62, s61")
        if pr == 2: e("s_sub_u32 s65, s86, s62")
        if pr == 3: e("s_sub_u32 s65, s66, s86")
        if pr == 4: e("s_mov_b32 s65, 0")
        e("s_add_u32 s65, s65, s66")
        e.label("L_probe_spin")
        e("s_memrealtime s[68:69]"); e("s_waitcnt lgkmcnt(0)")
        e("s_cmp_lt_u32 s68, s65"); e("s_cbranch_scc1 L_probe_spin")
    e.label("L_k2_end")
    e("s_endpgm")
```

```python
from asmlib import *
import math

NST = 10
NSLOT = 3
A_BYTES = 32768
BH = 10240
SLOT = A_BYTES + 2*BH
LDS_AUX = NSLOT * SLOT
LDS_STATS = LDS_AUX
LDS_CS = LDS_AUX + 2048
LDS_TOTAL = 163840
LDS_KVS = 0
LDS_RP = SLOT + 24576
WS_PQ = 0
WS_H = 2621440
WS_KV = WS_H + 6291456
WS_STATS = WS_KV + 65536
WS_WF = WS_STATS + 32768
WS_FLAGS = WS_WF + 544*5120
WS_USED = WS_FLAGS + 4096
LOG2E = 1.4426950408889634

S_X = 8; S_B0 = 12; S_B1 = 16; S_WS = 20; S_DBG = 24
S_RB = 26; S_CG = 27; S_WAVE = 28; S_TYPE = 29; S_SUB = 30; S_BSTR = 31
S_CB0 = 32; S_CB1 = 33; S_ROT = 34; S_SLOT = 35; S_CNT = 36
S_T = 37
S_EPS6 = 40
S_L2E = 42
S_AOFF = 56; S_BOFF = 57; S_M0S = 60; S_T2 = 61; S_T3 = 62; S_T4 = 63
S_EXS = 64
S_OK = 67
S_NONCE = 68

V_ACC = 96
def acc(mt, ct): return V_ACC + (ct * 4 + mt) * 4
V_X = 32
V_W = 64
V_XB = 2; V_WB = 3; V_XA = 4; V_WA = 6
V_LANE = 8; V_I = 9; V_G = 10
V_CSA = 80
V_ONES = 92

OPTS = {}
def SM():
    m = OPTS.get('smod', 'sc1')
    return (' ' + m.replace('_', ' ')) if m else ''
STAMP = False
WS_STAMP = 0x1000000
def stamp(e, idx):
    if STAMP:
        e(f"s_memtime {s(70 + 2*idx, 2)}")
        e("s_waitcnt lgkmcnt(0)")
def stamp_flush(e, n):
    if STAMP:
        e(f"s_lshl_b32 {s(S_T)}, s2, 3"); e(f"s_add_u32 {s(S_T)}, {s(S_T)}, {s(S_WAVE)}"); e(f"s_lshl_b32 {s(S_T)}, {s(S_T)}, 6")
        e(f"s_add_u32 {s(S_T)}, {s(S_T)}, {WS_STAMP}")
        e(f"v_mov_b32 v14, 0")
        e("s_memrealtime s[88:89]"); e("s_waitcnt lgkmcnt(0)")
        for k in range(n):
            e(f"v_mov_b32 v15, {s(70 + 2*k)}")
            e(f"buffer_store_dword v15, v14, {s(S_WS,4)}, {s(S_T)} offen offset:{4*k}")
            e("s_nop 1")
        e(f"v_mov_b32 v15, s86"); e(f"buffer_store_dword v15, v14, {s(S_WS,4)}, {s(S_T)} offen offset:{4*8}"); e("s_nop 1")
        e(f"v_mov_b32 v15, s88"); e(f"buffer_store_dword v15, v14, {s(S_WS,4)}, {s(S_T)} offen offset:{4*9}"); e("s_nop 1")
        if OPTS.get("rtloop"):
            e(f"v_mov_b32 v15, s84"); e(f"buffer_store_dword v15, v14, {s(S_WS,4)}, {s(S_T)} offen offset:{4*10}"); e("s_nop 1")
            e(f"v_mov_b32 v15, s85"); e(f"buffer_store_dword v15, v14, {s(S_WS,4)}, {s(S_T)} offen offset:{4*11}"); e("s_nop 1")

def cs_owned(w): return [ct for ct in (w, w + 4, w + 8) if ct < 10]

def wrap_slot(e, sreg):
    e(f"s_add_u32 {s(sreg)}, {s(sreg)}, {SLOT}")
    e(f"s_cmp_eq_u32 {s(sreg)}, {NSLOT*SLOT}")
    e(f"s_cselect_b32 {s(sreg)}, 0, {s(sreg)}")

def consumer_loop(e, swapped, tag, w):
    own = cs_owned(w) if not OPTS.get("nocolsum") else []
    RING = 4
    q = Queue(e, "lgkmcnt", 15)
    def rd_x(par, mt):
        if OPTS.get("nox"): return
        e(f"ds_read_b128 {v(V_X + par*16 + mt*4, 4)}, {v(V_XA + par)} offset:{mt*2048}")
        q.issue(("x", par, mt))
    def rd_w(f, part):
        if OPTS.get("now"): return
        ks, ct = divmod(f % 20, 10)
        half, c16 = divmod(ct, 5)
        off = half * BH + ks * 5120 + c16 * 32 + part * 1280
        ring = f % RING
        e(f"ds_read_b64_tr_b16 {v(V_W + ring*4 + part*2, 2)}, {v(V_WA)} offset:{off}")
        q.issue(("w", ring, part))
    def next_addr():
        e(f"v_add_u32 {v(V_XA)}, {s(S_SLOT)}, {v(V_XB)}")
        e(f"v_add_u32 {v(V_WA)}, {s(S_SLOT)}, {v(V_WB)}")
        e(f"v_xor_b32 {v(V_XA + 1)}, 64, {v(V_XA)}")
        wrap_slot(e, S_SLOT)
    sched = {G: [] for G in range(20)}
    sched[0] = [("w", 2, 0), ("w", 2, 1), ("w", 3, 0), ("w", 3, 1)]
    for G in range(1, 17): sched[G] = [("w", G + 3, 0), ("w", G + 3, 1)]
    for k, G in enumerate((4, 5, 6, 7)): sched[G].append(("x", 1, k))
    sched[18] = [("x", 0, 0), ("x", 0, 1), ("w", 20, 0), ("w", 20, 1)]
    sched[19] = [("x", 0, 2), ("x", 0, 3), ("w", 21, 0), ("w", 21, 1)]
    def do_read(r):
        if r[0] == "x": rd_x(r[1], r[2])
        else: rd_w(r[1], r[2])
    e(f"s_mov_b32 {s(S_SLOT)}, 0")
    stamp(e, 1)
    e("s_barrier")
    stamp(e, 2)
    if OPTS.get("rtloop"): e("s_memrealtime s[94:95]"); e("s_waitcnt lgkmcnt(0)"); e("s_mov_b32 s84, s94")
    next_addr()
    for G in (18, 19):
        for r in sched[G]: do_read(r)
    state0 = list(q.p)
    UNR = OPTS.get("unroll", 1)
    e(f"s_mov_b32 {s(S_CNT)}, {NST // UNR}")
    e.raw(".p2align 6")
    e.label(f"L_cloop_{tag}")
    for G in [g for _ in range(UNR) for g in range(20)]:
        ks, ct = divmod(G, 10)
        ring = G % RING
        reads = list(sched[G])
        if G == 18:
            q.drain()
            e("s_barrier")
            next_addr()
        ri = 0
        for mt in range(4):
            q.wait(("w", ring, 0), ("w", ring, 1), ("x", ks, mt))
            A = acc(mt, ct)
            xo = v(V_X + ks*16 + mt*4, 4); wo = v(V_W + ring*4, 4)
            if OPTS.get("nomfma"): pass
            elif swapped: e(f"v_mfma_f32_16x16x32_bf16 {v(A,4)}, {wo}, {xo}, {v(A,4)}")
            else: e(f"v_mfma_f32_16x16x32_bf16 {v(A,4)}, {xo}, {wo}, {v(A,4)}")
            if mt == 3 and ct in own and not OPTS.get("nomfma"):
                C = V_CSA + 4*own.index(ct)
                if swapped: e(f"v_mfma_f32_16x16x32_bf16 {v(C,4)}, {wo}, {v(V_ONES,4)}, {v(C,4)}")
                else: e(f"v_mfma_f32_16x16x32_bf16 {v(C,4)}, {v(V_ONES,4)}, {wo}, {v(C,4)}")
            nrd = (len(reads) - ri + (3 - mt)) // (4 - mt)
            for _ in range(nrd):
                do_read(reads[ri]); ri += 1
        assert ri == len(reads)
    e(f"s_sub_u32 {s(S_CNT)}, {s(S_CNT)}, 1")
    e(f"s_cmp_lg_u32 {s(S_CNT)}, 0")
    e(f"s_cbranch_scc1 L_cloop_{tag}")
    assert q.p == state0, (q.p, state0)
    e("s_waitcnt lgkmcnt(0)")
    stamp(e, 3)
    if OPTS.get("rtloop"): e("s_memrealtime s[94:95]"); e("s_waitcnt lgkmcnt(0)"); e("s_mov_b32 s85, s94")
    if own:
        if swapped:
            e(f"v_lshlrev_b32 v11, 4, {v(V_G)}"); e(f"v_add_u32 v11, {LDS_CS}, v11")
            e(f"v_cmp_eq_u32 vcc, 0, {v(V_I)}")
        else:
            e(f"v_lshlrev_b32 v11, 2, {v(V_I)}"); e(f"v_add_u32 v11, {LDS_CS}, v11")
            e(f"v_cmp_eq_u32 vcc, 0, {v(V_G)}")
        e("s_nop 4")
        e(f"s_and_saveexec_b64 {s(S_EXS,2)}, vcc")
        for k, ct in enumerate(own):
            if swapped: e(f"ds_write_b128 v11, {v(V_CSA + 4*k,4)} offset:{ct*64}")
            else: e(f"ds_write_b32 v11, {v(V_CSA + 4*k)} offset:{ct*64}")
        e(f"s_mov_b64 exec, {s(S_EXS,2)}")
        e("s_waitcnt lgkmcnt(0)")

def setup_pre(e):
    e("s_cmp_ge_u32 s2, 256")
    e("s_cbranch_scc1 L_k1_end")
    e("s_load_dwordx4 s[4:7], s[0:1], 0")
    e("s_load_dwordx4 s[48:51], s[0:1], 32")
    e("s_load_dwordx4 s[52:55], s[0:1], 64")
    if STAMP: e(f"s_memtime {s(70,2)}")
    if STAMP: e(f"s_memrealtime s[86:87]")
    e(f"v_lshrrev_b32 v1, 6, v0")
    e(f"v_and_b32 {v(V_LANE)}, 63, v0")
    e(f"v_readfirstlane_b32 {s(S_WAVE)}, v1")
    e(f"s_and_b32 {s(S_T)}, s2, 7")
    e(f"s_lshr_b32 {s(S_T+1)}, s2, 3")
    e(f"s_and_b32 {s(S_RB)}, {s(S_T)}, 1")
    e(f"s_lshl_b32 {s(S_RB)}, {s(S_RB)}, 2")
    e(f"s_and_b32 {s(S_T+2)}, {s(S_T+1)}, 3")
    e(f"s_add_u32 {s(S_RB)}, {s(S_RB)}, {s(S_T+2)}")
    e(f"s_lshr_b32 {s(S_T)}, {s(S_T)}, 1")
    e(f"s_lshr_b32 {s(S_T+1)}, {s(S_T+1)}, 2")
    e(f"s_lshl_b32 {s(S_CG)}, {s(S_T)}, 3"); e(f"s_add_u32 {s(S_CG)}, {s(S_CG)}, {s(S_T+1)}")
    e(f"s_mul_i32 {s(S_SUB)}, {s(S_T)}, 5"); e(f"s_add_u32 {s(S_SUB)}, {s(S_SUB)}, {s(S_T+1)}"); e(f"s_sub_u32 {s(S_SUB)}, {s(S_SUB)}, 3")
    e(f"s_mov_b32 {s(S_TYPE)}, 2")
    e(f"s_cmp_eq_u32 {s(S_T+1)}, 2")
    e(f"s_cselect_b32 {s(S_TYPE)}, 0, {s(S_TYPE)}"); e(f"s_cselect_b32 {s(S_SUB)}, {s(S_T)}, {s(S_SUB)}")
    e(f"s_lshl_b32 {s(S_T+2)}, {s(S_T)}, 1"); e(f"s_add_u32 {s(S_T+2)}, {s(S_T+2)}, {s(S_T+1)}")
    e(f"s_cmp_lt_u32 {s(S_T+1)}, 2")
    e(f"s_cselect_b32 {s(S_TYPE)}, 1, {s(S_TYPE)}"); e(f"s_cselect_b32 {s(S_SUB)}, {s(S_T+2)}, {s(S_SUB)}")
    e(f"s_mul_i32 {s(S_CB0)}, {s(S_SUB)}, 160")
    e(f"s_mov_b32 {s(S_CB1)}, {s(S_CB0)}")
    e(f"s_and_b32 {s(S_ROT)}, {s(S_SUB)}, 1"); e(f"s_lshl_b32 {s(S_ROT)}, {s(S_ROT)}, 1")
    e(f"s_cmp_eq_u32 {s(S_TYPE)}, 2")
    e(f"s_cselect_b32 {s(S_ROT)}, {s(S_ROT)}, 0")
    e(f"s_mov_b32 {s(S_BSTR)}, 3840"); e(f"s_mov_b32 {s(S_B0+2)}, 2457600")
    e(f"s_cselect_b32 {s(S_BSTR)}, 3072, {s(S_BSTR)}")
    e(f"s_cselect_b32 {s(S_B0+2)}, 1966080, {s(S_B0+2)}"); e(f"s_mov_b32 {s(S_B1+2)}, {s(S_B0+2)}")
    e(f"s_cmp_eq_u32 {s(S_TYPE)}, 1")
    e(f"s_cselect_b32 {s(S_T)}, 1280, 0"); e(f"s_cselect_b32 {s(S_T+1)}, 2560, 0")
    e(f"s_add_u32 {s(S_CB0)}, {s(S_CB0)}, {s(S_T)}"); e(f"s_add_u32 {s(S_CB1)}, {s(S_CB1)}, {s(S_T+1)}")
    e(f"s_cmp_eq_u32 {s(S_TYPE)}, 0")
    e(f"s_cselect_b32 {s(S_T)}, {s(S_CB0)}, 0"); e(f"s_cselect_b32 {s(S_T+1)}, 160, 0")
    e(f"s_add_u32 {s(S_CB0)}, {s(S_CB0)}, {s(S_T)}"); e(f"s_add_u32 {s(S_CB1)}, {s(S_CB1)}, {s(S_T)}"); e(f"s_add_u32 {s(S_CB1)}, {s(S_CB1)}, {s(S_T+1)}")
    e(f"s_mov_b32 {s(S_X+2)}, 2621440"); e(f"s_mov_b32 {s(S_X+3)}, 0x20000")
    e(f"s_mov_b32 {s(S_WS+2)}, {WS_USED if not STAMP else 0x2000000}"); e(f"s_mov_b32 {s(S_WS+3)}, 0x20000")
    e(f"s_mov_b32 {s(S_B0+3)}, 0x20000"); e(f"s_mov_b32 {s(S_B1+3)}, 0x20000")
    e(f"v_and_b32 {v(V_I)}, 15, {v(V_LANE)}")
    e(f"v_lshrrev_b32 {v(V_G)}, 4, {v(V_LANE)}")

def setup_post(e):
    e("s_waitcnt lgkmcnt(0)")
    e(f"s_mov_b32 {s(S_X)}, s4"); e(f"s_mov_b32 {s(S_X+1)}, s5")
    e(f"s_cmp_eq_u32 {s(S_TYPE)}, 2")
    e(f"s_cselect_b32 {s(S_B0)}, s48, s6"); e(f"s_cselect_b32 {s(S_B0+1)}, s49, s7")
    e(f"s_cselect_b32 {s(S_B1)}, s50, s6"); e(f"s_cselect_b32 {s(S_B1+1)}, s51, s7")
    e(f"s_mov_b32 {s(S_WS)}, s54"); e(f"s_mov_b32 {s(S_WS+1)}, s55")
    e(f"s_mov_b32 {s(S_DBG)}, s52"); e(f"s_mov_b32 {s(S_DBG+1)}, s53")

def consumer_setup(e):
    e(f"v_and_b32 v11, 7, {v(V_I)}")
    e(f"v_xor_b32 v11, {v(V_G)}, v11")
    e(f"v_lshlrev_b32 v11, 4, v11")
    e(f"s_lshl_b32 {s(S_T)}, {s(S_WAVE)}, 13")
    e(f"v_lshlrev_b32 v12, 7, {v(V_I)}")
    e(f"v_add3_u32 {v(V_XB)}, v11, v12, {s(S_T)}")
    e(f"v_lshrrev_b32 v11, 1, {v(V_G)}")
    e(f"v_lshlrev_b32 v11, 4, v11")
    e(f"v_and_b32 v12, 1, {v(V_G)}")
    e(f"v_lshlrev_b32 v12, 2, v12")
    e(f"v_lshrrev_b32 v13, 2, {v(V_I)}")
    e(f"v_add3_u32 v11, v11, v12, v13")
    e(f"v_mul_u32_u24 v11, 160, v11")
    e(f"v_and_b32 v12, 3, {v(V_I)}")
    e(f"v_lshlrev_b32 v12, 3, v12")
    e(f"v_add_u32 v11, v11, v12")
    e(f"v_add_u32 {v(V_WB)}, {A_BYTES}, v11")
    if OPTS.get("dry", 1):
        e("s_mov_b64 exec, 0")
        for ty, nm in ((2, "gu"), (0, "q"), (1, "kv")):
            if ty != 1: e(f"s_cmp_eq_u32 {s(S_TYPE)}, {ty}"); e(f"s_cbranch_scc0 L_dry_n{nm}")
            for w in range(4):
                if w < 3:
                    e(f"s_cmp_eq_u32 {s(S_WAVE)}, {w}"); e(f"s_cbranch_scc1 L_{nm}_b{w}")
                else: e(f"s_branch L_{nm}_b{w}")
            if ty != 1: e.label(f"L_dry_n{nm}")
    e.label("L_dry_ret")
    e("s_mov_b64 exec, -1")
    e("s_nop 3")
    for r in range(V_CSA, V_CSA + 12): e(f"v_mov_b32 {v(r)}, 0")
    for r in range(V_ONES, V_ONES + 4): e(f"v_mov_b32 {v(r)}, 0x3f803f80")
    for r in range(V_ACC, 256):
        e(f"v_mov_b32 {v(r)}, 0")

P_VA = 16
P_VB = 20
P_ONE = 26
P_SL = 100
P_POLL = 60
P_RES = 56
DBG_NONCE = 0
DBG_FLAG = 64

def div10(e, dst, src):
    e(f"v_mul_u32_u24 {v(dst)}, 205, {v(src)}")
    e(f"v_lshrrev_b32 {v(dst)}, 11, {v(dst)}")

def endp(e):
    if OPTS.get("fused"): e("s_branch L_phase_end")
    else: e("s_endpgm")

def lane0(e, on=True):
    if on:
        e(f"v_cmp_eq_u32 vcc, 0, {v(V_LANE)}")
        e(f"s_and_saveexec_b64 {s(S_EXS,2)}, vcc")
    else:
        e(f"s_mov_b64 exec, {s(S_EXS,2)}")

S_DA = 58; S_DB = 59; S_MA = 44; S_MB = 45
def issue_a(e, q, tag):
    for a_ in range(16):
        e(f"s_add_u32 m0, {s(S_MA)}, {a_*1024}")
        e(f"s_add_u32 {s(S_T)}, {s(S_AOFF)}, {a_*8*1280}")
        e(f"buffer_load_dwordx4 {v(P_VA)}, {s(S_X,4)}, {s(S_T)} offen lds")
        q.issue(tag)
    e(f"s_add_u32 {s(S_AOFF)}, {s(S_AOFF)}, 128")

def issue_b(e, q, tag):
    for b in range(10):
        if b == 5: e(f"s_add_u32 {s(S_BOFF)}, {s(S_BOFF)}, {s(S_T4)}")
        e(f"s_add_u32 m0, {s(S_MB)}, {b*1024}")
        e("s_nop 0")
        e(f"buffer_load_dwordx4 {v(P_VB + b % 5)}, {s(S_B0,4)}, {s(S_BOFF)} offen lds")
        q.issue(tag)
    e(f"s_add_u32 {s(S_BOFF)}, {s(S_BOFF)}, {s(S_T4)}")

def set_slot(e, slot_sgpr=None, slot_imm=None):
    if slot_sgpr is None:
        e(f"s_add_u32 {s(S_MA)}, {s(S_DA)}, {slot_imm}"); e(f"s_add_u32 {s(S_MB)}, {s(S_DB)}, {slot_imm}")
    else:
        e(f"s_add_u32 {s(S_MA)}, {s(S_DA)}, {s(slot_sgpr)}"); e(f"s_add_u32 {s(S_MB)}, {s(S_DB)}, {s(slot_sgpr)}")

S_KST = 46
def rot_wrap(e):
    if not OPTS.get("rot", 1): return
    e(f"s_add_u32 {s(S_KST)}, {s(S_KST)}, 1")
    e(f"s_cmp_eq_u32 {s(S_KST)}, 10")
    e(f"s_cselect_b32 {s(S_T)}, 1280, 0"); e(f"s_cselect_b32 {s(S_T+1)}, s47, 0"); e(f"s_cselect_b32 {s(S_KST)}, 0, {s(S_KST)}")
    e(f"s_sub_u32 {s(S_AOFF)}, {s(S_AOFF)}, {s(S_T)}"); e(f"s_sub_u32 {s(S_BOFF)}, {s(S_BOFF)}, {s(S_T+1)}")

def issue_stage(e, q, slot_sgpr=None, slot_imm=None, tag=None):
    if OPTS.get("nodma") and slot_sgpr is not None: return
    set_slot(e, slot_sgpr, slot_imm)
    issue_a(e, q, tag)
    issue_b(e, q, tag)
    rot_wrap(e)

def dma_wave(e):
    if OPTS.get("dprio", 3): e(f"s_setprio {OPTS.get('dprio', 3)}")
    q = Queue(e, "vmcnt", 63)
    n = 26
    e(f"s_sub_u32 {s(S_T3)}, {s(S_WAVE)}, 4")
    e(f"s_lshl_b32 {s(S_DA)}, {s(S_T3)}, 14")
    e(f"s_mul_i32 {s(S_DB)}, {s(S_T3)}, {BH}"); e(f"s_add_u32 {s(S_DB)}, {s(S_DB)}, {A_BYTES}")
    e(f"v_lshrrev_b32 v12, 3, {v(V_LANE)}")
    e(f"v_and_b32 v11, 7, {v(V_LANE)}")
    e(f"v_xor_b32 v11, v11, v12")
    e(f"v_lshlrev_b32 v11, 4, v11")
    e(f"v_mul_u32_u24 v12, 1280, v12")
    e(f"v_add_u32 {v(P_VA)}, v11, v12")
    e(f"s_lshl_b32 {s(S_AOFF)}, {s(S_RB)}, 1"); e(f"s_add_u32 {s(S_AOFF)}, {s(S_AOFF)}, {s(S_T3)}")
    e(f"s_mul_i32 {s(S_AOFF)}, {s(S_AOFF)}, {128*1280}")
    for b in range(5):
        e(f"v_add_u32 v11, {64*b}, {v(V_LANE)}")
        div10(e, 12, 11)
        e(f"v_mul_u32_u24 v13, 10, v12")
        e(f"v_sub_u32 v13, v11, v13")
        e(f"v_add_u32 v13, {s(S_ROT)}, v13")
        e(f"v_cmp_le_u32 vcc, 10, v13")
        e(f"v_subrev_u32 v14, 10, v13")
        e(f"v_and_b32 v15, 0x13, v12")
        e(f"v_cndmask_b32 v13, v13, v14, vcc")
        e(f"v_and_b32 v14, 4, v12"); e(f"v_lshlrev_b32 v14, 1, v14"); e(f"v_or_b32 v15, v15, v14")
        e(f"v_and_b32 v14, 8, v12"); e(f"v_lshrrev_b32 v14, 1, v14"); e(f"v_or_b32 v15, v15, v14")
        e(f"v_mul_lo_u32 v15, v15, {s(S_BSTR)}")
        e(f"v_lshlrev_b32 v13, 4, v13")
        e(f"v_add_u32 {v(P_VB + b)}, v15, v13")
    e(f"s_cmp_eq_u32 {s(S_T3)}, 0")
    e(f"s_cselect_b32 {s(S_BOFF)}, {s(S_CB0)}, {s(S_CB1)}")
    e(f"s_lshl_b32 {s(S_T4)}, {s(S_BSTR)}, 5")
    if OPTS.get("rot", 1):
        R = OPTS.get("rot", 1)
        e(f"s_lshl_b32 {s(S_KST)}, {s(S_RB)}, 1"); e(f"s_add_u32 {s(S_T)}, {s(S_RB)}, 2")
        e(f"s_cmp_lt_u32 {s(S_RB)}, 2"); e(f"s_cselect_b32 {s(S_KST)}, {s(S_KST)}, {s(S_T)}")
        if R == 4:
            e(f"s_and_b32 {s(S_T)}, {s(S_RB)}, 3"); e(f"s_mul_i32 {s(S_KST)}, {s(S_T)}, 5"); e(f"s_lshr_b32 {s(S_KST)}, {s(S_KST)}, 1")
            e(f"s_lshr_b32 {s(S_T)}, {s(S_RB)}, 2"); e(f"s_add_u32 {s(S_KST)}, {s(S_KST)}, {s(S_T)}")
        if R in (2, 3):
            if R == 3: e(f"s_mov_b32 {s(S_KST)}, 0")
            e(f"s_and_b32 {s(S_T)}, {s(S_CG)}, 7")
            if OPTS.get("rotm", 1) > 1: e(f"s_mul_i32 {s(S_T)}, {s(S_T)}, {OPTS.get('rotm')}")
            e(f"s_add_u32 {s(S_KST)}, {s(S_KST)}, {s(S_T)}")
            for _ in range(3):
                e(f"s_cmp_ge_u32 {s(S_KST)}, 10"); e(f"s_cselect_b32 {s(S_T)}, 10, 0"); e(f"s_sub_u32 {s(S_KST)}, {s(S_KST)}, {s(S_T)}")
        e(f"s_mul_i32 s47, {s(S_BSTR)}, 640")
        e(f"s_lshl_b32 {s(S_T)}, {s(S_KST)}, 7"); e(f"s_add_u32 {s(S_AOFF)}, {s(S_AOFF)}, {s(S_T)}")
        e(f"s_mul_i32 {s(S_T)}, {s(S_KST)}, {s(S_BSTR)}"); e(f"s_lshl_b32 {s(S_T)}, {s(S_T)}, 6"); e(f"s_add_u32 {s(S_BOFF)}, {s(S_BOFF)}, {s(S_T)}")
    setup_post(e)
    e(f"s_cmp_eq_u32 {s(S_T3)}, 0")
    e(f"s_cselect_b32 {s(S_B0)}, {s(S_B0)}, {s(S_B1)}"); e(f"s_cselect_b32 {s(S_B0+1)}, {s(S_B0+1)}, {s(S_B1+1)}")
    stamp(e, 1)
    issue_stage(e, q, slot_imm=0, tag=0)
    stamp(e, 2)
    NPRE = OPTS.get("npre", 2)
    if NPRE == 2: issue_stage(e, q, slot_imm=SLOT, tag=1)
    if NPRE == 3:
        set_slot(e, None, SLOT); issue_b(e, q, 1)
    if NPRE == 4:
        set_slot(e, None, SLOT); issue_a(e, q, 1)
    stamp(e, 3)
    q.wait(0)
    stamp(e, 5)
    e("s_barrier")
    if NPRE == 1: issue_stage(e, q, slot_imm=SLOT, tag=1)
    if NPRE == 3: issue_a(e, q, 1)
    if NPRE == 4: issue_b(e, q, 1)
    issue_stage(e, q, slot_imm=2*SLOT, tag=2)
    e(f"s_mov_b32 {s(S_M0S)}, 0")
    e(f"s_mov_b32 {s(S_CNT)}, 7")
    e.label(f"L_dloop")
    e(f"s_waitcnt vmcnt({n})")
    e("s_barrier")
    q2 = Queue(e, "vmcnt", 63)
    issue_stage(e, q2, slot_sgpr=S_M0S, tag="x"); wrap_slot(e, S_M0S)
    e(f"s_sub_u32 {s(S_CNT)}, {s(S_CNT)}, 1")
    e(f"s_cmp_lg_u32 {s(S_CNT)}, 0")
    e(f"s_cbranch_scc1 L_dloop")
    e(f"s_waitcnt vmcnt({n})"); e("s_barrier")
    e(f"s_waitcnt vmcnt(0)"); e("s_barrier")
    e("s_barrier")
    e("s_barrier")
    e(f"s_cmp_eq_u32 {s(S_TYPE)}, 1")
    e(f"s_cbranch_scc1 L_kv_final")
    if STAMP:
        stamp(e, 4); stamp(e, 6); stamp_flush(e, 7)
    endp(e)

def stats4_load(e, row_sgpr):
    e(f"v_add_u32 v11, {s(row_sgpr)}, {v(V_G)}")
    e(f"v_mul_u32_u24 v11, 1280, v11")
    e(f"v_lshlrev_b32 v14, 4, {v(V_I)}")
    e(f"v_add_u32 v11, v11, v14")
    for k in range(5):
        e(f"buffer_load_dwordx4 {v(P_SL + 4*k, 4)}, v11, {s(S_X,4)}, 0 offen offset:{k*256}")

def stats4_compute(e):
    A = P_SL + 20
    for k in range(4): e(f"v_mov_b32 {v(A + k)}, 0")
    for d in range(20):
        e(f"v_dot2c_f32_bf16 {v(A + (d & 1))}, {v(P_SL + d)}, {v(P_ONE)}")
        e(f"v_dot2c_f32_bf16 {v(A + 2 + (d & 1))}, {v(P_SL + d)}, {v(P_SL + d)}")
    e("s_nop 2")
    e(f"v_add_f32 {v(A)}, {v(A)}, {v(A+1)}")
    e(f"v_add_f32 {v(A+2)}, {v(A+2)}, {v(A+3)}")
    for ctl in ("quad_perm:[1,0,3,2]", "quad_perm:[2,3,0,1]", "row_half_mirror", "row_mirror"):
        e("s_nop 0")
        e(f"v_add_f32_dpp {v(A)}, {v(A)}, {v(A)} {ctl} row_mask:0xf bank_mask:0xf")
        e(f"v_add_f32_dpp {v(A+2)}, {v(A+2)}, {v(A+2)} {ctl} row_mask:0xf bank_mask:0xf")
        e("s_nop 0")
    M = P_SL + 26
    e(f"v_mul_f32 {v(M)}, {f32(1.0/640)}, {v(A)}")
    e(f"v_mul_f32 {v(A+1)}, {v(M)}, {v(M)}")
    e(f"v_mul_f32 {v(A+2)}, {f32(1.0/640)}, {v(A+2)}")
    e(f"v_sub_f32 {v(A+2)}, {v(A+2)}, {v(A+1)}")
    e(f"v_max_f32 {v(A+2)}, 0, {v(A+2)}")
    e(f"v_add_f32 {v(A+2)}, {f32(1e-5)}, {v(A+2)}")
    e(f"v_rsq_f32 {v(M+1)}, {v(A+2)}")
    e("s_nop 0")

def write_stats_lds_from_pairs(e, R, tag):
    e(f"s_cmp_eq_u32 {s(S_TYPE)}, 1")
    e(f"s_cbranch_scc1 L_wsk_{tag}")
    e(f"v_lshlrev_b32 v13, 5, {v(V_LANE)}")
    e(f"v_add_u32 v13, {LDS_STATS}, v13")
    e(f"ds_write_b128 v13, {v(R,4)}")
    e(f"ds_write_b128 v13, {v(R+4,4)} offset:16")
    e(f"s_branch L_wsd_{tag}")
    e.label(f"L_wsk_{tag}")
    T = R + 8
    for k in range(4):
        e(f"v_mov_b32 {v(T + k)}, {v(R + 2*k)}")
        e(f"v_mov_b32 {v(T + 4 + k)}, {v(R + 2*k + 1)}")
    e(f"v_lshlrev_b32 v13, 4, {v(V_LANE)}")
    e(f"v_add_u32 v13, {LDS_STATS}, v13")
    e(f"ds_write_b128 v13, {v(T,4)}")
    e(f"ds_write_b128 v13, {v(T+4,4)} offset:1024")
    e.label(f"L_wsd_{tag}")

def fetch_stats(e):
    e(f"s_lshl_b32 {s(S_T)}, {s(S_RB)}, 12")
    e(f"s_add_u32 {s(S_T)}, {s(S_T)}, {WS_STATS}")
    e(f"v_lshlrev_b32 v11, 6, {v(V_LANE)}")
    for k in range(4):
        e(f"buffer_load_dwordx4 {v(P_SL + 4*k,4)}, v11, {s(S_WS,4)}, {s(S_T)} offen offset:{16*k} sc1")

def check_stats(e, tag):
    e(f"v_cmp_eq_u32 vcc, {s(S_NONCE)}, {v(P_SL + 1)}")
    e(f"s_mov_b64 s[92:93], vcc")
    for k in range(1, 8):
        e(f"v_cmp_eq_u32 vcc, {s(S_NONCE)}, {v(P_SL + 2*k + 1)}")
        e(f"s_and_b64 s[92:93], s[92:93], vcc")
    e(f"s_cmp_eq_u64 s[92:93], -1")
    e(f"s_cbranch_scc0 L_chk_no_{tag}")
    R = P_SL + 16
    for k in range(8):
        e(f"v_mov_b32 {v(R + k)}, {v(P_SL + 2*k)}")
    write_stats_lds_from_pairs(e, R, tag)
    e(f"s_mov_b32 {s(S_OK)}, 1")
    e.label(f"L_chk_no_{tag}")

def publish_stats(e, tag):
    e(f"v_lshlrev_b32 v13, 4, {v(V_G)}")
    e(f"s_lshl_b32 {s(S_T)}, {s(S_T3)}, 4"); e(f"s_add_u32 {s(S_T)}, {s(S_T)}, {WS_STATS}")
    e(f"v_mov_b32 v29, {s(S_NONCE)}"); e(f"v_mov_b32 v31, {s(S_NONCE)}")
    e(f"v_mov_b32 v33, {s(S_NONCE)}"); e(f"v_mov_b32 v35, {s(S_NONCE)}")
    e(f"v_mov_b32 v28, {v(P_RES)}"); e(f"v_mov_b32 v30, {v(P_RES+1)}")
    e(f"v_mov_b32 v32, {v(P_RES+2)}"); e(f"v_mov_b32 v34, {v(P_RES+3)}")
    e(f"v_cmp_eq_u32 vcc, 0, {v(V_I)}")
    e(f"s_and_saveexec_b64 {s(S_EXS,2)}, vcc")
    e(f"buffer_store_dwordx4 v[28:31], v13, {s(S_WS,4)}, {s(S_T)} offen sc1")
    e(f"buffer_store_dwordx4 v[32:35], v13, {s(S_WS,4)}, {s(S_T)} offen offset:64 sc1")
    e(f"s_mov_b64 exec, {s(S_EXS,2)}")

def poll_nonce(e):
    e(f"v_mov_b32 v11, 0")
    e(f"global_load_dword {v(P_POLL)}, v11, {s(S_DBG,2)} offset:{DBG_NONCE} sc1")

def try_publish(e, tag, repoll=True):
    e(f"s_cmp_lg_u32 {s(S_NONCE)}, 0"); e(f"s_cbranch_scc1 L_tp_{tag}")
    e("s_waitcnt vmcnt(0)")
    e(f"v_readfirstlane_b32 {s(S_NONCE)}, {v(P_POLL)}")
    e("s_nop 3")
    e(f"s_cmp_eq_u32 {s(S_NONCE)}, 0"); e(f"s_cbranch_scc1 L_tpr_{tag}")
    publish_stats(e, tag)
    e(f"s_branch L_tp_{tag}")
    e.label(f"L_tpr_{tag}")
    if repoll: poll_nonce(e)
    e.label(f"L_tp_{tag}")

def hbar(e, j):
    e("s_barrier")
    if OPTS.get("hstamp"):
        e("s_memtime s[90:91]"); e("s_waitcnt lgkmcnt(0)")
        e(f"v_writelane_b32 v62, s90, {j}")

def helper0(e, opts):
    e("s_cmp_eq_u32 s2, 0"); e("s_cbranch_scc0 L_h0_nononce")
    e("s_memrealtime s[92:93]"); e("s_waitcnt lgkmcnt(0)")
    e("s_or_b32 s92, s92, 1")
    e("v_mov_b32 v11, 0"); e("v_mov_b32 v12, s92")
    lane0(e)
    e(f"global_store_dword v11, v12, {s(S_DBG,2)} offset:{DBG_NONCE} sc1")
    lane0(e, False)
    e.label("L_h0_nononce")
    e(f"s_lshl_b32 {s(S_T)}, {s(S_RB)}, 8")
    e(f"s_lshl_b32 {s(S_T+1)}, {s(S_CG)}, 3")
    e(f"s_add_u32 {s(S_T3)}, {s(S_T)}, {s(S_T+1)}")
    stats4_load(e, S_T3)
    e(f"v_add_u32 v11, {4*1280}, v11")
    for k in range(5):
        e(f"buffer_load_dwordx4 {v(P_SL + 32 + 4*k, 4)}, v11, {s(S_X,4)}, 0 offen offset:{k*256}")
    e(f"v_mov_b32 {v(P_ONE)}, 0x3f803f80")
    e(f"s_mov_b32 {s(S_OK)}, 0"); e(f"s_mov_b32 {s(S_NONCE)}, 0")
    LATE = OPTS.get("statlate", 0)
    def do_stats():
        e("s_waitcnt vmcnt(5)")
        stats4_compute(e)
        e(f"v_mov_b32 {v(P_RES)}, {v(P_SL+26)}"); e(f"v_mov_b32 {v(P_RES+1)}, {v(P_SL+27)}")
        e("s_waitcnt vmcnt(0)")
        poll_nonce(e)
        for k in range(20): e(f"v_mov_b32 {v(P_SL + k)}, {v(P_SL + 32 + k)}")
        stats4_compute(e)
        e(f"v_mov_b32 {v(P_RES+2)}, {v(P_SL+26)}"); e(f"v_mov_b32 {v(P_RES+3)}, {v(P_SL+27)}")
    def do_stats_a():
        e("s_waitcnt vmcnt(5)")
        stats4_compute(e)
        e(f"v_mov_b32 {v(P_RES)}, {v(P_SL+26)}"); e(f"v_mov_b32 {v(P_RES+1)}, {v(P_SL+27)}")
        e("s_waitcnt vmcnt(0)")
        poll_nonce(e)
    def do_stats_b():
        for k in range(20): e(f"v_mov_b32 {v(P_SL + k)}, {v(P_SL + 32 + k)}")
        stats4_compute(e)
        e(f"v_mov_b32 {v(P_RES+2)}, {v(P_SL+26)}"); e(f"v_mov_b32 {v(P_RES+3)}, {v(P_SL+27)}")
    if not LATE: do_stats()
    FJ = OPTS.get("fetchj", 5); CJ = OPTS.get("checkj", 8)
    for j in range(11):
        e("s_barrier")
        if j == 0 and LATE: do_stats_a()
        if j == 1 and LATE: do_stats_b()
        pj = (2, 3, 4) if LATE else (1, 2, 3, 4)
        if j in pj: try_publish(e, f"l{j}", repoll=(j < 4))
        if j == FJ: fetch_stats(e)
        if j == CJ:
            e("s_waitcnt vmcnt(0)")
            e(f"s_cmp_eq_u32 {s(S_NONCE)}, 0"); e("s_cbranch_scc1 L_h0_okA")
            if not opts.get("forcefb"): check_stats(e, "a")
            e(f"s_cmp_eq_u32 {s(S_OK)}, 1"); e("s_cbranch_scc1 L_h0_okA")
            fetch_stats(e)
            e.label("L_h0_okA")
        if j == 10:
            e(f"s_cmp_eq_u32 {s(S_OK)}, 1"); e("s_cbranch_scc1 L_h0_okB")
            e(f"s_cmp_eq_u32 {s(S_NONCE)}, 0"); e("s_cbranch_scc1 L_h0_okB")
            e("s_waitcnt vmcnt(0)")
            if not opts.get("forcefb"): check_stats(e, "b")
            e.label("L_h0_okB")
    e(f"s_cmp_eq_u32 {s(S_OK)}, 1"); e(f"s_cbranch_scc1 L_h0_done")
    e(f"s_cmp_eq_u32 {s(S_NONCE)}, 0"); e(f"s_cbranch_scc1 L_h0_fb")
    e(f"s_mov_b32 {s(S_CNT)}, {0 if opts.get('forcefb') else 200}")
    e.label("L_h0_spin")
    e(f"s_cmp_eq_u32 {s(S_CNT)}, 0"); e(f"s_cbranch_scc1 L_h0_fb")
    fetch_stats(e)
    e("s_waitcnt vmcnt(0)")
    check_stats(e, "c")
    e(f"s_sub_u32 {s(S_CNT)}, {s(S_CNT)}, 1")
    e(f"s_cmp_eq_u32 {s(S_OK)}, 1"); e(f"s_cbranch_scc1 L_h0_done")
    e("s_sleep 4")
    e("s_branch L_h0_spin")
    e.label("L_h0_fb")
    e(f"s_mov_b32 {s(S_CNT)}, 0")
    e.label("L_fb_loop")
    e(f"s_lshl_b32 {s(S_T)}, {s(S_RB)}, 8")
    e(f"s_lshl_b32 {s(S_T+1)}, {s(S_CNT)}, 2")
    e(f"s_add_u32 {s(S_T)}, {s(S_T)}, {s(S_T+1)}")
    stats4_load(e, S_T)
    e("s_waitcnt vmcnt(0)")
    stats4_compute(e)
    e(f"v_add_u32 v15, {s(S_T+1)}, {v(V_G)}")
    e(f"v_cmp_eq_u32 vcc, 0, {v(V_I)}")
    e(f"s_and_saveexec_b64 {s(S_EXS,2)}, vcc")
    e(f"s_cmp_eq_u32 {s(S_TYPE)}, 1")
    e(f"s_cbranch_scc1 L_fb_kv")
    e(f"v_lshlrev_b32 v13, 3, v15"); e(f"v_add_u32 v13, {LDS_STATS}, v13")
    e(f"ds_write_b64 v13, {v(P_SL + 26, 2)}")
    e(f"s_branch L_fb_n")
    e.label("L_fb_kv")
    e(f"v_lshlrev_b32 v13, 2, v15"); e(f"v_add_u32 v13, {LDS_STATS}, v13")
    e(f"ds_write_b32 v13, {v(P_SL + 26)}")
    e(f"ds_write_b32 v13, {v(P_SL + 27)} offset:1024")
    e.label("L_fb_n")
    e(f"s_mov_b64 exec, {s(S_EXS,2)}")
    e(f"s_add_u32 {s(S_CNT)}, {s(S_CNT)}, 1")
    e(f"s_cmp_lt_u32 {s(S_CNT)}, 64")
    e("s_cbranch_scc1 L_fb_loop")
    e.label("L_h0_done")
    e("s_waitcnt lgkmcnt(0)")
    e("s_barrier")
    e(f"s_cmp_eq_u32 {s(S_TYPE)}, 1")
    e(f"s_cbranch_scc1 L_kv_final")
    endp(e)

def repack_setup(e):
    for b in range(5):
        e(f"v_add_u32 v11, {64*b}, {v(V_LANE)}")
        div10(e, 12, 11)
        e(f"v_mul_u32_u24 v13, 10, v12"); e(f"v_sub_u32 v13, v11, v13")
        e(f"v_mul_u32_u24 v12, 1280, v12"); e(f"v_lshlrev_b32 v13, 4, v13")
        e(f"v_add_u32 {v(40 + b)}, v12, v13")
    e(f"v_lshlrev_b32 v11, 2, {v(V_G)}"); e(f"v_lshrrev_b32 v12, 2, {v(V_I)}"); e(f"v_add_u32 v11, v11, v12")
    e(f"v_mul_u32_u24 v11, 160, v11"); e(f"v_and_b32 v12, 3, {v(V_I)}"); e(f"v_lshlrev_b32 v12, 3, v12")
    e(f"v_add_u32 v11, v11, v12"); e(f"v_add_u32 v45, {LDS_RP}, v11")
    e(f"v_lshlrev_b32 v46, 4, {v(V_LANE)}")

def repack_issue(e):
    for r in range(3):
        e(f"s_add_u32 {s(S_T)}, s2, {256*r}")
        if r == 2:
            e(f"s_cmp_ge_u32 {s(S_T)}, 544"); e("s_cbranch_scc1 L_rp_i_done")
        e(f"s_lshr_b32 {s(S_T+1)}, {s(S_T)}, 3")
        e(f"s_and_b32 {s(S_T+2)}, {s(S_T)}, 7")
        e(f"s_mul_i32 {s(S_T+2)}, {s(S_T+2)}, 160")
        e(f"s_cmp_ge_u32 {s(S_T+1)}, 48")
        e(f"s_cbranch_scc1 L_rp_wo{r}")
        e(f"s_mul_i32 {s(S_T+1)}, {s(S_T+1)}, {32*1280}"); e(f"s_add_u32 {s(S_T+1)}, {s(S_T+1)}, {s(S_T+2)}")
        for b in range(5):
            e(f"s_mov_b32 m0, {LDS_RP + r*5120 + b*1024}"); e("s_nop 0")
            e(f"buffer_load_dwordx4 {v(40 + b)}, s[44:47], {s(S_T+1)} offen lds")
        e(f"s_branch L_rp_n{r}")
        e.label(f"L_rp_wo{r}")
        e(f"s_sub_u32 {s(S_T+1)}, {s(S_T+1)}, 48")
        e(f"s_mul_i32 {s(S_T+1)}, {s(S_T+1)}, {32*1280}"); e(f"s_add_u32 {s(S_T+1)}, {s(S_T+1)}, {s(S_T+2)}")
        for b in range(5):
            e(f"s_mov_b32 m0, {LDS_RP + r*5120 + b*1024}"); e("s_nop 0")
            e(f"buffer_load_dwordx4 {v(40 + b)}, s[48:51], {s(S_T+1)} offen lds")
        e.label(f"L_rp_n{r}")
    e.label("L_rp_i_done")

def repack_finish(e):
    e("s_waitcnt vmcnt(0)")
    for r in range(3):
        R = 64 + 20*r
        e(f"s_add_u32 {s(S_T)}, s2, {256*r}")
        if r == 2:
            e(f"s_cmp_ge_u32 {s(S_T)}, 544"); e("s_cbranch_scc1 L_rp_f_done")
        for ct in range(5):
            for part in range(2):
                e(f"ds_read_b64_tr_b16 {v(R + 4*ct + 2*part, 2)}, v45 offset:{r*5120 + ct*32 + part*2560}")
        e(f"s_mul_i32 {s(S_T)}, {s(S_T)}, 5120"); e(f"s_add_u32 {s(S_T)}, {s(S_T)}, {WS_WF}")
        e(f"s_add_u32 {s(S_T+1)}, {s(S_T)}, 4096")
        for ct in range(5):
            e(f"s_waitcnt lgkmcnt({2*(4-ct)})")
            if ct < 4: e(f"buffer_store_dwordx4 {v(R + 4*ct,4)}, v46, {s(S_WS,4)}, {s(S_T)} offen offset:{ct*1024}{SM()}")
            else: e(f"buffer_store_dwordx4 {v(R + 4*ct,4)}, v46, {s(S_WS,4)}, {s(S_T+1)} offen{SM()}")
    e.label("L_rp_f_done")

def helper1(e, opts):
    touch = OPTS.get("touch", 0)
    if OPTS.get("codepf"):
        e("s_getpc_b64 s[90:91]")
        e.label("L_pc_here")
        e(f"s_sub_u32 s90, s90, L_pc_here-k1_kernel"); e("s_subb_u32 s91, s91, 0")
        e(f"v_lshlrev_b32 v30, 7, {v(V_LANE)}")
        for k in range(OPTS.get("codepf")):
            e(f"global_load_dword v31, v30, s[90:91]")
            e(f"v_add_u32 v30, 8192, v30")
    e("s_load_dwordx2 s[44:45], s[0:1], 48")
    e("s_load_dwordx2 s[48:49], s[0:1], 16")
    if touch:
        e(f"s_and_b32 {s(S_T+1)}, {s(S_RB)}, 3")
        e(f"v_and_b32 v20, 31, {v(V_LANE)}")
        e(f"v_lshlrev_b32 v21, 2, v20"); e(f"v_add_u32 v21, {s(S_T+1)}, v21"); e(f"v_mul_lo_u32 v21, v21, {s(S_BSTR)}")
        e(f"v_lshrrev_b32 v22, 5, {v(V_LANE)}"); e(f"v_lshlrev_b32 v22, 7, v22"); e(f"v_add_u32 v21, v21, v22")
        e(f"s_and_b32 {s(S_T+1)}, {s(S_CG)}, 7"); e(f"s_lshl_b32 {s(S_T+1)}, {s(S_T+1)}, 5")
        e(f"s_lshl_b32 {s(S_T+2)}, {s(S_RB)}, 8"); e(f"s_add_u32 {s(S_T+1)}, {s(S_T+1)}, {s(S_T+2)}")
        e(f"v_add_u32 v20, {s(S_T+1)}, v20"); e(f"v_mul_u32_u24 v20, 1280, v20"); e(f"v_add_u32 v20, v20, v22")
        e(f"s_lshl_b32 s54, {s(S_BSTR)}, 7")
        e(f"s_add_u32 {s(S_CB0)}, {s(S_CB0)}, s54"); e(f"s_add_u32 {s(S_CB1)}, {s(S_CB1)}, s54"); e(f"s_mov_b32 s52, 256")
    def trip():
        if not touch: return
        e(f"buffer_load_dword v24, v21, {s(S_B0,4)}, {s(S_CB0)} offen")
        e(f"buffer_load_dword v25, v21, {s(S_B1,4)}, {s(S_CB1)} offen")
        e(f"buffer_load_dword v26, v20, {s(S_X,4)}, s52 offen")
        e(f"s_add_u32 {s(S_CB0)}, {s(S_CB0)}, s54"); e(f"s_add_u32 {s(S_CB1)}, {s(S_CB1)}, s54"); e("s_add_u32 s52, s52, 256")
    tj = OPTS.get("tj", "s,0,2,4")
    tj = [x for x in str(tj).replace("x", ",").split(",")]
    if OPTS.get("tdelay"): e(f"s_sleep {OPTS.get('tdelay')}")
    for x in tj:
        if x == "s": trip()
    if not OPTS.get("norepack"): repack_setup(e)
    e("s_waitcnt lgkmcnt(0)")
    e("s_mov_b32 s46, 1966080"); e("s_mov_b32 s47, 0x20000")
    e("s_mov_b32 s50, 819200"); e("s_mov_b32 s51, 0x20000")
    e(f"s_cmp_eq_u32 {s(S_TYPE)}, 1"); e(f"s_cbranch_scc0 L_nozero")
    e(f"s_cmp_eq_u32 {s(S_RB)}, 0"); e(f"s_cbranch_scc0 L_nozero")
    for r in range(28, 32): e(f"v_mov_b32 {v(r)}, 0")
    e(f"s_mul_i32 {s(S_T)}, {s(S_SUB)}, 6720")
    e(f"s_add_u32 {s(S_T)}, {s(S_T)}, {WS_KV}")
    e(f"s_add_u32 {s(S_T2)}, {s(S_T)}, 4096")
    e(f"v_lshlrev_b32 v11, 4, {v(V_LANE)}")
    for k in range(7):
        if k == 6:
            e(f"v_cmp_gt_u32 vcc, 36, {v(V_LANE)}")
            e(f"s_and_saveexec_b64 {s(S_EXS,2)}, vcc")
        sreg = S_T if k < 4 else S_T2
        e(f"buffer_store_dwordx4 v[28:31], v11, {s(S_WS,4)}, {s(sreg)} offen offset:{(k % 4)*1024} sc1")
        if k == 6:
            e(f"s_mov_b64 exec, {s(S_EXS,2)}")
    e.label("L_nozero")
    for j in range(11):
        hbar(e, j)
        for x in tj:
            if x == str(j): trip()
        if j == OPTS.get("sigj", 6):
            e(f"s_cmp_eq_u32 {s(S_TYPE)}, 1"); e(f"s_cbranch_scc0 L_h1_nosig")
            e(f"s_cmp_eq_u32 {s(S_RB)}, 0"); e(f"s_cbranch_scc0 L_h1_nosig")
            e("s_waitcnt vmcnt(0)")
            e(f"s_lshl_b32 {s(S_T)}, {s(S_SUB)}, 2")
            e(f"v_mov_b32 v11, {s(S_T)}"); e(f"v_mov_b32 v12, 1")
            lane0(e); e(f"global_store_dword v11, v12, {s(S_DBG,2)} offset:{DBG_FLAG} sc1"); lane0(e, False)
            e.label("L_h1_nosig")
        if j == 8 and not OPTS.get("norepack"): repack_issue(e)
        if j == 9:
            e(f"s_cmp_eq_u32 {s(S_TYPE)}, 1"); e(f"s_cbranch_scc0 L_h1_np")
            e(f"s_lshl_b32 {s(S_T)}, {s(S_SUB)}, 2")
            e(f"v_mov_b32 v11, {s(S_T)}")
            e(f"global_load_dword {v(P_POLL)}, v11, {s(S_DBG,2)} offset:{DBG_FLAG} sc1")
            e.label("L_h1_np")
    if OPTS.get("hstamp"):
        e(f"s_lshl_b32 {s(S_T)}, s2, 3"); e(f"s_add_u32 {s(S_T)}, {s(S_T)}, 4"); e(f"s_lshl_b32 {s(S_T)}, {s(S_T)}, 8")
        e(f"s_add_u32 {s(S_T)}, {s(S_T)}, {WS_STAMP + 0x100000}")
        e(f"v_lshlrev_b32 v14, 2, {v(V_LANE)}")
        e(f"buffer_store_dword v62, v14, {s(S_WS,4)}, {s(S_T)} offen")
    e("s_barrier")
    if not OPTS.get("norepack"): repack_finish(e)
    e(f"s_cmp_eq_u32 {s(S_TYPE)}, 1")
    e(f"s_cbranch_scc0 L_h1_end")
    e("s_waitcnt vmcnt(0)")
    e(f"s_lshl_b32 {s(S_T)}, {s(S_SUB)}, 2")
    e(f"v_mov_b32 v11, {s(S_T)}")
    e.label("L_poll_flag")
    e(f"v_readfirstlane_b32 {s(S_T)}, {v(P_POLL)}")
    e("s_nop 3")
    e(f"s_cmp_eq_u32 {s(S_T)}, 0")
    e(f"s_cbranch_scc0 L_kv_final")
    e("s_sleep 2")
    e(f"global_load_dword {v(P_POLL)}, v11, {s(S_DBG,2)} offset:{DBG_FLAG} sc1")
    e("s_waitcnt vmcnt(0)")
    e("s_branch L_poll_flag")
    e.label("L_h1_end")
    endp(e)

def ep_load_swapped(e):
    e(f"s_lshl_b32 {s(S_T)}, {s(S_WAVE)}, 9")
    e(f"v_lshlrev_b32 v11, 3, {v(V_I)}")
    e(f"v_add_u32 v11, {s(S_T)}, v11")
    e(f"v_add_u32 v11, {LDS_STATS}, v11")
    for mt in range(4):
        e(f"ds_read_b64 {v(16 + 2*mt, 2)}, v11 offset:{mt*128}")
    e(f"v_lshlrev_b32 v12, 4, {v(V_G)}")
    e(f"v_add_u32 v12, {LDS_CS}, v12")
    for ct in range(10):
        e(f"ds_read_b128 {v(32 + 4*ct, 4)}, v12 offset:{ct*64}")
    e("s_waitcnt lgkmcnt(0)")

def epilogue_gu(e):
    ep_load_swapped(e)
    for mt in range(4):
        e(f"v_mul_f32 {v(24 + 2*mt)}, {f32(-LOG2E)}, {v(17 + 2*mt)}")
        e(f"v_mul_f32 {v(25 + 2*mt)}, {v(17 + 2*mt)}, {v(17 + 2*mt)}")
    for mt in range(4):
        e(f"v_rcp_f32 {v(25 + 2*mt)}, {v(25 + 2*mt)}")
    e(f"v_lshlrev_b32 v11, 4, {v(V_LANE)}")
    e(f"s_mul_i32 {s(S_T)}, {s(S_WAVE)}, {4*48*1024}")
    e(f"v_add_u32 v11, {s(S_T)}, v11")
    e(f"s_mul_i32 {s(S_T)}, {s(S_RB)}, {16*48*1024}")
    e(f"s_add_u32 {s(S_T)}, {s(S_T)}, {WS_H}")
    e(f"s_mul_i32 {s(S_T+1)}, {s(S_SUB)}, 5")
    e(f"s_add_u32 {s(S_T+2)}, {s(S_T+1)}, 1")
    e(f"s_lshr_b32 {s(S_T+2)}, {s(S_T+2)}, 1")
    e(f"s_lshl_b32 {s(S_T+2)}, {s(S_T+2)}, 10")
    e(f"s_add_u32 {s(S_T2)}, {s(S_T)}, {s(S_T+2)}")
    e(f"s_and_b32 {s(S_T3)}, {s(S_SUB)}, 1")
    e(f"s_cmp_eq_u32 {s(S_T3)}, 0")
    e(f"s_cselect_b32 {s(S_T3)}, 4, -1")
    e(f"s_add_u32 {s(S_T+1)}, {s(S_T+1)}, {s(S_T3)}")
    e(f"s_lshr_b32 {s(S_T+1)}, {s(S_T+1)}, 1")
    e(f"s_lshl_b32 {s(S_T+1)}, {s(S_T+1)}, 10")
    e(f"s_add_u32 {s(S_T3)}, {s(S_T)}, {s(S_T+1)}")
    e(f"s_and_b32 {s(S_T+1)}, {s(S_SUB)}, 1")
    e(f"s_lshl_b32 {s(S_T+1)}, {s(S_T+1)}, 3")
    e(f"s_add_u32 {s(S_T3)}, {s(S_T3)}, {s(S_T+1)}")
    T = 72
    for mt in range(4):
        e.label(f"L_gu_b{mt}")
        MR = 16 + 2*mt; CI = 24 + 2*mt
        items = [(ct, hh) for ct in range(5) for hh in range(2)]
        for (ct, hh) in items:
            G = acc(mt, ct) + 2*hh; U = acc(mt, ct + 5) + 2*hh
            e(f"v_pk_fma_f32 {v(G,2)}, {v(32 + 4*ct + 2*hh,2)}, {v(MR,2)}, {v(G,2)} op_sel_hi:[1,0,1] neg_lo:[0,1,0] neg_hi:[0,1,0]")
            e(f"v_pk_fma_f32 {v(U,2)}, {v(32 + 4*(ct+5) + 2*hh,2)}, {v(MR,2)}, {v(U,2)} op_sel_hi:[1,0,1] neg_lo:[0,1,0] neg_hi:[0,1,0]")
        for k, (ct, hh) in enumerate(items):
            G = acc(mt, ct) + 2*hh
            e(f"v_pk_mul_f32 {v(T + 2*k,2)}, {v(G,2)}, {v(CI,2)} op_sel_hi:[1,0]")
        for k in range(10):
            e(f"v_exp_f32 {v(T + 2*k)}, {v(T + 2*k)}"); e(f"v_exp_f32 {v(T + 2*k + 1)}, {v(T + 2*k + 1)}")
        for k, (ct, hh) in enumerate(items):
            G = acc(mt, ct) + 2*hh; U = acc(mt, ct + 5) + 2*hh
            e(f"v_pk_mul_f32 {v(U,2)}, {v(G,2)}, {v(U,2)}")
        for k in range(10):
            e(f"v_pk_fma_f32 {v(T + 2*k,2)}, {v(T + 2*k,2)}, {v(CI,2)}, {v(CI,2)} op_sel:[0,1,1] op_sel_hi:[1,1,1]")
        for k in range(10):
            e(f"v_rcp_f32 {v(T + 2*k)}, {v(T + 2*k)}"); e(f"v_rcp_f32 {v(T + 2*k + 1)}, {v(T + 2*k + 1)}")
        e("s_nop 0")
        for k, (ct, hh) in enumerate(items):
            U = acc(mt, ct + 5) + 2*hh
            e(f"v_pk_mul_f32 {v(U,2)}, {v(U,2)}, {v(T + 2*k,2)}")
        for pp in range(2):
            O = acc(mt, 2*pp)
            for tt in range(2):
                U = acc(mt, 2*pp + tt + 5)
                e(f"v_cvt_pk_bf16_f32 {v(O + 2*tt)}, {v(U)}, {v(U+1)}")
                e(f"v_cvt_pk_bf16_f32 {v(O + 2*tt + 1)}, {v(U+2)}, {v(U+3)}")
        O = acc(mt, 4); U = acc(mt, 9)
        e(f"v_cvt_pk_bf16_f32 {v(O)}, {v(U)}, {v(U+1)}")
        e(f"v_cvt_pk_bf16_f32 {v(O+1)}, {v(U+2)}, {v(U+3)}")
        e("s_cbranch_execz L_dry_ret")
        if mt > 0:
            e(f"v_add_u32 v11, {48*1024}, v11")
        e(f"s_cmp_eq_u32 {s(S_SUB)}, 19")
        e(f"s_cbranch_scc1 L_gu_skip{mt}")
        e(f"buffer_store_dwordx4 {v(acc(mt,0),4)}, v11, {s(S_WS,4)}, {s(S_T2)} offen{SM()}")
        e(f"buffer_store_dwordx4 {v(acc(mt,2),4)}, v11, {s(S_WS,4)}, {s(S_T2)} offen offset:1024{SM()}")
        e.label(f"L_gu_skip{mt}")
        e(f"buffer_store_dwordx2 {v(acc(mt,4),2)}, v11, {s(S_WS,4)}, {s(S_T3)} offen{SM()}")
        e("s_nop 1")
    stamp(e, 5)
    if STAMP:
        e("s_waitcnt vmcnt(0)"); stamp(e, 6); stamp_flush(e, 7)
    endp(e)

def epilogue_q(e):
    ep_load_swapped(e)
    e(f"v_lshlrev_b32 v11, 4, {v(V_LANE)}")
    e(f"s_mul_i32 {s(S_T)}, {s(S_WAVE)}, {4*20*1024}")
    e(f"v_add_u32 v11, {s(S_T)}, v11")
    e(f"s_mul_i32 {s(S_T)}, {s(S_RB)}, {16*20*1024}")
    e(f"s_mul_i32 {s(S_T+1)}, {s(S_SUB)}, {5*1024}")
    e(f"s_add_u32 {s(S_T2)}, {s(S_T)}, {s(S_T+1)}")
    e(f"s_add_u32 {s(S_T2)}, {s(S_T2)}, {WS_PQ}")
    e(f"s_add_u32 {s(S_T3)}, {s(S_T2)}, 4096")
    T = 72
    for mt in range(4):
        e.label(f"L_q_b{mt}")
        MR = 16 + 2*mt
        for grp in range(2):
            items = [(ct, hh) for ct in range(grp*5, grp*5 + 5) for hh in range(2)]
            for (ct, hh) in items:
                A = acc(mt, ct) + 2*hh
                e(f"v_pk_fma_f32 {v(A,2)}, {v(32 + 4*ct + 2*hh,2)}, {v(MR,2)}, {v(A,2)} op_sel_hi:[1,0,1] neg_lo:[0,1,0] neg_hi:[0,1,0]")
            for (ct, hh) in items:
                A = acc(mt, ct) + 2*hh
                e(f"v_pk_fma_f32 {v(A,2)}, {v(A,2)}, {v(MR,2)}, {s(S_EPS6,2)} op_sel:[0,1,0] op_sel_hi:[1,1,1]")
            for k, (ct, hh) in enumerate(items):
                A = acc(mt, ct) + 2*hh
                e(f"v_pk_mul_f32 {v(T + 2*k,2)}, {v(A,2)}, {s(S_L2E,2)}")
            for k in range(10):
                e(f"v_exp_f32_e64 {v(T + 2*k)}, {v(T + 2*k)} clamp"); e(f"v_exp_f32_e64 {v(T + 2*k + 1)}, {v(T + 2*k + 1)} clamp")
            for (ct, hh) in items:
                A = acc(mt, ct) + 2*hh
                e(f"v_max_f32 {v(A)}, {s(S_EPS6)}, {v(A)}"); e(f"v_max_f32 {v(A+1)}, {s(S_EPS6)}, {v(A+1)}")
            for k, (ct, hh) in enumerate(items):
                A = acc(mt, ct) + 2*hh
                e(f"v_pk_add_f32 {v(A,2)}, {v(A,2)}, {v(T + 2*k,2)}")
        for pp in range(5):
            O = acc(mt, 2*pp); A0 = acc(mt, 2*pp); A1 = acc(mt, 2*pp + 1)
            e(f"v_cvt_pk_bf16_f32 {v(O)}, {v(A0)}, {v(A0+1)}")
            e(f"v_cvt_pk_bf16_f32 {v(O+1)}, {v(A0+2)}, {v(A0+3)}")
            e(f"v_cvt_pk_bf16_f32 {v(O+2)}, {v(A1)}, {v(A1+1)}")
            e(f"v_cvt_pk_bf16_f32 {v(O+3)}, {v(A1+2)}, {v(A1+3)}")
        e("s_cbranch_execz L_dry_ret")
        if mt > 0:
            e(f"v_add_u32 v11, {20*1024}, v11")
        for pp in range(5):
            if pp < 4:
                e(f"buffer_store_dwordx4 {v(acc(mt,2*pp),4)}, v11, {s(S_WS,4)}, {s(S_T2)} offen offset:{pp*1024}{SM()}")
            else:
                e(f"buffer_store_dwordx4 {v(acc(mt,2*pp),4)}, v11, {s(S_WS,4)}, {s(S_T3)} offen{SM()}")
        e("s_nop 1")
    stamp(e, 5)
    if STAMP:
        e("s_waitcnt vmcnt(0)"); stamp(e, 6); stamp_flush(e, 7)
    endp(e)

KV_TILES = [(0,0),(0,1),(1,0),(1,1),(1,2),(2,1),(2,2),(2,3),(3,2),(3,3),(3,4),(4,3),(4,4)]

def epilogue_kv(e):
    MV = 16; RV = 32; CS = 48; T = 60
    e(f"s_lshl_b32 {s(S_T)}, {s(S_WAVE)}, 8")
    e(f"v_lshlrev_b32 v11, 4, {v(V_G)}")
    e(f"v_add_u32 v11, {s(S_T)}, v11")
    e(f"v_add_u32 v11, {LDS_STATS}, v11")
    e(f"v_lshlrev_b32 v12, 2, {v(V_I)}")
    e(f"v_add_u32 v12, {LDS_CS}, v12")
    e(f"ds_read_b128 {v(MV, 4)}, v11"); e(f"ds_read_b128 {v(RV, 4)}, v11 offset:1024")
    for ct in range(10):
        e(f"ds_read_b32 {v(CS + ct)}, v12 offset:{ct*64}")
    e("s_waitcnt lgkmcnt(6)")
    for mt in range(1, 4):
        e(f"ds_read_b128 {v(MV + 4*mt, 4)}, v11 offset:{mt*64}")
        e(f"ds_read_b128 {v(RV + 4*mt, 4)}, v11 offset:{1024 + mt*64}")
    e("s_waitcnt lgkmcnt(6)")
    def cs_mod(ct):
        if ct % 2 == 0: return v(CS + ct, 2), 0, 0
        return v(CS + ct - 1, 2), 1, 1
    DQ = [acc(1, n) for n in range(10)] + [80, 84, 88] + [acc(3, td) for td in range(5)]
    def kv_mfma(n, kk):
        te, td = KV_TILES[n]
        c = "0" if kk == 0 else v(DQ[n], 4)
        return f"v_mfma_f32_16x16x32_bf16 {v(DQ[n],4)}, {v(acc(2*kk, 5 + te),4)}, {v(acc(2*kk, td),4)}, {c}"
    for mt in range(4):
        e.label(f"L_kv_b{mt}")
        if mt == 1: e("s_waitcnt lgkmcnt(0)")
        kk, odd = divmod(mt, 2)
        items = [(ct, hh) for ct in range(5) for hh in range(2)]
        allit = [(ct, hh) for ct in range(10) for hh in range(2)]
        L = []
        for (ct, hh) in allit:
            A = acc(mt, ct) + 2*hh
            c, o, oh = cs_mod(ct)
            L.append(f"v_pk_fma_f32 {v(A,2)}, {v(MV + 4*mt + 2*hh,2)}, {c}, {v(A,2)} op_sel:[0,{o},0] op_sel_hi:[1,{oh},1] neg_lo:[0,1,0] neg_hi:[0,1,0]")
        for (ct, hh) in items:
            A = acc(mt, ct) + 2*hh
            L.append(f"v_pk_fma_f32 {v(A,2)}, {v(A,2)}, {v(RV + 4*mt + 2*hh,2)}, {s(S_EPS6,2)}")
        for (ct, hh) in items:
            A = acc(mt, ct + 5) + 2*hh
            L.append(f"v_pk_mul_f32 {v(A,2)}, {v(A,2)}, {v(RV + 4*mt + 2*hh,2)}")
        for k, (ct, hh) in enumerate(items):
            A = acc(mt, ct) + 2*hh
            L.append(f"v_pk_mul_f32 {v(T + 2*k,2)}, {v(A,2)}, {s(S_L2E,2)}")
        for k in range(10):
            L.append(f"v_exp_f32_e64 {v(T + 2*k)}, {v(T + 2*k)} clamp"); L.append(f"v_exp_f32_e64 {v(T + 2*k + 1)}, {v(T + 2*k + 1)} clamp")
        for (ct, hh) in items:
            A = acc(mt, ct) + 2*hh
            L.append(f"v_max_f32 {v(A)}, {s(S_EPS6)}, {v(A)}"); L.append(f"v_max_f32 {v(A+1)}, {s(S_EPS6)}, {v(A+1)}")
        for k, (ct, hh) in enumerate(items):
            A = acc(mt, ct) + 2*hh
            L.append(f"v_pk_add_f32 {v(A,2)}, {v(A,2)}, {v(T + 2*k,2)}")
        for ct in range(10):
            A = acc(mt, ct); O = acc(2*kk, ct) + 2*odd
            L.append(f"v_cvt_pk_bf16_f32 {v(O)}, {v(A)}, {v(A+1)}")
            L.append(f"v_cvt_pk_bf16_f32 {v(O+1)}, {v(A+2)}, {v(A+3)}")
        if mt == 2 and not OPTS.get("kvnoil"):
            M = [kv_mfma(n, 0) for n in range(13)]
            lo = 50
            out = L[:lo]; rest = L[lo:lo + 40]
            for k, ins in enumerate(rest):
                out.append(ins)
                if k % 3 == 2 and M: out.append(M.pop(0))
            out += M + L[lo + 40:]
            L = out
        for ins in L: e(ins)
        if mt < 3: e("s_cbranch_execz L_dry_ret")
    if OPTS.get("kvstamp"): stamp(e, 1)
    e("s_nop 1")
    if OPTS.get("kvnoil"):
        for n in range(13): e(kv_mfma(n, 0))
    for td in range(5):
        e(f"v_mfma_f32_16x16x32_bf16 {v(DQ[13 + td],4)}, {v(V_ONES,4)}, {v(acc(0, td),4)}, 0")
    for n in range(13): e(kv_mfma(n, 1))
    for td in range(5):
        e(f"v_mfma_f32_16x16x32_bf16 {v(DQ[13 + td],4)}, {v(V_ONES,4)}, {v(acc(2, td),4)}, {v(DQ[13 + td],4)}")
    e(f"s_mul_i32 {s(S_T)}, {s(S_WAVE)}, {18*1024}")
    e(f"v_lshlrev_b32 v11, 4, {v(V_LANE)}")
    e(f"v_add_u32 v11, {s(S_T)}, v11")
    e(f"v_add_u32 v11, {LDS_KVS}, v11")
    e("s_cbranch_execz L_dry_ret")
    e("s_nop 2")
    for nn in range(18):
        if nn == 13: e("s_nop 3")
        e(f"ds_write_b128 v11, {v(DQ[nn],4)} offset:{nn*1024}")
        if nn == 11: e("s_waitcnt lgkmcnt(4)")

def kv_addr(e, dst, tag):
    TE = 0; TD = 0
    for n, (te, td) in enumerate(KV_TILES):
        TE |= te << (4*n); TD |= td << (4*n)
    e(f"s_cmp_ge_u32 {s(S_CNT)}, 13"); e(f"s_cbranch_scc1 L_kva_z{tag}")
    e(f"s_lshl_b32 {s(S_T)}, {s(S_CNT)}, 2")
    e(f"s_mov_b32 s92, {TE & 0xffffffff}"); e(f"s_mov_b32 s93, {TE >> 32}")
    e(f"s_lshr_b64 s[92:93], s[92:93], {s(S_T)}"); e(f"s_and_b32 {s(S_T+1)}, s92, 15")
    e(f"s_mov_b32 s92, {TD & 0xffffffff}"); e(f"s_mov_b32 s93, {TD >> 32}")
    e(f"s_lshr_b64 s[92:93], s[92:93], {s(S_T)}"); e(f"s_and_b32 {s(S_T+2)}, s92, 15")
    e(f"s_lshl_b32 {s(S_T+1)}, {s(S_T+1)}, 2"); e(f"s_lshl_b32 {s(S_T+2)}, {s(S_T+2)}, 4")
    e(f"v_add_u32 v11, {s(S_T+1)}, {v(V_G)}")
    e(f"v_mul_u32_u24 v12, 52, v11"); e(f"v_lshrrev_b32 v12, 8, v12")
    e(f"v_lshlrev_b32 v11, 2, v11"); e(f"v_sub_u32 v11, v11, v12"); e(f"v_mul_u32_u24 v11, 80, v11")
    e(f"v_add_u32 v13, {s(S_T+2)}, {v(V_I)}")
    e(f"v_mul_u32_u24 v14, 205, v13"); e(f"v_lshrrev_b32 v14, 12, v14")
    e(f"v_cmp_eq_u32 vcc, v12, v14")
    e(f"v_lshlrev_b32 v13, 2, v13")
    e(f"v_add_u32 v11, v11, v13")
    e(f"v_mov_b32 v12, 0x7ffffff0")
    e(f"v_cndmask_b32 {v(dst)}, v12, v11, vcc")
    e(f"s_branch L_kva_d{tag}")
    e.label(f"L_kva_z{tag}")
    e(f"s_sub_u32 {s(S_T)}, {s(S_CNT)}, 13"); e(f"s_lshl_b32 {s(S_T)}, {s(S_T)}, 6")
    e(f"v_lshlrev_b32 v11, 2, {v(V_I)}")
    e(f"v_add_u32 v11, {s(S_T)}, v11")
    e(f"v_add_u32 v11, 6400, v11")
    e(f"v_cmp_eq_u32 vcc, 0, {v(V_G)}")
    e(f"v_mov_b32 v12, 0x7ffffff0")
    e("s_nop 0")
    e(f"v_cndmask_b32 {v(dst)}, v12, v11, vcc")
    e.label(f"L_kva_d{tag}")

def kv_final(e):
    if OPTS.get("kvstamp"): stamp(e, 2)
    e.label("L_kv_final")
    e("v_mov_b32 v42, 0x7ffffff0")
    for k in range(3):
        e(f"s_add_u32 {s(S_CNT)}, {s(S_WAVE)}, {8*k}")
        if k == 2:
            e(f"s_cmp_lt_u32 {s(S_CNT)}, 18"); e("s_cbranch_scc0 L_kva_skip")
        kv_addr(e, 40 + k, str(k))
    e.label("L_kva_skip")
    e(f"s_mul_i32 {s(S_T4)}, {s(S_SUB)}, 6720")
    e(f"s_add_u32 {s(S_T4)}, {s(S_T4)}, {WS_KV}")
    e(f"s_lshl_b32 {s(S_T)}, {s(S_WAVE)}, 10")
    e(f"v_lshlrev_b32 v16, 4, {v(V_LANE)}")
    e(f"v_add_u32 v16, {s(S_T)}, v16")
    e(f"v_add_u32 v16, {LDS_KVS}, v16")
    e(f"v_add_u32 v17, {2*18*1024}, v16")
    e("s_waitcnt lgkmcnt(0)")
    e("s_barrier")
    if OPTS.get("kvstamp"): stamp(e, 3)
    def rd(k):
        for w in range(4):
            e(f"ds_read_b128 {v(44 + 16*k + 4*w,4)}, {'v16' if w < 2 else 'v17'} offset:{(w % 2)*18*1024 + k*8192}")
    def summ(k, nreg):
        B = 44 + 16*k
        if nreg == 4:
            for h in range(2):
                e(f"v_add_f32 {v(B+2*h)}, {v(B+2*h)}, {v(B+4+2*h)}"); e(f"v_add_f32 {v(B+2*h+1)}, {v(B+2*h+1)}, {v(B+5+2*h)}")
                e(f"v_add_f32 {v(B+8+2*h)}, {v(B+8+2*h)}, {v(B+12+2*h)}"); e(f"v_add_f32 {v(B+9+2*h)}, {v(B+9+2*h)}, {v(B+13+2*h)}")
            for r in range(4): e(f"v_add_f32 {v(B+r)}, {v(B+r)}, {v(B+8+r)}")
            for r in range(4):
                e(f"buffer_atomic_add_f32 {v(B + r)}, {v(40 + k)}, {s(S_WS,4)}, {s(S_T4)} offen offset:{80*r}")
        else:
            e(f"v_add_f32 {v(B)}, {v(B)}, {v(B+4)}"); e(f"v_add_f32 {v(B+8)}, {v(B+8)}, {v(B+12)}"); e(f"v_add_f32 {v(B)}, {v(B)}, {v(B+8)}")
            e(f"buffer_atomic_add_f32 {v(B)}, {v(40 + k)}, {s(S_WS,4)}, {s(S_T4)} offen")
    rd(0); rd(1)
    e(f"s_cmp_lt_u32 {s(S_WAVE)}, 2"); e("s_cbranch_scc0 L_kvf_no2")
    rd(2)
    e.label("L_kvf_no2")
    e("s_waitcnt lgkmcnt(0)")
    summ(0, 4)
    e(f"s_cmp_lt_u32 {s(S_WAVE)}, 5"); e("s_cbranch_scc0 L_kvf_z1")
    summ(1, 4)
    e("s_branch L_kvf_t2")
    e.label("L_kvf_z1")
    summ(1, 1)
    e.label("L_kvf_t2")
    e(f"s_cmp_lt_u32 {s(S_WAVE)}, 2"); e("s_cbranch_scc0 L_k1_end2")
    summ(2, 1)
    e.label("L_k1_end2")
    if STAMP:
        stamp(e, 5)
        e("s_waitcnt vmcnt(0)"); stamp(e, 6); stamp_flush(e, 7)
    endp(e)
    e.label("L_k1_end")
    e("s_endpgm")

def phase_end(e):
    e.label("L_phase_end")
    e("s_setprio 0")
    e("s_mov_b64 exec, -1")
    e("s_waitcnt vmcnt(0) lgkmcnt(0)")
    e("s_barrier")
    e(f"s_cmp_eq_u32 {s(S_WAVE)}, 6"); e("s_cbranch_scc0 L_pe_noflag")
    e("s_mov_b32 s60, 0x100000")
    e.label("L_pe_nonce")
    e(f"s_cmp_lg_u32 {s(S_NONCE)}, 0"); e("s_cbranch_scc1 L_pe_have")
    e("s_sub_u32 s60, s60, 1"); e("s_cmp_eq_u32 s60, 0"); e("s_cbranch_scc1 L_pe_have")
    poll_nonce(e)
    e("s_waitcnt vmcnt(0)")
    e(f"v_readfirstlane_b32 {s(S_NONCE)}, {v(P_POLL)}")
    e("s_nop 3")
    e("s_branch L_pe_nonce")
    e.label("L_pe_have")
    e(f"s_lshl_b32 s60, s2, 2"); e(f"s_add_u32 s60, s60, {WS_FLAGS}")
    e(f"v_mov_b32 v11, 0"); e(f"v_mov_b32 v12, {s(S_NONCE)}")
    lane0(e)
    e(f"buffer_store_dword v12, v11, {s(S_WS,4)}, s60 offen sc1")
    lane0(e, False)
    e.label("L_pe_noflag")

def gen_k1(e, opts=None):
    opts = opts or {}
    global STAMP
    STAMP = opts.get("stamp", False)
    OPTS.clear(); OPTS.update(opts)
    KN = opts.get("kname", "k1_kernel")
    e.raw(f".globl {KN}"); e.raw(".p2align 8"); e.raw(f".type {KN},@function"); e.label(KN)
    setup_pre(e)
    e(f"s_cmp_lt_u32 {s(S_WAVE)}, 4"); e("s_cbranch_scc1 L_consumers")
    e(f"s_cmp_ge_u32 {s(S_WAVE)}, 6"); e("s_cbranch_scc1 L_helpers")
    dma_wave(e)
    e.label("L_helpers")
    if OPTS.get("hprio", 3): e(f"s_setprio {OPTS.get('hprio', 3)}")
    setup_post(e)
    e(f"s_cmp_eq_u32 {s(S_WAVE)}, 7"); e("s_cbranch_scc1 L_prod3")
    helper0(e, opts)
    e.label("L_prod3"); helper1(e, opts)
    e.label("L_consumers")
    consumer_setup(e)
    e(f"s_mov_b32 {s(S_EPS6)}, {f32(1e-6)}"); e(f"s_mov_b32 {s(S_EPS6+1)}, {f32(1e-6)}")
    e(f"s_mov_b32 {s(S_L2E)}, {f32(LOG2E)}"); e(f"s_mov_b32 {s(S_L2E+1)}, {f32(LOG2E)}")
    setup_post(e)
    e(f"s_setprio {OPTS.get('cprio', 2)}")
    e(f"s_cmp_eq_u32 {s(S_TYPE)}, 1")
    e("s_cbranch_scc1 L_cons_kv")
    for w in range(4):
        if w < 3:
            e(f"s_cmp_eq_u32 {s(S_WAVE)}, {w}"); e(f"s_cbranch_scc0 L_sw_n{w}")
        consumer_loop(e, True, f"sw{w}", w)
        if w < 3:
            e("s_branch L_sw_done"); e.label(f"L_sw_n{w}")
    e.label("L_sw_done")
    e("s_barrier")
    stamp(e, 4)
    e(f"s_cmp_eq_u32 {s(S_TYPE)}, 0")
    e("s_cbranch_scc1 L_epi_q")
    epilogue_gu(e)
    e.label("L_epi_q")
    epilogue_q(e)
    e.label("L_cons_kv")
    for w in range(4):
        if w < 3:
            e(f"s_cmp_eq_u32 {s(S_WAVE)}, {w}"); e(f"s_cbranch_scc0 L_ns_n{w}")
        consumer_loop(e, False, f"ns{w}", w)
        if w < 3:
            e("s_branch L_ns_done"); e.label(f"L_ns_n{w}")
    e.label("L_ns_done")
    e("s_barrier")
    stamp(e, 4)
    epilogue_kv(e)
    kv_final(e)
```

```python
from asmlib import *
import k1
from k1 import WS_PQ, WS_H, WS_KV, WS_WF, WS_USED, WS_FLAGS

LDS_WAVE = 20480
ZBASE = 13440
LDS_TOTAL = 8 * LDS_WAVE
OPTS = {}
BLOCK = 512
NVGPR = 256

S_X = 8; S_WS = 20; S_OUT = 24
S_RB = 28; S_CB = 29; S_W = 30; S_LB = 31
S_T = 32
S_BO = 40; S_HO = 41; S_WV = 42; S_PQO = 45; S_EPS = 46

V_LANE = 1; V_I = 2; V_G = 3
V_HV = 9
V_T = 12
V_ACC = 176
def acc(mt, ct): return V_ACC + (ct * 4 + mt) * 4
V_HVM = 16
V_W = 20
V_H = 64
NH = 6
def bufA(k, mt): return v(V_H + 16*k + 4*mt, 4)
def bufW(k, ct): return v(V_W + 20*k + 4*ct, 4)
V_ZA = 11
V_KVT = 20
V_HE = 128
V_PQ = 128
V_NUM = 176
V_DEN = 216
V_RC = 228
V_TMP = 240
A_PQ0 = 128
V_PQS = 4
V_TB = [128, 148, 20, 40, 60]
V_O = 80

NUM = [(0,0),(1,0),(1,1),(2,0),(2,1),(3,1),(3,2),(4,1),(4,2),(5,2),(5,3),(6,2),(6,3),(7,3),(7,4),(8,3),(8,4),(9,4)]
DEN = [(0,0),(0,1),(0,2),(1,1),(1,2),(1,3),(1,4),(2,3),(2,4)]

def stamp(e, idx):
    if OPTS.get("stamp"):
        e(f"s_memtime {s(70 + 2*idx, 2)}")
        e("s_waitcnt lgkmcnt(0)")

def capture(fn):
    t = Emit(); fn(t)
    chunks = []; cur = []
    for l in t.lines:
        cur.append(l.strip())
        op = l.split()[0]
        if op.startswith("buffer_") or op.startswith("ds_") or op.startswith("global_"):
            chunks.append(cur); cur = []
    if cur:
        if chunks: chunks[-1] += cur
        else: chunks.append(cur)
    return [c for c in chunks if c]

def mfma_step(e, wop, aop, extra=None, first=False, nomfma=False, noextra=False):
    extra = list(extra or []) if not noextra else []
    n = len(extra); xi = 0; idx = 0
    for ct in range(5):
        for mt in range(4):
            A = acc(mt, ct)
            c = "0" if first else v(A, 4)
            if not nomfma: e(f"v_mfma_f32_16x16x32_bf16 {v(A,4)}, {wop(ct)}, {aop(mt)}, {c}")
            idx += 1
            want = (idx * n + 19) // 20 if n else 0
            while xi < want:
                for ins in extra[xi]: e(ins)
                xi += 1
    assert xi == n

def f_load_b(e, j):
    if OPTS.get("fnob"): return
    for ct in range(5):
        e(f"s_add_u32 m0, {s(S_LB)}, {(j % 4)*5120 + ct*1024}")
        e(f"s_add_u32 {s(S_T)}, {s(S_BO)}, {ct*1024}")
        e(f"buffer_load_dwordx4 {v(V_HV)}, {s(S_WS,4)}, {s(S_T)} offen lds")
    e(f"s_add_u32 {s(S_BO)}, {s(S_BO)}, {8*5120}")

def f_load_h(e, k):
    if OPTS.get("fnoh"): return
    for mt in range(4):
        e(f"buffer_load_dwordx4 {bufA(k, mt)}, {v(V_HVM + mt)}, {s(S_WS,4)}, {s(S_HO)} offen")
    e(f"s_add_u32 {s(S_HO)}, {s(S_HO)}, 1024")

def f_read_w(e, k, j):
    if OPTS.get("fnow"): return
    for ct in range(5):
        e(f"ds_read_b128 {bufW(k, ct)}, {v(V_T+2)} offset:{(j % 4)*5120 + ct*1024}")

def f_wave(e):
    for mt in range(4):
        e(f"v_add_u32 {v(V_HVM + mt)}, {mt*48*1024}, {v(V_HV)}")
    NF = OPTS.get("nf", 11)
    e(f"s_mul_i32 {s(S_BO)}, {s(S_W)}, {NF*8*5120}"); e(f"s_mul_i32 {s(S_T)}, {s(S_CB)}, 5120"); e(f"s_add_u32 {s(S_BO)}, {s(S_BO)}, {s(S_T)}")
    e(f"s_add_u32 {s(S_BO)}, {s(S_BO)}, {WS_WF}")
    e(f"s_mul_i32 {s(S_HO)}, {s(S_RB)}, {4*48*1024}"); e(f"s_mul_i32 {s(S_T)}, {s(S_W)}, {NF*1024}")
    e(f"s_add_u32 {s(S_HO)}, {s(S_HO)}, {s(S_T)}"); e(f"s_add_u32 {s(S_HO)}, {s(S_HO)}, {WS_H}")
    e(f"v_add_u32 {v(V_T+2)}, {s(S_LB)}, {v(V_HV)}")
    post_args(e, "F")
    if OPTS.get("fdelay"): e(f"s_sleep {OPTS.get('fdelay')}")
    q = Queue(e, "vmcnt", 63); lq = Queue(e, "lgkmcnt", 15)
    def qi(tag, n):
        for _ in range(n): q.issue(tag)
    items = [("b",0),("h",0),("b",1),("h",1),("b",2),("h",2),("b",3),("h",3),("h",4),("h",5)]
    npf = OPTS.get("npf", 6)
    for kind, t in items[:npf]:
        if kind == "b": f_load_b(e, t); qi(("b", t), 5)
        else: f_load_h(e, t); qi(("h", t), 4)
    late = items[npf:]
    stamp(e, 1)
    q.wait(("b", 0))
    f_read_w(e, 0, 0)
    for _ in range(5): lq.issue(("w", 0))
    for t in range(NF):
        ch = []; pv = []; pl = []
        if t + 1 < NF: q.wait(("b", t + 1))
        q.wait(("h", t))
        lq.wait(("w", t % 2))
        if t + 1 < NF:
            ch += capture(lambda t_: f_read_w(t_, (t + 1) % 2, t + 1)); pl += [("w", (t + 1) % 2)] * 5
        for _ in range(3):
            if late:
                kind, tt = late.pop(0)
                if kind == "b": ch += capture(lambda t_, tt=tt: f_load_b(t_, tt)); pv += [("b", tt)] * 5
                else: ch += capture(lambda t_, tt=tt: f_load_h(t_, tt)); pv += [("h", tt)] * 4
        if t + 4 < NF:
            ch += capture(lambda t_: f_load_b(t_, t + 4)); pv += [("b", t + 4)] * 5
        if t >= 1 and t - 1 + NH < NF:
            ch += capture(lambda t_: f_load_h(t_, (t - 1) % NH)); pv += [("h", t - 1 + NH)] * 4
        for x in pl: lq.issue(x)
        for x in pv: q.issue(x)
        mfma_step(e, lambda ct: bufW(t % 2, ct), lambda mt: bufA(t % NH, mt), extra=ch, first=(t == 0), nomfma=OPTS.get("fnomfma"))
        if t == 0: stamp(e, 2)
    stamp(e, 5)

def load_pq(e, set_):
    R = V_PQSET[set_]
    for p in range(5):
        if p < 4:
            e(f"buffer_load_dwordx4 {v(R + 4*p,4)}, {v(V_HV)}, {s(S_WS,4)}, {s(S_PQO)} offen offset:{p*1024}")
        else:
            e(f"s_add_u32 {s(S_T)}, {s(S_PQO)}, 4096")
            e(f"buffer_load_dwordx4 {v(R + 4*p,4)}, {v(V_HV)}, {s(S_WS,4)}, {s(S_T)} offen")
    e(f"s_add_u32 {s(S_PQO)}, {s(S_PQO)}, {20*1024}")

def load_kv(e):
    e(f"s_mul_i32 {s(S_T)}, {s(S_W)}, 13440"); e(f"s_add_u32 {s(S_T)}, {s(S_T)}, {WS_KV}")
    for k in range(14):
        if k == 13:
            e(f"v_cmp_gt_u32 vcc, 8, {v(V_LANE)}"); e(f"s_and_saveexec_b64 s[36:37], vcc")
        e(f"s_add_u32 m0, {s(S_LB)}, {k*1024}")
        e(f"s_add_u32 {s(S_T+2)}, {s(S_T)}, {k*1024}")
        e(f"buffer_load_dwordx4 {v(V_HV)}, {s(S_WS,4)}, {s(S_T+2)} offen lds")
        if k == 13: e("s_mov_b64 exec, s[36:37]")

def load_tb(e, j):
    R = V_TB[j]
    for ct in range(5):
        if ct < 4:
            e(f"buffer_load_dwordx4 {v(R + 4*ct,4)}, {v(V_HV)}, {s(S_WS,4)}, {s(S_BO)} offen offset:{ct*1024}")
        else:
            e(f"s_add_u32 {s(S_T)}, {s(S_BO)}, 4096")
            e(f"buffer_load_dwordx4 {v(R + 4*ct,4)}, {v(V_HV)}, {s(S_WS,4)}, {s(S_T)} offen")
    e(f"s_add_u32 {s(S_BO)}, {s(S_BO)}, {8*5120}")

V_PQSET = [176, 196]
V_NUM = 128
V_DEN = 216
V_RC = 228
V_TB = [20, 40, 60, 128, 148]

def precompute(e):
    for r in range(4): e(f"v_mov_b32 {v(V_TMP + r)}, 0")
    e(f"v_add_u32 {v(V_T)}, {s(S_LB)}, {v(V_HV)}")
    e(f"v_cmp_gt_u32 vcc, 44, {v(V_LANE)}"); e(f"s_and_saveexec_b64 s[36:37], vcc")
    e(f"ds_write_b128 {v(V_T)}, {v(V_TMP,4)} offset:{ZBASE}")
    e("s_mov_b64 exec, s[36:37]")
    e(f"v_lshlrev_b32 {v(V_T+3)}, 4, {v(V_G)}")
    for t in range(10):
        e(f"v_add_u32 {v(V_T)}, {16*t}, {v(V_I)}")
        e(f"v_mul_u32_u24 {v(V_HE + t)}, 205, {v(V_T)}"); e(f"v_lshrrev_b32 {v(V_HE + t)}, 12, {v(V_HE + t)}")
        e(f"v_sub_u32 {v(V_T)}, {v(V_T)}, {v(V_HE + t)}"); e(f"v_mul_u32_u24 {v(V_T)}, 80, {v(V_T)}")
        e(f"v_lshrrev_b32 {v(V_T+1)}, 2, {v(V_HE + t)}"); e(f"v_mul_u32_u24 {v(V_T+1)}, 320, {v(V_T+1)}")
        e(f"v_add3_u32 {v(V_T)}, {v(V_T)}, {v(V_T+1)}, {v(V_T+3)}")
        e(f"v_add_u32 {v(V_HE + 10 + t)}, {s(S_LB)}, {v(V_T)}")
    for wh in range(10):
        e(f"v_add_u32 {v(V_T)}, {4*wh}, {v(V_G)}")
        e(f"v_mul_u32_u24 {v(V_HE + 20 + wh)}, 52, {v(V_T)}"); e(f"v_lshrrev_b32 {v(V_HE + 20 + wh)}, 8, {v(V_HE + 20 + wh)}")
        e(f"v_lshrrev_b32 {v(V_T+1)}, 2, {v(V_HE + 20 + wh)}"); e(f"v_mul_u32_u24 {v(V_T+1)}, 6400, {v(V_T+1)}")
        e(f"v_add3_u32 {v(V_T+1)}, {v(V_T+1)}, {v(V_T+3)}, {s(S_LB)}")
        e(f"v_add_u32 {v(V_HE + 30 + wh)}, 6400, {v(V_T+1)}")
    for u in range(3):
        e(f"v_and_b32 {v(V_T)}, 3, {v(V_I)}"); e(f"v_lshlrev_b32 {v(V_T)}, 2, {v(V_T)}")
        e(f"v_lshrrev_b32 {v(V_T+1)}, 2, {v(V_I)}")
        e(f"v_add3_u32 {v(V_T)}, {v(V_T)}, {v(V_T+1)}, {16*u}")
        e(f"v_mul_u32_u24 {v(V_HE + 40 + u)}, 52, {v(V_T)}"); e(f"v_lshrrev_b32 {v(V_HE + 40 + u)}, 8, {v(V_HE + 40 + u)}")
    e(f"s_add_u32 {s(S_T)}, {s(S_LB)}, {ZBASE}")
    e(f"v_mov_b32 {v(V_ZA)}, {s(S_T)}")

def build_frags(e):
    lq = Queue(e, "lgkmcnt", 15)
    frs = [("n", t, w) for (t, w) in NUM] + [("d", u, w) for (u, w) in DEN]
    halves = []
    for fi, (kind, t, w) in enumerate(frs):
        for hf in range(2):
            wh = 2*w + hf
            hsrc = V_HE + t if kind == "n" else V_HE + 40 + t
            asrc = V_HE + 10 + t if kind == "n" else V_HE + 30 + wh
            halves.append((fi, hf, wh, hsrc, asrc))
    M = [48, 50, 52, 54]
    def cmp(hi):
        fi, hf, wh, hsrc, asrc = halves[hi]
        e(f"v_cmp_eq_u32 {s(M[hi % 4],2)}, {v(hsrc)}, {v(V_HE + 20 + wh)}")
    def rd(hi):
        fi, hf, wh, hsrc, asrc = halves[hi]
        tb = V_TMP + (fi % 2) * 8
        ad = V_T + (hi % 2)
        e(f"v_cndmask_b32 {v(ad)}, {v(V_ZA)}, {v(asrc)}, {s(M[hi % 4],2)}")
        e(f"ds_read_b128 {v(tb + 4*hf, 4)}, {v(ad)} offset:{64*wh}")
        lq.issue(("f", fi))
    def fin(fi):
        lq.wait(("f", fi))
        tb = V_TMP + (fi % 2) * 8
        R = V_KVT + 4*fi
        for k in range(4):
            e(f"v_cvt_pk_bf16_f32 {v(R + k)}, {v(tb + 2*k)}, {v(tb + 2*k + 1)}")
    n = len(halves)
    cmp(0); cmp(1); cmp(2)
    for hi in range(n):
        if hi + 3 < n: cmp(hi + 3)
        else: e("s_nop 0")
        rd(hi)
        fi, hf = halves[hi][0], halves[hi][1]
        if hf == 1 and fi >= 1: fin(fi - 1)
    fin(len(frs) - 1)

def o_block(e, b):
    PQ = V_PQSET[b % 2]
    den = {}
    for n_, (u, w) in enumerate(DEN): den.setdefault(u, []).append((18 + n_, w))
    num = {}
    for fi, (t, w) in enumerate(NUM): num.setdefault(t, []).append((fi, w))
    seq = []
    def D(u, k): fi, w = den[u][k]; return (V_DEN + 4*u, fi, w, k == 0)
    def N(t, k): fi, w = num[t][k]; return (V_NUM + 4*t, fi, w, k == 0)
    seq += [D(0,0), D(1,0), D(2,0), N(0,0), N(1,0), N(2,0), N(3,0)]
    seq += [D(0,1), D(1,1), D(2,1), N(4,0), N(5,0), N(6,0), N(7,0)]
    seq += [D(0,2), D(1,2), N(8,0), N(9,0), N(1,1), N(2,1), N(3,1)]
    seq += [D(1,3), N(4,1), N(5,1), N(6,1), N(7,1), N(8,1)]
    assert len(seq) == 27
    if OPTS.get("zeroc"):
        for r in list(range(V_NUM, V_NUM + 40)) + list(range(V_DEN, V_DEN + 12)): e(f"v_mov_b32 {v(r)}, 0")
        e("s_nop 1")
    for (dst, fi, w, first) in seq:
        c = "0" if (first and not OPTS.get("zeroc")) else v(dst, 4)
        e(f"v_mfma_f32_16x16x32_bf16 {v(dst,4)}, {v(V_KVT + 4*fi,4)}, {v(PQ + 4*w,4)}, {c}")
    if b < 2 and OPTS.get("pqearly", 1): pass
def o_rc(e):
    for t2 in range(10): e(f"v_add_f32 {v(V_RC + t2)}, {s(S_EPS)}, {v(V_DEN + 4*(t2 >> 2) + (t2 & 3))}")
    for t2 in range(10): e(f"v_rcp_f32 {v(V_RC + t2)}, {v(V_RC + t2)}")

def o_finish(e, b):
    n1 = OPTS.get("nop_pm", 0); n2 = OPTS.get("nop_dw", 0)
    for p in range(5):
        for t in (2*p, 2*p + 1):
            N = V_NUM + 4*t
            r = V_RC + t
            if r % 2 == 0: pr, o, oh = v(r,2), 0, 0
            else: pr, o, oh = v(r-1,2), 1, 1
            if OPTS.get("nopk", 1):
                for k in range(4): e(f"v_mul_f32 {v(N+k)}, {v(N+k)}, {v(r)}")
            else:
                e(f"v_pk_mul_f32 {v(N,2)}, {v(N,2)}, {pr} op_sel:[0,{o}] op_sel_hi:[1,{oh}]")
                e(f"v_pk_mul_f32 {v(N+2,2)}, {v(N+2,2)}, {pr} op_sel:[0,{o}] op_sel_hi:[1,{oh}]")
        if n1: e(f"s_nop {n1}")
        O = V_NUM + 8*p
        e(f"v_cvt_pk_bf16_f32 {v(O)}, {v(O)}, {v(O+1)}")
        e(f"v_cvt_pk_bf16_f32 {v(O+1)}, {v(O+2)}, {v(O+3)}")
        e(f"v_cvt_pk_bf16_f32 {v(O+2)}, {v(O+4)}, {v(O+5)}")
        e(f"v_cvt_pk_bf16_f32 {v(O+3)}, {v(O+6)}, {v(O+7)}")
        if n2: e(f"s_nop {n2}")
        e(f"ds_write_b128 {v(V_T+2)}, {v(O,4)} offset:{(b*5 + p)*1024}")

def a_wave(e):
    e(f"s_mul_i32 {s(S_PQO)}, {s(S_RB)}, {4*20*1024}"); e(f"s_mul_i32 {s(S_T)}, {s(S_W)}, {5*1024}")
    e(f"s_add_u32 {s(S_PQO)}, {s(S_PQO)}, {s(S_T)}"); e(f"s_add_u32 {s(S_PQO)}, {s(S_PQO)}, {WS_PQ}")
    e(f"s_mul_i32 {s(S_BO)}, {s(S_W)}, {5*8*5120}"); e(f"s_mul_i32 {s(S_T)}, {s(S_CB)}, 5120"); e(f"s_add_u32 {s(S_BO)}, {s(S_BO)}, {s(S_T)}")
    e(f"s_add_u32 {s(S_BO)}, {s(S_BO)}, {WS_WF + 48*8*5120}")
    if OPTS.get("fused"): precompute(e)
    post_args(e, "A")
    q = Queue(e, "vmcnt", 63); lq = Queue(e, "lgkmcnt", 15)
    def qi(tag, n):
        for _ in range(n): q.issue(tag)
    load_kv(e); qi("kv", 14)
    load_pq(e, 0); qi(("pq", 0), 5)
    load_pq(e, 1); qi(("pq", 1), 5)
    stamp(e, 1)
    if not OPTS.get("fused"): precompute(e)
    if OPTS.get("kvall", 1): q.drain()
    else: q.wait("kv")
    stamp(e, 2)
    e("s_waitcnt lgkmcnt(0)")
    build_frags(e)
    stamp(e, 3)
    e(f"s_mov_b32 {s(S_EPS)}, {f32(1e-6)}")
    e(f"v_add_u32 {v(V_T+2)}, {s(S_LB)}, {v(V_HV)}")
    for b in range(4):
        q.wait(("pq", b))
        o_block(e, b)
        if OPTS.get("drainA"):
            e("s_nop 7"); e(f"v_mov_b32 v5, {v(V_NUM + 4*8)}"); e(f"v_mov_b32 v5, {v(V_NUM + 4*7)}")
        if b < 2:
            load_pq(e, b % 2); qi(("pq", b + 2), 5)
        if b == 3:
            for j in range(3):
                load_tb(e, j); qi(("tb", j), 5)
        e("s_nop 7")
        if OPTS.get("longnop"):
            for _ in range(OPTS.get("longnop")): e("s_nop 15")
        o_rc(e)
        e("s_nop 1")
        o_finish(e, b)
    stamp(e, 4)
    e("s_nop 1")
    if OPTS.get("fixa"): e("s_waitcnt lgkmcnt(0)")
    for j in range(3, 5):
        load_tb(e, j); qi(("tb", j), 5)
    def read_o(t):
        return [f"ds_read_b128 {v(V_O + (t % 2)*16 + 4*mt,4)}, {v(V_T+2)} offset:{(mt*5 + t)*1024}" for mt in range(4)]
    for ins in read_o(0): e(ins)
    for _ in range(4): lq.issue(("o", 0))
    NF = OPTS.get("nf", 11); NX = 12 - NF
    XH = [112, 96, 80, 112, 96]
    def xb(t_, k):
        if k == 0:
            t_(f"s_mul_i32 {s(S_BO)}, {s(S_W)}, {NX*8*5120}"); t_(f"s_mul_i32 {s(S_T)}, {s(S_CB)}, 5120"); t_(f"s_add_u32 {s(S_BO)}, {s(S_BO)}, {s(S_T)}")
            t_(f"s_add_u32 {s(S_BO)}, {s(S_BO)}, {WS_WF + 4*NF*8*5120}")
        R = V_TB[k]
        for ct in range(5):
            if ct < 4: t_(f"buffer_load_dwordx4 {v(R + 4*ct,4)}, {v(V_HV)}, {s(S_WS,4)}, {s(S_BO)} offen offset:{ct*1024}")
            else:
                t_(f"s_add_u32 {s(S_T)}, {s(S_BO)}, 4096")
                t_(f"buffer_load_dwordx4 {v(R + 4*ct,4)}, {v(V_HV)}, {s(S_WS,4)}, {s(S_T)} offen")
        t_(f"s_add_u32 {s(S_BO)}, {s(S_BO)}, {8*5120}")
    def xh(t_, k):
        if k == 0:
            t_(f"s_mul_i32 {s(S_HO)}, {s(S_RB)}, {4*48*1024}"); t_(f"s_mul_i32 {s(S_T)}, {s(S_W)}, {NX*1024}")
            t_(f"s_add_u32 {s(S_HO)}, {s(S_HO)}, {s(S_T)}"); t_(f"s_add_u32 {s(S_HO)}, {s(S_HO)}, {WS_H + 4*NF*1024}")
        for mt in range(4):
            t_(f"s_add_u32 {s(S_T)}, {s(S_HO)}, {mt*48*1024}")
            t_(f"buffer_load_dwordx4 {v(XH[k] + 4*mt,4)}, {v(V_HV)}, {s(S_WS,4)}, {s(S_T)} offen")
        t_(f"s_add_u32 {s(S_HO)}, {s(S_HO)}, 1024")
    for t in range(5 + NX):
        ch = []
        if t < 5:
            q.wait(("tb", t)); lq.wait(("o", t))
            if t + 1 < 5:
                ch += [[ins] for ins in read_o(t + 1)]
                for _ in range(4): lq.issue(("o", t + 1))
        else:
            q.wait(("xb", t - 5), ("xh", t - 5))
        pend = []
        k = t - 1
        if 0 <= k < NX:
            ch += capture(lambda t_: xb(t_, k)); pend += [("xb", k)] * 5
        if t == 1 and NX >= 1: ch += capture(lambda t_: xh(t_, 0)); pend += [("xh", 0)] * 4
        if t == 4 and NX >= 2: ch += capture(lambda t_: xh(t_, 1)); pend += [("xh", 1)] * 4
        if t == 5 and NX >= 3: ch += capture(lambda t_: xh(t_, 2)); pend += [("xh", 2)] * 4
        if t == 6 and NX >= 4: ch += capture(lambda t_: xh(t_, 3)); pend += [("xh", 3)] * 4
        if t == 7 and NX >= 5: ch += capture(lambda t_: xh(t_, 4)); pend += [("xh", 4)] * 4
        for x in pend: q.issue(x)
        if t < 5:
            mfma_step(e, lambda ct: v(V_TB[t] + 4*ct, 4), lambda mt: v(V_O + (t % 2)*16 + 4*mt, 4), extra=ch, first=(t == 0))
        else:
            mfma_step(e, lambda ct: v(V_TB[t - 5] + 4*ct, 4), lambda mt: v(XH[t - 5] + 4*mt, 4), extra=ch)
    stamp(e, 5)

def post_args(e, tag=""):
    e("s_waitcnt lgkmcnt(0)")
    if OPTS.get("fused"):
        e(f"s_mov_b32 {s(S_OUT)}, s50"); e(f"s_mov_b32 {s(S_OUT+1)}, s51")
        if tag == "F":
            e(f"s_cmp_eq_u32 {s(S_WV)}, 6"); e("s_cbranch_scc0 L_gb_done")
            e(f"s_mov_b32 s60, {WS_FLAGS}"); e("s_mov_b32 s62, 0x40000")
            e.label("L_gb_poll")
            e(f"buffer_load_dwordx4 v[20:23], {v(V_HV)}, {s(S_WS,4)}, s60 offen sc1")
            e("s_waitcnt vmcnt(0)")
            e("v_cmp_eq_u32 vcc, s68, v20"); e("s_mov_b64 s[64:65], vcc")
            for k in range(1, 4):
                e(f"v_cmp_eq_u32 vcc, s68, v{20+k}"); e("s_and_b64 s[64:65], s[64:65], vcc")
            e("s_cmp_eq_u64 s[64:65], -1"); e("s_cbranch_scc1 L_gb_done")
            e("s_sub_u32 s62, s62, 1"); e("s_cmp_eq_u32 s62, 0"); e("s_cbranch_scc1 L_gb_done")
            e(f"s_sleep {OPTS.get('gbsleep', 8)}")
            e("s_branch L_gb_poll")
            e.label("L_gb_done")
        e("s_barrier")
        if OPTS.get("stamp"): e(f"s_memtime {s(70,2)}"); e("s_memrealtime s[86:87]"); e("s_waitcnt lgkmcnt(0)")
        return
    e(f"s_mov_b32 {s(S_WS)}, s52"); e(f"s_mov_b32 {s(S_WS+1)}, s53")
    e(f"s_mov_b32 {s(S_X)}, s4"); e(f"s_mov_b32 {s(S_X+1)}, s5")
    e(f"s_mov_b32 {s(S_OUT)}, s50"); e(f"s_mov_b32 {s(S_OUT+1)}, s51")

def gen_k2(e, opts=None):
    opts = opts or {}
    OPTS.clear(); OPTS.update(opts)
    if not opts.get("fused"):
        e.raw(".globl k2_kernel"); e.raw(".p2align 8"); e.raw(".type k2_kernel,@function"); e.label("k2_kernel")
        e("s_cmp_ge_u32 s2, 256")
        e("s_cbranch_scc1 L_k2_end")
        e("s_load_dwordx2 s[4:5], s[0:1], 0")
        e("s_load_dwordx2 s[50:51], s[0:1], 56")
        e("s_load_dwordx2 s[52:53], s[0:1], 72")
        if opts.get("stamp"): e(f"s_memtime {s(70,2)}"); e("s_memrealtime s[86:87]")
    else:
        e("s_load_dwordx2 s[50:51], s[0:1], 56")
    e("v_lshrrev_b32 v4, 6, v0")
    e(f"v_and_b32 {v(V_LANE)}, 63, v0")
    e(f"v_readfirstlane_b32 {s(S_WV)}, v4")
    e(f"v_and_b32 {v(V_I)}, 15, {v(V_LANE)}")
    e(f"v_lshrrev_b32 {v(V_G)}, 4, {v(V_LANE)}")
    e(f"s_and_b32 {s(S_T)}, s2, 7"); e(f"s_lshr_b32 {s(S_T+1)}, s2, 3")
    e(f"s_lshr_b32 {s(S_RB)}, {s(S_T)}, 1"); e(f"s_lshl_b32 {s(S_RB)}, {s(S_RB)}, 3")
    e(f"s_and_b32 {s(S_T+2)}, {s(S_T+1)}, 7"); e(f"s_add_u32 {s(S_RB)}, {s(S_RB)}, {s(S_T+2)}")
    e(f"s_and_b32 {s(S_CB)}, {s(S_T)}, 1"); e(f"s_lshl_b32 {s(S_CB)}, {s(S_CB)}, 2")
    e(f"s_lshr_b32 {s(S_T+2)}, {s(S_T+1)}, 3"); e(f"s_add_u32 {s(S_CB)}, {s(S_CB)}, {s(S_T+2)}")
    e(f"s_and_b32 {s(S_W)}, {s(S_WV)}, 3")
    e(f"s_mul_i32 {s(S_LB)}, {s(S_WV)}, {LDS_WAVE}")
    e(f"v_lshlrev_b32 {v(V_HV)}, 4, {v(V_LANE)}")
    e(f"s_mov_b32 {s(S_WS+2)}, {WS_USED if not opts.get('stamp') else 0x2000000}"); e(f"s_mov_b32 {s(S_WS+3)}, 0x20000")
    e(f"s_mov_b32 {s(S_X+2)}, 2621440"); e(f"s_mov_b32 {s(S_X+3)}, 0x20000")
    e(f"s_mov_b32 {s(S_OUT+2)}, 2621440"); e(f"s_mov_b32 {s(S_OUT+3)}, 0x20000")
    aw = OPTS.get("awfirst", 1)
    e(f"s_cmp_lt_u32 {s(S_WV)}, 4"); e(f"s_cbranch_scc{0 if aw else 1} L_k2_F")
    if OPTS.get("aprio"): e(f"s_setprio {OPTS.get('aprio')}")
    if OPTS.get("noA"):
        post_args(e)
        for r in range(80): e(f"v_mov_b32 {v(V_ACC + r)}, 0")
    else: a_wave(e)
    e("s_branch L_k2_R")
    e.label("L_k2_F")
    if OPTS.get("fprio"): e(f"s_setprio {OPTS.get('fprio')}")
    if OPTS.get("ftest"):
        post_args(e)
        e(f"v_add_u32 {v(V_T+2)}, {s(S_LB)}, {v(V_HV)}")
        e("s_mov_b32 s60, 40")
        e.label("L_ft")
        k = OPTS.get("ftest")
        for i in range(20):
            if k == 1: e(f"v_mfma_f32_16x16x32_bf16 {v(V_ACC + 4*i,4)}, {v(20,4)}, {v(64,4)}, {v(V_ACC + 4*i,4)}")
            if k == 2: e(f"ds_read_b128 {v(20 + 4*(i % 8),4)}, {v(V_T+2)} offset:{(i % 16)*1024}"); e("s_nop 3")
            if k == 3: e(f"v_pk_mul_f32 {v(20 + 2*i,2)}, {v(64,2)}, {v(66,2)}"); e(f"v_fma_f32 {v(100 + i)}, v64, v65, v66"); e("s_nop 1")
        if k == 2: e("s_waitcnt lgkmcnt(0)")
        e("s_sub_u32 s60, s60, 1"); e("s_cmp_lg_u32 s60, 0"); e("s_cbranch_scc1 L_ft")
        for r in range(80): e(f"v_mov_b32 {v(V_ACC + r)}, 0")
    elif OPTS.get("noF"):
        post_args(e)
        for r in range(80): e(f"v_mov_b32 {v(V_ACC + r)}, 0")
    else: f_wave(e)
    e.label("L_k2_R")
    e(f"s_lshl_b32 {s(S_T)}, {s(S_RB)}, 6"); e(f"s_lshl_b32 {s(S_T+1)}, {s(S_W)}, 4"); e(f"s_add_u32 {s(S_T)}, {s(S_T)}, {s(S_T+1)}")
    e(f"v_add_u32 v10, {s(S_T)}, {v(V_I)}"); e(f"v_mul_u32_u24 v10, 1280, v10")
    e(f"v_lshlrev_b32 v4, 3, {v(V_G)}"); e(f"v_add_u32 v10, v10, v4")
    e(f"s_lshr_b32 {s(S_T+3)}, {s(S_WV)}, 2")
    e(f"s_mul_i32 {s(S_T+2)}, {s(S_CB)}, 160"); e(f"s_mul_i32 {s(S_T+4)}, {s(S_T+3)}, 96"); e(f"s_add_u32 {s(S_T+2)}, {s(S_T+2)}, {s(S_T+4)}")
    for k in range(3):
        e(f"buffer_load_dwordx2 {v(150 + 2*k,2)}, v10, {s(S_X,4)}, {s(S_T+2)} offen offset:{k*32}")
    e("s_waitcnt lgkmcnt(0)")
    e(f"v_add_u32 {v(V_T)}, {s(S_LB)}, {v(V_HV)}")
    e("s_nop 4")
    for mt in range(4):
        for ct in range(5):
            e(f"ds_write_b128 {v(V_T)}, {v(acc(mt,ct),4)} offset:{(mt*5 + ct)*1024}")
        if mt == 1: e("s_waitcnt lgkmcnt(4)")
    e(f"s_mul_i32 {s(S_T)}, {s(S_W)}, 5120"); e(f"s_mul_i32 {s(S_T+4)}, {s(S_T+3)}, 3072"); e(f"s_add_u32 {s(S_T)}, {s(S_T)}, {s(S_T+4)}")
    e(f"v_add_u32 v4, {s(S_T)}, {v(V_HV)}")
    e(f"v_add_u32 v5, {3*LDS_WAVE}, v4"); e(f"v_add_u32 v6, {6*LDS_WAVE}, v4")
    e("s_waitcnt lgkmcnt(0)")
    stamp(e, 6)
    e("s_barrier")
    if OPTS.get("fstamp"): stamp(e, 1)
    def rd(k):
        for ww in range(8):
            ad = 4 + ww // 3
            e(f"ds_read_b128 {v(20 + k*32 + ww*4,4)}, {v(ad)} offset:{(ww % 3)*LDS_WAVE + k*1024}")
    def fin(k):
        B = 20 + k*32
        if OPTS.get("sumA") or OPTS.get("sumF"):
            zs = range(4, 8) if OPTS.get("sumA") else range(0, 4)
            for ww in zs:
                for r in range(4): e(f"v_mov_b32 {v(B + ww*4 + r)}, 0")
        for h in range(2):
            for a_ in range(4):
                e(f"v_pk_add_f32 {v(B+8*a_+2*h,2)}, {v(B+8*a_+2*h,2)}, {v(B+8*a_+4+2*h,2)}")
        X = 150 + 2*k
        e(f"v_lshlrev_b32 {v(B+4)}, 16, {v(X)}"); e(f"v_and_b32 {v(B+5)}, 0xffff0000, {v(X)}")
        e(f"v_lshlrev_b32 {v(B+6)}, 16, {v(X+1)}"); e(f"v_and_b32 {v(B+7)}, 0xffff0000, {v(X+1)}")
        for h in range(2):
            e(f"v_pk_add_f32 {v(B+2*h,2)}, {v(B+2*h,2)}, {v(B+8+2*h,2)}")
            e(f"v_pk_add_f32 {v(B+16+2*h,2)}, {v(B+16+2*h,2)}, {v(B+24+2*h,2)}")
        for h in range(2):
            e(f"v_pk_add_f32 {v(B+16+2*h,2)}, {v(B+16+2*h,2)}, {v(B+4+2*h,2)}")
        for h in range(2):
            e(f"v_pk_add_f32 {v(B+2*h,2)}, {v(B+2*h,2)}, {v(B+16+2*h,2)}")
        e(f"v_cvt_pk_bf16_f32 {v(B)}, {v(B)}, {v(B+1)}")
        e(f"v_cvt_pk_bf16_f32 {v(B+1)}, {v(B+2)}, {v(B+3)}")
        e(f"buffer_store_dwordx2 {v(B,2)}, v10, {s(S_OUT,4)}, {s(S_T+2)} offen offset:{k*32}" + ((" " + OPTS.get("omod").replace("_", " ")) if OPTS.get("omod") else ""))
    rd(0)
    e("s_waitcnt lgkmcnt(2)")
    rd(1)
    e("s_waitcnt vmcnt(0) lgkmcnt(8)")
    if OPTS.get("fstamp"): stamp(e, 2)
    e(f"s_cmp_eq_u32 {s(S_T+3)}, 0"); e("s_cbranch_scc0 L_k2_h1")
    fin(0)
    if OPTS.get("fstamp"): stamp(e, 3)
    e("s_waitcnt lgkmcnt(2)")
    rd(2)
    e("s_waitcnt lgkmcnt(8)")
    fin(1)
    e("s_waitcnt lgkmcnt(0)")
    fin(2)
    e("s_branch L_k2_fin")
    e.label("L_k2_h1")
    fin(0)
    e("s_waitcnt lgkmcnt(0)")
    fin(1)
    e.label("L_k2_fin")
    if opts.get("stamp"):
        stamp(e, 7)
        e(f"s_lshl_b32 {s(S_T)}, s2, 3"); e(f"s_add_u32 {s(S_T)}, {s(S_T)}, {s(S_WV)}"); e(f"s_lshl_b32 {s(S_T)}, {s(S_T)}, 6")
        e(f"s_add_u32 {s(S_T)}, {s(S_T)}, {0x1200000}")
        e(f"v_mov_b32 v14, 0")
        e("s_memrealtime s[88:89]"); e("s_waitcnt lgkmcnt(0)")
        for k in range(8):
            e(f"v_mov_b32 v15, {s(70 + 2*k)}")
            e(f"buffer_store_dword v15, v14, {s(S_WS,4)}, {s(S_T)} offen offset:{4*k}")
            e("s_nop 1")
        e(f"v_mov_b32 v15, s86"); e(f"buffer_store_dword v15, v14, {s(S_WS,4)}, {s(S_T)} offen offset:{4*8}"); e("s_nop 1")
        e(f"v_mov_b32 v15, s88"); e(f"buffer_store_dword v15, v14, {s(S_WS,4)}, {s(S_T)} offen offset:{4*9}"); e("s_nop 1")
    if opts.get("probe"):
        pr = opts.get("probe")
        e("s_cmp_eq_u32 s2, 0"); e("s_cbranch_scc0 L_k2_end")
        e(f"s_cmp_eq_u32 {s(S_WV)}, 0"); e("s_cbranch_scc0 L_k2_end")
        e("s_waitcnt vmcnt(0)")
        e(f"v_lshlrev_b32 v20, 11, {v(V_LANE)}")
        e(f"s_mov_b32 s60, {0x1000000}")
        for k in range(4):
            e(f"buffer_load_dwordx2 v[{22+2*k}:{23+2*k}], v20, {s(S_WS,4)}, s60 offen offset:{32 + 512*k}")
        e("s_waitcnt vmcnt(0)")
        e("v_min_u32 v22, v22, v24"); e("v_min_u32 v26, v26, v28"); e("v_min_u32 v22, v22, v26")
        e("v_max_u32 v23, v23, v25"); e("v_max_u32 v27, v27, v29"); e("v_max_u32 v23, v23, v27")
        e("s_mov_b32 s61, -1"); e("s_mov_b32 s62, 0")
        for ln in range(64):
            e(f"v_readlane_b32 s63, v22, {ln}"); e(f"v_readlane_b32 s64, v23, {ln}"); e("s_nop 0")
            e("s_min_u32 s61, s61, s63"); e("s_max_u32 s62, s62, s64")
        e("s_memrealtime s[66:67]"); e("s_waitcnt lgkmcnt(0)")
        if pr == 1: e("s_sub_u32 s65, s62, s61")
        if pr == 2: e("s_sub_u32 s65, s86, s62")
        if pr == 3: e("s_sub_u32 s65, s66, s86")
        if pr == 4: e("s_mov_b32 s65, 0")
        e("s_add_u32 s65, s65, s66")
        e.label("L_probe_spin")
        e("s_memrealtime s[68:69]"); e("s_waitcnt lgkmcnt(0)")
        e("s_cmp_lt_u32 s68, s65"); e("s_cbranch_scc1 L_probe_spin")
    e.label("L_k2_end")
    e("s_endpgm")
```

```python
import sys
from asmlib import *
import k1
HDR = open('parallel_sum__linear_attn_block__glu_gated_swiglu__prompt.s.ref').read().split("; Override launch")[0]
NAME = "parallel_sum__linear_attn_block__glu_gated_swiglu__prompt_kernel"
def build_fused(opts):
    import k2
    opts = dict(opts); opts["kname"] = NAME
    e = Emit()
    e.raw(HDR.rstrip())
    e.raw(f"; @launch grid=(256,1,1) block=(512,1,1) lds={k1.LDS_TOTAL}")
    e.raw('.amdgcn_target "amdgcn-amd-amdhsa--gfx950"')
    e.raw(".text")
    k1.gen_k1(e, opts)
    k1.phase_end(e)
    k2.gen_k2(e, opts)
    e.raw(kernel_desc(NAME, 256, 96, 256))
    return e.text()
def build(opts=None, with_k2=True):
    if opts and opts.get("fused"): return build_fused(opts)
    e = Emit()
    e.raw(HDR.rstrip())
    e.raw(f"; @launch kernel=k1_kernel grid=(256,1,1) block=(512,1,1) lds={k1.LDS_TOTAL}")
    if with_k2:
        import k2
        e.raw(f"; @launch kernel=k2_kernel grid=(256,1,1) block=({getattr(k2, 'BLOCK', 256)},1,1) lds={k2.LDS_TOTAL}")
    e.raw('.amdgcn_target "amdgcn-amd-amdhsa--gfx950"')
    e.raw(".text")
    k1.gen_k1(e, opts)
    if with_k2:
        k2.gen_k2(e, opts)
    e.raw(kernel_desc("k1_kernel", 256, 96, 256))
    if with_k2:
        e.raw(kernel_desc("k2_kernel", getattr(k2, "NVGPR", 512), 96, 256))
    return e.text()
if __name__ == "__main__":
    out = sys.argv[1]
    flags = sys.argv[2:]
    opts = {}
    for f in flags:
        if "=" in f:
            k, val = f.split("=")
            try: opts[k] = int(val)
            except ValueError: opts[k] = val
        else: opts[f] = True
    open(out, "w").write(build(opts, with_k2=not opts.get("k1only")))
```

```python
from asmlib import *
import math

NST = 10
NSLOT = 3
A_BYTES = 32768
BH = 10240
SLOT = A_BYTES + 2*BH
LDS_AUX = NSLOT * SLOT
LDS_STATS = LDS_AUX
LDS_CS = LDS_AUX + 2048
LDS_TOTAL = 163840
LDS_KVS = 0
LDS_RP = SLOT + 24576
WS_PQ = 0
WS_H = 2621440
WS_KV = WS_H + 6291456
WS_STATS = WS_KV + 65536
WS_WF = WS_STATS + 32768
WS_FLAGS = WS_WF + 544*5120
WS_CSX = WS_FLAGS + 4096
WS_USED = WS_CSX + 32*8*1280
LOG2E = 1.4426950408889634

S_X = 8; S_B0 = 12; S_B1 = 16; S_WS = 20; S_DBG = 24
S_RB = 26; S_CG = 27; S_WAVE = 28; S_TYPE = 29; S_SUB = 30; S_BSTR = 31
S_CB0 = 32; S_CB1 = 33; S_ROT = 34; S_SLOT = 35; S_CNT = 36
S_T = 37
S_EPS6 = 40
S_L2E = 42
S_AOFF = 56; S_BOFF = 57; S_M0S = 60; S_T2 = 61; S_T3 = 62; S_T4 = 63
S_EXS = 64
S_OK = 67
S_NONCE = 68

V_ACC = 96
def acc(mt, ct): return V_ACC + (ct * 4 + mt) * 4
V_X = 32
V_W = 64
V_XB = 2; V_WB = 3; V_XA = 4; V_WA = 6
V_LANE = 8; V_I = 9; V_G = 10
V_CSA = 80
V_ONES = 92

OPTS = {}
def SM():
    m = OPTS.get('smod', 'sc1')
    return (' ' + m.replace('_', ' ')) if m else ''
STAMP = False
WS_STAMP = 0x1000000
def stamp(e, idx):
    if STAMP:
        e(f"s_memtime {s(70 + 2*idx, 2)}")
        e("s_waitcnt lgkmcnt(0)")
def stamp_flush(e, n):
    if STAMP:
        e(f"s_lshl_b32 {s(S_T)}, s2, 3"); e(f"s_add_u32 {s(S_T)}, {s(S_T)}, {s(S_WAVE)}"); e(f"s_lshl_b32 {s(S_T)}, {s(S_T)}, 6")
        e(f"s_add_u32 {s(S_T)}, {s(S_T)}, {WS_STAMP}")
        e(f"v_mov_b32 v14, 0")
        e("s_memrealtime s[88:89]"); e("s_waitcnt lgkmcnt(0)")
        for k in range(n):
            e(f"v_mov_b32 v15, {s(70 + 2*k)}")
            e(f"buffer_store_dword v15, v14, {s(S_WS,4)}, {s(S_T)} offen offset:{4*k}")
            e("s_nop 1")
        e(f"v_mov_b32 v15, s86"); e(f"buffer_store_dword v15, v14, {s(S_WS,4)}, {s(S_T)} offen offset:{4*8}"); e("s_nop 1")
        e(f"v_mov_b32 v15, s88"); e(f"buffer_store_dword v15, v14, {s(S_WS,4)}, {s(S_T)} offen offset:{4*9}"); e("s_nop 1")
        if OPTS.get("rtloop"):
            e(f"v_mov_b32 v15, s84"); e(f"buffer_store_dword v15, v14, {s(S_WS,4)}, {s(S_T)} offen offset:{4*10}"); e("s_nop 1")
            e(f"v_mov_b32 v15, s85"); e(f"buffer_store_dword v15, v14, {s(S_WS,4)}, {s(S_T)} offen offset:{4*11}"); e("s_nop 1")

def cs_owned(w): return [ct for ct in (w, w + 4, w + 8) if ct < 10]

def wrap_slot(e, sreg):
    e(f"s_add_u32 {s(sreg)}, {s(sreg)}, {SLOT}")
    e(f"s_cmp_eq_u32 {s(sreg)}, {NSLOT*SLOT}")
    e(f"s_cselect_b32 {s(sreg)}, 0, {s(sreg)}")

def _loop_parts(e, swapped, valid):
    RING = 4
    q = Queue(e, "lgkmcnt", 15)
    def rd_x(par, mt):
        if OPTS.get("nox"): return
        e(f"ds_read_b128 {v(V_X + par*16 + mt*4, 4)}, {v(V_XA + par)} offset:{mt*2048}")
        q.issue(("x", par, mt))
    def rd_w(f, part):
        if OPTS.get("now"): return
        ks, ct = divmod(f % 20, 10)
        if valid is not None and ct not in valid: return
        half, c16 = divmod(ct, 5)
        off = half * BH + ks * 5120 + c16 * 32 + part * 1280
        ring = f % RING
        e(f"ds_read_b64_tr_b16 {v(V_W + ring*4 + part*2, 2)}, {v(V_WA)} offset:{off}")
        q.issue(("w", ring, part))
    def next_addr():
        e(f"v_add_u32 {v(V_XA)}, {s(S_SLOT)}, {v(V_XB)}")
        e(f"v_add_u32 {v(V_WA)}, {s(S_SLOT)}, {v(V_WB)}")
        e(f"v_xor_b32 {v(V_XA + 1)}, 64, {v(V_XA)}")
        wrap_slot(e, S_SLOT)
    sched = {G: [] for G in range(20)}
    sched[0] = [("w", 2, 0), ("w", 2, 1), ("w", 3, 0), ("w", 3, 1)]
    for G in range(1, 17): sched[G] = [("w", G + 3, 0), ("w", G + 3, 1)]
    for k, G in enumerate((4, 5, 6, 7)): sched[G].append(("x", 1, k))
    sched[18] = [("x", 0, 0), ("x", 0, 1), ("w", 20, 0), ("w", 20, 1)]
    sched[19] = [("x", 0, 2), ("x", 0, 3), ("w", 21, 0), ("w", 21, 1)]
    def do_read(r):
        if r[0] == "x": rd_x(r[1], r[2])
        else: rd_w(r[1], r[2])
    def prologue():
        next_addr()
        for G in (18, 19):
            for r in sched[G]: do_read(r)
    def body(own):
        for G in range(20):
            ks, ct = divmod(G, 10)
            ring = G % RING
            reads = list(sched[G])
            if G == 18:
                q.drain()
                e("s_barrier")
                next_addr()
            ri = 0
            for mt in range(4):
                q.wait(("w", ring, 0), ("w", ring, 1), ("x", ks, mt))
                A = acc(mt, ct)
                xo = v(V_X + ks*16 + mt*4, 4); wo = v(V_W + ring*4, 4)
                if OPTS.get("nomfma") or (valid is not None and ct not in valid): pass
                elif swapped: e(f"v_mfma_f32_16x16x32_bf16 {v(A,4)}, {wo}, {xo}, {v(A,4)}")
                else: e(f"v_mfma_f32_16x16x32_bf16 {v(A,4)}, {xo}, {wo}, {v(A,4)}")
                if mt == 3 and ct in own and not OPTS.get("nomfma"):
                    C = V_CSA + 4*own.index(ct)
                    if swapped: e(f"v_mfma_f32_16x16x32_bf16 {v(C,4)}, {wo}, {v(V_ONES,4)}, {v(C,4)}")
                    else: e(f"v_mfma_f32_16x16x32_bf16 {v(C,4)}, {v(V_ONES,4)}, {wo}, {v(C,4)}")
                nrd = (len(reads) - ri + (3 - mt)) // (4 - mt)
                for _ in range(nrd):
                    do_read(reads[ri]); ri += 1
            assert ri == len(reads)
    return q, prologue, body

def cs_flush(e, swapped, own, wait=True):
    if not own: return
    if swapped:
        e(f"v_lshlrev_b32 v11, 4, {v(V_G)}"); e(f"v_add_u32 v11, {LDS_CS}, v11")
        e(f"v_cmp_eq_u32 vcc, 0, {v(V_I)}")
    else:
        e(f"v_lshlrev_b32 v11, 2, {v(V_I)}"); e(f"v_add_u32 v11, {LDS_CS}, v11")
        e(f"v_cmp_eq_u32 vcc, 0, {v(V_G)}")
    e("s_nop 5")
    e(f"s_and_saveexec_b64 {s(S_EXS,2)}, vcc")
    for k, ct in enumerate(own):
        if swapped: e(f"ds_write_b128 v11, {v(V_CSA + 4*k,4)} offset:{ct*64}")
        else: e(f"ds_write_b32 v11, {v(V_CSA + 4*k)} offset:{ct*64}")
    e(f"s_mov_b64 exec, {s(S_EXS,2)}")
    if wait: e("s_waitcnt lgkmcnt(0)")
    else: e("s_nop 3")

def consumer_loop(e, swapped, tag, w, valid=None, ntag=None):
    own = cs_owned(w) if not OPTS.get("nocolsum") else []
    if valid is not None: own = [ct for ct in own if ct in valid]
    dcs = OPTS.get("dcs", 1)
    q, prologue, body = _loop_parts(e, swapped, valid)
    e(f"s_mov_b32 {s(S_SLOT)}, 0")
    stamp(e, 1)
    e("s_barrier")
    stamp(e, 2)
    if OPTS.get("rtloop"): e("s_memrealtime s[94:95]"); e("s_waitcnt lgkmcnt(0)"); e("s_mov_b32 s84, s94")
    prologue()
    state0 = list(q.p)
    if dcs:
        e(f"s_cmp_lt_u32 {s(S_RB)}, 2"); e(f"s_cselect_b32 {s(S_CNT)}, 2, 1"); e(f"s_sub_u32 {s(S_T3)}, {NST}, {s(S_CNT)}")
    else:
        e(f"s_mov_b32 {s(S_CNT)}, {NST}")
    e.raw(".p2align 6")
    e.label(f"L_cloop_{tag}")
    body(own)
    e(f"s_sub_u32 {s(S_CNT)}, {s(S_CNT)}, 1")
    e(f"s_cmp_lg_u32 {s(S_CNT)}, 0")
    e(f"s_cbranch_scc1 L_cloop_{tag}")
    assert q.p == state0, (q.p, state0)
    if dcs:
        cs_flush(e, swapped, own, wait=False)
        e(f"s_mov_b32 {s(S_CNT)}, {s(S_T3)}")
        e(f"s_branch L_cloopN_{ntag}")
        return
    e("s_waitcnt lgkmcnt(0)")
    stamp(e, 3)
    if OPTS.get("rtloop"): e("s_memrealtime s[94:95]"); e("s_waitcnt lgkmcnt(0)"); e("s_mov_b32 s85, s94")
    cs_flush(e, swapped, own)

def shared_loop(e, swapped, ntag, valid=None):
    if not OPTS.get("dcs", 1): return
    t = Emit(); q0, pro0, _ = _loop_parts(t, swapped, valid); pro0(); st0 = list(q0.p)
    q, prologue, body = _loop_parts(e, swapped, valid)
    q.p = list(st0)
    e.raw(".p2align 6")
    e.label(f"L_cloopN_{ntag}")
    body([])
    e(f"s_sub_u32 {s(S_CNT)}, {s(S_CNT)}, 1")
    e(f"s_cmp_lg_u32 {s(S_CNT)}, 0")
    e(f"s_cbranch_scc1 L_cloopN_{ntag}")
    assert q.p == st0
    e("s_waitcnt lgkmcnt(0)")
    stamp(e, 3)
    if OPTS.get("rtloop"): e("s_memrealtime s[94:95]"); e("s_waitcnt lgkmcnt(0)"); e("s_mov_b32 s85, s94")

def setup_pre(e):
    e("s_cmp_ge_u32 s2, 256")
    e("s_cbranch_scc1 L_k1_end")
    e("s_load_dwordx4 s[4:7], s[0:1], 0")
    e("s_load_dwordx4 s[48:51], s[0:1], 32")
    e("s_load_dwordx4 s[52:55], s[0:1], 64")
    if STAMP: e(f"s_memtime {s(70,2)}")
    if STAMP: e(f"s_memrealtime s[86:87]")
    e(f"v_lshrrev_b32 v1, 6, v0")
    e(f"v_and_b32 {v(V_LANE)}, 63, v0")
    e(f"v_readfirstlane_b32 {s(S_WAVE)}, v1")
    e(f"s_and_b32 {s(S_T)}, s2, 7")
    e(f"s_lshr_b32 {s(S_T+1)}, s2, 3")
    e(f"s_and_b32 {s(S_RB)}, {s(S_T)}, 1")
    e(f"s_lshl_b32 {s(S_RB)}, {s(S_RB)}, 2")
    e(f"s_and_b32 {s(S_T+2)}, {s(S_T+1)}, 3")
    e(f"s_add_u32 {s(S_RB)}, {s(S_RB)}, {s(S_T+2)}")
    e(f"s_lshr_b32 {s(S_T)}, {s(S_T)}, 1")
    e(f"s_lshr_b32 {s(S_T+1)}, {s(S_T+1)}, 2")
    e(f"s_lshl_b32 {s(S_CG)}, {s(S_T)}, 3"); e(f"s_add_u32 {s(S_CG)}, {s(S_CG)}, {s(S_T+1)}")
    e(f"s_mul_i32 {s(S_SUB)}, {s(S_T)}, 5"); e(f"s_add_u32 {s(S_SUB)}, {s(S_SUB)}, {s(S_T+1)}"); e(f"s_sub_u32 {s(S_SUB)}, {s(S_SUB)}, 3")
    e(f"s_mov_b32 {s(S_TYPE)}, 2")
    e(f"s_cmp_eq_u32 {s(S_T+1)}, 2")
    e(f"s_cselect_b32 {s(S_TYPE)}, 0, {s(S_TYPE)}"); e(f"s_cselect_b32 {s(S_SUB)}, {s(S_T)}, {s(S_SUB)}")
    e(f"s_lshl_b32 {s(S_T+2)}, {s(S_T)}, 1"); e(f"s_add_u32 {s(S_T+2)}, {s(S_T+2)}, {s(S_T+1)}")
    e(f"s_cmp_lt_u32 {s(S_T+1)}, 2")
    e(f"s_cselect_b32 {s(S_TYPE)}, 1, {s(S_TYPE)}"); e(f"s_cselect_b32 {s(S_SUB)}, {s(S_T+2)}, {s(S_SUB)}")
    e(f"s_mul_i32 {s(S_CB0)}, {s(S_SUB)}, 160")
    e(f"s_mov_b32 {s(S_CB1)}, {s(S_CB0)}")
    e(f"s_and_b32 {s(S_ROT)}, {s(S_SUB)}, 1"); e(f"s_lshl_b32 {s(S_ROT)}, {s(S_ROT)}, 1")
    e(f"s_cmp_eq_u32 {s(S_TYPE)}, 2")
    e(f"s_cselect_b32 {s(S_ROT)}, {s(S_ROT)}, 0")
    e(f"s_mov_b32 {s(S_BSTR)}, 3840"); e(f"s_mov_b32 {s(S_B0+2)}, 2457600")
    e(f"s_cselect_b32 {s(S_BSTR)}, 3072, {s(S_BSTR)}")
    e(f"s_cselect_b32 {s(S_B0+2)}, 1966080, {s(S_B0+2)}"); e(f"s_mov_b32 {s(S_B1+2)}, {s(S_B0+2)}")
    e(f"s_cmp_eq_u32 {s(S_TYPE)}, 1")
    e(f"s_cselect_b32 {s(S_T)}, 1280, 0"); e(f"s_cselect_b32 {s(S_T+1)}, 2560, 0")
    e(f"s_add_u32 {s(S_CB0)}, {s(S_CB0)}, {s(S_T)}"); e(f"s_add_u32 {s(S_CB1)}, {s(S_CB1)}, {s(S_T+1)}")
    e(f"s_cmp_eq_u32 {s(S_TYPE)}, 0")
    e(f"s_cselect_b32 {s(S_T)}, {s(S_CB0)}, 0"); e(f"s_cselect_b32 {s(S_T+1)}, 160, 0")
    e(f"s_add_u32 {s(S_CB0)}, {s(S_CB0)}, {s(S_T)}"); e(f"s_add_u32 {s(S_CB1)}, {s(S_CB1)}, {s(S_T)}"); e(f"s_add_u32 {s(S_CB1)}, {s(S_CB1)}, {s(S_T+1)}")
    e(f"s_mov_b32 {s(S_X+2)}, 2621440"); e(f"s_mov_b32 {s(S_X+3)}, 0x20000")
    e(f"s_mov_b32 {s(S_WS+2)}, {WS_USED if not STAMP else 0x2000000}"); e(f"s_mov_b32 {s(S_WS+3)}, 0x20000")
    e(f"s_mov_b32 {s(S_B0+3)}, 0x20000"); e(f"s_mov_b32 {s(S_B1+3)}, 0x20000")
    e(f"v_and_b32 {v(V_I)}, 15, {v(V_LANE)}")
    e(f"v_lshrrev_b32 {v(V_G)}, 4, {v(V_LANE)}")

def setup_post(e):
    e("s_waitcnt lgkmcnt(0)")
    e(f"s_mov_b32 {s(S_X)}, s4"); e(f"s_mov_b32 {s(S_X+1)}, s5")
    e(f"s_cmp_eq_u32 {s(S_TYPE)}, 2")
    e(f"s_cselect_b32 {s(S_B0)}, s48, s6"); e(f"s_cselect_b32 {s(S_B0+1)}, s49, s7")
    e(f"s_cselect_b32 {s(S_B1)}, s50, s6"); e(f"s_cselect_b32 {s(S_B1+1)}, s51, s7")
    e(f"s_mov_b32 {s(S_WS)}, s54"); e(f"s_mov_b32 {s(S_WS+1)}, s55")
    e(f"s_mov_b32 {s(S_DBG)}, s52"); e(f"s_mov_b32 {s(S_DBG+1)}, s53")

def consumer_setup(e):
    e(f"v_and_b32 v11, 7, {v(V_I)}")
    e(f"v_xor_b32 v11, {v(V_G)}, v11")
    e(f"v_lshlrev_b32 v11, 4, v11")
    e(f"s_lshl_b32 {s(S_T)}, {s(S_WAVE)}, 13")
    e(f"v_lshlrev_b32 v12, 7, {v(V_I)}")
    e(f"v_add3_u32 {v(V_XB)}, v11, v12, {s(S_T)}")
    e(f"v_lshrrev_b32 v11, 1, {v(V_G)}")
    e(f"v_lshlrev_b32 v11, 4, v11")
    e(f"v_and_b32 v12, 1, {v(V_G)}")
    e(f"v_lshlrev_b32 v12, 2, v12")
    e(f"v_lshrrev_b32 v13, 2, {v(V_I)}")
    e(f"v_add3_u32 v11, v11, v12, v13")
    e(f"v_mul_u32_u24 v11, 160, v11")
    e(f"v_and_b32 v12, 3, {v(V_I)}")
    e(f"v_lshlrev_b32 v12, 3, v12")
    e(f"v_add_u32 v11, v11, v12")
    e(f"v_add_u32 {v(V_WB)}, {A_BYTES}, v11")
    if OPTS.get("dry", 1):
        e("s_mov_b64 exec, 0")
        for ty, nm in ((2, "gu"), (0, "q"), (1, "kv")):
            if ty != 1: e(f"s_cmp_eq_u32 {s(S_TYPE)}, {ty}"); e(f"s_cbranch_scc0 L_dry_n{nm}")
            for w in range(4):
                if w < 3:
                    e(f"s_cmp_eq_u32 {s(S_WAVE)}, {w}"); e(f"s_cbranch_scc1 L_{nm}_b{w}")
                else: e(f"s_branch L_{nm}_b{w}")
            if ty != 1: e.label(f"L_dry_n{nm}")
    e.label("L_dry_ret")
    e("s_mov_b64 exec, -1")
    e("s_nop 3")
    for r in range(V_CSA, V_CSA + 12): e(f"v_mov_b32 {v(r)}, 0")
    for r in range(V_ONES, V_ONES + 4): e(f"v_mov_b32 {v(r)}, 0x3f803f80")
    for r in range(V_ACC, 256):
        e(f"v_mov_b32 {v(r)}, 0")

P_VA = 16
P_VB = 20
P_ONE = 26
P_SL = 100
P_POLL = 60
P_RES = 56
DBG_NONCE = 0
DBG_FLAG = 64

def div10(e, dst, src):
    e(f"v_mul_u32_u24 {v(dst)}, 205, {v(src)}")
    e(f"v_lshrrev_b32 {v(dst)}, 11, {v(dst)}")

def endp(e):
    if OPTS.get("fused"): e("s_branch L_phase_end")
    else: e("s_endpgm")

def lane0(e, on=True):
    if on:
        e(f"v_cmp_eq_u32 vcc, 0, {v(V_LANE)}")
        e(f"s_and_saveexec_b64 {s(S_EXS,2)}, vcc")
    else:
        e(f"s_mov_b64 exec, {s(S_EXS,2)}")

S_DA = 58; S_DB = 59; S_MA = 44; S_MB = 45
def issue_a(e, q, tag):
    for a_ in range(16):
        e(f"s_add_u32 m0, {s(S_MA)}, {a_*1024}")
        e(f"s_add_u32 {s(S_T)}, {s(S_AOFF)}, {a_*8*1280}")
        e(f"buffer_load_dwordx4 {v(P_VA)}, {s(S_X,4)}, {s(S_T)} offen lds")
        q.issue(tag)
    e(f"s_add_u32 {s(S_AOFF)}, {s(S_AOFF)}, 128")

def issue_b(e, q, tag):
    for b in range(10):
        if b == 5: e(f"s_add_u32 {s(S_BOFF)}, {s(S_BOFF)}, {s(S_T4)}")
        e(f"s_add_u32 m0, {s(S_MB)}, {b*1024}")
        e("s_nop 0")
        e(f"buffer_load_dwordx4 {v(P_VB + b % 5)}, {s(S_B0,4)}, {s(S_BOFF)} offen lds")
        q.issue(tag)
    e(f"s_add_u32 {s(S_BOFF)}, {s(S_BOFF)}, {s(S_T4)}")

def set_slot(e, slot_sgpr=None, slot_imm=None):
    if slot_sgpr is None:
        e(f"s_add_u32 {s(S_MA)}, {s(S_DA)}, {slot_imm}"); e(f"s_add_u32 {s(S_MB)}, {s(S_DB)}, {slot_imm}")
    else:
        e(f"s_add_u32 {s(S_MA)}, {s(S_DA)}, {s(slot_sgpr)}"); e(f"s_add_u32 {s(S_MB)}, {s(S_DB)}, {s(slot_sgpr)}")

S_KST = 46
def rot_wrap(e):
    if not OPTS.get("rot", 1): return
    e(f"s_add_u32 {s(S_KST)}, {s(S_KST)}, 1")
    e(f"s_cmp_eq_u32 {s(S_KST)}, 10")
    e(f"s_cselect_b32 {s(S_T)}, 1280, 0"); e(f"s_cselect_b32 {s(S_T+1)}, s47, 0"); e(f"s_cselect_b32 {s(S_KST)}, 0, {s(S_KST)}")
    e(f"s_sub_u32 {s(S_AOFF)}, {s(S_AOFF)}, {s(S_T)}"); e(f"s_sub_u32 {s(S_BOFF)}, {s(S_BOFF)}, {s(S_T+1)}")

def issue_stage(e, q, slot_sgpr=None, slot_imm=None, tag=None):
    if OPTS.get("nodma") and slot_sgpr is not None: return
    set_slot(e, slot_sgpr, slot_imm)
    issue_a(e, q, tag)
    issue_b(e, q, tag)
    rot_wrap(e)

def dma_wave(e):
    if OPTS.get("dprio", 3): e(f"s_setprio {OPTS.get('dprio', 3)}")
    q = Queue(e, "vmcnt", 63)
    n = 26
    e(f"s_sub_u32 {s(S_T3)}, {s(S_WAVE)}, 4")
    e(f"s_lshl_b32 {s(S_DA)}, {s(S_T3)}, 14")
    e(f"s_mul_i32 {s(S_DB)}, {s(S_T3)}, {BH}"); e(f"s_add_u32 {s(S_DB)}, {s(S_DB)}, {A_BYTES}")
    e(f"v_lshrrev_b32 v12, 3, {v(V_LANE)}")
    e(f"v_and_b32 v11, 7, {v(V_LANE)}")
    e(f"v_xor_b32 v11, v11, v12")
    e(f"v_lshlrev_b32 v11, 4, v11")
    e(f"v_mul_u32_u24 v12, 1280, v12")
    e(f"v_add_u32 {v(P_VA)}, v11, v12")
    e(f"s_lshl_b32 {s(S_AOFF)}, {s(S_RB)}, 1"); e(f"s_add_u32 {s(S_AOFF)}, {s(S_AOFF)}, {s(S_T3)}")
    e(f"s_mul_i32 {s(S_AOFF)}, {s(S_AOFF)}, {128*1280}")
    for b in range(5):
        e(f"v_add_u32 v11, {64*b}, {v(V_LANE)}")
        div10(e, 12, 11)
        e(f"v_mul_u32_u24 v13, 10, v12")
        e(f"v_sub_u32 v13, v11, v13")
        e(f"v_add_u32 v13, {s(S_ROT)}, v13")
        e(f"v_cmp_le_u32 vcc, 10, v13")
        e(f"v_subrev_u32 v14, 10, v13")
        e(f"v_and_b32 v15, 0x13, v12")
        e(f"v_cndmask_b32 v13, v13, v14, vcc")
        e(f"v_and_b32 v14, 4, v12"); e(f"v_lshlrev_b32 v14, 1, v14"); e(f"v_or_b32 v15, v15, v14")
        e(f"v_and_b32 v14, 8, v12"); e(f"v_lshrrev_b32 v14, 1, v14"); e(f"v_or_b32 v15, v15, v14")
        e(f"v_mul_lo_u32 v15, v15, {s(S_BSTR)}")
        e(f"v_lshlrev_b32 v13, 4, v13")
        e(f"v_add_u32 {v(P_VB + b)}, v15, v13")
    e(f"s_cmp_eq_u32 {s(S_T3)}, 0")
    e(f"s_cselect_b32 {s(S_BOFF)}, {s(S_CB0)}, {s(S_CB1)}")
    e(f"s_lshl_b32 {s(S_T4)}, {s(S_BSTR)}, 5")
    if OPTS.get("rot", 1):
        R = OPTS.get("rot", 1)
        e(f"s_lshl_b32 {s(S_KST)}, {s(S_RB)}, 1"); e(f"s_add_u32 {s(S_T)}, {s(S_RB)}, 2")
        e(f"s_cmp_lt_u32 {s(S_RB)}, 2"); e(f"s_cselect_b32 {s(S_KST)}, {s(S_KST)}, {s(S_T)}")
        if R == 4:
            e(f"s_and_b32 {s(S_T)}, {s(S_RB)}, 3"); e(f"s_mul_i32 {s(S_KST)}, {s(S_T)}, 5"); e(f"s_lshr_b32 {s(S_KST)}, {s(S_KST)}, 1")
            e(f"s_lshr_b32 {s(S_T)}, {s(S_RB)}, 2"); e(f"s_add_u32 {s(S_KST)}, {s(S_KST)}, {s(S_T)}")
        if R in (2, 3):
            if R == 3: e(f"s_mov_b32 {s(S_KST)}, 0")
            e(f"s_and_b32 {s(S_T)}, {s(S_CG)}, 7")
            if OPTS.get("rotm", 1) > 1: e(f"s_mul_i32 {s(S_T)}, {s(S_T)}, {OPTS.get('rotm')}")
            e(f"s_add_u32 {s(S_KST)}, {s(S_KST)}, {s(S_T)}")
            for _ in range(3):
                e(f"s_cmp_ge_u32 {s(S_KST)}, 10"); e(f"s_cselect_b32 {s(S_T)}, 10, 0"); e(f"s_sub_u32 {s(S_KST)}, {s(S_KST)}, {s(S_T)}")
        e(f"s_mul_i32 s47, {s(S_BSTR)}, 640")
        e(f"s_lshl_b32 {s(S_T)}, {s(S_KST)}, 7"); e(f"s_add_u32 {s(S_AOFF)}, {s(S_AOFF)}, {s(S_T)}")
        e(f"s_mul_i32 {s(S_T)}, {s(S_KST)}, {s(S_BSTR)}"); e(f"s_lshl_b32 {s(S_T)}, {s(S_T)}, 6"); e(f"s_add_u32 {s(S_BOFF)}, {s(S_BOFF)}, {s(S_T)}")
    setup_post(e)
    e(f"s_cmp_eq_u32 {s(S_T3)}, 0")
    e(f"s_cselect_b32 {s(S_B0)}, {s(S_B0)}, {s(S_B1)}"); e(f"s_cselect_b32 {s(S_B0+1)}, {s(S_B0+1)}, {s(S_B1+1)}")
    stamp(e, 1)
    issue_stage(e, q, slot_imm=0, tag=0)
    stamp(e, 2)
    NPRE = OPTS.get("npre", 2)
    if NPRE == 2: issue_stage(e, q, slot_imm=SLOT, tag=1)
    if NPRE == 3:
        set_slot(e, None, SLOT); issue_b(e, q, 1)
    if NPRE == 4:
        set_slot(e, None, SLOT); issue_a(e, q, 1)
    stamp(e, 3)
    q.wait(0)
    stamp(e, 5)
    e("s_barrier")
    if NPRE == 1: issue_stage(e, q, slot_imm=SLOT, tag=1)
    if NPRE == 3: issue_a(e, q, 1)
    if NPRE == 4: issue_b(e, q, 1)
    issue_stage(e, q, slot_imm=2*SLOT, tag=2)
    e(f"s_mov_b32 {s(S_M0S)}, 0")
    e(f"s_mov_b32 {s(S_CNT)}, 7")
    e.label(f"L_dloop")
    e(f"s_waitcnt vmcnt({n})")
    e("s_barrier")
    q2 = Queue(e, "vmcnt", 63)
    issue_stage(e, q2, slot_sgpr=S_M0S, tag="x"); wrap_slot(e, S_M0S)
    e(f"s_sub_u32 {s(S_CNT)}, {s(S_CNT)}, 1")
    e(f"s_cmp_lg_u32 {s(S_CNT)}, 0")
    e(f"s_cbranch_scc1 L_dloop")
    e(f"s_waitcnt vmcnt({n})"); e("s_barrier")
    e(f"s_waitcnt vmcnt(0)"); e("s_barrier")
    e("s_barrier")
    e("s_barrier")
    e(f"s_cmp_eq_u32 {s(S_TYPE)}, 1")
    e(f"s_cbranch_scc1 L_kv_final")
    if STAMP:
        stamp(e, 4); stamp(e, 6); stamp_flush(e, 7)
    endp(e)

def stats4_load(e, row_sgpr):
    e(f"v_add_u32 v11, {s(row_sgpr)}, {v(V_G)}")
    e(f"v_mul_u32_u24 v11, 1280, v11")
    e(f"v_lshlrev_b32 v14, 4, {v(V_I)}")
    e(f"v_add_u32 v11, v11, v14")
    for k in range(5):
        e(f"buffer_load_dwordx4 {v(P_SL + 4*k, 4)}, v11, {s(S_X,4)}, 0 offen offset:{k*256}")

def stats4_compute(e):
    A = P_SL + 20
    for k in range(4): e(f"v_mov_b32 {v(A + k)}, 0")
    for d in range(20):
        e(f"v_dot2c_f32_bf16 {v(A + (d & 1))}, {v(P_SL + d)}, {v(P_ONE)}")
        e(f"v_dot2c_f32_bf16 {v(A + 2 + (d & 1))}, {v(P_SL + d)}, {v(P_SL + d)}")
    e("s_nop 2")
    e(f"v_add_f32 {v(A)}, {v(A)}, {v(A+1)}")
    e(f"v_add_f32 {v(A+2)}, {v(A+2)}, {v(A+3)}")
    for ctl in ("quad_perm:[1,0,3,2]", "quad_perm:[2,3,0,1]", "row_half_mirror", "row_mirror"):
        e("s_nop 0")
        e(f"v_add_f32_dpp {v(A)}, {v(A)}, {v(A)} {ctl} row_mask:0xf bank_mask:0xf")
        e(f"v_add_f32_dpp {v(A+2)}, {v(A+2)}, {v(A+2)} {ctl} row_mask:0xf bank_mask:0xf")
        e("s_nop 0")
    M = P_SL + 26
    e(f"v_mul_f32 {v(M)}, {f32(1.0/640)}, {v(A)}")
    e(f"v_mul_f32 {v(A+1)}, {v(M)}, {v(M)}")
    e(f"v_mul_f32 {v(A+2)}, {f32(1.0/640)}, {v(A+2)}")
    e(f"v_sub_f32 {v(A+2)}, {v(A+2)}, {v(A+1)}")
    e(f"v_max_f32 {v(A+2)}, 0, {v(A+2)}")
    e(f"v_add_f32 {v(A+2)}, {f32(1e-5)}, {v(A+2)}")
    e(f"v_rsq_f32 {v(M+1)}, {v(A+2)}")
    e("s_nop 0")

def write_stats_lds_from_pairs(e, R, tag):
    e(f"s_cmp_eq_u32 {s(S_TYPE)}, 1")
    e(f"s_cbranch_scc1 L_wsk_{tag}")
    e(f"v_lshlrev_b32 v13, 5, {v(V_LANE)}")
    e(f"v_add_u32 v13, {LDS_STATS}, v13")
    e(f"ds_write_b128 v13, {v(R,4)}")
    e(f"ds_write_b128 v13, {v(R+4,4)} offset:16")
    e(f"s_branch L_wsd_{tag}")
    e.label(f"L_wsk_{tag}")
    T = R + 8
    for k in range(4):
        e(f"v_mov_b32 {v(T + k)}, {v(R + 2*k)}")
        e(f"v_mov_b32 {v(T + 4 + k)}, {v(R + 2*k + 1)}")
    e(f"v_lshlrev_b32 v13, 4, {v(V_LANE)}")
    e(f"v_add_u32 v13, {LDS_STATS}, v13")
    e(f"ds_write_b128 v13, {v(T,4)}")
    e(f"ds_write_b128 v13, {v(T+4,4)} offset:1024")
    e.label(f"L_wsd_{tag}")

def fetch_stats(e):
    e(f"s_lshl_b32 {s(S_T)}, {s(S_RB)}, 12")
    e(f"s_add_u32 {s(S_T)}, {s(S_T)}, {WS_STATS}")
    e(f"v_lshlrev_b32 v11, 6, {v(V_LANE)}")
    for k in range(4):
        e(f"buffer_load_dwordx4 {v(P_SL + 4*k,4)}, v11, {s(S_WS,4)}, {s(S_T)} offen offset:{16*k} sc1")

def check_stats(e, tag):
    e(f"v_cmp_eq_u32 vcc, {s(S_NONCE)}, {v(P_SL + 1)}")
    e(f"s_mov_b64 s[92:93], vcc")
    for k in range(1, 8):
        e(f"v_cmp_eq_u32 vcc, {s(S_NONCE)}, {v(P_SL + 2*k + 1)}")
        e(f"s_and_b64 s[92:93], s[92:93], vcc")
    e(f"s_cmp_eq_u64 s[92:93], -1")
    e(f"s_cbranch_scc0 L_chk_no_{tag}")
    R = P_SL + 16
    for k in range(8):
        e(f"v_mov_b32 {v(R + k)}, {v(P_SL + 2*k)}")
    write_stats_lds_from_pairs(e, R, tag)
    e(f"s_mov_b32 {s(S_OK)}, 1")
    e.label(f"L_chk_no_{tag}")

def publish_stats(e, tag):
    e(f"v_lshlrev_b32 v13, 4, {v(V_G)}")
    e(f"s_lshl_b32 {s(S_T)}, {s(S_T3)}, 4"); e(f"s_add_u32 {s(S_T)}, {s(S_T)}, {WS_STATS}")
    e(f"v_mov_b32 v29, {s(S_NONCE)}"); e(f"v_mov_b32 v31, {s(S_NONCE)}")
    e(f"v_mov_b32 v33, {s(S_NONCE)}"); e(f"v_mov_b32 v35, {s(S_NONCE)}")
    e(f"v_mov_b32 v28, {v(P_RES)}"); e(f"v_mov_b32 v30, {v(P_RES+1)}")
    e(f"v_mov_b32 v32, {v(P_RES+2)}"); e(f"v_mov_b32 v34, {v(P_RES+3)}")
    e(f"v_cmp_eq_u32 vcc, 0, {v(V_I)}")
    e(f"s_and_saveexec_b64 {s(S_EXS,2)}, vcc")
    e(f"buffer_store_dwordx4 v[28:31], v13, {s(S_WS,4)}, {s(S_T)} offen sc1")
    e(f"buffer_store_dwordx4 v[32:35], v13, {s(S_WS,4)}, {s(S_T)} offen offset:64 sc1")
    e(f"s_mov_b64 exec, {s(S_EXS,2)}")

def poll_nonce(e):
    e(f"v_mov_b32 v11, 0")
    e(f"global_load_dword {v(P_POLL)}, v11, {s(S_DBG,2)} offset:{DBG_NONCE} sc1")

def try_publish(e, tag, repoll=True):
    e(f"s_cmp_lg_u32 {s(S_NONCE)}, 0"); e(f"s_cbranch_scc1 L_tp_{tag}")
    e("s_waitcnt vmcnt(0)")
    e(f"v_readfirstlane_b32 {s(S_NONCE)}, {v(P_POLL)}")
    e("s_nop 3")
    e(f"s_cmp_eq_u32 {s(S_NONCE)}, 0"); e(f"s_cbranch_scc1 L_tpr_{tag}")
    publish_stats(e, tag)
    e(f"s_branch L_tp_{tag}")
    e.label(f"L_tpr_{tag}")
    if repoll: poll_nonce(e)
    e.label(f"L_tp_{tag}")

def hbar(e, j):
    e("s_barrier")
    if OPTS.get("hstamp"):
        e("s_memtime s[90:91]"); e("s_waitcnt lgkmcnt(0)")
        e(f"v_writelane_b32 v62, s90, {j}")

def helper0(e, opts):
    e("s_cmp_eq_u32 s2, 0"); e("s_cbranch_scc0 L_h0_nononce")
    e("s_memrealtime s[92:93]"); e("s_waitcnt lgkmcnt(0)")
    e("s_or_b32 s92, s92, 1")
    e("v_mov_b32 v11, 0"); e("v_mov_b32 v12, s92")
    lane0(e)
    e(f"global_store_dword v11, v12, {s(S_DBG,2)} offset:{DBG_NONCE} sc1")
    lane0(e, False)
    e.label("L_h0_nononce")
    e(f"s_lshl_b32 {s(S_T)}, {s(S_RB)}, 8")
    e(f"s_lshl_b32 {s(S_T+1)}, {s(S_CG)}, 3")
    e(f"s_add_u32 {s(S_T3)}, {s(S_T)}, {s(S_T+1)}")
    stats4_load(e, S_T3)
    e(f"v_add_u32 v11, {4*1280}, v11")
    for k in range(5):
        e(f"buffer_load_dwordx4 {v(P_SL + 32 + 4*k, 4)}, v11, {s(S_X,4)}, 0 offen offset:{k*256}")
    e(f"v_mov_b32 {v(P_ONE)}, 0x3f803f80")
    e(f"s_mov_b32 {s(S_OK)}, 0"); e(f"s_mov_b32 {s(S_NONCE)}, 0")
    LATE = OPTS.get("statlate", 0)
    def do_stats():
        e("s_waitcnt vmcnt(5)")
        stats4_compute(e)
        e(f"v_mov_b32 {v(P_RES)}, {v(P_SL+26)}"); e(f"v_mov_b32 {v(P_RES+1)}, {v(P_SL+27)}")
        e("s_waitcnt vmcnt(0)")
        poll_nonce(e)
        for k in range(20): e(f"v_mov_b32 {v(P_SL + k)}, {v(P_SL + 32 + k)}")
        stats4_compute(e)
        e(f"v_mov_b32 {v(P_RES+2)}, {v(P_SL+26)}"); e(f"v_mov_b32 {v(P_RES+3)}, {v(P_SL+27)}")
    def do_stats_a():
        e("s_waitcnt vmcnt(5)")
        stats4_compute(e)
        e(f"v_mov_b32 {v(P_RES)}, {v(P_SL+26)}"); e(f"v_mov_b32 {v(P_RES+1)}, {v(P_SL+27)}")
        e("s_waitcnt vmcnt(0)")
        poll_nonce(e)
    def do_stats_b():
        for k in range(20): e(f"v_mov_b32 {v(P_SL + k)}, {v(P_SL + 32 + k)}")
        stats4_compute(e)
        e(f"v_mov_b32 {v(P_RES+2)}, {v(P_SL+26)}"); e(f"v_mov_b32 {v(P_RES+3)}, {v(P_SL+27)}")
    if not LATE: do_stats()
    FJ = OPTS.get("fetchj", 5); CJ = OPTS.get("checkj", 8)
    for j in range(11):
        e("s_barrier")
        if j == 0 and LATE: do_stats_a()
        if j == 1 and LATE: do_stats_b()
        pj = (2, 3, 4) if (LATE or OPTS.get("pj0", 1) == 2) else (1, 2, 3, 4)
        if j in pj: try_publish(e, f"l{j}", repoll=(j < 4))
        if j == FJ: fetch_stats(e)
        if j == CJ:
            e("s_waitcnt vmcnt(0)")
            e(f"s_cmp_eq_u32 {s(S_NONCE)}, 0"); e("s_cbranch_scc1 L_h0_okA")
            if not opts.get("forcefb"): check_stats(e, "a")
            e(f"s_cmp_eq_u32 {s(S_OK)}, 1"); e("s_cbranch_scc1 L_h0_okA")
            fetch_stats(e)
            e.label("L_h0_okA")
        if j == 10:
            e(f"s_cmp_eq_u32 {s(S_OK)}, 1"); e("s_cbranch_scc1 L_h0_okB")
            e(f"s_cmp_eq_u32 {s(S_NONCE)}, 0"); e("s_cbranch_scc1 L_h0_okB")
            e("s_waitcnt vmcnt(0)")
            if not opts.get("forcefb"): check_stats(e, "b")
            e.label("L_h0_okB")
    e(f"s_cmp_eq_u32 {s(S_OK)}, 1"); e(f"s_cbranch_scc1 L_h0_done")
    e(f"s_cmp_eq_u32 {s(S_NONCE)}, 0"); e(f"s_cbranch_scc1 L_h0_fb")
    e(f"s_mov_b32 {s(S_CNT)}, {0 if opts.get('forcefb') else 200}")
    e.label("L_h0_spin")
    e(f"s_cmp_eq_u32 {s(S_CNT)}, 0"); e(f"s_cbranch_scc1 L_h0_fb")
    fetch_stats(e)
    e("s_waitcnt vmcnt(0)")
    check_stats(e, "c")
    e(f"s_sub_u32 {s(S_CNT)}, {s(S_CNT)}, 1")
    e(f"s_cmp_eq_u32 {s(S_OK)}, 1"); e(f"s_cbranch_scc1 L_h0_done")
    e("s_sleep 4")
    e("s_branch L_h0_spin")
    e.label("L_h0_fb")
    e(f"s_mov_b32 {s(S_CNT)}, 0")
    e.label("L_fb_loop")
    e(f"s_lshl_b32 {s(S_T)}, {s(S_RB)}, 8")
    e(f"s_lshl_b32 {s(S_T+1)}, {s(S_CNT)}, 2")
    e(f"s_add_u32 {s(S_T)}, {s(S_T)}, {s(S_T+1)}")
    stats4_load(e, S_T)
    e("s_waitcnt vmcnt(0)")
    stats4_compute(e)
    e(f"v_add_u32 v15, {s(S_T+1)}, {v(V_G)}")
    e(f"v_cmp_eq_u32 vcc, 0, {v(V_I)}")
    e(f"s_and_saveexec_b64 {s(S_EXS,2)}, vcc")
    e(f"s_cmp_eq_u32 {s(S_TYPE)}, 1")
    e(f"s_cbranch_scc1 L_fb_kv")
    e(f"v_lshlrev_b32 v13, 3, v15"); e(f"v_add_u32 v13, {LDS_STATS}, v13")
    e(f"ds_write_b64 v13, {v(P_SL + 26, 2)}")
    e(f"s_branch L_fb_n")
    e.label("L_fb_kv")
    e(f"v_lshlrev_b32 v13, 2, v15"); e(f"v_add_u32 v13, {LDS_STATS}, v13")
    e(f"ds_write_b32 v13, {v(P_SL + 26)}")
    e(f"ds_write_b32 v13, {v(P_SL + 27)} offset:1024")
    e.label("L_fb_n")
    e(f"s_mov_b64 exec, {s(S_EXS,2)}")
    e(f"s_add_u32 {s(S_CNT)}, {s(S_CNT)}, 1")
    e(f"s_cmp_lt_u32 {s(S_CNT)}, 64")
    e("s_cbranch_scc1 L_fb_loop")
    e.label("L_h0_done")
    e("s_waitcnt lgkmcnt(0)")
    e("s_barrier")
    e(f"s_cmp_eq_u32 {s(S_TYPE)}, 1")
    e(f"s_cbranch_scc1 L_kv_final")
    endp(e)

def repack_setup(e):
    for b in range(5):
        e(f"v_add_u32 v11, {64*b}, {v(V_LANE)}")
        div10(e, 12, 11)
        e(f"v_mul_u32_u24 v13, 10, v12"); e(f"v_sub_u32 v13, v11, v13")
        e(f"v_mul_u32_u24 v12, 1280, v12"); e(f"v_lshlrev_b32 v13, 4, v13")
        e(f"v_add_u32 {v(40 + b)}, v12, v13")
    e(f"v_lshlrev_b32 v11, 2, {v(V_G)}"); e(f"v_lshrrev_b32 v12, 2, {v(V_I)}"); e(f"v_add_u32 v11, v11, v12")
    e(f"v_mul_u32_u24 v11, 160, v11"); e(f"v_and_b32 v12, 3, {v(V_I)}"); e(f"v_lshlrev_b32 v12, 3, v12")
    e(f"v_add_u32 v11, v11, v12"); e(f"v_add_u32 v45, {LDS_RP}, v11")
    e(f"v_lshlrev_b32 v46, 4, {v(V_LANE)}")

def repack_issue(e):
    for r in range(3):
        e(f"s_add_u32 {s(S_T)}, s2, {256*r}")
        if r == 2:
            e(f"s_cmp_ge_u32 {s(S_T)}, 544"); e("s_cbranch_scc1 L_rp_i_done")
        e(f"s_lshr_b32 {s(S_T+1)}, {s(S_T)}, 3")
        e(f"s_and_b32 {s(S_T+2)}, {s(S_T)}, 7")
        e(f"s_mul_i32 {s(S_T+2)}, {s(S_T+2)}, 160")
        e(f"s_cmp_ge_u32 {s(S_T+1)}, 48")
        e(f"s_cbranch_scc1 L_rp_wo{r}")
        e(f"s_mul_i32 {s(S_T+1)}, {s(S_T+1)}, {32*1280}"); e(f"s_add_u32 {s(S_T+1)}, {s(S_T+1)}, {s(S_T+2)}")
        for b in range(5):
            e(f"s_mov_b32 m0, {LDS_RP + r*5120 + b*1024}"); e("s_nop 0")
            e(f"buffer_load_dwordx4 {v(40 + b)}, s[44:47], {s(S_T+1)} offen lds")
        e(f"s_branch L_rp_n{r}")
        e.label(f"L_rp_wo{r}")
        e(f"s_sub_u32 {s(S_T+1)}, {s(S_T+1)}, 48")
        e(f"s_mul_i32 {s(S_T+1)}, {s(S_T+1)}, {32*1280}"); e(f"s_add_u32 {s(S_T+1)}, {s(S_T+1)}, {s(S_T+2)}")
        for b in range(5):
            e(f"s_mov_b32 m0, {LDS_RP + r*5120 + b*1024}"); e("s_nop 0")
            e(f"buffer_load_dwordx4 {v(40 + b)}, s[48:51], {s(S_T+1)} offen lds")
        e.label(f"L_rp_n{r}")
    e.label("L_rp_i_done")

def repack_finish(e):
    e("s_waitcnt vmcnt(0)")
    for r in range(3):
        R = 64 + 20*r
        e(f"s_add_u32 {s(S_T)}, s2, {256*r}")
        if r == 2:
            e(f"s_cmp_ge_u32 {s(S_T)}, 544"); e("s_cbranch_scc1 L_rp_f_done")
        for ct in range(5):
            for part in range(2):
                e(f"ds_read_b64_tr_b16 {v(R + 4*ct + 2*part, 2)}, v45 offset:{r*5120 + ct*32 + part*2560}")
        e(f"s_mul_i32 {s(S_T)}, {s(S_T)}, 5120"); e(f"s_add_u32 {s(S_T)}, {s(S_T)}, {WS_WF}")
        e(f"s_add_u32 {s(S_T+1)}, {s(S_T)}, 4096")
        for ct in range(5):
            e(f"s_waitcnt lgkmcnt({2*(4-ct)})")
            if ct < 4: e(f"buffer_store_dwordx4 {v(R + 4*ct,4)}, v46, {s(S_WS,4)}, {s(S_T)} offen offset:{ct*1024}{SM()}")
            else: e(f"buffer_store_dwordx4 {v(R + 4*ct,4)}, v46, {s(S_WS,4)}, {s(S_T+1)} offen{SM()}")
    e.label("L_rp_f_done")

def cs_publish(e, tag):
    e(f"v_lshlrev_b32 v11, 3, {v(V_LANE)}"); e(f"v_add_u32 v11, {LDS_CS}, v11")
    e("ds_read_b64 v[28:29], v11"); e("ds_read_b64 v[32:33], v11 offset:512")
    e(f"s_lshl_b32 {s(S_T)}, {s(S_CG)}, 3"); e(f"s_add_u32 {s(S_T)}, {s(S_T)}, {s(S_RB)}"); e(f"s_mul_i32 {s(S_T)}, {s(S_T)}, 1280")
    e(f"s_add_u32 {s(S_T)}, {s(S_T)}, {WS_CSX}")
    e(f"v_lshlrev_b32 v12, 4, {v(V_LANE)}")
    e("s_waitcnt lgkmcnt(0)")
    e("v_mov_b32 v30, v29"); e(f"v_mov_b32 v29, {s(S_NONCE)}"); e(f"v_mov_b32 v31, {s(S_NONCE)}")
    e("v_mov_b32 v34, v33"); e(f"v_mov_b32 v33, {s(S_NONCE)}"); e(f"v_mov_b32 v35, {s(S_NONCE)}")
    e(f"buffer_store_dwordx4 v[28:31], v12, {s(S_WS,4)}, {s(S_T)} offen sc1")
    e(f"v_cmp_gt_u32 vcc, 16, {v(V_LANE)}"); e(f"s_and_saveexec_b64 {s(S_EXS,2)}, vcc")
    e(f"buffer_store_dwordx4 v[32:35], v12, {s(S_WS,4)}, {s(S_T)} offen offset:1024 sc1")
    e(f"s_mov_b64 exec, {s(S_EXS,2)}")

def cs_try_publish(e, tag, repoll):
    e(f"s_cmp_lg_u32 {s(S_NONCE)}, 0"); e(f"s_cbranch_scc1 L_ctp_{tag}")
    e("s_waitcnt vmcnt(0)")
    e(f"v_readfirstlane_b32 {s(S_NONCE)}, v61")
    e("s_nop 3")
    e(f"s_cmp_eq_u32 {s(S_NONCE)}, 0"); e(f"s_cbranch_scc1 L_ctr_{tag}")
    cs_publish(e, tag)
    e(f"s_branch L_ctp_{tag}")
    e.label(f"L_ctr_{tag}")
    if repoll:
        e("v_mov_b32 v11, 0"); e(f"global_load_dword v61, v11, {s(S_DBG,2)} offset:{DBG_NONCE} sc1")
    e.label(f"L_ctp_{tag}")

def cs_fetch(e):
    e(f"s_mul_i32 {s(S_T)}, {s(S_CG)}, {8*1280}"); e(f"s_add_u32 {s(S_T)}, {s(S_T)}, {WS_CSX}")
    e(f"v_lshlrev_b32 v12, 4, {v(V_LANE)}")
    for r in range(8):
        e(f"s_add_u32 {s(S_T+1)}, {s(S_T)}, {r*1280}")
        e(f"buffer_load_dwordx4 {v(64 + 4*r,4)}, v12, {s(S_WS,4)}, {s(S_T+1)} offen sc1")
    e(f"v_cmp_gt_u32 vcc, 16, {v(V_LANE)}"); e(f"s_and_saveexec_b64 {s(S_EXS,2)}, vcc")
    for r in range(8):
        e(f"s_add_u32 {s(S_T+1)}, {s(S_T)}, {r*1280}")
        e(f"buffer_load_dwordx4 {v(96 + 4*r,4)}, v12, {s(S_WS,4)}, {s(S_T+1)} offen offset:1024 sc1")
    e(f"s_mov_b64 exec, {s(S_EXS,2)}")

def cs_check(e, tag, part=None):
    if part in (None, "tags"):
        e("s_mov_b32 s66, 0")
        e("s_mov_b64 s[92:93], -1")
        for r in range(8):
            for k in (1, 3):
                e(f"v_cmp_eq_u32 vcc, {s(S_NONCE)}, {v(64 + 4*r + k)}"); e("s_and_b64 s[92:93], s[92:93], vcc")
        e("s_mov_b64 s[90:91], 0xffff")
        for r in range(8):
            for k in (1, 3):
                e(f"v_cmp_eq_u32 vcc, {s(S_NONCE)}, {v(96 + 4*r + k)}"); e("s_and_b64 s[90:91], s[90:91], vcc")
        e("s_cmp_eq_u64 s[92:93], -1"); e(f"s_cbranch_scc0 L_cct_no_{tag}")
        e("s_cmp_eq_u64 s[90:91], 0xffff"); e(f"s_cbranch_scc0 L_cct_no_{tag}")
        e("s_mov_b32 s66, 1")
        e.label(f"L_cct_no_{tag}")
    if part in (None, "sum"):
        e("s_cmp_eq_u32 s66, 1"); e(f"s_cbranch_scc0 L_cck_no_{tag}")
        for base in (64, 96):
            for r in range(1, 8):
                e(f"v_add_f32 {v(base)}, {v(base)}, {v(base + 4*r)}"); e(f"v_add_f32 {v(base + 2)}, {v(base + 2)}, {v(base + 4*r + 2)}")
            e(f"v_mov_b32 {v(base + 1)}, {v(base + 2)}")
        e(f"v_lshlrev_b32 v11, 3, {v(V_LANE)}"); e(f"v_add_u32 v11, {LDS_CS}, v11")
        e("ds_write_b64 v11, v[64:65]")
        e(f"v_cmp_gt_u32 vcc, 16, {v(V_LANE)}"); e(f"s_and_saveexec_b64 {s(S_EXS,2)}, vcc")
        e("ds_write_b64 v11, v[96:97] offset:512")
        e(f"s_mov_b64 exec, {s(S_EXS,2)}")
        e(f"s_mov_b32 {s(S_OK)}, 1")
        e.label(f"L_cck_no_{tag}")

def cs_fallback(e):
    e(f"v_add_u32 v13, {s(S_ROT)}, {v(V_LANE)}")
    e("v_cmp_le_u32 vcc, 10, v13"); e("v_subrev_u32 v14, 10, v13"); e("s_nop 0"); e("v_cndmask_b32 v13, v13, v14, vcc")
    e("v_lshlrev_b32 v13, 4, v13")
    e(f"v_cmp_gt_u32 vcc, 10, {v(V_LANE)}"); e(f"s_and_saveexec_b64 {s(S_EXS,2)}, vcc")
    for hf in range(2):
        srd = S_B0 if hf == 0 else S_B1; cb = S_CB0 if hf == 0 else S_CB1
        for r in range(8): e(f"v_mov_b32 {v(16 + r)}, 0")
        e(f"s_mov_b32 {s(S_T)}, {s(cb)}"); e(f"s_mov_b32 {s(S_CNT)}, 80")
        e.label(f"L_csfb_{hf}")
        for r in range(8):
            e(f"buffer_load_dwordx4 {v(64 + 4*r,4)}, v13, {s(srd,4)}, {s(S_T)} offen")
            e(f"s_add_u32 {s(S_T)}, {s(S_T)}, {s(S_BSTR)}")
        e("s_waitcnt vmcnt(0)")
        for r in range(8):
            for d in range(4):
                e(f"v_lshlrev_b32 v24, 16, {v(64 + 4*r + d)}"); e(f"v_and_b32 v25, 0xffff0000, {v(64 + 4*r + d)}")
                e(f"v_add_f32 {v(16 + 2*d)}, {v(16 + 2*d)}, v24"); e(f"v_add_f32 {v(17 + 2*d)}, {v(17 + 2*d)}, v25")
        e(f"s_sub_u32 {s(S_CNT)}, {s(S_CNT)}, 1"); e(f"s_cmp_lg_u32 {s(S_CNT)}, 0"); e(f"s_cbranch_scc1 L_csfb_{hf}")
        e(f"v_lshlrev_b32 v11, 5, {v(V_LANE)}"); e(f"v_add_u32 v11, {LDS_CS + hf*320}, v11")
        e("ds_write_b128 v11, v[16:19]"); e("ds_write_b128 v11, v[20:23] offset:16")
    e(f"s_mov_b64 exec, {s(S_EXS,2)}")

def helper1(e, opts):
    touch = OPTS.get("touch", 0)
    if OPTS.get("codepf"):
        e("s_getpc_b64 s[90:91]")
        e.label("L_pc_here")
        e(f"s_sub_u32 s90, s90, L_pc_here-k1_kernel"); e("s_subb_u32 s91, s91, 0")
        e(f"v_lshlrev_b32 v30, 7, {v(V_LANE)}")
        for k in range(OPTS.get("codepf")):
            e(f"global_load_dword v31, v30, s[90:91]")
            e(f"v_add_u32 v30, 8192, v30")
    e("s_load_dwordx2 s[44:45], s[0:1], 48")
    e("s_load_dwordx2 s[48:49], s[0:1], 16")
    if touch:
        e(f"s_and_b32 {s(S_T+1)}, {s(S_RB)}, 3")
        e(f"v_and_b32 v20, 31, {v(V_LANE)}")
        e(f"v_lshlrev_b32 v21, 2, v20"); e(f"v_add_u32 v21, {s(S_T+1)}, v21"); e(f"v_mul_lo_u32 v21, v21, {s(S_BSTR)}")
        e(f"v_lshrrev_b32 v22, 5, {v(V_LANE)}"); e(f"v_lshlrev_b32 v22, 7, v22"); e(f"v_add_u32 v21, v21, v22")
        e(f"s_and_b32 {s(S_T+1)}, {s(S_CG)}, 7"); e(f"s_lshl_b32 {s(S_T+1)}, {s(S_T+1)}, 5")
        e(f"s_lshl_b32 {s(S_T+2)}, {s(S_RB)}, 8"); e(f"s_add_u32 {s(S_T+1)}, {s(S_T+1)}, {s(S_T+2)}")
        e(f"v_add_u32 v20, {s(S_T+1)}, v20"); e(f"v_mul_u32_u24 v20, 1280, v20"); e(f"v_add_u32 v20, v20, v22")
        e(f"s_lshl_b32 s54, {s(S_BSTR)}, 7")
        e(f"s_add_u32 {s(S_CB0)}, {s(S_CB0)}, s54"); e(f"s_add_u32 {s(S_CB1)}, {s(S_CB1)}, s54"); e(f"s_mov_b32 s52, 256")
    def trip():
        if not touch: return
        e(f"buffer_load_dword v24, v21, {s(S_B0,4)}, {s(S_CB0)} offen")
        e(f"buffer_load_dword v25, v21, {s(S_B1,4)}, {s(S_CB1)} offen")
        e(f"buffer_load_dword v26, v20, {s(S_X,4)}, s52 offen")
        e(f"s_add_u32 {s(S_CB0)}, {s(S_CB0)}, s54"); e(f"s_add_u32 {s(S_CB1)}, {s(S_CB1)}, s54"); e("s_add_u32 s52, s52, 256")
    tj = OPTS.get("tj", "s,0,2,4")
    tj = [x for x in str(tj).replace("x", ",").split(",")]
    if OPTS.get("tdelay"): e(f"s_sleep {OPTS.get('tdelay')}")
    for x in tj:
        if x == "s": trip()
    dcs = OPTS.get("dcs", 1)
    if dcs:
        e(f"s_mov_b32 {s(S_NONCE)}, 0"); e(f"s_mov_b32 {s(S_OK)}, 0")
        e("v_mov_b32 v11, 0"); e(f"global_load_dword v61, v11, {s(S_DBG,2)} offset:{DBG_NONCE} sc1")
    if not OPTS.get("norepack"): repack_setup(e)
    e("s_waitcnt lgkmcnt(0)")
    e("s_mov_b32 s46, 1966080"); e("s_mov_b32 s47, 0x20000")
    e("s_mov_b32 s50, 819200"); e("s_mov_b32 s51, 0x20000")
    e(f"s_cmp_eq_u32 {s(S_TYPE)}, 1"); e(f"s_cbranch_scc0 L_nozero")
    e(f"s_cmp_eq_u32 {s(S_RB)}, 0"); e(f"s_cbranch_scc0 L_nozero")
    for r in range(28, 32): e(f"v_mov_b32 {v(r)}, 0")
    e(f"s_mul_i32 {s(S_T)}, {s(S_SUB)}, 6720")
    e(f"s_add_u32 {s(S_T)}, {s(S_T)}, {WS_KV}")
    e(f"s_add_u32 {s(S_T2)}, {s(S_T)}, 4096")
    e(f"v_lshlrev_b32 v11, 4, {v(V_LANE)}")
    for k in range(7):
        if k == 6:
            e(f"v_cmp_gt_u32 vcc, 36, {v(V_LANE)}")
            e(f"s_and_saveexec_b64 {s(S_EXS,2)}, vcc")
        sreg = S_T if k < 4 else S_T2
        e(f"buffer_store_dwordx4 v[28:31], v11, {s(S_WS,4)}, {s(sreg)} offen offset:{(k % 4)*1024} sc1")
        if k == 6:
            e(f"s_mov_b64 exec, {s(S_EXS,2)}")
    e.label("L_nozero")
    for j in range(11):
        hbar(e, j)
        for x in tj:
            if x == str(j): trip()
        if dcs:
            if j == 1:
                e("s_waitcnt vmcnt(0)")
                e(f"v_readfirstlane_b32 {s(S_T)}, v61"); e("s_nop 3")
                e(f"s_cmp_eq_u32 {s(S_T)}, 0"); e("s_cbranch_scc0 L_h1_haven")
                e("v_mov_b32 v11, 0"); e(f"global_load_dword v61, v11, {s(S_DBG,2)} offset:{DBG_NONCE} sc1")
                e.label("L_h1_haven")
            if j in (3, 4): cs_try_publish(e, f"p{j}", repoll=(j < 4))
            if j == OPTS.get("csfetchj", 6): pass
            CJ = OPTS.get("cscheckj", 7)
            if j == CJ:
                e("s_mov_b32 s66, 0")
                e("s_waitcnt vmcnt(0)")
                e(f"s_cmp_eq_u32 {s(S_NONCE)}, 0"); e("s_cbranch_scc1 L_h1_cA")
                if not opts.get("forcefb"): cs_check(e, "a", "tags")
                e("s_cmp_eq_u32 s66, 1"); e("s_cbranch_scc1 L_h1_cA")
                cs_fetch(e)
                e.label("L_h1_cA")
            if j == CJ + 1 and not opts.get("forcefb"): cs_check(e, "a2", "sum")
            if j == 10:
                e(f"s_cmp_eq_u32 {s(S_OK)}, 1"); e("s_cbranch_scc1 L_h1_cB")
                e(f"s_cmp_eq_u32 {s(S_NONCE)}, 0"); e("s_cbranch_scc1 L_h1_cB")
                e("s_waitcnt vmcnt(0)")
                if not opts.get("forcefb"): cs_check(e, "b")
                e.label("L_h1_cB")
        if j == OPTS.get("sigj", 6):
            e(f"s_cmp_eq_u32 {s(S_TYPE)}, 1"); e(f"s_cbranch_scc0 L_h1_nosig")
            e(f"s_cmp_eq_u32 {s(S_RB)}, 0"); e(f"s_cbranch_scc0 L_h1_nosig")
            e("s_waitcnt vmcnt(0)")
            e(f"s_lshl_b32 {s(S_T)}, {s(S_SUB)}, 2")
            e(f"v_mov_b32 v11, {s(S_T)}"); e(f"v_mov_b32 v12, 1")
            lane0(e); e(f"global_store_dword v11, v12, {s(S_DBG,2)} offset:{DBG_FLAG} sc1"); lane0(e, False)
            e.label("L_h1_nosig")
        if dcs and j == OPTS.get("csfetchj", 5): cs_fetch(e)
        if j == OPTS.get("rpj", 9) and not OPTS.get("norepack"): repack_issue(e)
        if j == 9:
            e(f"s_cmp_eq_u32 {s(S_TYPE)}, 1"); e(f"s_cbranch_scc0 L_h1_np")
            e(f"s_lshl_b32 {s(S_T)}, {s(S_SUB)}, 2")
            e(f"v_mov_b32 v11, {s(S_T)}")
            e(f"global_load_dword {v(P_POLL)}, v11, {s(S_DBG,2)} offset:{DBG_FLAG} sc1")
            e.label("L_h1_np")
    if OPTS.get("hstamp"):
        e(f"s_lshl_b32 {s(S_T)}, s2, 3"); e(f"s_add_u32 {s(S_T)}, {s(S_T)}, 4"); e(f"s_lshl_b32 {s(S_T)}, {s(S_T)}, 8")
        e(f"s_add_u32 {s(S_T)}, {s(S_T)}, {WS_STAMP + 0x100000}")
        e(f"v_lshlrev_b32 v14, 2, {v(V_LANE)}")
        e(f"buffer_store_dword v62, v14, {s(S_WS,4)}, {s(S_T)} offen")
    if dcs:
        e(f"s_cmp_eq_u32 {s(S_OK)}, 1"); e("s_cbranch_scc1 L_h1_csdone")
        e(f"s_cmp_eq_u32 {s(S_NONCE)}, 0"); e("s_cbranch_scc1 L_h1_csfb")
        e(f"s_mov_b32 {s(S_CNT)}, {0 if opts.get('forcefb') else 200}")
        e.label("L_h1_csspin")
        e(f"s_cmp_eq_u32 {s(S_CNT)}, 0"); e("s_cbranch_scc1 L_h1_csfb")
        cs_fetch(e)
        e("s_waitcnt vmcnt(0)")
        cs_check(e, "c")
        e(f"s_sub_u32 {s(S_CNT)}, {s(S_CNT)}, 1")
        e(f"s_cmp_eq_u32 {s(S_OK)}, 1"); e("s_cbranch_scc1 L_h1_csdone")
        e("s_sleep 4"); e("s_branch L_h1_csspin")
        e.label("L_h1_csfb")
        cs_fallback(e)
        e.label("L_h1_csdone")
        e("s_waitcnt lgkmcnt(0)")
    e("s_barrier")
    if not OPTS.get("norepack"): repack_finish(e)
    e(f"s_cmp_eq_u32 {s(S_TYPE)}, 1")
    e(f"s_cbranch_scc0 L_h1_end")
    e("s_waitcnt vmcnt(0)")
    e(f"s_lshl_b32 {s(S_T)}, {s(S_SUB)}, 2")
    e(f"v_mov_b32 v11, {s(S_T)}")
    e.label("L_poll_flag")
    e(f"v_readfirstlane_b32 {s(S_T)}, {v(P_POLL)}")
    e("s_nop 3")
    e(f"s_cmp_eq_u32 {s(S_T)}, 0")
    e(f"s_cbranch_scc0 L_kv_final")
    e("s_sleep 2")
    e(f"global_load_dword {v(P_POLL)}, v11, {s(S_DBG,2)} offset:{DBG_FLAG} sc1")
    e("s_waitcnt vmcnt(0)")
    e("s_branch L_poll_flag")
    e.label("L_h1_end")
    endp(e)

def ep_load_swapped(e):
    e(f"s_lshl_b32 {s(S_T)}, {s(S_WAVE)}, 9")
    e(f"v_lshlrev_b32 v11, 3, {v(V_I)}")
    e(f"v_add_u32 v11, {s(S_T)}, v11")
    e(f"v_add_u32 v11, {LDS_STATS}, v11")
    for mt in range(4):
        e(f"ds_read_b64 {v(16 + 2*mt, 2)}, v11 offset:{mt*128}")
    e(f"v_lshlrev_b32 v12, 4, {v(V_G)}")
    e(f"v_add_u32 v12, {LDS_CS}, v12")
    for ct in range(10):
        e(f"ds_read_b128 {v(32 + 4*ct, 4)}, v12 offset:{ct*64}")
    e("s_waitcnt lgkmcnt(0)")

def epilogue_gu(e):
    ep_load_swapped(e)
    for mt in range(4):
        e(f"v_mul_f32 {v(24 + 2*mt)}, {f32(-LOG2E)}, {v(17 + 2*mt)}")
        e(f"v_mul_f32 {v(25 + 2*mt)}, {v(17 + 2*mt)}, {v(17 + 2*mt)}")
    for mt in range(4):
        e(f"v_rcp_f32 {v(25 + 2*mt)}, {v(25 + 2*mt)}")
    e(f"v_lshlrev_b32 v11, 4, {v(V_LANE)}")
    e(f"s_mul_i32 {s(S_T)}, {s(S_WAVE)}, {4*48*1024}")
    e(f"v_add_u32 v11, {s(S_T)}, v11")
    e(f"s_mul_i32 {s(S_T)}, {s(S_RB)}, {16*48*1024}")
    e(f"s_add_u32 {s(S_T)}, {s(S_T)}, {WS_H}")
    e(f"s_mul_i32 {s(S_T+1)}, {s(S_SUB)}, 5")
    e(f"s_add_u32 {s(S_T+2)}, {s(S_T+1)}, 1")
    e(f"s_lshr_b32 {s(S_T+2)}, {s(S_T+2)}, 1")
    e(f"s_lshl_b32 {s(S_T+2)}, {s(S_T+2)}, 10")
    e(f"s_add_u32 {s(S_T2)}, {s(S_T)}, {s(S_T+2)}")
    e(f"s_and_b32 {s(S_T3)}, {s(S_SUB)}, 1")
    e(f"s_cmp_eq_u32 {s(S_T3)}, 0")
    e(f"s_cselect_b32 {s(S_T3)}, 4, -1")
    e(f"s_add_u32 {s(S_T+1)}, {s(S_T+1)}, {s(S_T3)}")
    e(f"s_lshr_b32 {s(S_T+1)}, {s(S_T+1)}, 1")
    e(f"s_lshl_b32 {s(S_T+1)}, {s(S_T+1)}, 10")
    e(f"s_add_u32 {s(S_T3)}, {s(S_T)}, {s(S_T+1)}")
    e(f"s_and_b32 {s(S_T+1)}, {s(S_SUB)}, 1")
    e(f"s_lshl_b32 {s(S_T+1)}, {s(S_T+1)}, 3")
    e(f"s_add_u32 {s(S_T3)}, {s(S_T3)}, {s(S_T+1)}")
    T = 72
    for mt in range(4):
        e.label(f"L_gu_b{mt}")
        MR = 16 + 2*mt; CI = 24 + 2*mt
        items = [(ct, hh) for ct in range(5) for hh in range(2)]
        for (ct, hh) in items:
            G = acc(mt, ct) + 2*hh; U = acc(mt, ct + 5) + 2*hh
            e(f"v_pk_fma_f32 {v(G,2)}, {v(32 + 4*ct + 2*hh,2)}, {v(MR,2)}, {v(G,2)} op_sel_hi:[1,0,1] neg_lo:[0,1,0] neg_hi:[0,1,0]")
            e(f"v_pk_fma_f32 {v(U,2)}, {v(32 + 4*(ct+5) + 2*hh,2)}, {v(MR,2)}, {v(U,2)} op_sel_hi:[1,0,1] neg_lo:[0,1,0] neg_hi:[0,1,0]")
        for k, (ct, hh) in enumerate(items):
            G = acc(mt, ct) + 2*hh
            e(f"v_pk_mul_f32 {v(T + 2*k,2)}, {v(G,2)}, {v(CI,2)} op_sel_hi:[1,0]")
        for k in range(10):
            e(f"v_exp_f32 {v(T + 2*k)}, {v(T + 2*k)}"); e(f"v_exp_f32 {v(T + 2*k + 1)}, {v(T + 2*k + 1)}")
        for k, (ct, hh) in enumerate(items):
            G = acc(mt, ct) + 2*hh; U = acc(mt, ct + 5) + 2*hh
            e(f"v_pk_mul_f32 {v(U,2)}, {v(G,2)}, {v(U,2)}")
        for k in range(10):
            e(f"v_pk_fma_f32 {v(T + 2*k,2)}, {v(T + 2*k,2)}, {v(CI,2)}, {v(CI,2)} op_sel:[0,1,1] op_sel_hi:[1,1,1]")
        for k in range(10):
            e(f"v_rcp_f32 {v(T + 2*k)}, {v(T + 2*k)}"); e(f"v_rcp_f32 {v(T + 2*k + 1)}, {v(T + 2*k + 1)}")
        e("s_nop 0")
        for k, (ct, hh) in enumerate(items):
            U = acc(mt, ct + 5) + 2*hh
            e(f"v_pk_mul_f32 {v(U,2)}, {v(U,2)}, {v(T + 2*k,2)}")
        for pp in range(2):
            O = acc(mt, 2*pp)
            for tt in range(2):
                U = acc(mt, 2*pp + tt + 5)
                e(f"v_cvt_pk_bf16_f32 {v(O + 2*tt)}, {v(U)}, {v(U+1)}")
                e(f"v_cvt_pk_bf16_f32 {v(O + 2*tt + 1)}, {v(U+2)}, {v(U+3)}")
        O = acc(mt, 4); U = acc(mt, 9)
        e(f"v_cvt_pk_bf16_f32 {v(O)}, {v(U)}, {v(U+1)}")
        e(f"v_cvt_pk_bf16_f32 {v(O+1)}, {v(U+2)}, {v(U+3)}")
        e("s_cbranch_execz L_dry_ret")
        if mt > 0:
            e(f"v_add_u32 v11, {48*1024}, v11")
        e(f"s_cmp_eq_u32 {s(S_SUB)}, 19")
        e(f"s_cbranch_scc1 L_gu_skip{mt}")
        e(f"buffer_store_dwordx4 {v(acc(mt,0),4)}, v11, {s(S_WS,4)}, {s(S_T2)} offen{SM()}")
        e(f"buffer_store_dwordx4 {v(acc(mt,2),4)}, v11, {s(S_WS,4)}, {s(S_T2)} offen offset:1024{SM()}")
        e.label(f"L_gu_skip{mt}")
        e(f"buffer_store_dwordx2 {v(acc(mt,4),2)}, v11, {s(S_WS,4)}, {s(S_T3)} offen{SM()}")
        e("s_nop 1")
    stamp(e, 5)
    if STAMP:
        e("s_waitcnt vmcnt(0)"); stamp(e, 6); stamp_flush(e, 7)
    endp(e)

def epilogue_q(e):
    ep_load_swapped(e)
    e(f"v_lshlrev_b32 v11, 4, {v(V_LANE)}")
    e(f"s_mul_i32 {s(S_T)}, {s(S_WAVE)}, {4*20*1024}")
    e(f"v_add_u32 v11, {s(S_T)}, v11")
    e(f"s_mul_i32 {s(S_T)}, {s(S_RB)}, {16*20*1024}")
    e(f"s_mul_i32 {s(S_T+1)}, {s(S_SUB)}, {5*1024}")
    e(f"s_add_u32 {s(S_T2)}, {s(S_T)}, {s(S_T+1)}")
    e(f"s_add_u32 {s(S_T2)}, {s(S_T2)}, {WS_PQ}")
    e(f"s_add_u32 {s(S_T3)}, {s(S_T2)}, 4096")
    T = 72
    for mt in range(4):
        e.label(f"L_q_b{mt}")
        MR = 16 + 2*mt
        for grp in range(2):
            items = [(ct, hh) for ct in range(grp*5, grp*5 + 5) for hh in range(2)]
            for (ct, hh) in items:
                A = acc(mt, ct) + 2*hh
                e(f"v_pk_fma_f32 {v(A,2)}, {v(32 + 4*ct + 2*hh,2)}, {v(MR,2)}, {v(A,2)} op_sel_hi:[1,0,1] neg_lo:[0,1,0] neg_hi:[0,1,0]")
            for (ct, hh) in items:
                A = acc(mt, ct) + 2*hh
                e(f"v_pk_fma_f32 {v(A,2)}, {v(A,2)}, {v(MR,2)}, {s(S_EPS6,2)} op_sel:[0,1,0] op_sel_hi:[1,1,1]")
            for k, (ct, hh) in enumerate(items):
                A = acc(mt, ct) + 2*hh
                e(f"v_pk_mul_f32 {v(T + 2*k,2)}, {v(A,2)}, {s(S_L2E,2)}")
            for k in range(10):
                e(f"v_exp_f32_e64 {v(T + 2*k)}, {v(T + 2*k)} clamp"); e(f"v_exp_f32_e64 {v(T + 2*k + 1)}, {v(T + 2*k + 1)} clamp")
            for (ct, hh) in items:
                A = acc(mt, ct) + 2*hh
                e(f"v_max_f32 {v(A)}, {s(S_EPS6)}, {v(A)}"); e(f"v_max_f32 {v(A+1)}, {s(S_EPS6)}, {v(A+1)}")
            for k, (ct, hh) in enumerate(items):
                A = acc(mt, ct) + 2*hh
                e(f"v_pk_add_f32 {v(A,2)}, {v(A,2)}, {v(T + 2*k,2)}")
        for pp in range(5):
            O = acc(mt, 2*pp); A0 = acc(mt, 2*pp); A1 = acc(mt, 2*pp + 1)
            e(f"v_cvt_pk_bf16_f32 {v(O)}, {v(A0)}, {v(A0+1)}")
            e(f"v_cvt_pk_bf16_f32 {v(O+1)}, {v(A0+2)}, {v(A0+3)}")
            e(f"v_cvt_pk_bf16_f32 {v(O+2)}, {v(A1)}, {v(A1+1)}")
            e(f"v_cvt_pk_bf16_f32 {v(O+3)}, {v(A1+2)}, {v(A1+3)}")
        e("s_cbranch_execz L_dry_ret")
        if mt > 0:
            e(f"v_add_u32 v11, {20*1024}, v11")
        for pp in range(5):
            if pp < 4:
                e(f"buffer_store_dwordx4 {v(acc(mt,2*pp),4)}, v11, {s(S_WS,4)}, {s(S_T2)} offen offset:{pp*1024}{SM()}")
            else:
                e(f"buffer_store_dwordx4 {v(acc(mt,2*pp),4)}, v11, {s(S_WS,4)}, {s(S_T3)} offen{SM()}")
        e("s_nop 1")
    stamp(e, 5)
    if STAMP:
        e("s_waitcnt vmcnt(0)"); stamp(e, 6); stamp_flush(e, 7)
    endp(e)

KV_TILES = [(0,0),(0,1),(1,0),(1,1),(1,2),(2,1),(2,2),(2,3),(3,2),(3,3),(3,4),(4,3),(4,4)]

def epilogue_kv(e):
    MV = 16; RV = 32; CS = 48; T = 60
    e(f"s_lshl_b32 {s(S_T)}, {s(S_WAVE)}, 8")
    e(f"v_lshlrev_b32 v11, 4, {v(V_G)}")
    e(f"v_add_u32 v11, {s(S_T)}, v11")
    e(f"v_add_u32 v11, {LDS_STATS}, v11")
    e(f"v_lshlrev_b32 v12, 2, {v(V_I)}")
    e(f"v_add_u32 v12, {LDS_CS}, v12")
    e(f"ds_read_b128 {v(MV, 4)}, v11"); e(f"ds_read_b128 {v(RV, 4)}, v11 offset:1024")
    for ct in range(10):
        e(f"ds_read_b32 {v(CS + ct)}, v12 offset:{ct*64}")
    e("s_waitcnt lgkmcnt(6)")
    for mt in range(1, 4):
        e(f"ds_read_b128 {v(MV + 4*mt, 4)}, v11 offset:{mt*64}")
        e(f"ds_read_b128 {v(RV + 4*mt, 4)}, v11 offset:{1024 + mt*64}")
    e("s_waitcnt lgkmcnt(6)")
    def cs_mod(ct):
        if ct % 2 == 0: return v(CS + ct, 2), 0, 0
        return v(CS + ct - 1, 2), 1, 1
    DQ = [acc(1, n) for n in range(10)] + [80, 84, 88] + [acc(3, td) for td in range(5)]
    def kv_mfma(n, kk):
        te, td = KV_TILES[n]
        c = "0" if kk == 0 else v(DQ[n], 4)
        return f"v_mfma_f32_16x16x32_bf16 {v(DQ[n],4)}, {v(acc(2*kk, 5 + te),4)}, {v(acc(2*kk, td),4)}, {c}"
    for mt in range(4):
        e.label(f"L_kv_b{mt}")
        if mt == 1: e("s_waitcnt lgkmcnt(0)")
        kk, odd = divmod(mt, 2)
        items = [(ct, hh) for ct in range(5) for hh in range(2)]
        allit = [(ct, hh) for ct in range(10) for hh in range(2)]
        L = []
        for (ct, hh) in allit:
            A = acc(mt, ct) + 2*hh
            c, o, oh = cs_mod(ct)
            L.append(f"v_pk_fma_f32 {v(A,2)}, {v(MV + 4*mt + 2*hh,2)}, {c}, {v(A,2)} op_sel:[0,{o},0] op_sel_hi:[1,{oh},1] neg_lo:[0,1,0] neg_hi:[0,1,0]")
        for (ct, hh) in items:
            A = acc(mt, ct) + 2*hh
            L.append(f"v_pk_fma_f32 {v(A,2)}, {v(A,2)}, {v(RV + 4*mt + 2*hh,2)}, {s(S_EPS6,2)}")
        for (ct, hh) in items:
            A = acc(mt, ct + 5) + 2*hh
            L.append(f"v_pk_mul_f32 {v(A,2)}, {v(A,2)}, {v(RV + 4*mt + 2*hh,2)}")
        for k, (ct, hh) in enumerate(items):
            A = acc(mt, ct) + 2*hh
            L.append(f"v_pk_mul_f32 {v(T + 2*k,2)}, {v(A,2)}, {s(S_L2E,2)}")
        for k in range(10):
            L.append(f"v_exp_f32_e64 {v(T + 2*k)}, {v(T + 2*k)} clamp"); L.append(f"v_exp_f32_e64 {v(T + 2*k + 1)}, {v(T + 2*k + 1)} clamp")
        for (ct, hh) in items:
            A = acc(mt, ct) + 2*hh
            L.append(f"v_max_f32 {v(A)}, {s(S_EPS6)}, {v(A)}"); L.append(f"v_max_f32 {v(A+1)}, {s(S_EPS6)}, {v(A+1)}")
        for k, (ct, hh) in enumerate(items):
            A = acc(mt, ct) + 2*hh
            L.append(f"v_pk_add_f32 {v(A,2)}, {v(A,2)}, {v(T + 2*k,2)}")
        for ct in range(10):
            A = acc(mt, ct); O = acc(2*kk, ct) + 2*odd
            L.append(f"v_cvt_pk_bf16_f32 {v(O)}, {v(A)}, {v(A+1)}")
            L.append(f"v_cvt_pk_bf16_f32 {v(O+1)}, {v(A+2)}, {v(A+3)}")
        if mt == 2 and not OPTS.get("kvnoil"):
            M = [kv_mfma(n, 0) for n in range(13)]
            lo = 50
            out = L[:lo]; rest = L[lo:lo + 40]
            for k, ins in enumerate(rest):
                out.append(ins)
                if k % 3 == 2 and M: out.append(M.pop(0))
            out += M + L[lo + 40:]
            L = out
        for ins in L: e(ins)
        if mt < 3: e("s_cbranch_execz L_dry_ret")
    if OPTS.get("kvstamp"): stamp(e, 1)
    e("s_nop 1")
    if OPTS.get("kvnoil"):
        for n in range(13): e(kv_mfma(n, 0))
    for td in range(5):
        e(f"v_mfma_f32_16x16x32_bf16 {v(DQ[13 + td],4)}, {v(V_ONES,4)}, {v(acc(0, td),4)}, 0")
    for n in range(13): e(kv_mfma(n, 1))
    for td in range(5):
        e(f"v_mfma_f32_16x16x32_bf16 {v(DQ[13 + td],4)}, {v(V_ONES,4)}, {v(acc(2, td),4)}, {v(DQ[13 + td],4)}")
    e(f"s_mul_i32 {s(S_T)}, {s(S_WAVE)}, {18*1024}")
    e(f"v_lshlrev_b32 v11, 4, {v(V_LANE)}")
    e(f"v_add_u32 v11, {s(S_T)}, v11")
    e(f"v_add_u32 v11, {LDS_KVS}, v11")
    e("s_cbranch_execz L_dry_ret")
    e("s_nop 2")
    for nn in range(18):
        if nn == 13: e("s_nop 3")
        e(f"ds_write_b128 v11, {v(DQ[nn],4)} offset:{nn*1024}")
        if nn == 11: e("s_waitcnt lgkmcnt(4)")

def kv_addr(e, dst, tag):
    TE = 0; TD = 0
    for n, (te, td) in enumerate(KV_TILES):
        TE |= te << (4*n); TD |= td << (4*n)
    e(f"s_cmp_ge_u32 {s(S_CNT)}, 13"); e(f"s_cbranch_scc1 L_kva_z{tag}")
    e(f"s_lshl_b32 {s(S_T)}, {s(S_CNT)}, 2")
    e(f"s_mov_b32 s92, {TE & 0xffffffff}"); e(f"s_mov_b32 s93, {TE >> 32}")
    e(f"s_lshr_b64 s[92:93], s[92:93], {s(S_T)}"); e(f"s_and_b32 {s(S_T+1)}, s92, 15")
    e(f"s_mov_b32 s92, {TD & 0xffffffff}"); e(f"s_mov_b32 s93, {TD >> 32}")
    e(f"s_lshr_b64 s[92:93], s[92:93], {s(S_T)}"); e(f"s_and_b32 {s(S_T+2)}, s92, 15")
    e(f"s_lshl_b32 {s(S_T+1)}, {s(S_T+1)}, 2"); e(f"s_lshl_b32 {s(S_T+2)}, {s(S_T+2)}, 4")
    e(f"v_add_u32 v11, {s(S_T+1)}, {v(V_G)}")
    e(f"v_mul_u32_u24 v12, 52, v11"); e(f"v_lshrrev_b32 v12, 8, v12")
    e(f"v_lshlrev_b32 v11, 2, v11"); e(f"v_sub_u32 v11, v11, v12"); e(f"v_mul_u32_u24 v11, 80, v11")
    e(f"v_add_u32 v13, {s(S_T+2)}, {v(V_I)}")
    e(f"v_mul_u32_u24 v14, 205, v13"); e(f"v_lshrrev_b32 v14, 12, v14")
    e(f"v_cmp_eq_u32 vcc, v12, v14")
    e(f"v_lshlrev_b32 v13, 2, v13")
    e(f"v_add_u32 v11, v11, v13")
    e(f"v_mov_b32 v12, 0x7ffffff0")
    e(f"v_cndmask_b32 {v(dst)}, v12, v11, vcc")
    e(f"s_branch L_kva_d{tag}")
    e.label(f"L_kva_z{tag}")
    e(f"s_sub_u32 {s(S_T)}, {s(S_CNT)}, 13"); e(f"s_lshl_b32 {s(S_T)}, {s(S_T)}, 6")
    e(f"v_lshlrev_b32 v11, 2, {v(V_I)}")
    e(f"v_add_u32 v11, {s(S_T)}, v11")
    e(f"v_add_u32 v11, 6400, v11")
    e(f"v_cmp_eq_u32 vcc, 0, {v(V_G)}")
    e(f"v_mov_b32 v12, 0x7ffffff0")
    e("s_nop 0")
    e(f"v_cndmask_b32 {v(dst)}, v12, v11, vcc")
    e.label(f"L_kva_d{tag}")

def kv_final(e):
    if OPTS.get("kvstamp"): stamp(e, 2)
    e.label("L_kv_final")
    e("v_mov_b32 v42, 0x7ffffff0")
    for k in range(3):
        e(f"s_add_u32 {s(S_CNT)}, {s(S_WAVE)}, {8*k}")
        if k == 2:
            e(f"s_cmp_lt_u32 {s(S_CNT)}, 18"); e("s_cbranch_scc0 L_kva_skip")
        kv_addr(e, 40 + k, str(k))
    e.label("L_kva_skip")
    e(f"s_mul_i32 {s(S_T4)}, {s(S_SUB)}, 6720")
    e(f"s_add_u32 {s(S_T4)}, {s(S_T4)}, {WS_KV}")
    e(f"s_lshl_b32 {s(S_T)}, {s(S_WAVE)}, 10")
    e(f"v_lshlrev_b32 v16, 4, {v(V_LANE)}")
    e(f"v_add_u32 v16, {s(S_T)}, v16")
    e(f"v_add_u32 v16, {LDS_KVS}, v16")
    e(f"v_add_u32 v17, {2*18*1024}, v16")
    e("s_waitcnt lgkmcnt(0)")
    e("s_barrier")
    if OPTS.get("kvstamp"): stamp(e, 3)
    def rd(k):
        for w in range(4):
            e(f"ds_read_b128 {v(44 + 16*k + 4*w,4)}, {'v16' if w < 2 else 'v17'} offset:{(w % 2)*18*1024 + k*8192}")
    def summ(k, nreg):
        B = 44 + 16*k
        if nreg == 4:
            for h in range(2):
                e(f"v_add_f32 {v(B+2*h)}, {v(B+2*h)}, {v(B+4+2*h)}"); e(f"v_add_f32 {v(B+2*h+1)}, {v(B+2*h+1)}, {v(B+5+2*h)}")
                e(f"v_add_f32 {v(B+8+2*h)}, {v(B+8+2*h)}, {v(B+12+2*h)}"); e(f"v_add_f32 {v(B+9+2*h)}, {v(B+9+2*h)}, {v(B+13+2*h)}")
            for r in range(4): e(f"v_add_f32 {v(B+r)}, {v(B+r)}, {v(B+8+r)}")
            for r in range(4):
                e(f"buffer_atomic_add_f32 {v(B + r)}, {v(40 + k)}, {s(S_WS,4)}, {s(S_T4)} offen offset:{80*r}")
        else:
            e(f"v_add_f32 {v(B)}, {v(B)}, {v(B+4)}"); e(f"v_add_f32 {v(B+8)}, {v(B+8)}, {v(B+12)}"); e(f"v_add_f32 {v(B)}, {v(B)}, {v(B+8)}")
            e(f"buffer_atomic_add_f32 {v(B)}, {v(40 + k)}, {s(S_WS,4)}, {s(S_T4)} offen")
    rd(0); rd(1)
    e(f"s_cmp_lt_u32 {s(S_WAVE)}, 2"); e("s_cbranch_scc0 L_kvf_no2")
    rd(2)
    e.label("L_kvf_no2")
    e("s_waitcnt lgkmcnt(0)")
    summ(0, 4)
    e(f"s_cmp_lt_u32 {s(S_WAVE)}, 5"); e("s_cbranch_scc0 L_kvf_z1")
    summ(1, 4)
    e("s_branch L_kvf_t2")
    e.label("L_kvf_z1")
    summ(1, 1)
    e.label("L_kvf_t2")
    e(f"s_cmp_lt_u32 {s(S_WAVE)}, 2"); e("s_cbranch_scc0 L_k1_end2")
    summ(2, 1)
    e.label("L_k1_end2")
    if STAMP:
        stamp(e, 5)
        e("s_waitcnt vmcnt(0)"); stamp(e, 6); stamp_flush(e, 7)
    endp(e)
    e.label("L_k1_end")
    e("s_endpgm")

def phase_end(e):
    e.label("L_phase_end")
    e("s_setprio 0")
    e("s_mov_b64 exec, -1")
    e("s_waitcnt vmcnt(0) lgkmcnt(0)")
    e("s_barrier")
    e(f"s_cmp_eq_u32 {s(S_WAVE)}, 6"); e("s_cbranch_scc0 L_pe_noflag")
    e("s_mov_b32 s60, 0x100000")
    e.label("L_pe_nonce")
    e(f"s_cmp_lg_u32 {s(S_NONCE)}, 0"); e("s_cbranch_scc1 L_pe_have")
    e("s_sub_u32 s60, s60, 1"); e("s_cmp_eq_u32 s60, 0"); e("s_cbranch_scc1 L_pe_have")
    poll_nonce(e)
    e("s_waitcnt vmcnt(0)")
    e(f"v_readfirstlane_b32 {s(S_NONCE)}, {v(P_POLL)}")
    e("s_nop 3")
    e("s_branch L_pe_nonce")
    e.label("L_pe_have")
    e(f"s_lshl_b32 s60, s2, 2"); e(f"s_add_u32 s60, s60, {WS_FLAGS}")
    e(f"v_mov_b32 v11, 0"); e(f"v_mov_b32 v12, {s(S_NONCE)}")
    lane0(e)
    e(f"buffer_store_dword v12, v11, {s(S_WS,4)}, s60 offen sc1")
    lane0(e, False)
    e.label("L_pe_noflag")

def gen_k1(e, opts=None):
    opts = opts or {}
    global STAMP
    STAMP = opts.get("stamp", False)
    OPTS.clear(); OPTS.update(opts)
    KN = opts.get("kname", "k1_kernel")
    e.raw(f".globl {KN}"); e.raw(".p2align 8"); e.raw(f".type {KN},@function"); e.label(KN)
    setup_pre(e)
    e(f"s_cmp_lt_u32 {s(S_WAVE)}, 4"); e("s_cbranch_scc1 L_consumers")
    e(f"s_cmp_ge_u32 {s(S_WAVE)}, 6"); e("s_cbranch_scc1 L_helpers")
    dma_wave(e)
    e.label("L_helpers")
    if OPTS.get("hprio", 3): e(f"s_setprio {OPTS.get('hprio', 3)}")
    setup_post(e)
    e(f"s_cmp_eq_u32 {s(S_WAVE)}, 7"); e("s_cbranch_scc1 L_prod3")
    helper0(e, opts)
    e.label("L_prod3"); helper1(e, opts)
    e.label("L_consumers")
    consumer_setup(e)
    e(f"s_mov_b32 {s(S_EPS6)}, {f32(1e-6)}"); e(f"s_mov_b32 {s(S_EPS6+1)}, {f32(1e-6)}")
    e(f"s_mov_b32 {s(S_L2E)}, {f32(LOG2E)}"); e(f"s_mov_b32 {s(S_L2E+1)}, {f32(LOG2E)}")
    setup_post(e)
    e(f"s_setprio {OPTS.get('cprio', 2)}")
    e(f"s_cmp_eq_u32 {s(S_TYPE)}, 1")
    e("s_cbranch_scc1 L_cons_kv")
    dcs = OPTS.get("dcs", 1)
    if OPTS.get("light", 1):
        e(f"s_cmp_eq_u32 {s(S_TYPE)}, 2"); e("s_cbranch_scc0 L_not_light")
        e(f"s_cmp_eq_u32 {s(S_SUB)}, 19"); e("s_cbranch_scc0 L_not_light")
        for w in range(4):
            if w < 3:
                e(f"s_cmp_eq_u32 {s(S_WAVE)}, {w}"); e(f"s_cbranch_scc0 L_lt_n{w}")
            consumer_loop(e, True, f"lt{w}", w, valid=(4, 9), ntag="lt")
            if not dcs: e("s_branch L_sw_done")
            if w < 3: e.label(f"L_lt_n{w}")
        shared_loop(e, True, "lt", valid=(4, 9))
        if dcs: e("s_branch L_sw_done")
        e.label("L_not_light")
    for w in range(4):
        if w < 3:
            e(f"s_cmp_eq_u32 {s(S_WAVE)}, {w}"); e(f"s_cbranch_scc0 L_sw_n{w}")
        consumer_loop(e, True, f"sw{w}", w, ntag="sw")
        if w < 3:
            if not dcs: e("s_branch L_sw_done")
            e.label(f"L_sw_n{w}")
    shared_loop(e, True, "sw")
    e.label("L_sw_done")
    e("s_barrier")
    stamp(e, 4)
    e(f"s_cmp_eq_u32 {s(S_TYPE)}, 0")
    e("s_cbranch_scc1 L_epi_q")
    epilogue_gu(e)
    e.label("L_epi_q")
    epilogue_q(e)
    e.label("L_cons_kv")
    for w in range(4):
        if w < 3:
            e(f"s_cmp_eq_u32 {s(S_WAVE)}, {w}"); e(f"s_cbranch_scc0 L_ns_n{w}")
        consumer_loop(e, False, f"ns{w}", w, ntag="ns")
        if w < 3:
            if not dcs: e("s_branch L_ns_done")
            e.label(f"L_ns_n{w}")
    shared_loop(e, False, "ns")
    e.label("L_ns_done")
    e("s_barrier")
    stamp(e, 4)
    epilogue_kv(e)
    kv_final(e)
```

```python
from asmlib import *
import math

NST = 10
NSLOT = 3
A_BYTES = 32768
BH = 10240
SLOT = A_BYTES + 2*BH
LDS_AUX = NSLOT * SLOT
LDS_STATS = LDS_AUX
LDS_CS = LDS_AUX + 2048
LDS_TOTAL = 163840
LDS_KVS = 0
LDS_RP = SLOT + 24576
WS_PQ = 0
WS_H = 2621440
WS_KV = WS_H + 6291456
WS_STATS = WS_KV + 65536
WS_WF = WS_STATS + 32768
WS_FLAGS = WS_WF + 544*5120
WS_CSX = WS_FLAGS + 4096
WS_USED = WS_CSX + 32*8*1280
LOG2E = 1.4426950408889634

S_X = 8; S_B0 = 12; S_B1 = 16; S_WS = 20; S_DBG = 24
S_RB = 26; S_CG = 27; S_WAVE = 28; S_TYPE = 29; S_SUB = 30; S_BSTR = 31
S_CB0 = 32; S_CB1 = 33; S_ROT = 34; S_SLOT = 35; S_CNT = 36
S_T = 37
S_EPS6 = 40
S_L2E = 42
S_AOFF = 56; S_BOFF = 57; S_M0S = 60; S_T2 = 61; S_T3 = 62; S_T4 = 63
S_EXS = 64
S_OK = 67
S_NONCE = 68

V_ACC = 96
def acc(mt, ct): return V_ACC + (ct * 4 + mt) * 4
V_X = 32
V_W = 64
V_XB = 2; V_WB = 3; V_XA = 4; V_WA = 6
V_LANE = 8; V_I = 9; V_G = 10
V_CSA = 80
V_ONES = 92

OPTS = {}
def SM():
    m = OPTS.get('smod', 'sc1')
    return (' ' + m.replace('_', ' ')) if m else ''
STAMP = False
WS_STAMP = 0x1000000
def stamp(e, idx):
    if STAMP:
        e(f"s_memtime {s(70 + 2*idx, 2)}")
        e("s_waitcnt lgkmcnt(0)")
def stamp_flush(e, n):
    if STAMP:
        e(f"s_lshl_b32 {s(S_T)}, s2, 3"); e(f"s_add_u32 {s(S_T)}, {s(S_T)}, {s(S_WAVE)}"); e(f"s_lshl_b32 {s(S_T)}, {s(S_T)}, 6")
        e(f"s_add_u32 {s(S_T)}, {s(S_T)}, {WS_STAMP}")
        e(f"v_mov_b32 v14, 0")
        e("s_memrealtime s[88:89]"); e("s_waitcnt lgkmcnt(0)")
        for k in range(n):
            e(f"v_mov_b32 v15, {s(70 + 2*k)}")
            e(f"buffer_store_dword v15, v14, {s(S_WS,4)}, {s(S_T)} offen offset:{4*k}")
            e("s_nop 1")
        e(f"v_mov_b32 v15, s86"); e(f"buffer_store_dword v15, v14, {s(S_WS,4)}, {s(S_T)} offen offset:{4*8}"); e("s_nop 1")
        e(f"v_mov_b32 v15, s88"); e(f"buffer_store_dword v15, v14, {s(S_WS,4)}, {s(S_T)} offen offset:{4*9}"); e("s_nop 1")
        if OPTS.get("rtloop"):
            e(f"v_mov_b32 v15, s84"); e(f"buffer_store_dword v15, v14, {s(S_WS,4)}, {s(S_T)} offen offset:{4*10}"); e("s_nop 1")
            e(f"v_mov_b32 v15, s85"); e(f"buffer_store_dword v15, v14, {s(S_WS,4)}, {s(S_T)} offen offset:{4*11}"); e("s_nop 1")

def cs_owned(w): return [ct for ct in (w, w + 4, w + 8) if ct < 10]

def wrap_slot(e, sreg):
    e(f"s_add_u32 {s(sreg)}, {s(sreg)}, {SLOT}")
    e(f"s_cmp_eq_u32 {s(sreg)}, {NSLOT*SLOT}")
    e(f"s_cselect_b32 {s(sreg)}, 0, {s(sreg)}")

def _loop_parts(e, swapped, valid):
    RING = 4
    q = Queue(e, "lgkmcnt", 15)
    def rd_x(par, mt):
        if OPTS.get("nox"): return
        e(f"ds_read_b128 {v(V_X + par*16 + mt*4, 4)}, {v(V_XA + par)} offset:{mt*2048}")
        q.issue(("x", par, mt))
    def rd_w(f, part):
        if OPTS.get("now"): return
        ks, ct = divmod(f % 20, 10)
        if valid is not None and ct not in valid: return
        half, c16 = divmod(ct, 5)
        off = half * BH + ks * 5120 + c16 * 32 + part * 1280
        ring = f % RING
        e(f"ds_read_b64_tr_b16 {v(V_W + ring*4 + part*2, 2)}, {v(V_WA)} offset:{off}")
        q.issue(("w", ring, part))
    def next_addr():
        e(f"v_add_u32 {v(V_XA)}, {s(S_SLOT)}, {v(V_XB)}")
        e(f"v_add_u32 {v(V_WA)}, {s(S_SLOT)}, {v(V_WB)}")
        e(f"v_xor_b32 {v(V_XA + 1)}, 64, {v(V_XA)}")
        wrap_slot(e, S_SLOT)
    sched = {G: [] for G in range(20)}
    sched[0] = [("w", 2, 0), ("w", 2, 1), ("w", 3, 0), ("w", 3, 1)]
    for G in range(1, 17): sched[G] = [("w", G + 3, 0), ("w", G + 3, 1)]
    for k, G in enumerate((4, 5, 6, 7)): sched[G].append(("x", 1, k))
    sched[18] = [("x", 0, 0), ("x", 0, 1), ("w", 20, 0), ("w", 20, 1)]
    sched[19] = [("x", 0, 2), ("x", 0, 3), ("w", 21, 0), ("w", 21, 1)]
    def do_read(r):
        if r[0] == "x": rd_x(r[1], r[2])
        else: rd_w(r[1], r[2])
    def prologue():
        next_addr()
        for G in (18, 19):
            for r in sched[G]: do_read(r)
    def mm(G, mt):
        ks, ct = divmod(G, 10); ring = G % RING
        q.wait(("w", ring, 0), ("w", ring, 1), ("x", ks, mt))
        A = acc(mt, ct)
        xo = v(V_X + ks*16 + mt*4, 4); wo = v(V_W + ring*4, 4)
        if OPTS.get("nomfma") or (valid is not None and ct not in valid): pass
        elif swapped: e(f"v_mfma_f32_16x16x32_bf16 {v(A,4)}, {wo}, {xo}, {v(A,4)}")
        else: e(f"v_mfma_f32_16x16x32_bf16 {v(A,4)}, {xo}, {wo}, {v(A,4)}")
    def cm(G, own):
        ks, ct = divmod(G, 10); ring = G % RING
        if ct in own and not OPTS.get("nomfma"):
            wo = v(V_W + ring*4, 4); C = V_CSA + 4*own.index(ct)
            if swapped: e(f"v_mfma_f32_16x16x32_bf16 {v(C,4)}, {wo}, {v(V_ONES,4)}, {v(C,4)}")
            else: e(f"v_mfma_f32_16x16x32_bf16 {v(C,4)}, {v(V_ONES,4)}, {wo}, {v(C,4)}")
    def body(own):
        SN = OPTS.get("snake", 1)
        if SN == 2:
            for G in range(0, 20, 2):
                if G == 18: reads = list(sched[18]) + list(sched[19])
                else:
                    reads = [("w", G + 2, 0), ("w", G + 2, 1), ("w", G + 3, 0), ("w", G + 3, 1)]
                    if G == 4: reads += [("x", 1, 0), ("x", 1, 1)]
                    if G == 6: reads += [("x", 1, 2), ("x", 1, 3)]
                if G == 18:
                    q.drain(); e("s_barrier"); next_addr()
                seq = []
                for mt in range(4):
                    seq += [(G, mt), (G + 1, mt)] if mt % 2 == 0 else [(G + 1, mt), (G, mt)]
                ri = 0
                for idx, (g, mt) in enumerate(seq):
                    mm(g, mt)
                    if idx == 6: cm(G + 1 if seq[6][0] == G + 1 else G, own)
                    if idx == 7: cm(seq[7][0], own)
                    nrd = (len(reads) - ri + (7 - idx)) // (8 - idx)
                    for _ in range(nrd):
                        do_read(reads[ri]); ri += 1
                assert ri == len(reads)
            return
        for G in range(20):
            ks, ct = divmod(G, 10)
            reads = list(sched[G])
            if G == 18:
                q.drain()
                e("s_barrier")
                next_addr()
            ri = 0
            order = [3, 2, 1, 0] if (SN and G % 2 == 1) else [0, 1, 2, 3]
            for idx, mt in enumerate(order):
                mm(G, mt)
                if idx == 3: cm(G, own)
                nrd = (len(reads) - ri + (3 - idx)) // (4 - idx)
                for _ in range(nrd):
                    do_read(reads[ri]); ri += 1
            assert ri == len(reads)
    return q, prologue, body

def cs_flush(e, swapped, own, wait=True):
    if not own: return
    if swapped:
        e(f"v_lshlrev_b32 v11, 4, {v(V_G)}"); e(f"v_add_u32 v11, {LDS_CS}, v11")
        e(f"v_cmp_eq_u32 vcc, 0, {v(V_I)}")
    else:
        e(f"v_lshlrev_b32 v11, 2, {v(V_I)}"); e(f"v_add_u32 v11, {LDS_CS}, v11")
        e(f"v_cmp_eq_u32 vcc, 0, {v(V_G)}")
    e("s_nop 5")
    e(f"s_and_saveexec_b64 {s(S_EXS,2)}, vcc")
    for k, ct in enumerate(own):
        if swapped: e(f"ds_write_b128 v11, {v(V_CSA + 4*k,4)} offset:{ct*64}")
        else: e(f"ds_write_b32 v11, {v(V_CSA + 4*k)} offset:{ct*64}")
    e(f"s_mov_b64 exec, {s(S_EXS,2)}")
    if wait: e("s_waitcnt lgkmcnt(0)")
    else: e("s_nop 3")

def consumer_loop(e, swapped, tag, w, valid=None, ntag=None):
    own = cs_owned(w) if not OPTS.get("nocolsum") else []
    if valid is not None: own = [ct for ct in own if ct in valid]
    dcs = OPTS.get("dcs", 1)
    q, prologue, body = _loop_parts(e, swapped, valid)
    e(f"s_mov_b32 {s(S_SLOT)}, 0")
    stamp(e, 1)
    e("s_barrier")
    stamp(e, 2)
    if OPTS.get("rtloop"): e("s_memrealtime s[94:95]"); e("s_waitcnt lgkmcnt(0)"); e("s_mov_b32 s84, s94")
    prologue()
    state0 = list(q.p)
    if dcs:
        if OPTS.get("rot", 1) == 5:
            e(f"s_lshr_b32 {s(S_T3)}, 0xa0, {s(S_RB)}"); e(f"s_and_b32 {s(S_T3)}, {s(S_T3)}, 1"); e(f"s_add_u32 {s(S_CNT)}, {s(S_T3)}, 1")
        else:
            e(f"s_cmp_lt_u32 {s(S_RB)}, 2"); e(f"s_cselect_b32 {s(S_CNT)}, 2, 1")
        e(f"s_sub_u32 {s(S_T3)}, {NST}, {s(S_CNT)}")
    else:
        e(f"s_mov_b32 {s(S_CNT)}, {NST}")
    e.raw(".p2align 6")
    e.label(f"L_cloop_{tag}")
    body(own)
    e(f"s_sub_u32 {s(S_CNT)}, {s(S_CNT)}, 1")
    e(f"s_cmp_lg_u32 {s(S_CNT)}, 0")
    e(f"s_cbranch_scc1 L_cloop_{tag}")
    assert q.p == state0, (q.p, state0)
    if dcs:
        cs_flush(e, swapped, own, wait=False)
        e(f"s_mov_b32 {s(S_CNT)}, {s(S_T3)}")
        e(f"s_branch L_cloopN_{ntag}")
        return
    e("s_waitcnt lgkmcnt(0)")
    stamp(e, 3)
    if OPTS.get("rtloop"): e("s_memrealtime s[94:95]"); e("s_waitcnt lgkmcnt(0)"); e("s_mov_b32 s85, s94")
    cs_flush(e, swapped, own)

def shared_loop(e, swapped, ntag, valid=None):
    if not OPTS.get("dcs", 1): return
    t = Emit(); q0, pro0, _ = _loop_parts(t, swapped, valid); pro0(); st0 = list(q0.p)
    q, prologue, body = _loop_parts(e, swapped, valid)
    q.p = list(st0)
    e.raw(".p2align 6")
    e.label(f"L_cloopN_{ntag}")
    body([])
    e(f"s_sub_u32 {s(S_CNT)}, {s(S_CNT)}, 1")
    e(f"s_cmp_lg_u32 {s(S_CNT)}, 0")
    e(f"s_cbranch_scc1 L_cloopN_{ntag}")
    assert q.p == st0
    e("s_waitcnt lgkmcnt(0)")
    stamp(e, 3)
    if OPTS.get("rtloop"): e("s_memrealtime s[94:95]"); e("s_waitcnt lgkmcnt(0)"); e("s_mov_b32 s85, s94")

def setup_pre(e):
    e("s_cmp_ge_u32 s2, 256")
    e("s_cbranch_scc1 L_k1_end")
    e("s_load_dwordx4 s[4:7], s[0:1], 0")
    e("s_load_dwordx4 s[48:51], s[0:1], 32")
    e("s_load_dwordx4 s[52:55], s[0:1], 64")
    if STAMP: e(f"s_memtime {s(70,2)}")
    if STAMP: e(f"s_memrealtime s[86:87]")
    e(f"v_lshrrev_b32 v1, 6, v0")
    e(f"v_and_b32 {v(V_LANE)}, 63, v0")
    e(f"v_readfirstlane_b32 {s(S_WAVE)}, v1")
    e(f"s_and_b32 {s(S_T)}, s2, 7")
    e(f"s_lshr_b32 {s(S_T+1)}, s2, 3")
    e(f"s_and_b32 {s(S_RB)}, {s(S_T)}, 1")
    e(f"s_lshl_b32 {s(S_RB)}, {s(S_RB)}, 2")
    e(f"s_and_b32 {s(S_T+2)}, {s(S_T+1)}, 3")
    e(f"s_add_u32 {s(S_RB)}, {s(S_RB)}, {s(S_T+2)}")
    e(f"s_lshr_b32 {s(S_T)}, {s(S_T)}, 1")
    e(f"s_lshr_b32 {s(S_T+1)}, {s(S_T+1)}, 2")
    e(f"s_lshl_b32 {s(S_CG)}, {s(S_T)}, 3"); e(f"s_add_u32 {s(S_CG)}, {s(S_CG)}, {s(S_T+1)}")
    e(f"s_mul_i32 {s(S_SUB)}, {s(S_T)}, 5"); e(f"s_add_u32 {s(S_SUB)}, {s(S_SUB)}, {s(S_T+1)}"); e(f"s_sub_u32 {s(S_SUB)}, {s(S_SUB)}, 3")
    e(f"s_mov_b32 {s(S_TYPE)}, 2")
    e(f"s_cmp_eq_u32 {s(S_T+1)}, 2")
    e(f"s_cselect_b32 {s(S_TYPE)}, 0, {s(S_TYPE)}"); e(f"s_cselect_b32 {s(S_SUB)}, {s(S_T)}, {s(S_SUB)}")
    e(f"s_lshl_b32 {s(S_T+2)}, {s(S_T)}, 1"); e(f"s_add_u32 {s(S_T+2)}, {s(S_T+2)}, {s(S_T+1)}")
    e(f"s_cmp_lt_u32 {s(S_T+1)}, 2")
    e(f"s_cselect_b32 {s(S_TYPE)}, 1, {s(S_TYPE)}"); e(f"s_cselect_b32 {s(S_SUB)}, {s(S_T+2)}, {s(S_SUB)}")
    e(f"s_mul_i32 {s(S_CB0)}, {s(S_SUB)}, 160")
    e(f"s_mov_b32 {s(S_CB1)}, {s(S_CB0)}")
    e(f"s_and_b32 {s(S_ROT)}, {s(S_SUB)}, 1"); e(f"s_lshl_b32 {s(S_ROT)}, {s(S_ROT)}, 1")
    e(f"s_cmp_eq_u32 {s(S_TYPE)}, 2")
    e(f"s_cselect_b32 {s(S_ROT)}, {s(S_ROT)}, 0")
    e(f"s_mov_b32 {s(S_BSTR)}, 3840"); e(f"s_mov_b32 {s(S_B0+2)}, 2457600")
    e(f"s_cselect_b32 {s(S_BSTR)}, 3072, {s(S_BSTR)}")
    e(f"s_cselect_b32 {s(S_B0+2)}, 1966080, {s(S_B0+2)}"); e(f"s_mov_b32 {s(S_B1+2)}, {s(S_B0+2)}")
    e(f"s_cmp_eq_u32 {s(S_TYPE)}, 1")
    e(f"s_cselect_b32 {s(S_T)}, 1280, 0"); e(f"s_cselect_b32 {s(S_T+1)}, 2560, 0")
    e(f"s_add_u32 {s(S_CB0)}, {s(S_CB0)}, {s(S_T)}"); e(f"s_add_u32 {s(S_CB1)}, {s(S_CB1)}, {s(S_T+1)}")
    e(f"s_cmp_eq_u32 {s(S_TYPE)}, 0")
    e(f"s_cselect_b32 {s(S_T)}, {s(S_CB0)}, 0"); e(f"s_cselect_b32 {s(S_T+1)}, 160, 0")
    e(f"s_add_u32 {s(S_CB0)}, {s(S_CB0)}, {s(S_T)}"); e(f"s_add_u32 {s(S_CB1)}, {s(S_CB1)}, {s(S_T)}"); e(f"s_add_u32 {s(S_CB1)}, {s(S_CB1)}, {s(S_T+1)}")
    e(f"s_mov_b32 {s(S_X+2)}, 2621440"); e(f"s_mov_b32 {s(S_X+3)}, 0x20000")
    e(f"s_mov_b32 {s(S_WS+2)}, {WS_USED if not STAMP else 0x2000000}"); e(f"s_mov_b32 {s(S_WS+3)}, 0x20000")
    e(f"s_mov_b32 {s(S_B0+3)}, 0x20000"); e(f"s_mov_b32 {s(S_B1+3)}, 0x20000")
    e(f"v_and_b32 {v(V_I)}, 15, {v(V_LANE)}")
    e(f"v_lshrrev_b32 {v(V_G)}, 4, {v(V_LANE)}")

def setup_post(e):
    e("s_waitcnt lgkmcnt(0)")
    e(f"s_mov_b32 {s(S_X)}, s4"); e(f"s_mov_b32 {s(S_X+1)}, s5")
    e(f"s_cmp_eq_u32 {s(S_TYPE)}, 2")
    e(f"s_cselect_b32 {s(S_B0)}, s48, s6"); e(f"s_cselect_b32 {s(S_B0+1)}, s49, s7")
    e(f"s_cselect_b32 {s(S_B1)}, s50, s6"); e(f"s_cselect_b32 {s(S_B1+1)}, s51, s7")
    e(f"s_mov_b32 {s(S_WS)}, s54"); e(f"s_mov_b32 {s(S_WS+1)}, s55")
    e(f"s_mov_b32 {s(S_DBG)}, s52"); e(f"s_mov_b32 {s(S_DBG+1)}, s53")

def consumer_setup(e):
    e(f"v_and_b32 v11, 7, {v(V_I)}")
    e(f"v_xor_b32 v11, {v(V_G)}, v11")
    e(f"v_lshlrev_b32 v11, 4, v11")
    e(f"s_lshl_b32 {s(S_T)}, {s(S_WAVE)}, 13")
    e(f"v_lshlrev_b32 v12, 7, {v(V_I)}")
    e(f"v_add3_u32 {v(V_XB)}, v11, v12, {s(S_T)}")
    e(f"v_lshrrev_b32 v11, 1, {v(V_G)}")
    e(f"v_lshlrev_b32 v11, 4, v11")
    e(f"v_and_b32 v12, 1, {v(V_G)}")
    e(f"v_lshlrev_b32 v12, 2, v12")
    e(f"v_lshrrev_b32 v13, 2, {v(V_I)}")
    e(f"v_add3_u32 v11, v11, v12, v13")
    e(f"v_mul_u32_u24 v11, 160, v11")
    e(f"v_and_b32 v12, 3, {v(V_I)}")
    e(f"v_lshlrev_b32 v12, 3, v12")
    e(f"v_add_u32 v11, v11, v12")
    e(f"v_add_u32 {v(V_WB)}, {A_BYTES}, v11")
    if OPTS.get("dry", 1):
        e("s_mov_b64 exec, 0")
        for ty, nm in ((2, "gu"), (0, "q"), (1, "kv")):
            if ty != 1: e(f"s_cmp_eq_u32 {s(S_TYPE)}, {ty}"); e(f"s_cbranch_scc0 L_dry_n{nm}")
            for w in range(4):
                if w < 3:
                    e(f"s_cmp_eq_u32 {s(S_WAVE)}, {w}"); e(f"s_cbranch_scc1 L_{nm}_b{w}")
                else: e(f"s_branch L_{nm}_b{w}")
            if ty != 1: e.label(f"L_dry_n{nm}")
    e.label("L_dry_ret")
    e("s_mov_b64 exec, -1")
    e("s_nop 3")
    for r in range(V_CSA, V_CSA + 12): e(f"v_mov_b32 {v(r)}, 0")
    for r in range(V_ONES, V_ONES + 4): e(f"v_mov_b32 {v(r)}, 0x3f803f80")
    for r in range(V_ACC, 256):
        e(f"v_mov_b32 {v(r)}, 0")

P_VA = 16
P_VB = 20
P_ONE = 26
P_SL = 100
P_POLL = 60
P_RES = 56
DBG_NONCE = 0
DBG_FLAG = 64

def div10(e, dst, src):
    e(f"v_mul_u32_u24 {v(dst)}, 205, {v(src)}")
    e(f"v_lshrrev_b32 {v(dst)}, 11, {v(dst)}")

def endp(e):
    if OPTS.get("fused"): e("s_branch L_phase_end")
    else: e("s_endpgm")

def lane0(e, on=True):
    if on:
        e(f"v_cmp_eq_u32 vcc, 0, {v(V_LANE)}")
        e(f"s_and_saveexec_b64 {s(S_EXS,2)}, vcc")
    else:
        e(f"s_mov_b64 exec, {s(S_EXS,2)}")

S_DA = 58; S_DB = 59; S_MA = 44; S_MB = 45
def issue_a(e, q, tag):
    for a_ in range(16):
        e(f"s_add_u32 m0, {s(S_MA)}, {a_*1024}")
        e(f"s_add_u32 {s(S_T)}, {s(S_AOFF)}, {a_*8*1280}")
        e(f"buffer_load_dwordx4 {v(P_VA)}, {s(S_X,4)}, {s(S_T)} offen lds")
        q.issue(tag)
    e(f"s_add_u32 {s(S_AOFF)}, {s(S_AOFF)}, 128")

def issue_b(e, q, tag):
    for b in range(10):
        if b == 5: e(f"s_add_u32 {s(S_BOFF)}, {s(S_BOFF)}, {s(S_T4)}")
        e(f"s_add_u32 m0, {s(S_MB)}, {b*1024}")
        e("s_nop 0")
        e(f"buffer_load_dwordx4 {v(P_VB + b % 5)}, {s(S_B0,4)}, {s(S_BOFF)} offen lds")
        q.issue(tag)
    e(f"s_add_u32 {s(S_BOFF)}, {s(S_BOFF)}, {s(S_T4)}")

def set_slot(e, slot_sgpr=None, slot_imm=None):
    if slot_sgpr is None:
        e(f"s_add_u32 {s(S_MA)}, {s(S_DA)}, {slot_imm}"); e(f"s_add_u32 {s(S_MB)}, {s(S_DB)}, {slot_imm}")
    else:
        e(f"s_add_u32 {s(S_MA)}, {s(S_DA)}, {s(slot_sgpr)}"); e(f"s_add_u32 {s(S_MB)}, {s(S_DB)}, {s(slot_sgpr)}")

S_KST = 46
def rot_wrap(e):
    if not OPTS.get("rot", 1): return
    e(f"s_add_u32 {s(S_KST)}, {s(S_KST)}, 1")
    e(f"s_cmp_eq_u32 {s(S_KST)}, 10")
    e(f"s_cselect_b32 {s(S_T)}, 1280, 0"); e(f"s_cselect_b32 {s(S_T+1)}, s47, 0"); e(f"s_cselect_b32 {s(S_KST)}, 0, {s(S_KST)}")
    e(f"s_sub_u32 {s(S_AOFF)}, {s(S_AOFF)}, {s(S_T)}"); e(f"s_sub_u32 {s(S_BOFF)}, {s(S_BOFF)}, {s(S_T+1)}")

def issue_stage(e, q, slot_sgpr=None, slot_imm=None, tag=None):
    if OPTS.get("nodma") and slot_sgpr is not None: return
    set_slot(e, slot_sgpr, slot_imm)
    issue_a(e, q, tag)
    issue_b(e, q, tag)
    rot_wrap(e)

def dma_wave(e):
    if OPTS.get("dprio", 3): e(f"s_setprio {OPTS.get('dprio', 3)}")
    q = Queue(e, "vmcnt", 63)
    n = 26
    e(f"s_sub_u32 {s(S_T3)}, {s(S_WAVE)}, 4")
    e(f"s_lshl_b32 {s(S_DA)}, {s(S_T3)}, 14")
    e(f"s_mul_i32 {s(S_DB)}, {s(S_T3)}, {BH}"); e(f"s_add_u32 {s(S_DB)}, {s(S_DB)}, {A_BYTES}")
    e(f"v_lshrrev_b32 v12, 3, {v(V_LANE)}")
    e(f"v_and_b32 v11, 7, {v(V_LANE)}")
    e(f"v_xor_b32 v11, v11, v12")
    e(f"v_lshlrev_b32 v11, 4, v11")
    e(f"v_mul_u32_u24 v12, 1280, v12")
    e(f"v_add_u32 {v(P_VA)}, v11, v12")
    e(f"s_lshl_b32 {s(S_AOFF)}, {s(S_RB)}, 1"); e(f"s_add_u32 {s(S_AOFF)}, {s(S_AOFF)}, {s(S_T3)}")
    e(f"s_mul_i32 {s(S_AOFF)}, {s(S_AOFF)}, {128*1280}")
    for b in range(5):
        e(f"v_add_u32 v11, {64*b}, {v(V_LANE)}")
        div10(e, 12, 11)
        e(f"v_mul_u32_u24 v13, 10, v12")
        e(f"v_sub_u32 v13, v11, v13")
        e(f"v_add_u32 v13, {s(S_ROT)}, v13")
        e(f"v_cmp_le_u32 vcc, 10, v13")
        e(f"v_subrev_u32 v14, 10, v13")
        e(f"v_and_b32 v15, 0x13, v12")
        e(f"v_cndmask_b32 v13, v13, v14, vcc")
        e(f"v_and_b32 v14, 4, v12"); e(f"v_lshlrev_b32 v14, 1, v14"); e(f"v_or_b32 v15, v15, v14")
        e(f"v_and_b32 v14, 8, v12"); e(f"v_lshrrev_b32 v14, 1, v14"); e(f"v_or_b32 v15, v15, v14")
        e(f"v_mul_lo_u32 v15, v15, {s(S_BSTR)}")
        e(f"v_lshlrev_b32 v13, 4, v13")
        e(f"v_add_u32 {v(P_VB + b)}, v15, v13")
    e(f"s_cmp_eq_u32 {s(S_T3)}, 0")
    e(f"s_cselect_b32 {s(S_BOFF)}, {s(S_CB0)}, {s(S_CB1)}")
    e(f"s_lshl_b32 {s(S_T4)}, {s(S_BSTR)}, 5")
    if OPTS.get("rot", 1):
        R = OPTS.get("rot", 1)
        e(f"s_lshl_b32 {s(S_KST)}, {s(S_RB)}, 1"); e(f"s_add_u32 {s(S_T)}, {s(S_RB)}, 2")
        e(f"s_cmp_lt_u32 {s(S_RB)}, 2"); e(f"s_cselect_b32 {s(S_KST)}, {s(S_KST)}, {s(S_T)}")
        if R == 4:
            e(f"s_and_b32 {s(S_T)}, {s(S_RB)}, 3"); e(f"s_mul_i32 {s(S_KST)}, {s(S_T)}, 5"); e(f"s_lshr_b32 {s(S_KST)}, {s(S_KST)}, 1")
            e(f"s_lshr_b32 {s(S_T)}, {s(S_RB)}, 2"); e(f"s_add_u32 {s(S_KST)}, {s(S_KST)}, {s(S_T)}")
        if R == 5:
            tab = sum(x << (4*i) for i, x in enumerate((0, 2, 5, 7, 1, 3, 6, 8)))
            e(f"s_lshl_b32 {s(S_T)}, {s(S_RB)}, 2"); e(f"s_lshr_b32 {s(S_KST)}, {hex(tab)}, {s(S_T)}"); e(f"s_and_b32 {s(S_KST)}, {s(S_KST)}, 15")
        if R in (2, 3):
            if R == 3: e(f"s_mov_b32 {s(S_KST)}, 0")
            e(f"s_and_b32 {s(S_T)}, {s(S_CG)}, 7")
            if OPTS.get("rotm", 1) > 1: e(f"s_mul_i32 {s(S_T)}, {s(S_T)}, {OPTS.get('rotm')}")
            e(f"s_add_u32 {s(S_KST)}, {s(S_KST)}, {s(S_T)}")
            for _ in range(3):
                e(f"s_cmp_ge_u32 {s(S_KST)}, 10"); e(f"s_cselect_b32 {s(S_T)}, 10, 0"); e(f"s_sub_u32 {s(S_KST)}, {s(S_KST)}, {s(S_T)}")
        e(f"s_mul_i32 s47, {s(S_BSTR)}, 640")
        e(f"s_lshl_b32 {s(S_T)}, {s(S_KST)}, 7"); e(f"s_add_u32 {s(S_AOFF)}, {s(S_AOFF)}, {s(S_T)}")
        e(f"s_mul_i32 {s(S_T)}, {s(S_KST)}, {s(S_BSTR)}"); e(f"s_lshl_b32 {s(S_T)}, {s(S_T)}, 6"); e(f"s_add_u32 {s(S_BOFF)}, {s(S_BOFF)}, {s(S_T)}")
    setup_post(e)
    e(f"s_cmp_eq_u32 {s(S_T3)}, 0")
    e(f"s_cselect_b32 {s(S_B0)}, {s(S_B0)}, {s(S_B1)}"); e(f"s_cselect_b32 {s(S_B0+1)}, {s(S_B0+1)}, {s(S_B1+1)}")
    stamp(e, 1)
    issue_stage(e, q, slot_imm=0, tag=0)
    stamp(e, 2)
    NPRE = OPTS.get("npre", 2)
    if NPRE == 2: issue_stage(e, q, slot_imm=SLOT, tag=1)
    if NPRE == 3:
        set_slot(e, None, SLOT); issue_b(e, q, 1)
    if NPRE == 4:
        set_slot(e, None, SLOT); issue_a(e, q, 1)
    stamp(e, 3)
    q.wait(0)
    stamp(e, 5)
    e("s_barrier")
    if NPRE == 1: issue_stage(e, q, slot_imm=SLOT, tag=1)
    if NPRE == 3: issue_a(e, q, 1)
    if NPRE == 4: issue_b(e, q, 1)
    issue_stage(e, q, slot_imm=2*SLOT, tag=2)
    e(f"s_mov_b32 {s(S_M0S)}, 0")
    e(f"s_mov_b32 {s(S_CNT)}, 7")
    e.label(f"L_dloop")
    e(f"s_waitcnt vmcnt({n})")
    e("s_barrier")
    q2 = Queue(e, "vmcnt", 63)
    issue_stage(e, q2, slot_sgpr=S_M0S, tag="x"); wrap_slot(e, S_M0S)
    e(f"s_sub_u32 {s(S_CNT)}, {s(S_CNT)}, 1")
    e(f"s_cmp_lg_u32 {s(S_CNT)}, 0")
    e(f"s_cbranch_scc1 L_dloop")
    e(f"s_waitcnt vmcnt({n})"); e("s_barrier")
    e(f"s_waitcnt vmcnt(0)"); e("s_barrier")
    e("s_barrier")
    e("s_barrier")
    e(f"s_cmp_eq_u32 {s(S_TYPE)}, 1")
    e(f"s_cbranch_scc1 L_kv_final")
    if STAMP:
        stamp(e, 4); stamp(e, 6); stamp_flush(e, 7)
    endp(e)

def stats4_load(e, row_sgpr):
    e(f"v_add_u32 v11, {s(row_sgpr)}, {v(V_G)}")
    e(f"v_mul_u32_u24 v11, 1280, v11")
    e(f"v_lshlrev_b32 v14, 4, {v(V_I)}")
    e(f"v_add_u32 v11, v11, v14")
    for k in range(5):
        e(f"buffer_load_dwordx4 {v(P_SL + 4*k, 4)}, v11, {s(S_X,4)}, 0 offen offset:{k*256}")

def stats4_compute(e):
    A = P_SL + 20
    for k in range(4): e(f"v_mov_b32 {v(A + k)}, 0")
    for d in range(20):
        e(f"v_dot2c_f32_bf16 {v(A + (d & 1))}, {v(P_SL + d)}, {v(P_ONE)}")
        e(f"v_dot2c_f32_bf16 {v(A + 2 + (d & 1))}, {v(P_SL + d)}, {v(P_SL + d)}")
    e("s_nop 2")
    e(f"v_add_f32 {v(A)}, {v(A)}, {v(A+1)}")
    e(f"v_add_f32 {v(A+2)}, {v(A+2)}, {v(A+3)}")
    for ctl in ("quad_perm:[1,0,3,2]", "quad_perm:[2,3,0,1]", "row_half_mirror", "row_mirror"):
        e("s_nop 0")
        e(f"v_add_f32_dpp {v(A)}, {v(A)}, {v(A)} {ctl} row_mask:0xf bank_mask:0xf")
        e(f"v_add_f32_dpp {v(A+2)}, {v(A+2)}, {v(A+2)} {ctl} row_mask:0xf bank_mask:0xf")
        e("s_nop 0")
    M = P_SL + 26
    e(f"v_mul_f32 {v(M)}, {f32(1.0/640)}, {v(A)}")
    e(f"v_mul_f32 {v(A+1)}, {v(M)}, {v(M)}")
    e(f"v_mul_f32 {v(A+2)}, {f32(1.0/640)}, {v(A+2)}")
    e(f"v_sub_f32 {v(A+2)}, {v(A+2)}, {v(A+1)}")
    e(f"v_max_f32 {v(A+2)}, 0, {v(A+2)}")
    e(f"v_add_f32 {v(A+2)}, {f32(1e-5)}, {v(A+2)}")
    e(f"v_rsq_f32 {v(M+1)}, {v(A+2)}")
    e("s_nop 0")

def write_stats_lds_from_pairs(e, R, tag):
    e(f"s_cmp_eq_u32 {s(S_TYPE)}, 1")
    e(f"s_cbranch_scc1 L_wsk_{tag}")
    e(f"v_lshlrev_b32 v13, 5, {v(V_LANE)}")
    e(f"v_add_u32 v13, {LDS_STATS}, v13")
    e(f"ds_write_b128 v13, {v(R,4)}")
    e(f"ds_write_b128 v13, {v(R+4,4)} offset:16")
    e(f"s_branch L_wsd_{tag}")
    e.label(f"L_wsk_{tag}")
    T = R + 8
    for k in range(4):
        e(f"v_mov_b32 {v(T + k)}, {v(R + 2*k)}")
        e(f"v_mov_b32 {v(T + 4 + k)}, {v(R + 2*k + 1)}")
    e(f"v_lshlrev_b32 v13, 4, {v(V_LANE)}")
    e(f"v_add_u32 v13, {LDS_STATS}, v13")
    e(f"ds_write_b128 v13, {v(T,4)}")
    e(f"ds_write_b128 v13, {v(T+4,4)} offset:1024")
    e.label(f"L_wsd_{tag}")

def fetch_stats(e):
    e(f"s_lshl_b32 {s(S_T)}, {s(S_RB)}, 12")
    e(f"s_add_u32 {s(S_T)}, {s(S_T)}, {WS_STATS}")
    e(f"v_lshlrev_b32 v11, 6, {v(V_LANE)}")
    for k in range(4):
        e(f"buffer_load_dwordx4 {v(P_SL + 4*k,4)}, v11, {s(S_WS,4)}, {s(S_T)} offen offset:{16*k} sc1")

def check_stats(e, tag):
    e(f"v_cmp_eq_u32 vcc, {s(S_NONCE)}, {v(P_SL + 1)}")
    e(f"s_mov_b64 s[92:93], vcc")
    for k in range(1, 8):
        e(f"v_cmp_eq_u32 vcc, {s(S_NONCE)}, {v(P_SL + 2*k + 1)}")
        e(f"s_and_b64 s[92:93], s[92:93], vcc")
    e(f"s_cmp_eq_u64 s[92:93], -1")
    e(f"s_cbranch_scc0 L_chk_no_{tag}")
    R = P_SL + 16
    for k in range(8):
        e(f"v_mov_b32 {v(R + k)}, {v(P_SL + 2*k)}")
    write_stats_lds_from_pairs(e, R, tag)
    e(f"s_mov_b32 {s(S_OK)}, 1")
    e.label(f"L_chk_no_{tag}")

def publish_stats(e, tag):
    e(f"v_lshlrev_b32 v13, 4, {v(V_G)}")
    e(f"s_lshl_b32 {s(S_T)}, {s(S_T3)}, 4"); e(f"s_add_u32 {s(S_T)}, {s(S_T)}, {WS_STATS}")
    e(f"v_mov_b32 v29, {s(S_NONCE)}"); e(f"v_mov_b32 v31, {s(S_NONCE)}")
    e(f"v_mov_b32 v33, {s(S_NONCE)}"); e(f"v_mov_b32 v35, {s(S_NONCE)}")
    e(f"v_mov_b32 v28, {v(P_RES)}"); e(f"v_mov_b32 v30, {v(P_RES+1)}")
    e(f"v_mov_b32 v32, {v(P_RES+2)}"); e(f"v_mov_b32 v34, {v(P_RES+3)}")
    e(f"v_cmp_eq_u32 vcc, 0, {v(V_I)}")
    e(f"s_and_saveexec_b64 {s(S_EXS,2)}, vcc")
    e(f"buffer_store_dwordx4 v[28:31], v13, {s(S_WS,4)}, {s(S_T)} offen sc1")
    e(f"buffer_store_dwordx4 v[32:35], v13, {s(S_WS,4)}, {s(S_T)} offen offset:64 sc1")
    e(f"s_mov_b64 exec, {s(S_EXS,2)}")

def poll_nonce(e):
    e(f"v_mov_b32 v11, 0")
    e(f"global_load_dword {v(P_POLL)}, v11, {s(S_DBG,2)} offset:{DBG_NONCE} sc1")

def try_publish(e, tag, repoll=True):
    e(f"s_cmp_lg_u32 {s(S_NONCE)}, 0"); e(f"s_cbranch_scc1 L_tp_{tag}")
    e("s_waitcnt vmcnt(0)")
    e(f"v_readfirstlane_b32 {s(S_NONCE)}, {v(P_POLL)}")
    e("s_nop 3")
    e(f"s_cmp_eq_u32 {s(S_NONCE)}, 0"); e(f"s_cbranch_scc1 L_tpr_{tag}")
    publish_stats(e, tag)
    e(f"s_branch L_tp_{tag}")
    e.label(f"L_tpr_{tag}")
    if repoll: poll_nonce(e)
    e.label(f"L_tp_{tag}")

def hbar(e, j):
    e("s_barrier")
    if OPTS.get("hstamp"):
        e("s_memtime s[90:91]"); e("s_waitcnt lgkmcnt(0)")
        e(f"v_writelane_b32 v62, s90, {j}")

def helper0(e, opts):
    e("s_cmp_eq_u32 s2, 0"); e("s_cbranch_scc0 L_h0_nononce")
    e("s_memrealtime s[92:93]"); e("s_waitcnt lgkmcnt(0)")
    e("s_or_b32 s92, s92, 1")
    e("v_mov_b32 v11, 0"); e("v_mov_b32 v12, s92")
    lane0(e)
    e(f"global_store_dword v11, v12, {s(S_DBG,2)} offset:{DBG_NONCE} sc1")
    lane0(e, False)
    e.label("L_h0_nononce")
    e(f"s_lshl_b32 {s(S_T)}, {s(S_RB)}, 8")
    e(f"s_lshl_b32 {s(S_T+1)}, {s(S_CG)}, 3")
    e(f"s_add_u32 {s(S_T3)}, {s(S_T)}, {s(S_T+1)}")
    stats4_load(e, S_T3)
    e(f"v_add_u32 v11, {4*1280}, v11")
    for k in range(5):
        e(f"buffer_load_dwordx4 {v(P_SL + 32 + 4*k, 4)}, v11, {s(S_X,4)}, 0 offen offset:{k*256}")
    e(f"v_mov_b32 {v(P_ONE)}, 0x3f803f80")
    e(f"s_mov_b32 {s(S_OK)}, 0"); e(f"s_mov_b32 {s(S_NONCE)}, 0")
    LATE = OPTS.get("statlate", 0)
    def do_stats():
        e("s_waitcnt vmcnt(5)")
        stats4_compute(e)
        e(f"v_mov_b32 {v(P_RES)}, {v(P_SL+26)}"); e(f"v_mov_b32 {v(P_RES+1)}, {v(P_SL+27)}")
        e("s_waitcnt vmcnt(0)")
        poll_nonce(e)
        for k in range(20): e(f"v_mov_b32 {v(P_SL + k)}, {v(P_SL + 32 + k)}")
        stats4_compute(e)
        e(f"v_mov_b32 {v(P_RES+2)}, {v(P_SL+26)}"); e(f"v_mov_b32 {v(P_RES+3)}, {v(P_SL+27)}")
    def do_stats_a():
        e("s_waitcnt vmcnt(5)")
        stats4_compute(e)
        e(f"v_mov_b32 {v(P_RES)}, {v(P_SL+26)}"); e(f"v_mov_b32 {v(P_RES+1)}, {v(P_SL+27)}")
        e("s_waitcnt vmcnt(0)")
        poll_nonce(e)
    def do_stats_b():
        for k in range(20): e(f"v_mov_b32 {v(P_SL + k)}, {v(P_SL + 32 + k)}")
        stats4_compute(e)
        e(f"v_mov_b32 {v(P_RES+2)}, {v(P_SL+26)}"); e(f"v_mov_b32 {v(P_RES+3)}, {v(P_SL+27)}")
    if not LATE: do_stats()
    FJ = OPTS.get("fetchj", 5); CJ = OPTS.get("checkj", 8)
    for j in range(11):
        e("s_barrier")
        if j == 0 and LATE: do_stats_a()
        if j == 1 and LATE: do_stats_b()
        pj = (2, 3, 4) if (LATE or OPTS.get("pj0", 1) == 2) else (1, 2, 3, 4)
        if j in pj: try_publish(e, f"l{j}", repoll=(j < 4))
        if j == FJ: fetch_stats(e)
        if j == CJ:
            e("s_waitcnt vmcnt(0)")
            e(f"s_cmp_eq_u32 {s(S_NONCE)}, 0"); e("s_cbranch_scc1 L_h0_okA")
            if not opts.get("forcefb"): check_stats(e, "a")
            e(f"s_cmp_eq_u32 {s(S_OK)}, 1"); e("s_cbranch_scc1 L_h0_okA")
            fetch_stats(e)
            e.label("L_h0_okA")
        if j == 10:
            e(f"s_cmp_eq_u32 {s(S_OK)}, 1"); e("s_cbranch_scc1 L_h0_okB")
            e(f"s_cmp_eq_u32 {s(S_NONCE)}, 0"); e("s_cbranch_scc1 L_h0_okB")
            e("s_waitcnt vmcnt(0)")
            if not opts.get("forcefb"): check_stats(e, "b")
            e.label("L_h0_okB")
    e(f"s_cmp_eq_u32 {s(S_OK)}, 1"); e(f"s_cbranch_scc1 L_h0_done")
    e(f"s_cmp_eq_u32 {s(S_NONCE)}, 0"); e(f"s_cbranch_scc1 L_h0_fb")
    e(f"s_mov_b32 {s(S_CNT)}, {0 if opts.get('forcefb') else 200}")
    e.label("L_h0_spin")
    e(f"s_cmp_eq_u32 {s(S_CNT)}, 0"); e(f"s_cbranch_scc1 L_h0_fb")
    fetch_stats(e)
    e("s_waitcnt vmcnt(0)")
    check_stats(e, "c")
    e(f"s_sub_u32 {s(S_CNT)}, {s(S_CNT)}, 1")
    e(f"s_cmp_eq_u32 {s(S_OK)}, 1"); e(f"s_cbranch_scc1 L_h0_done")
    e("s_sleep 4")
    e("s_branch L_h0_spin")
    e.label("L_h0_fb")
    e(f"s_mov_b32 {s(S_CNT)}, 0")
    e.label("L_fb_loop")
    e(f"s_lshl_b32 {s(S_T)}, {s(S_RB)}, 8")
    e(f"s_lshl_b32 {s(S_T+1)}, {s(S_CNT)}, 2")
    e(f"s_add_u32 {s(S_T)}, {s(S_T)}, {s(S_T+1)}")
    stats4_load(e, S_T)
    e("s_waitcnt vmcnt(0)")
    stats4_compute(e)
    e(f"v_add_u32 v15, {s(S_T+1)}, {v(V_G)}")
    e(f"v_cmp_eq_u32 vcc, 0, {v(V_I)}")
    e(f"s_and_saveexec_b64 {s(S_EXS,2)}, vcc")
    e(f"s_cmp_eq_u32 {s(S_TYPE)}, 1")
    e(f"s_cbranch_scc1 L_fb_kv")
    e(f"v_lshlrev_b32 v13, 3, v15"); e(f"v_add_u32 v13, {LDS_STATS}, v13")
    e(f"ds_write_b64 v13, {v(P_SL + 26, 2)}")
    e(f"s_branch L_fb_n")
    e.label("L_fb_kv")
    e(f"v_lshlrev_b32 v13, 2, v15"); e(f"v_add_u32 v13, {LDS_STATS}, v13")
    e(f"ds_write_b32 v13, {v(P_SL + 26)}")
    e(f"ds_write_b32 v13, {v(P_SL + 27)} offset:1024")
    e.label("L_fb_n")
    e(f"s_mov_b64 exec, {s(S_EXS,2)}")
    e(f"s_add_u32 {s(S_CNT)}, {s(S_CNT)}, 1")
    e(f"s_cmp_lt_u32 {s(S_CNT)}, 64")
    e("s_cbranch_scc1 L_fb_loop")
    e.label("L_h0_done")
    e("s_waitcnt lgkmcnt(0)")
    e("s_barrier")
    e(f"s_cmp_eq_u32 {s(S_TYPE)}, 1")
    e(f"s_cbranch_scc1 L_kv_final")
    endp(e)

def repack_setup(e):
    for b in range(5):
        e(f"v_add_u32 v11, {64*b}, {v(V_LANE)}")
        div10(e, 12, 11)
        e(f"v_mul_u32_u24 v13, 10, v12"); e(f"v_sub_u32 v13, v11, v13")
        e(f"v_mul_u32_u24 v12, 1280, v12"); e(f"v_lshlrev_b32 v13, 4, v13")
        e(f"v_add_u32 {v(40 + b)}, v12, v13")
    e(f"v_lshlrev_b32 v11, 2, {v(V_G)}"); e(f"v_lshrrev_b32 v12, 2, {v(V_I)}"); e(f"v_add_u32 v11, v11, v12")
    e(f"v_mul_u32_u24 v11, 160, v11"); e(f"v_and_b32 v12, 3, {v(V_I)}"); e(f"v_lshlrev_b32 v12, 3, v12")
    e(f"v_add_u32 v11, v11, v12"); e(f"v_add_u32 v45, {LDS_RP}, v11")
    e(f"v_lshlrev_b32 v46, 4, {v(V_LANE)}")

def repack_issue(e):
    for r in range(3):
        e(f"s_add_u32 {s(S_T)}, s2, {256*r}")
        if r == 2:
            e(f"s_cmp_ge_u32 {s(S_T)}, 544"); e("s_cbranch_scc1 L_rp_i_done")
        e(f"s_lshr_b32 {s(S_T+1)}, {s(S_T)}, 3")
        e(f"s_and_b32 {s(S_T+2)}, {s(S_T)}, 7")
        e(f"s_mul_i32 {s(S_T+2)}, {s(S_T+2)}, 160")
        e(f"s_cmp_ge_u32 {s(S_T+1)}, 48")
        e(f"s_cbranch_scc1 L_rp_wo{r}")
        e(f"s_mul_i32 {s(S_T+1)}, {s(S_T+1)}, {32*1280}"); e(f"s_add_u32 {s(S_T+1)}, {s(S_T+1)}, {s(S_T+2)}")
        for b in range(5):
            e(f"s_mov_b32 m0, {LDS_RP + r*5120 + b*1024}"); e("s_nop 0")
            e(f"buffer_load_dwordx4 {v(40 + b)}, s[44:47], {s(S_T+1)} offen lds")
        e(f"s_branch L_rp_n{r}")
        e.label(f"L_rp_wo{r}")
        e(f"s_sub_u32 {s(S_T+1)}, {s(S_T+1)}, 48")
        e(f"s_mul_i32 {s(S_T+1)}, {s(S_T+1)}, {32*1280}"); e(f"s_add_u32 {s(S_T+1)}, {s(S_T+1)}, {s(S_T+2)}")
        for b in range(5):
            e(f"s_mov_b32 m0, {LDS_RP + r*5120 + b*1024}"); e("s_nop 0")
            e(f"buffer_load_dwordx4 {v(40 + b)}, s[48:51], {s(S_T+1)} offen lds")
        e.label(f"L_rp_n{r}")
    e.label("L_rp_i_done")

def repack_finish(e):
    e("s_waitcnt vmcnt(0)")
    for r in range(3):
        R = 64 + 20*r
        e(f"s_add_u32 {s(S_T)}, s2, {256*r}")
        if r == 2:
            e(f"s_cmp_ge_u32 {s(S_T)}, 544"); e("s_cbranch_scc1 L_rp_f_done")
        for ct in range(5):
            for part in range(2):
                e(f"ds_read_b64_tr_b16 {v(R + 4*ct + 2*part, 2)}, v45 offset:{r*5120 + ct*32 + part*2560}")
        e(f"s_mul_i32 {s(S_T)}, {s(S_T)}, 5120"); e(f"s_add_u32 {s(S_T)}, {s(S_T)}, {WS_WF}")
        e(f"s_add_u32 {s(S_T+1)}, {s(S_T)}, 4096")
        for ct in range(5):
            e(f"s_waitcnt lgkmcnt({2*(4-ct)})")
            if ct < 4: e(f"buffer_store_dwordx4 {v(R + 4*ct,4)}, v46, {s(S_WS,4)}, {s(S_T)} offen offset:{ct*1024}{SM()}")
            else: e(f"buffer_store_dwordx4 {v(R + 4*ct,4)}, v46, {s(S_WS,4)}, {s(S_T+1)} offen{SM()}")
    e.label("L_rp_f_done")

def cs_publish(e, tag):
    e(f"v_lshlrev_b32 v11, 3, {v(V_LANE)}"); e(f"v_add_u32 v11, {LDS_CS}, v11")
    e("ds_read_b64 v[28:29], v11"); e("ds_read_b64 v[32:33], v11 offset:512")
    e(f"s_lshl_b32 {s(S_T)}, {s(S_CG)}, 3"); e(f"s_add_u32 {s(S_T)}, {s(S_T)}, {s(S_RB)}"); e(f"s_mul_i32 {s(S_T)}, {s(S_T)}, 1280")
    e(f"s_add_u32 {s(S_T)}, {s(S_T)}, {WS_CSX}")
    e(f"v_lshlrev_b32 v12, 4, {v(V_LANE)}")
    e("s_waitcnt lgkmcnt(0)")
    e("v_mov_b32 v30, v29"); e(f"v_mov_b32 v29, {s(S_NONCE)}"); e(f"v_mov_b32 v31, {s(S_NONCE)}")
    e("v_mov_b32 v34, v33"); e(f"v_mov_b32 v33, {s(S_NONCE)}"); e(f"v_mov_b32 v35, {s(S_NONCE)}")
    e(f"buffer_store_dwordx4 v[28:31], v12, {s(S_WS,4)}, {s(S_T)} offen sc1")
    e(f"v_cmp_gt_u32 vcc, 16, {v(V_LANE)}"); e(f"s_and_saveexec_b64 {s(S_EXS,2)}, vcc")
    e(f"buffer_store_dwordx4 v[32:35], v12, {s(S_WS,4)}, {s(S_T)} offen offset:1024 sc1")
    e(f"s_mov_b64 exec, {s(S_EXS,2)}")

def cs_try_publish(e, tag, repoll):
    e(f"s_cmp_lg_u32 {s(S_NONCE)}, 0"); e(f"s_cbranch_scc1 L_ctp_{tag}")
    e("s_waitcnt vmcnt(0)")
    e(f"v_readfirstlane_b32 {s(S_NONCE)}, v61")
    e("s_nop 3")
    e(f"s_cmp_eq_u32 {s(S_NONCE)}, 0"); e(f"s_cbranch_scc1 L_ctr_{tag}")
    cs_publish(e, tag)
    e(f"s_branch L_ctp_{tag}")
    e.label(f"L_ctr_{tag}")
    if repoll:
        e("v_mov_b32 v11, 0"); e(f"global_load_dword v61, v11, {s(S_DBG,2)} offset:{DBG_NONCE} sc1")
    e.label(f"L_ctp_{tag}")

def cs_fetch(e):
    e(f"s_mul_i32 {s(S_T)}, {s(S_CG)}, {8*1280}"); e(f"s_add_u32 {s(S_T)}, {s(S_T)}, {WS_CSX}")
    e(f"v_lshlrev_b32 v12, 4, {v(V_LANE)}")
    for r in range(8):
        e(f"s_add_u32 {s(S_T+1)}, {s(S_T)}, {r*1280}")
        e(f"buffer_load_dwordx4 {v(64 + 4*r,4)}, v12, {s(S_WS,4)}, {s(S_T+1)} offen sc1")
    e(f"v_cmp_gt_u32 vcc, 16, {v(V_LANE)}"); e(f"s_and_saveexec_b64 {s(S_EXS,2)}, vcc")
    for r in range(8):
        e(f"s_add_u32 {s(S_T+1)}, {s(S_T)}, {r*1280}")
        e(f"buffer_load_dwordx4 {v(96 + 4*r,4)}, v12, {s(S_WS,4)}, {s(S_T+1)} offen offset:1024 sc1")
    e(f"s_mov_b64 exec, {s(S_EXS,2)}")

def cs_check(e, tag, part=None):
    if part in (None, "tags"):
        e("s_mov_b32 s66, 0")
        e("s_mov_b64 s[92:93], -1")
        for r in range(8):
            for k in (1, 3):
                e(f"v_cmp_eq_u32 vcc, {s(S_NONCE)}, {v(64 + 4*r + k)}"); e("s_and_b64 s[92:93], s[92:93], vcc")
        e("s_mov_b64 s[90:91], 0xffff")
        for r in range(8):
            for k in (1, 3):
                e(f"v_cmp_eq_u32 vcc, {s(S_NONCE)}, {v(96 + 4*r + k)}"); e("s_and_b64 s[90:91], s[90:91], vcc")
        e("s_cmp_eq_u64 s[92:93], -1"); e(f"s_cbranch_scc0 L_cct_no_{tag}")
        e("s_cmp_eq_u64 s[90:91], 0xffff"); e(f"s_cbranch_scc0 L_cct_no_{tag}")
        e("s_mov_b32 s66, 1")
        e.label(f"L_cct_no_{tag}")
    if part in (None, "sum"):
        e("s_cmp_eq_u32 s66, 1"); e(f"s_cbranch_scc0 L_cck_no_{tag}")
        for base in (64, 96):
            for r in range(1, 8):
                e(f"v_add_f32 {v(base)}, {v(base)}, {v(base + 4*r)}"); e(f"v_add_f32 {v(base + 2)}, {v(base + 2)}, {v(base + 4*r + 2)}")
            e(f"v_mov_b32 {v(base + 1)}, {v(base + 2)}")
        e(f"v_lshlrev_b32 v11, 3, {v(V_LANE)}"); e(f"v_add_u32 v11, {LDS_CS}, v11")
        e("ds_write_b64 v11, v[64:65]")
        e(f"v_cmp_gt_u32 vcc, 16, {v(V_LANE)}"); e(f"s_and_saveexec_b64 {s(S_EXS,2)}, vcc")
        e("ds_write_b64 v11, v[96:97] offset:512")
        e(f"s_mov_b64 exec, {s(S_EXS,2)}")
        e(f"s_mov_b32 {s(S_OK)}, 1")
        e.label(f"L_cck_no_{tag}")

def cs_fallback(e):
    e(f"v_add_u32 v13, {s(S_ROT)}, {v(V_LANE)}")
    e("v_cmp_le_u32 vcc, 10, v13"); e("v_subrev_u32 v14, 10, v13"); e("s_nop 0"); e("v_cndmask_b32 v13, v13, v14, vcc")
    e("v_lshlrev_b32 v13, 4, v13")
    e(f"v_cmp_gt_u32 vcc, 10, {v(V_LANE)}"); e(f"s_and_saveexec_b64 {s(S_EXS,2)}, vcc")
    for hf in range(2):
        srd = S_B0 if hf == 0 else S_B1; cb = S_CB0 if hf == 0 else S_CB1
        for r in range(8): e(f"v_mov_b32 {v(16 + r)}, 0")
        e(f"s_mov_b32 {s(S_T)}, {s(cb)}"); e(f"s_mov_b32 {s(S_CNT)}, 80")
        e.label(f"L_csfb_{hf}")
        for r in range(8):
            e(f"buffer_load_dwordx4 {v(64 + 4*r,4)}, v13, {s(srd,4)}, {s(S_T)} offen")
            e(f"s_add_u32 {s(S_T)}, {s(S_T)}, {s(S_BSTR)}")
        e("s_waitcnt vmcnt(0)")
        for r in range(8):
            for d in range(4):
                e(f"v_lshlrev_b32 v24, 16, {v(64 + 4*r + d)}"); e(f"v_and_b32 v25, 0xffff0000, {v(64 + 4*r + d)}")
                e(f"v_add_f32 {v(16 + 2*d)}, {v(16 + 2*d)}, v24"); e(f"v_add_f32 {v(17 + 2*d)}, {v(17 + 2*d)}, v25")
        e(f"s_sub_u32 {s(S_CNT)}, {s(S_CNT)}, 1"); e(f"s_cmp_lg_u32 {s(S_CNT)}, 0"); e(f"s_cbranch_scc1 L_csfb_{hf}")
        e(f"v_lshlrev_b32 v11, 5, {v(V_LANE)}"); e(f"v_add_u32 v11, {LDS_CS + hf*320}, v11")
        e("ds_write_b128 v11, v[16:19]"); e("ds_write_b128 v11, v[20:23] offset:16")
    e(f"s_mov_b64 exec, {s(S_EXS,2)}")

def helper1(e, opts):
    touch = OPTS.get("touch", 0)
    if OPTS.get("codepf"):
        e("s_getpc_b64 s[90:91]")
        e.label("L_pc_here")
        e(f"s_sub_u32 s90, s90, L_pc_here-k1_kernel"); e("s_subb_u32 s91, s91, 0")
        e(f"v_lshlrev_b32 v30, 7, {v(V_LANE)}")
        for k in range(OPTS.get("codepf")):
            e(f"global_load_dword v31, v30, s[90:91]")
            e(f"v_add_u32 v30, 8192, v30")
    e("s_load_dwordx2 s[44:45], s[0:1], 48")
    e("s_load_dwordx2 s[48:49], s[0:1], 16")
    if touch:
        e(f"s_and_b32 {s(S_T+1)}, {s(S_RB)}, 3")
        e(f"v_and_b32 v20, 31, {v(V_LANE)}")
        e(f"v_lshlrev_b32 v21, 2, v20"); e(f"v_add_u32 v21, {s(S_T+1)}, v21"); e(f"v_mul_lo_u32 v21, v21, {s(S_BSTR)}")
        e(f"v_lshrrev_b32 v22, 5, {v(V_LANE)}"); e(f"v_lshlrev_b32 v22, 7, v22"); e(f"v_add_u32 v21, v21, v22")
        e(f"s_and_b32 {s(S_T+1)}, {s(S_CG)}, 7"); e(f"s_lshl_b32 {s(S_T+1)}, {s(S_T+1)}, 5")
        e(f"s_lshl_b32 {s(S_T+2)}, {s(S_RB)}, 8"); e(f"s_add_u32 {s(S_T+1)}, {s(S_T+1)}, {s(S_T+2)}")
        e(f"v_add_u32 v20, {s(S_T+1)}, v20"); e(f"v_mul_u32_u24 v20, 1280, v20"); e(f"v_add_u32 v20, v20, v22")
        e(f"s_lshl_b32 s54, {s(S_BSTR)}, 7")
        e(f"s_add_u32 {s(S_CB0)}, {s(S_CB0)}, s54"); e(f"s_add_u32 {s(S_CB1)}, {s(S_CB1)}, s54"); e(f"s_mov_b32 s52, 256")
    def trip():
        if not touch: return
        e(f"buffer_load_dword v24, v21, {s(S_B0,4)}, {s(S_CB0)} offen")
        e(f"buffer_load_dword v25, v21, {s(S_B1,4)}, {s(S_CB1)} offen")
        e(f"buffer_load_dword v26, v20, {s(S_X,4)}, s52 offen")
        e(f"s_add_u32 {s(S_CB0)}, {s(S_CB0)}, s54"); e(f"s_add_u32 {s(S_CB1)}, {s(S_CB1)}, s54"); e("s_add_u32 s52, s52, 256")
    tj = OPTS.get("tj", "s,0,2,4")
    tj = [x for x in str(tj).replace("x", ",").split(",")]
    if OPTS.get("tdelay"): e(f"s_sleep {OPTS.get('tdelay')}")
    for x in tj:
        if x == "s": trip()
    dcs = OPTS.get("dcs", 1)
    if dcs:
        e(f"s_mov_b32 {s(S_NONCE)}, 0"); e(f"s_mov_b32 {s(S_OK)}, 0")
        e("v_mov_b32 v11, 0"); e(f"global_load_dword v61, v11, {s(S_DBG,2)} offset:{DBG_NONCE} sc1")
    if not OPTS.get("norepack"): repack_setup(e)
    e("s_waitcnt lgkmcnt(0)")
    e("s_mov_b32 s46, 1966080"); e("s_mov_b32 s47, 0x20000")
    e("s_mov_b32 s50, 819200"); e("s_mov_b32 s51, 0x20000")
    e(f"s_cmp_eq_u32 {s(S_TYPE)}, 1"); e(f"s_cbranch_scc0 L_nozero")
    e(f"s_cmp_eq_u32 {s(S_RB)}, 0"); e(f"s_cbranch_scc0 L_nozero")
    for r in range(28, 32): e(f"v_mov_b32 {v(r)}, 0")
    e(f"s_mul_i32 {s(S_T)}, {s(S_SUB)}, 6720")
    e(f"s_add_u32 {s(S_T)}, {s(S_T)}, {WS_KV}")
    e(f"s_add_u32 {s(S_T2)}, {s(S_T)}, 4096")
    e(f"v_lshlrev_b32 v11, 4, {v(V_LANE)}")
    for k in range(7):
        if k == 6:
            e(f"v_cmp_gt_u32 vcc, 36, {v(V_LANE)}")
            e(f"s_and_saveexec_b64 {s(S_EXS,2)}, vcc")
        sreg = S_T if k < 4 else S_T2
        e(f"buffer_store_dwordx4 v[28:31], v11, {s(S_WS,4)}, {s(sreg)} offen offset:{(k % 4)*1024} sc1")
        if k == 6:
            e(f"s_mov_b64 exec, {s(S_EXS,2)}")
    e.label("L_nozero")
    for j in range(11):
        hbar(e, j)
        for x in tj:
            if x == str(j): trip()
        if dcs:
            if j == 1:
                e("s_waitcnt vmcnt(0)")
                e(f"v_readfirstlane_b32 {s(S_T)}, v61"); e("s_nop 3")
                e(f"s_cmp_eq_u32 {s(S_T)}, 0"); e("s_cbranch_scc0 L_h1_haven")
                e("v_mov_b32 v11, 0"); e(f"global_load_dword v61, v11, {s(S_DBG,2)} offset:{DBG_NONCE} sc1")
                e.label("L_h1_haven")
            if j in (3, 4): cs_try_publish(e, f"p{j}", repoll=(j < 4))
            if j == OPTS.get("csfetchj", 6): pass
            CJ = OPTS.get("cscheckj", 7)
            if j == CJ:
                e("s_mov_b32 s66, 0")
                e("s_waitcnt vmcnt(0)")
                e(f"s_cmp_eq_u32 {s(S_NONCE)}, 0"); e("s_cbranch_scc1 L_h1_cA")
                if not opts.get("forcefb"): cs_check(e, "a", "tags")
                e("s_cmp_eq_u32 s66, 1"); e("s_cbranch_scc1 L_h1_cA")
                cs_fetch(e)
                e.label("L_h1_cA")
            if j == CJ + 1 and not opts.get("forcefb"): cs_check(e, "a2", "sum")
            if j == 10:
                e(f"s_cmp_eq_u32 {s(S_OK)}, 1"); e("s_cbranch_scc1 L_h1_cB")
                e(f"s_cmp_eq_u32 {s(S_NONCE)}, 0"); e("s_cbranch_scc1 L_h1_cB")
                e("s_waitcnt vmcnt(0)")
                if not opts.get("forcefb"): cs_check(e, "b")
                e.label("L_h1_cB")
        if j == OPTS.get("sigj", 6):
            e(f"s_cmp_eq_u32 {s(S_TYPE)}, 1"); e(f"s_cbranch_scc0 L_h1_nosig")
            e(f"s_cmp_eq_u32 {s(S_RB)}, 0"); e(f"s_cbranch_scc0 L_h1_nosig")
            e("s_waitcnt vmcnt(0)")
            e(f"s_lshl_b32 {s(S_T)}, {s(S_SUB)}, 2")
            e(f"v_mov_b32 v11, {s(S_T)}"); e(f"v_mov_b32 v12, 1")
            lane0(e); e(f"global_store_dword v11, v12, {s(S_DBG,2)} offset:{DBG_FLAG} sc1"); lane0(e, False)
            e.label("L_h1_nosig")
        if dcs and j == OPTS.get("csfetchj", 5): cs_fetch(e)
        if j == OPTS.get("rpj", 9) and not OPTS.get("norepack"): repack_issue(e)
        if j == 9:
            e(f"s_cmp_eq_u32 {s(S_TYPE)}, 1"); e(f"s_cbranch_scc0 L_h1_np")
            e(f"s_lshl_b32 {s(S_T)}, {s(S_SUB)}, 2")
            e(f"v_mov_b32 v11, {s(S_T)}")
            e(f"global_load_dword {v(P_POLL)}, v11, {s(S_DBG,2)} offset:{DBG_FLAG} sc1")
            e.label("L_h1_np")
    if OPTS.get("hstamp"):
        e(f"s_lshl_b32 {s(S_T)}, s2, 3"); e(f"s_add_u32 {s(S_T)}, {s(S_T)}, 4"); e(f"s_lshl_b32 {s(S_T)}, {s(S_T)}, 8")
        e(f"s_add_u32 {s(S_T)}, {s(S_T)}, {WS_STAMP + 0x100000}")
        e(f"v_lshlrev_b32 v14, 2, {v(V_LANE)}")
        e(f"buffer_store_dword v62, v14, {s(S_WS,4)}, {s(S_T)} offen")
    if dcs:
        e(f"s_cmp_eq_u32 {s(S_OK)}, 1"); e("s_cbranch_scc1 L_h1_csdone")
        e(f"s_cmp_eq_u32 {s(S_NONCE)}, 0"); e("s_cbranch_scc1 L_h1_csfb")
        e(f"s_mov_b32 {s(S_CNT)}, {0 if opts.get('forcefb') else 200}")
        e.label("L_h1_csspin")
        e(f"s_cmp_eq_u32 {s(S_CNT)}, 0"); e("s_cbranch_scc1 L_h1_csfb")
        cs_fetch(e)
        e("s_waitcnt vmcnt(0)")
        cs_check(e, "c")
        e(f"s_sub_u32 {s(S_CNT)}, {s(S_CNT)}, 1")
        e(f"s_cmp_eq_u32 {s(S_OK)}, 1"); e("s_cbranch_scc1 L_h1_csdone")
        e("s_sleep 4"); e("s_branch L_h1_csspin")
        e.label("L_h1_csfb")
        cs_fallback(e)
        e.label("L_h1_csdone")
        e("s_waitcnt lgkmcnt(0)")
    e("s_barrier")
    if not OPTS.get("norepack"): repack_finish(e)
    e(f"s_cmp_eq_u32 {s(S_TYPE)}, 1")
    e(f"s_cbranch_scc0 L_h1_end")
    e("s_waitcnt vmcnt(0)")
    e(f"s_lshl_b32 {s(S_T)}, {s(S_SUB)}, 2")
    e(f"v_mov_b32 v11, {s(S_T)}")
    e.label("L_poll_flag")
    e(f"v_readfirstlane_b32 {s(S_T)}, {v(P_POLL)}")
    e("s_nop 3")
    e(f"s_cmp_eq_u32 {s(S_T)}, 0")
    e(f"s_cbranch_scc0 L_kv_final")
    e("s_sleep 2")
    e(f"global_load_dword {v(P_POLL)}, v11, {s(S_DBG,2)} offset:{DBG_FLAG} sc1")
    e("s_waitcnt vmcnt(0)")
    e("s_branch L_poll_flag")
    e.label("L_h1_end")
    endp(e)

def ep_load_swapped(e):
    e(f"s_lshl_b32 {s(S_T)}, {s(S_WAVE)}, 9")
    e(f"v_lshlrev_b32 v11, 3, {v(V_I)}")
    e(f"v_add_u32 v11, {s(S_T)}, v11")
    e(f"v_add_u32 v11, {LDS_STATS}, v11")
    for mt in range(4):
        e(f"ds_read_b64 {v(16 + 2*mt, 2)}, v11 offset:{mt*128}")
    e(f"v_lshlrev_b32 v12, 4, {v(V_G)}")
    e(f"v_add_u32 v12, {LDS_CS}, v12")
    for ct in range(10):
        e(f"ds_read_b128 {v(32 + 4*ct, 4)}, v12 offset:{ct*64}")
    e("s_waitcnt lgkmcnt(0)")

def epilogue_gu(e):
    ep_load_swapped(e)
    for mt in range(4):
        e(f"v_mul_f32 {v(24 + 2*mt)}, {f32(-LOG2E)}, {v(17 + 2*mt)}")
        e(f"v_mul_f32 {v(25 + 2*mt)}, {v(17 + 2*mt)}, {v(17 + 2*mt)}")
    for mt in range(4):
        e(f"v_rcp_f32 {v(25 + 2*mt)}, {v(25 + 2*mt)}")
    e(f"v_lshlrev_b32 v11, 4, {v(V_LANE)}")
    e(f"s_mul_i32 {s(S_T)}, {s(S_WAVE)}, {4*48*1024}")
    e(f"v_add_u32 v11, {s(S_T)}, v11")
    e(f"s_mul_i32 {s(S_T)}, {s(S_RB)}, {16*48*1024}")
    e(f"s_add_u32 {s(S_T)}, {s(S_T)}, {WS_H}")
    e(f"s_mul_i32 {s(S_T+1)}, {s(S_SUB)}, 5")
    e(f"s_add_u32 {s(S_T+2)}, {s(S_T+1)}, 1")
    e(f"s_lshr_b32 {s(S_T+2)}, {s(S_T+2)}, 1")
    e(f"s_lshl_b32 {s(S_T+2)}, {s(S_T+2)}, 10")
    e(f"s_add_u32 {s(S_T2)}, {s(S_T)}, {s(S_T+2)}")
    e(f"s_and_b32 {s(S_T3)}, {s(S_SUB)}, 1")
    e(f"s_cmp_eq_u32 {s(S_T3)}, 0")
    e(f"s_cselect_b32 {s(S_T3)}, 4, -1")
    e(f"s_add_u32 {s(S_T+1)}, {s(S_T+1)}, {s(S_T3)}")
    e(f"s_lshr_b32 {s(S_T+1)}, {s(S_T+1)}, 1")
    e(f"s_lshl_b32 {s(S_T+1)}, {s(S_T+1)}, 10")
    e(f"s_add_u32 {s(S_T3)}, {s(S_T)}, {s(S_T+1)}")
    e(f"s_and_b32 {s(S_T+1)}, {s(S_SUB)}, 1")
    e(f"s_lshl_b32 {s(S_T+1)}, {s(S_T+1)}, 3")
    e(f"s_add_u32 {s(S_T3)}, {s(S_T3)}, {s(S_T+1)}")
    T = 72
    for mt in range(4):
        e.label(f"L_gu_b{mt}")
        MR = 16 + 2*mt; CI = 24 + 2*mt
        items = [(ct, hh) for ct in range(5) for hh in range(2)]
        for (ct, hh) in items:
            G = acc(mt, ct) + 2*hh; U = acc(mt, ct + 5) + 2*hh
            e(f"v_pk_fma_f32 {v(G,2)}, {v(32 + 4*ct + 2*hh,2)}, {v(MR,2)}, {v(G,2)} op_sel_hi:[1,0,1] neg_lo:[0,1,0] neg_hi:[0,1,0]")
            e(f"v_pk_fma_f32 {v(U,2)}, {v(32 + 4*(ct+5) + 2*hh,2)}, {v(MR,2)}, {v(U,2)} op_sel_hi:[1,0,1] neg_lo:[0,1,0] neg_hi:[0,1,0]")
        for k, (ct, hh) in enumerate(items):
            G = acc(mt, ct) + 2*hh
            e(f"v_pk_mul_f32 {v(T + 2*k,2)}, {v(G,2)}, {v(CI,2)} op_sel_hi:[1,0]")
        for k in range(10):
            e(f"v_exp_f32 {v(T + 2*k)}, {v(T + 2*k)}"); e(f"v_exp_f32 {v(T + 2*k + 1)}, {v(T + 2*k + 1)}")
        for k, (ct, hh) in enumerate(items):
            G = acc(mt, ct) + 2*hh; U = acc(mt, ct + 5) + 2*hh
            e(f"v_pk_mul_f32 {v(U,2)}, {v(G,2)}, {v(U,2)}")
        for k in range(10):
            e(f"v_pk_fma_f32 {v(T + 2*k,2)}, {v(T + 2*k,2)}, {v(CI,2)}, {v(CI,2)} op_sel:[0,1,1] op_sel_hi:[1,1,1]")
        for k in range(10):
            e(f"v_rcp_f32 {v(T + 2*k)}, {v(T + 2*k)}"); e(f"v_rcp_f32 {v(T + 2*k + 1)}, {v(T + 2*k + 1)}")
        e("s_nop 0")
        for k, (ct, hh) in enumerate(items):
            U = acc(mt, ct + 5) + 2*hh
            e(f"v_pk_mul_f32 {v(U,2)}, {v(U,2)}, {v(T + 2*k,2)}")
        for pp in range(2):
            O = acc(mt, 2*pp)
            for tt in range(2):
                U = acc(mt, 2*pp + tt + 5)
                e(f"v_cvt_pk_bf16_f32 {v(O + 2*tt)}, {v(U)}, {v(U+1)}")
                e(f"v_cvt_pk_bf16_f32 {v(O + 2*tt + 1)}, {v(U+2)}, {v(U+3)}")
        O = acc(mt, 4); U = acc(mt, 9)
        e(f"v_cvt_pk_bf16_f32 {v(O)}, {v(U)}, {v(U+1)}")
        e(f"v_cvt_pk_bf16_f32 {v(O+1)}, {v(U+2)}, {v(U+3)}")
        e("s_cbranch_execz L_dry_ret")
        if mt > 0:
            e(f"v_add_u32 v11, {48*1024}, v11")
        e(f"s_cmp_eq_u32 {s(S_SUB)}, 19")
        e(f"s_cbranch_scc1 L_gu_skip{mt}")
        e(f"buffer_store_dwordx4 {v(acc(mt,0),4)}, v11, {s(S_WS,4)}, {s(S_T2)} offen{SM()}")
        e(f"buffer_store_dwordx4 {v(acc(mt,2),4)}, v11, {s(S_WS,4)}, {s(S_T2)} offen offset:1024{SM()}")
        e.label(f"L_gu_skip{mt}")
        e(f"buffer_store_dwordx2 {v(acc(mt,4),2)}, v11, {s(S_WS,4)}, {s(S_T3)} offen{SM()}")
        e("s_nop 1")
    stamp(e, 5)
    if STAMP:
        e("s_waitcnt vmcnt(0)"); stamp(e, 6); stamp_flush(e, 7)
    endp(e)

def epilogue_q(e):
    ep_load_swapped(e)
    e(f"v_lshlrev_b32 v11, 4, {v(V_LANE)}")
    e(f"s_mul_i32 {s(S_T)}, {s(S_WAVE)}, {4*20*1024}")
    e(f"v_add_u32 v11, {s(S_T)}, v11")
    e(f"s_mul_i32 {s(S_T)}, {s(S_RB)}, {16*20*1024}")
    e(f"s_mul_i32 {s(S_T+1)}, {s(S_SUB)}, {5*1024}")
    e(f"s_add_u32 {s(S_T2)}, {s(S_T)}, {s(S_T+1)}")
    e(f"s_add_u32 {s(S_T2)}, {s(S_T2)}, {WS_PQ}")
    e(f"s_add_u32 {s(S_T3)}, {s(S_T2)}, 4096")
    T = 72
    for mt in range(4):
        e.label(f"L_q_b{mt}")
        MR = 16 + 2*mt
        for grp in range(2):
            items = [(ct, hh) for ct in range(grp*5, grp*5 + 5) for hh in range(2)]
            for (ct, hh) in items:
                A = acc(mt, ct) + 2*hh
                e(f"v_pk_fma_f32 {v(A,2)}, {v(32 + 4*ct + 2*hh,2)}, {v(MR,2)}, {v(A,2)} op_sel_hi:[1,0,1] neg_lo:[0,1,0] neg_hi:[0,1,0]")
            for (ct, hh) in items:
                A = acc(mt, ct) + 2*hh
                e(f"v_pk_fma_f32 {v(A,2)}, {v(A,2)}, {v(MR,2)}, {s(S_EPS6,2)} op_sel:[0,1,0] op_sel_hi:[1,1,1]")
            for k, (ct, hh) in enumerate(items):
                A = acc(mt, ct) + 2*hh
                e(f"v_pk_mul_f32 {v(T + 2*k,2)}, {v(A,2)}, {s(S_L2E,2)}")
            for k in range(10):
                e(f"v_exp_f32_e64 {v(T + 2*k)}, {v(T + 2*k)} clamp"); e(f"v_exp_f32_e64 {v(T + 2*k + 1)}, {v(T + 2*k + 1)} clamp")
            for (ct, hh) in items:
                A = acc(mt, ct) + 2*hh
                e(f"v_max_f32 {v(A)}, {s(S_EPS6)}, {v(A)}"); e(f"v_max_f32 {v(A+1)}, {s(S_EPS6)}, {v(A+1)}")
            for k, (ct, hh) in enumerate(items):
                A = acc(mt, ct) + 2*hh
                e(f"v_pk_add_f32 {v(A,2)}, {v(A,2)}, {v(T + 2*k,2)}")
        for pp in range(5):
            O = acc(mt, 2*pp); A0 = acc(mt, 2*pp); A1 = acc(mt, 2*pp + 1)
            e(f"v_cvt_pk_bf16_f32 {v(O)}, {v(A0)}, {v(A0+1)}")
            e(f"v_cvt_pk_bf16_f32 {v(O+1)}, {v(A0+2)}, {v(A0+3)}")
            e(f"v_cvt_pk_bf16_f32 {v(O+2)}, {v(A1)}, {v(A1+1)}")
            e(f"v_cvt_pk_bf16_f32 {v(O+3)}, {v(A1+2)}, {v(A1+3)}")
        e("s_cbranch_execz L_dry_ret")
        if mt > 0:
            e(f"v_add_u32 v11, {20*1024}, v11")
        for pp in range(5):
            if pp < 4:
                e(f"buffer_store_dwordx4 {v(acc(mt,2*pp),4)}, v11, {s(S_WS,4)}, {s(S_T2)} offen offset:{pp*1024}{SM()}")
            else:
                e(f"buffer_store_dwordx4 {v(acc(mt,2*pp),4)}, v11, {s(S_WS,4)}, {s(S_T3)} offen{SM()}")
        e("s_nop 1")
    stamp(e, 5)
    if STAMP:
        e("s_waitcnt vmcnt(0)"); stamp(e, 6); stamp_flush(e, 7)
    endp(e)

KV_TILES = [(0,0),(0,1),(1,0),(1,1),(1,2),(2,1),(2,2),(2,3),(3,2),(3,3),(3,4),(4,3),(4,4)]

def epilogue_kv(e):
    MV = 16; RV = 32; CS = 48; T = 60
    e(f"s_lshl_b32 {s(S_T)}, {s(S_WAVE)}, 8")
    e(f"v_lshlrev_b32 v11, 4, {v(V_G)}")
    e(f"v_add_u32 v11, {s(S_T)}, v11")
    e(f"v_add_u32 v11, {LDS_STATS}, v11")
    e(f"v_lshlrev_b32 v12, 2, {v(V_I)}")
    e(f"v_add_u32 v12, {LDS_CS}, v12")
    e(f"ds_read_b128 {v(MV, 4)}, v11"); e(f"ds_read_b128 {v(RV, 4)}, v11 offset:1024")
    for ct in range(10):
        e(f"ds_read_b32 {v(CS + ct)}, v12 offset:{ct*64}")
    e("s_waitcnt lgkmcnt(6)")
    for mt in range(1, 4):
        e(f"ds_read_b128 {v(MV + 4*mt, 4)}, v11 offset:{mt*64}")
        e(f"ds_read_b128 {v(RV + 4*mt, 4)}, v11 offset:{1024 + mt*64}")
    e("s_waitcnt lgkmcnt(6)")
    def cs_mod(ct):
        if ct % 2 == 0: return v(CS + ct, 2), 0, 0
        return v(CS + ct - 1, 2), 1, 1
    DQ = [acc(1, n) for n in range(10)] + [80, 84, 88] + [acc(3, td) for td in range(5)]
    def kv_mfma(n, kk):
        te, td = KV_TILES[n]
        c = "0" if kk == 0 else v(DQ[n], 4)
        return f"v_mfma_f32_16x16x32_bf16 {v(DQ[n],4)}, {v(acc(2*kk, 5 + te),4)}, {v(acc(2*kk, td),4)}, {c}"
    for mt in range(4):
        e.label(f"L_kv_b{mt}")
        if mt == 1: e("s_waitcnt lgkmcnt(0)")
        kk, odd = divmod(mt, 2)
        items = [(ct, hh) for ct in range(5) for hh in range(2)]
        allit = [(ct, hh) for ct in range(10) for hh in range(2)]
        L = []
        for (ct, hh) in allit:
            A = acc(mt, ct) + 2*hh
            c, o, oh = cs_mod(ct)
            L.append(f"v_pk_fma_f32 {v(A,2)}, {v(MV + 4*mt + 2*hh,2)}, {c}, {v(A,2)} op_sel:[0,{o},0] op_sel_hi:[1,{oh},1] neg_lo:[0,1,0] neg_hi:[0,1,0]")
        for (ct, hh) in items:
            A = acc(mt, ct) + 2*hh
            L.append(f"v_pk_fma_f32 {v(A,2)}, {v(A,2)}, {v(RV + 4*mt + 2*hh,2)}, {s(S_EPS6,2)}")
        for (ct, hh) in items:
            A = acc(mt, ct + 5) + 2*hh
            L.append(f"v_pk_mul_f32 {v(A,2)}, {v(A,2)}, {v(RV + 4*mt + 2*hh,2)}")
        for k, (ct, hh) in enumerate(items):
            A = acc(mt, ct) + 2*hh
            L.append(f"v_pk_mul_f32 {v(T + 2*k,2)}, {v(A,2)}, {s(S_L2E,2)}")
        for k in range(10):
            L.append(f"v_exp_f32_e64 {v(T + 2*k)}, {v(T + 2*k)} clamp"); L.append(f"v_exp_f32_e64 {v(T + 2*k + 1)}, {v(T + 2*k + 1)} clamp")
        for (ct, hh) in items:
            A = acc(mt, ct) + 2*hh
            L.append(f"v_max_f32 {v(A)}, {s(S_EPS6)}, {v(A)}"); L.append(f"v_max_f32 {v(A+1)}, {s(S_EPS6)}, {v(A+1)}")
        for k, (ct, hh) in enumerate(items):
            A = acc(mt, ct) + 2*hh
            L.append(f"v_pk_add_f32 {v(A,2)}, {v(A,2)}, {v(T + 2*k,2)}")
        for ct in range(10):
            A = acc(mt, ct); O = acc(2*kk, ct) + 2*odd
            L.append(f"v_cvt_pk_bf16_f32 {v(O)}, {v(A)}, {v(A+1)}")
            L.append(f"v_cvt_pk_bf16_f32 {v(O+1)}, {v(A+2)}, {v(A+3)}")
        if mt == 2 and not OPTS.get("kvnoil"):
            M = [kv_mfma(n, 0) for n in range(13)]
            lo = 50
            out = L[:lo]; rest = L[lo:lo + 40]
            for k, ins in enumerate(rest):
                out.append(ins)
                if k % 3 == 2 and M: out.append(M.pop(0))
            out += M + L[lo + 40:]
            L = out
        for ins in L: e(ins)
        if mt < 3: e("s_cbranch_execz L_dry_ret")
    if OPTS.get("kvstamp"): stamp(e, 1)
    e("s_nop 1")
    if OPTS.get("kvnoil"):
        for n in range(13): e(kv_mfma(n, 0))
    for td in range(5):
        e(f"v_mfma_f32_16x16x32_bf16 {v(DQ[13 + td],4)}, {v(V_ONES,4)}, {v(acc(0, td),4)}, 0")
    for n in range(13): e(kv_mfma(n, 1))
    for td in range(5):
        e(f"v_mfma_f32_16x16x32_bf16 {v(DQ[13 + td],4)}, {v(V_ONES,4)}, {v(acc(2, td),4)}, {v(DQ[13 + td],4)}")
    e(f"s_mul_i32 {s(S_T)}, {s(S_WAVE)}, {18*1024}")
    e(f"v_lshlrev_b32 v11, 4, {v(V_LANE)}")
    e(f"v_add_u32 v11, {s(S_T)}, v11")
    e(f"v_add_u32 v11, {LDS_KVS}, v11")
    e("s_cbranch_execz L_dry_ret")
    e("s_nop 2")
    for nn in range(18):
        if nn == 13: e("s_nop 3")
        e(f"ds_write_b128 v11, {v(DQ[nn],4)} offset:{nn*1024}")
        if nn == 11: e("s_waitcnt lgkmcnt(4)")

def kv_addr(e, dst, tag):
    TE = 0; TD = 0
    for n, (te, td) in enumerate(KV_TILES):
        TE |= te << (4*n); TD |= td << (4*n)
    e(f"s_cmp_ge_u32 {s(S_CNT)}, 13"); e(f"s_cbranch_scc1 L_kva_z{tag}")
    e(f"s_lshl_b32 {s(S_T)}, {s(S_CNT)}, 2")
    e(f"s_mov_b32 s92, {TE & 0xffffffff}"); e(f"s_mov_b32 s93, {TE >> 32}")
    e(f"s_lshr_b64 s[92:93], s[92:93], {s(S_T)}"); e(f"s_and_b32 {s(S_T+1)}, s92, 15")
    e(f"s_mov_b32 s92, {TD & 0xffffffff}"); e(f"s_mov_b32 s93, {TD >> 32}")
    e(f"s_lshr_b64 s[92:93], s[92:93], {s(S_T)}"); e(f"s_and_b32 {s(S_T+2)}, s92, 15")
    e(f"s_lshl_b32 {s(S_T+1)}, {s(S_T+1)}, 2"); e(f"s_lshl_b32 {s(S_T+2)}, {s(S_T+2)}, 4")
    e(f"v_add_u32 v11, {s(S_T+1)}, {v(V_G)}")
    e(f"v_mul_u32_u24 v12, 52, v11"); e(f"v_lshrrev_b32 v12, 8, v12")
    e(f"v_lshlrev_b32 v11, 2, v11"); e(f"v_sub_u32 v11, v11, v12"); e(f"v_mul_u32_u24 v11, 80, v11")
    e(f"v_add_u32 v13, {s(S_T+2)}, {v(V_I)}")
    e(f"v_mul_u32_u24 v14, 205, v13"); e(f"v_lshrrev_b32 v14, 12, v14")
    e(f"v_cmp_eq_u32 vcc, v12, v14")
    e(f"v_lshlrev_b32 v13, 2, v13")
    e(f"v_add_u32 v11, v11, v13")
    e(f"v_mov_b32 v12, 0x7ffffff0")
    e(f"v_cndmask_b32 {v(dst)}, v12, v11, vcc")
    e(f"s_branch L_kva_d{tag}")
    e.label(f"L_kva_z{tag}")
    e(f"s_sub_u32 {s(S_T)}, {s(S_CNT)}, 13"); e(f"s_lshl_b32 {s(S_T)}, {s(S_T)}, 6")
    e(f"v_lshlrev_b32 v11, 2, {v(V_I)}")
    e(f"v_add_u32 v11, {s(S_T)}, v11")
    e(f"v_add_u32 v11, 6400, v11")
    e(f"v_cmp_eq_u32 vcc, 0, {v(V_G)}")
    e(f"v_mov_b32 v12, 0x7ffffff0")
    e("s_nop 0")
    e(f"v_cndmask_b32 {v(dst)}, v12, v11, vcc")
    e.label(f"L_kva_d{tag}")

def kv_final(e):
    if OPTS.get("kvstamp"): stamp(e, 2)
    e.label("L_kv_final")
    e("v_mov_b32 v42, 0x7ffffff0")
    for k in range(3):
        e(f"s_add_u32 {s(S_CNT)}, {s(S_WAVE)}, {8*k}")
        if k == 2:
            e(f"s_cmp_lt_u32 {s(S_CNT)}, 18"); e("s_cbranch_scc0 L_kva_skip")
        kv_addr(e, 40 + k, str(k))
    e.label("L_kva_skip")
    e(f"s_mul_i32 {s(S_T4)}, {s(S_SUB)}, 6720")
    e(f"s_add_u32 {s(S_T4)}, {s(S_T4)}, {WS_KV}")
    e(f"s_lshl_b32 {s(S_T)}, {s(S_WAVE)}, 10")
    e(f"v_lshlrev_b32 v16, 4, {v(V_LANE)}")
    e(f"v_add_u32 v16, {s(S_T)}, v16")
    e(f"v_add_u32 v16, {LDS_KVS}, v16")
    e(f"v_add_u32 v17, {2*18*1024}, v16")
    e("s_waitcnt lgkmcnt(0)")
    e("s_barrier")
    if OPTS.get("kvstamp"): stamp(e, 3)
    def rd(k):
        for w in range(4):
            e(f"ds_read_b128 {v(44 + 16*k + 4*w,4)}, {'v16' if w < 2 else 'v17'} offset:{(w % 2)*18*1024 + k*8192}")
    def summ(k, nreg):
        B = 44 + 16*k
        if nreg == 4:
            for h in range(2):
                e(f"v_add_f32 {v(B+2*h)}, {v(B+2*h)}, {v(B+4+2*h)}"); e(f"v_add_f32 {v(B+2*h+1)}, {v(B+2*h+1)}, {v(B+5+2*h)}")
                e(f"v_add_f32 {v(B+8+2*h)}, {v(B+8+2*h)}, {v(B+12+2*h)}"); e(f"v_add_f32 {v(B+9+2*h)}, {v(B+9+2*h)}, {v(B+13+2*h)}")
            for r in range(4): e(f"v_add_f32 {v(B+r)}, {v(B+r)}, {v(B+8+r)}")
            for r in range(4):
                e(f"buffer_atomic_add_f32 {v(B + r)}, {v(40 + k)}, {s(S_WS,4)}, {s(S_T4)} offen offset:{80*r}")
        else:
            e(f"v_add_f32 {v(B)}, {v(B)}, {v(B+4)}"); e(f"v_add_f32 {v(B+8)}, {v(B+8)}, {v(B+12)}"); e(f"v_add_f32 {v(B)}, {v(B)}, {v(B+8)}")
            e(f"buffer_atomic_add_f32 {v(B)}, {v(40 + k)}, {s(S_WS,4)}, {s(S_T4)} offen")
    rd(0); rd(1)
    e(f"s_cmp_lt_u32 {s(S_WAVE)}, 2"); e("s_cbranch_scc0 L_kvf_no2")
    rd(2)
    e.label("L_kvf_no2")
    e("s_waitcnt lgkmcnt(0)")
    summ(0, 4)
    e(f"s_cmp_lt_u32 {s(S_WAVE)}, 5"); e("s_cbranch_scc0 L_kvf_z1")
    summ(1, 4)
    e("s_branch L_kvf_t2")
    e.label("L_kvf_z1")
    summ(1, 1)
    e.label("L_kvf_t2")
    e(f"s_cmp_lt_u32 {s(S_WAVE)}, 2"); e("s_cbranch_scc0 L_k1_end2")
    summ(2, 1)
    e.label("L_k1_end2")
    if STAMP:
        stamp(e, 5)
        e("s_waitcnt vmcnt(0)"); stamp(e, 6); stamp_flush(e, 7)
    endp(e)
    e.label("L_k1_end")
    e("s_endpgm")

def phase_end(e):
    e.label("L_phase_end")
    e("s_setprio 0")
    e("s_mov_b64 exec, -1")
    e("s_waitcnt vmcnt(0) lgkmcnt(0)")
    e("s_barrier")
    e(f"s_cmp_eq_u32 {s(S_WAVE)}, 6"); e("s_cbranch_scc0 L_pe_noflag")
    e("s_mov_b32 s60, 0x100000")
    e.label("L_pe_nonce")
    e(f"s_cmp_lg_u32 {s(S_NONCE)}, 0"); e("s_cbranch_scc1 L_pe_have")
    e("s_sub_u32 s60, s60, 1"); e("s_cmp_eq_u32 s60, 0"); e("s_cbranch_scc1 L_pe_have")
    poll_nonce(e)
    e("s_waitcnt vmcnt(0)")
    e(f"v_readfirstlane_b32 {s(S_NONCE)}, {v(P_POLL)}")
    e("s_nop 3")
    e("s_branch L_pe_nonce")
    e.label("L_pe_have")
    e(f"s_lshl_b32 s60, s2, 2"); e(f"s_add_u32 s60, s60, {WS_FLAGS}")
    e(f"v_mov_b32 v11, 0"); e(f"v_mov_b32 v12, {s(S_NONCE)}")
    lane0(e)
    e(f"buffer_store_dword v12, v11, {s(S_WS,4)}, s60 offen sc1")
    lane0(e, False)
    e.label("L_pe_noflag")

def gen_k1(e, opts=None):
    opts = opts or {}
    global STAMP
    STAMP = opts.get("stamp", False)
    OPTS.clear(); OPTS.update(opts)
    KN = opts.get("kname", "k1_kernel")
    e.raw(f".globl {KN}"); e.raw(".p2align 8"); e.raw(f".type {KN},@function"); e.label(KN)
    setup_pre(e)
    e(f"s_cmp_lt_u32 {s(S_WAVE)}, 4"); e("s_cbranch_scc1 L_consumers")
    e(f"s_cmp_ge_u32 {s(S_WAVE)}, 6"); e("s_cbranch_scc1 L_helpers")
    dma_wave(e)
    e.label("L_helpers")
    if OPTS.get("hprio", 3): e(f"s_setprio {OPTS.get('hprio', 3)}")
    setup_post(e)
    e(f"s_cmp_eq_u32 {s(S_WAVE)}, 7"); e("s_cbranch_scc1 L_prod3")
    helper0(e, opts)
    e.label("L_prod3"); helper1(e, opts)
    e.label("L_consumers")
    consumer_setup(e)
    e(f"s_mov_b32 {s(S_EPS6)}, {f32(1e-6)}"); e(f"s_mov_b32 {s(S_EPS6+1)}, {f32(1e-6)}")
    e(f"s_mov_b32 {s(S_L2E)}, {f32(LOG2E)}"); e(f"s_mov_b32 {s(S_L2E+1)}, {f32(LOG2E)}")
    setup_post(e)
    e(f"s_setprio {OPTS.get('cprio', 2)}")
    e(f"s_cmp_eq_u32 {s(S_TYPE)}, 1")
    e("s_cbranch_scc1 L_cons_kv")
    dcs = OPTS.get("dcs", 1)
    if OPTS.get("light", 1):
        e(f"s_cmp_eq_u32 {s(S_TYPE)}, 2"); e("s_cbranch_scc0 L_not_light")
        e(f"s_cmp_eq_u32 {s(S_SUB)}, 19"); e("s_cbranch_scc0 L_not_light")
        for w in range(4):
            if w < 3:
                e(f"s_cmp_eq_u32 {s(S_WAVE)}, {w}"); e(f"s_cbranch_scc0 L_lt_n{w}")
            consumer_loop(e, True, f"lt{w}", w, valid=(4, 9), ntag="lt")
            if not dcs: e("s_branch L_sw_done")
            if w < 3: e.label(f"L_lt_n{w}")
        shared_loop(e, True, "lt", valid=(4, 9))
        if dcs: e("s_branch L_sw_done")
        e.label("L_not_light")
    for w in range(4):
        if w < 3:
            e(f"s_cmp_eq_u32 {s(S_WAVE)}, {w}"); e(f"s_cbranch_scc0 L_sw_n{w}")
        consumer_loop(e, True, f"sw{w}", w, ntag="sw")
        if w < 3:
            if not dcs: e("s_branch L_sw_done")
            e.label(f"L_sw_n{w}")
    shared_loop(e, True, "sw")
    e.label("L_sw_done")
    e("s_barrier")
    stamp(e, 4)
    e(f"s_cmp_eq_u32 {s(S_TYPE)}, 0")
    e("s_cbranch_scc1 L_epi_q")
    epilogue_gu(e)
    e.label("L_epi_q")
    epilogue_q(e)
    e.label("L_cons_kv")
    for w in range(4):
        if w < 3:
            e(f"s_cmp_eq_u32 {s(S_WAVE)}, {w}"); e(f"s_cbranch_scc0 L_ns_n{w}")
        consumer_loop(e, False, f"ns{w}", w, ntag="ns")
        if w < 3:
            if not dcs: e("s_branch L_ns_done")
            e.label(f"L_ns_n{w}")
    shared_loop(e, False, "ns")
    e.label("L_ns_done")
    e("s_barrier")
    stamp(e, 4)
    epilogue_kv(e)
    kv_final(e)
```

```python
from asmlib import *
import k1
from k1 import WS_PQ, WS_H, WS_KV, WS_WF, WS_USED, WS_FLAGS

LDS_WAVE = 20480
ZBASE = 13440
LDS_TOTAL = 8 * LDS_WAVE
OPTS = {}
BLOCK = 512
NVGPR = 256

S_X = 8; S_WS = 20; S_OUT = 24
S_RB = 28; S_CB = 29; S_W = 30; S_LB = 31
S_T = 32
S_BO = 40; S_HO = 41; S_WV = 42; S_PQO = 45; S_EPS = 46

V_LANE = 1; V_I = 2; V_G = 3
V_HV = 9
V_T = 12
V_ACC = 176
def acc(mt, ct): return V_ACC + (ct * 4 + mt) * 4
V_HVM = 16
V_W = 20
V_H = 64
NH = 6
def set_nh(n):
    global NH
    NH = n
def bufA(k, mt): return v(V_H + 16*k + 4*mt, 4)
def bufW(k, ct): return v(V_W + 20*k + 4*ct, 4)
V_ZA = 11
V_KVT = 20
V_HE = 128
V_PQ = 128
V_NUM = 176
V_DEN = 216
V_RC = 228
V_TMP = 240
A_PQ0 = 128
V_PQS = 4
V_TB = [128, 148, 20, 40, 60]
V_O = 80

NUM = [(0,0),(1,0),(1,1),(2,0),(2,1),(3,1),(3,2),(4,1),(4,2),(5,2),(5,3),(6,2),(6,3),(7,3),(7,4),(8,3),(8,4),(9,4)]
DEN = [(0,0),(0,1),(0,2),(1,1),(1,2),(1,3),(1,4),(2,3),(2,4)]

def stamp(e, idx):
    if OPTS.get("stamp"):
        e(f"s_memtime {s(70 + 2*idx, 2)}")
        e("s_waitcnt lgkmcnt(0)")

def capture(fn):
    t = Emit(); fn(t)
    chunks = []; cur = []
    for l in t.lines:
        cur.append(l.strip())
        op = l.split()[0]
        if op.startswith("buffer_") or op.startswith("ds_") or op.startswith("global_"):
            chunks.append(cur); cur = []
    if cur:
        if chunks: chunks[-1] += cur
        else: chunks.append(cur)
    return [c for c in chunks if c]

def mfma_step(e, wop, aop, extra=None, first=False, nomfma=False, noextra=False):
    extra = list(extra or []) if not noextra else []
    n = len(extra); xi = 0; idx = 0
    for ct in range(5):
        for mt in ([3, 2, 1, 0] if (OPTS.get("snake2", 1) and ct % 2) else [0, 1, 2, 3]):
            A = acc(mt, ct)
            c = "0" if first else v(A, 4)
            if not nomfma: e(f"v_mfma_f32_16x16x32_bf16 {v(A,4)}, {wop(ct)}, {aop(mt)}, {c}")
            idx += 1
            want = (idx * n + 19) // 20 if n else 0
            while xi < want:
                for ins in extra[xi]: e(ins)
                xi += 1
    assert xi == n

def f_load_b(e, j):
    if OPTS.get("fnob"): return
    for ct in range(5):
        e(f"s_add_u32 m0, {s(S_LB)}, {(j % 4)*5120 + ct*1024}")
        e(f"s_add_u32 {s(S_T)}, {s(S_BO)}, {ct*1024}")
        e(f"buffer_load_dwordx4 {v(V_HV)}, {s(S_WS,4)}, {s(S_T)} offen lds")
    e(f"s_add_u32 {s(S_BO)}, {s(S_BO)}, {8*5120}")

def f_load_h(e, k):
    if OPTS.get("fnoh"): return
    for mt in range(4):
        e(f"buffer_load_dwordx4 {bufA(k, mt)}, {v(V_HVM + mt)}, {s(S_WS,4)}, {s(S_HO)} offen")
    e(f"s_add_u32 {s(S_HO)}, {s(S_HO)}, 1024")

def f_read_w(e, k, j):
    if OPTS.get("fnow"): return
    for ct in range(5):
        e(f"ds_read_b128 {bufW(k, ct)}, {v(V_T+2)} offset:{(j % 4)*5120 + ct*1024}")

def f_wave(e):
    for mt in range(4):
        e(f"v_add_u32 {v(V_HVM + mt)}, {mt*48*1024}, {v(V_HV)}")
    NF = OPTS.get("nf", 11)
    e(f"s_mul_i32 {s(S_BO)}, {s(S_W)}, {NF*8*5120}"); e(f"s_mul_i32 {s(S_T)}, {s(S_CB)}, 5120"); e(f"s_add_u32 {s(S_BO)}, {s(S_BO)}, {s(S_T)}")
    e(f"s_add_u32 {s(S_BO)}, {s(S_BO)}, {WS_WF}")
    e(f"s_mul_i32 {s(S_HO)}, {s(S_RB)}, {4*48*1024}"); e(f"s_mul_i32 {s(S_T)}, {s(S_W)}, {NF*1024}")
    e(f"s_add_u32 {s(S_HO)}, {s(S_HO)}, {s(S_T)}"); e(f"s_add_u32 {s(S_HO)}, {s(S_HO)}, {WS_H}")
    e(f"v_add_u32 {v(V_T+2)}, {s(S_LB)}, {v(V_HV)}")
    post_args(e, "F")
    if OPTS.get("fdelay"): e(f"s_sleep {OPTS.get('fdelay')}")
    q = Queue(e, "vmcnt", 63); lq = Queue(e, "lgkmcnt", 15)
    def qi(tag, n):
        for _ in range(n): q.issue(tag)
    items = [("b",0),("h",0),("b",1),("h",1),("b",2),("h",2),("b",3),("h",3),("h",4),("h",5)] + [("h", k) for k in range(6, NH)]
    npf = OPTS.get("npf", 6)
    for kind, t in items[:npf]:
        if kind == "b": f_load_b(e, t); qi(("b", t), 5)
        else: f_load_h(e, t); qi(("h", t), 4)
    late = items[npf:]
    stamp(e, 1)
    q.wait(("b", 0))
    f_read_w(e, 0, 0)
    for _ in range(5): lq.issue(("w", 0))
    for t in range(NF):
        ch = []; pv = []; pl = []
        if t + 1 < NF: q.wait(("b", t + 1))
        q.wait(("h", t))
        lq.wait(("w", t % 2))
        if t + 1 < NF:
            ch += capture(lambda t_: f_read_w(t_, (t + 1) % 2, t + 1)); pl += [("w", (t + 1) % 2)] * 5
        for _ in range(3):
            if late:
                kind, tt = late.pop(0)
                if kind == "b": ch += capture(lambda t_, tt=tt: f_load_b(t_, tt)); pv += [("b", tt)] * 5
                else: ch += capture(lambda t_, tt=tt: f_load_h(t_, tt)); pv += [("h", tt)] * 4
        if t + 4 < NF:
            ch += capture(lambda t_: f_load_b(t_, t + 4)); pv += [("b", t + 4)] * 5
        if t >= 1 and t - 1 + NH < NF:
            ch += capture(lambda t_: f_load_h(t_, (t - 1) % NH)); pv += [("h", t - 1 + NH)] * 4
        for x in pl: lq.issue(x)
        for x in pv: q.issue(x)
        mfma_step(e, lambda ct: bufW(t % 2, ct), lambda mt: bufA(t % NH, mt), extra=ch, first=(t == 0), nomfma=OPTS.get("fnomfma"))
        if t == 0: stamp(e, 2)
    stamp(e, 5)

def load_pq(e, set_):
    R = V_PQSET[set_]
    for p in range(5):
        if p < 4:
            e(f"buffer_load_dwordx4 {v(R + 4*p,4)}, {v(V_HV)}, {s(S_WS,4)}, {s(S_PQO)} offen offset:{p*1024}")
        else:
            e(f"s_add_u32 {s(S_T)}, {s(S_PQO)}, 4096")
            e(f"buffer_load_dwordx4 {v(R + 4*p,4)}, {v(V_HV)}, {s(S_WS,4)}, {s(S_T)} offen")
    e(f"s_add_u32 {s(S_PQO)}, {s(S_PQO)}, {20*1024}")

def load_kv(e):
    e(f"s_mul_i32 {s(S_T)}, {s(S_W)}, 13440"); e(f"s_add_u32 {s(S_T)}, {s(S_T)}, {WS_KV}")
    for k in range(14):
        if k == 13:
            e(f"v_cmp_gt_u32 vcc, 8, {v(V_LANE)}"); e(f"s_and_saveexec_b64 s[36:37], vcc")
        e(f"s_add_u32 m0, {s(S_LB)}, {k*1024}")
        e(f"s_add_u32 {s(S_T+2)}, {s(S_T)}, {k*1024}")
        e(f"buffer_load_dwordx4 {v(V_HV)}, {s(S_WS,4)}, {s(S_T+2)} offen lds")
        if k == 13: e("s_mov_b64 exec, s[36:37]")

def load_tb(e, j):
    R = V_TB[j]
    for ct in range(5):
        if ct < 4:
            e(f"buffer_load_dwordx4 {v(R + 4*ct,4)}, {v(V_HV)}, {s(S_WS,4)}, {s(S_BO)} offen offset:{ct*1024}")
        else:
            e(f"s_add_u32 {s(S_T)}, {s(S_BO)}, 4096")
            e(f"buffer_load_dwordx4 {v(R + 4*ct,4)}, {v(V_HV)}, {s(S_WS,4)}, {s(S_T)} offen")
    e(f"s_add_u32 {s(S_BO)}, {s(S_BO)}, {8*5120}")

V_PQSET = [176, 196]
V_NUM = 128
V_DEN = 216
V_RC = 228
V_TB = [20, 40, 60, 128, 148]

def precompute(e):
    for r in range(4): e(f"v_mov_b32 {v(V_TMP + r)}, 0")
    e(f"v_add_u32 {v(V_T)}, {s(S_LB)}, {v(V_HV)}")
    e(f"v_cmp_gt_u32 vcc, 44, {v(V_LANE)}"); e(f"s_and_saveexec_b64 s[36:37], vcc")
    e(f"ds_write_b128 {v(V_T)}, {v(V_TMP,4)} offset:{ZBASE}")
    e("s_mov_b64 exec, s[36:37]")
    e(f"v_lshlrev_b32 {v(V_T+3)}, 4, {v(V_G)}")
    for t in range(10):
        e(f"v_add_u32 {v(V_T)}, {16*t}, {v(V_I)}")
        e(f"v_mul_u32_u24 {v(V_HE + t)}, 205, {v(V_T)}"); e(f"v_lshrrev_b32 {v(V_HE + t)}, 12, {v(V_HE + t)}")
        e(f"v_sub_u32 {v(V_T)}, {v(V_T)}, {v(V_HE + t)}"); e(f"v_mul_u32_u24 {v(V_T)}, 80, {v(V_T)}")
        e(f"v_lshrrev_b32 {v(V_T+1)}, 2, {v(V_HE + t)}"); e(f"v_mul_u32_u24 {v(V_T+1)}, 320, {v(V_T+1)}")
        e(f"v_add3_u32 {v(V_T)}, {v(V_T)}, {v(V_T+1)}, {v(V_T+3)}")
        e(f"v_add_u32 {v(V_HE + 10 + t)}, {s(S_LB)}, {v(V_T)}")
    for wh in range(10):
        e(f"v_add_u32 {v(V_T)}, {4*wh}, {v(V_G)}")
        e(f"v_mul_u32_u24 {v(V_HE + 20 + wh)}, 52, {v(V_T)}"); e(f"v_lshrrev_b32 {v(V_HE + 20 + wh)}, 8, {v(V_HE + 20 + wh)}")
        e(f"v_lshrrev_b32 {v(V_T+1)}, 2, {v(V_HE + 20 + wh)}"); e(f"v_mul_u32_u24 {v(V_T+1)}, 6400, {v(V_T+1)}")
        e(f"v_add3_u32 {v(V_T+1)}, {v(V_T+1)}, {v(V_T+3)}, {s(S_LB)}")
        e(f"v_add_u32 {v(V_HE + 30 + wh)}, 6400, {v(V_T+1)}")
    for u in range(3):
        e(f"v_and_b32 {v(V_T)}, 3, {v(V_I)}"); e(f"v_lshlrev_b32 {v(V_T)}, 2, {v(V_T)}")
        e(f"v_lshrrev_b32 {v(V_T+1)}, 2, {v(V_I)}")
        e(f"v_add3_u32 {v(V_T)}, {v(V_T)}, {v(V_T+1)}, {16*u}")
        e(f"v_mul_u32_u24 {v(V_HE + 40 + u)}, 52, {v(V_T)}"); e(f"v_lshrrev_b32 {v(V_HE + 40 + u)}, 8, {v(V_HE + 40 + u)}")
    e(f"s_add_u32 {s(S_T)}, {s(S_LB)}, {ZBASE}")
    e(f"v_mov_b32 {v(V_ZA)}, {s(S_T)}")

def build_frags(e):
    lq = Queue(e, "lgkmcnt", 15)
    frs = [("n", t, w) for (t, w) in NUM] + [("d", u, w) for (u, w) in DEN]
    halves = []
    for fi, (kind, t, w) in enumerate(frs):
        for hf in range(2):
            wh = 2*w + hf
            hsrc = V_HE + t if kind == "n" else V_HE + 40 + t
            asrc = V_HE + 10 + t if kind == "n" else V_HE + 30 + wh
            halves.append((fi, hf, wh, hsrc, asrc))
    M = [48, 50, 52, 54]
    def cmp(hi):
        fi, hf, wh, hsrc, asrc = halves[hi]
        e(f"v_cmp_eq_u32 {s(M[hi % 4],2)}, {v(hsrc)}, {v(V_HE + 20 + wh)}")
    def rd(hi):
        fi, hf, wh, hsrc, asrc = halves[hi]
        tb = V_TMP + (fi % 2) * 8
        ad = V_T + (hi % 2)
        e(f"v_cndmask_b32 {v(ad)}, {v(V_ZA)}, {v(asrc)}, {s(M[hi % 4],2)}")
        e(f"ds_read_b128 {v(tb + 4*hf, 4)}, {v(ad)} offset:{64*wh}")
        lq.issue(("f", fi))
    def fin(fi):
        lq.wait(("f", fi))
        tb = V_TMP + (fi % 2) * 8
        R = V_KVT + 4*fi
        for k in range(4):
            e(f"v_cvt_pk_bf16_f32 {v(R + k)}, {v(tb + 2*k)}, {v(tb + 2*k + 1)}")
    n = len(halves)
    cmp(0); cmp(1); cmp(2)
    for hi in range(n):
        if hi + 3 < n: cmp(hi + 3)
        else: e("s_nop 0")
        rd(hi)
        fi, hf = halves[hi][0], halves[hi][1]
        if hf == 1 and fi >= 1: fin(fi - 1)
    fin(len(frs) - 1)

def o_block(e, b):
    PQ = V_PQSET[b % 2]
    den = {}
    for n_, (u, w) in enumerate(DEN): den.setdefault(u, []).append((18 + n_, w))
    num = {}
    for fi, (t, w) in enumerate(NUM): num.setdefault(t, []).append((fi, w))
    seq = []
    def D(u, k): fi, w = den[u][k]; return (V_DEN + 4*u, fi, w, k == 0)
    def N(t, k): fi, w = num[t][k]; return (V_NUM + 4*t, fi, w, k == 0)
    seq += [D(0,0), D(1,0), D(2,0), N(0,0), N(1,0), N(2,0), N(3,0)]
    seq += [D(0,1), D(1,1), D(2,1), N(4,0), N(5,0), N(6,0), N(7,0)]
    seq += [D(0,2), D(1,2), N(8,0), N(9,0), N(1,1), N(2,1), N(3,1)]
    seq += [D(1,3), N(4,1), N(5,1), N(6,1), N(7,1), N(8,1)]
    assert len(seq) == 27
    if OPTS.get("zeroc"):
        for r in list(range(V_NUM, V_NUM + 40)) + list(range(V_DEN, V_DEN + 12)): e(f"v_mov_b32 {v(r)}, 0")
        e("s_nop 1")
    for (dst, fi, w, first) in seq:
        c = "0" if (first and not OPTS.get("zeroc")) else v(dst, 4)
        e(f"v_mfma_f32_16x16x32_bf16 {v(dst,4)}, {v(V_KVT + 4*fi,4)}, {v(PQ + 4*w,4)}, {c}")
    if b < 2 and OPTS.get("pqearly", 1): pass
def o_rc(e):
    for t2 in range(10): e(f"v_add_f32 {v(V_RC + t2)}, {s(S_EPS)}, {v(V_DEN + 4*(t2 >> 2) + (t2 & 3))}")
    for t2 in range(10): e(f"v_rcp_f32 {v(V_RC + t2)}, {v(V_RC + t2)}")

def o_finish(e, b):
    n1 = OPTS.get("nop_pm", 0); n2 = OPTS.get("nop_dw", 0)
    for p in range(5):
        for t in (2*p, 2*p + 1):
            N = V_NUM + 4*t
            r = V_RC + t
            if r % 2 == 0: pr, o, oh = v(r,2), 0, 0
            else: pr, o, oh = v(r-1,2), 1, 1
            if OPTS.get("nopk", 1):
                for k in range(4): e(f"v_mul_f32 {v(N+k)}, {v(N+k)}, {v(r)}")
            else:
                e(f"v_pk_mul_f32 {v(N,2)}, {v(N,2)}, {pr} op_sel:[0,{o}] op_sel_hi:[1,{oh}]")
                e(f"v_pk_mul_f32 {v(N+2,2)}, {v(N+2,2)}, {pr} op_sel:[0,{o}] op_sel_hi:[1,{oh}]")
        if n1: e(f"s_nop {n1}")
        O = V_NUM + 8*p
        e(f"v_cvt_pk_bf16_f32 {v(O)}, {v(O)}, {v(O+1)}")
        e(f"v_cvt_pk_bf16_f32 {v(O+1)}, {v(O+2)}, {v(O+3)}")
        e(f"v_cvt_pk_bf16_f32 {v(O+2)}, {v(O+4)}, {v(O+5)}")
        e(f"v_cvt_pk_bf16_f32 {v(O+3)}, {v(O+6)}, {v(O+7)}")
        if n2: e(f"s_nop {n2}")
        e(f"ds_write_b128 {v(V_T+2)}, {v(O,4)} offset:{(b*5 + p)*1024}")

def a_wave(e):
    e(f"s_mul_i32 {s(S_PQO)}, {s(S_RB)}, {4*20*1024}"); e(f"s_mul_i32 {s(S_T)}, {s(S_W)}, {5*1024}")
    e(f"s_add_u32 {s(S_PQO)}, {s(S_PQO)}, {s(S_T)}"); e(f"s_add_u32 {s(S_PQO)}, {s(S_PQO)}, {WS_PQ}")
    e(f"s_mul_i32 {s(S_BO)}, {s(S_W)}, {5*8*5120}"); e(f"s_mul_i32 {s(S_T)}, {s(S_CB)}, 5120"); e(f"s_add_u32 {s(S_BO)}, {s(S_BO)}, {s(S_T)}")
    e(f"s_add_u32 {s(S_BO)}, {s(S_BO)}, {WS_WF + 48*8*5120}")
    if OPTS.get("fused"): precompute(e)
    post_args(e, "A")
    q = Queue(e, "vmcnt", 63); lq = Queue(e, "lgkmcnt", 15)
    def qi(tag, n):
        for _ in range(n): q.issue(tag)
    load_kv(e); qi("kv", 14)
    load_pq(e, 0); qi(("pq", 0), 5)
    load_pq(e, 1); qi(("pq", 1), 5)
    stamp(e, 1)
    if not OPTS.get("fused"): precompute(e)
    if OPTS.get("kvall", 1): q.drain()
    else: q.wait("kv")
    stamp(e, 2)
    e("s_waitcnt lgkmcnt(0)")
    build_frags(e)
    stamp(e, 3)
    e(f"s_mov_b32 {s(S_EPS)}, {f32(1e-6)}")
    e(f"v_add_u32 {v(V_T+2)}, {s(S_LB)}, {v(V_HV)}")
    for b in range(4):
        q.wait(("pq", b))
        o_block(e, b)
        if OPTS.get("drainA"):
            e("s_nop 7"); e(f"v_mov_b32 v5, {v(V_NUM + 4*8)}"); e(f"v_mov_b32 v5, {v(V_NUM + 4*7)}")
        if b < 2:
            load_pq(e, b % 2); qi(("pq", b + 2), 5)
        if b == 3:
            for j in range(3):
                load_tb(e, j); qi(("tb", j), 5)
        e("s_nop 7")
        if OPTS.get("longnop"):
            for _ in range(OPTS.get("longnop")): e("s_nop 15")
        o_rc(e)
        e("s_nop 1")
        o_finish(e, b)
    stamp(e, 4)
    e("s_nop 1")
    if OPTS.get("fixa"): e("s_waitcnt lgkmcnt(0)")
    for j in range(3, 5):
        load_tb(e, j); qi(("tb", j), 5)
    def read_o(t):
        return [f"ds_read_b128 {v(V_O + (t % 2)*16 + 4*mt,4)}, {v(V_T+2)} offset:{(mt*5 + t)*1024}" for mt in range(4)]
    for ins in read_o(0): e(ins)
    for _ in range(4): lq.issue(("o", 0))
    NF = OPTS.get("nf", 11); NX = 12 - NF
    XH = [112, 96, 80, 112, 96]
    def xb(t_, k):
        if k == 0:
            t_(f"s_mul_i32 {s(S_BO)}, {s(S_W)}, {NX*8*5120}"); t_(f"s_mul_i32 {s(S_T)}, {s(S_CB)}, 5120"); t_(f"s_add_u32 {s(S_BO)}, {s(S_BO)}, {s(S_T)}")
            t_(f"s_add_u32 {s(S_BO)}, {s(S_BO)}, {WS_WF + 4*NF*8*5120}")
        R = V_TB[k]
        for ct in range(5):
            if ct < 4: t_(f"buffer_load_dwordx4 {v(R + 4*ct,4)}, {v(V_HV)}, {s(S_WS,4)}, {s(S_BO)} offen offset:{ct*1024}")
            else:
                t_(f"s_add_u32 {s(S_T)}, {s(S_BO)}, 4096")
                t_(f"buffer_load_dwordx4 {v(R + 4*ct,4)}, {v(V_HV)}, {s(S_WS,4)}, {s(S_T)} offen")
        t_(f"s_add_u32 {s(S_BO)}, {s(S_BO)}, {8*5120}")
    def xh(t_, k):
        if k == 0:
            t_(f"s_mul_i32 {s(S_HO)}, {s(S_RB)}, {4*48*1024}"); t_(f"s_mul_i32 {s(S_T)}, {s(S_W)}, {NX*1024}")
            t_(f"s_add_u32 {s(S_HO)}, {s(S_HO)}, {s(S_T)}"); t_(f"s_add_u32 {s(S_HO)}, {s(S_HO)}, {WS_H + 4*NF*1024}")
        for mt in range(4):
            t_(f"s_add_u32 {s(S_T)}, {s(S_HO)}, {mt*48*1024}")
            t_(f"buffer_load_dwordx4 {v(XH[k] + 4*mt,4)}, {v(V_HV)}, {s(S_WS,4)}, {s(S_T)} offen")
        t_(f"s_add_u32 {s(S_HO)}, {s(S_HO)}, 1024")
    for t in range(5 + NX):
        ch = []
        if t < 5:
            q.wait(("tb", t)); lq.wait(("o", t))
            if t + 1 < 5:
                ch += [[ins] for ins in read_o(t + 1)]
                for _ in range(4): lq.issue(("o", t + 1))
        else:
            q.wait(("xb", t - 5), ("xh", t - 5))
        pend = []
        k = t - 1
        if 0 <= k < NX:
            ch += capture(lambda t_: xb(t_, k)); pend += [("xb", k)] * 5
        if t == 1 and NX >= 1: ch += capture(lambda t_: xh(t_, 0)); pend += [("xh", 0)] * 4
        if t == 4 and NX >= 2: ch += capture(lambda t_: xh(t_, 1)); pend += [("xh", 1)] * 4
        if t == 5 and NX >= 3: ch += capture(lambda t_: xh(t_, 2)); pend += [("xh", 2)] * 4
        if t == 6 and NX >= 4: ch += capture(lambda t_: xh(t_, 3)); pend += [("xh", 3)] * 4
        if t == 7 and NX >= 5: ch += capture(lambda t_: xh(t_, 4)); pend += [("xh", 4)] * 4
        for x in pend: q.issue(x)
        if t < 5:
            mfma_step(e, lambda ct: v(V_TB[t] + 4*ct, 4), lambda mt: v(V_O + (t % 2)*16 + 4*mt, 4), extra=ch, first=(t == 0))
        else:
            mfma_step(e, lambda ct: v(V_TB[t - 5] + 4*ct, 4), lambda mt: v(XH[t - 5] + 4*mt, 4), extra=ch)
    stamp(e, 5)

def post_args(e, tag=""):
    e("s_waitcnt lgkmcnt(0)")
    if OPTS.get("fused"):
        e(f"s_mov_b32 {s(S_OUT)}, s50"); e(f"s_mov_b32 {s(S_OUT+1)}, s51")
        if tag == "F":
            e(f"s_cmp_eq_u32 {s(S_WV)}, 6"); e("s_cbranch_scc0 L_gb_done")
            e(f"s_mov_b32 s60, {WS_FLAGS}"); e("s_mov_b32 s62, 0x40000")
            e.label("L_gb_poll")
            e(f"buffer_load_dwordx4 v[20:23], {v(V_HV)}, {s(S_WS,4)}, s60 offen sc1")
            e("s_waitcnt vmcnt(0)")
            e("v_cmp_eq_u32 vcc, s68, v20"); e("s_mov_b64 s[64:65], vcc")
            for k in range(1, 4):
                e(f"v_cmp_eq_u32 vcc, s68, v{20+k}"); e("s_and_b64 s[64:65], s[64:65], vcc")
            e("s_cmp_eq_u64 s[64:65], -1"); e("s_cbranch_scc1 L_gb_done")
            e("s_sub_u32 s62, s62, 1"); e("s_cmp_eq_u32 s62, 0"); e("s_cbranch_scc1 L_gb_done")
            e(f"s_sleep {OPTS.get('gbsleep', 8)}")
            e("s_branch L_gb_poll")
            e.label("L_gb_done")
        e("s_barrier")
        if OPTS.get("stamp"): e(f"s_memtime {s(70,2)}"); e("s_memrealtime s[86:87]"); e("s_waitcnt lgkmcnt(0)")
        return
    e(f"s_mov_b32 {s(S_WS)}, s52"); e(f"s_mov_b32 {s(S_WS+1)}, s53")
    e(f"s_mov_b32 {s(S_X)}, s4"); e(f"s_mov_b32 {s(S_X+1)}, s5")
    e(f"s_mov_b32 {s(S_OUT)}, s50"); e(f"s_mov_b32 {s(S_OUT+1)}, s51")

def gen_k2(e, opts=None):
    opts = opts or {}
    OPTS.clear(); OPTS.update(opts)
    set_nh(opts.get("nh", 6))
    if not opts.get("fused"):
        e.raw(".globl k2_kernel"); e.raw(".p2align 8"); e.raw(".type k2_kernel,@function"); e.label("k2_kernel")
        e("s_cmp_ge_u32 s2, 256")
        e("s_cbranch_scc1 L_k2_end")
        e("s_load_dwordx2 s[4:5], s[0:1], 0")
        e("s_load_dwordx2 s[50:51], s[0:1], 56")
        e("s_load_dwordx2 s[52:53], s[0:1], 72")
        if opts.get("stamp"): e(f"s_memtime {s(70,2)}"); e("s_memrealtime s[86:87]")
    else:
        e("s_load_dwordx2 s[50:51], s[0:1], 56")
    e("v_lshrrev_b32 v4, 6, v0")
    e(f"v_and_b32 {v(V_LANE)}, 63, v0")
    e(f"v_readfirstlane_b32 {s(S_WV)}, v4")
    e(f"v_and_b32 {v(V_I)}, 15, {v(V_LANE)}")
    e(f"v_lshrrev_b32 {v(V_G)}, 4, {v(V_LANE)}")
    e(f"s_and_b32 {s(S_T)}, s2, 7"); e(f"s_lshr_b32 {s(S_T+1)}, s2, 3")
    e(f"s_lshr_b32 {s(S_RB)}, {s(S_T)}, 1"); e(f"s_lshl_b32 {s(S_RB)}, {s(S_RB)}, 3")
    e(f"s_and_b32 {s(S_T+2)}, {s(S_T+1)}, 7"); e(f"s_add_u32 {s(S_RB)}, {s(S_RB)}, {s(S_T+2)}")
    e(f"s_and_b32 {s(S_CB)}, {s(S_T)}, 1"); e(f"s_lshl_b32 {s(S_CB)}, {s(S_CB)}, 2")
    e(f"s_lshr_b32 {s(S_T+2)}, {s(S_T+1)}, 3"); e(f"s_add_u32 {s(S_CB)}, {s(S_CB)}, {s(S_T+2)}")
    e(f"s_and_b32 {s(S_W)}, {s(S_WV)}, 3")
    e(f"s_mul_i32 {s(S_LB)}, {s(S_WV)}, {LDS_WAVE}")
    e(f"v_lshlrev_b32 {v(V_HV)}, 4, {v(V_LANE)}")
    e(f"s_mov_b32 {s(S_WS+2)}, {WS_USED if not opts.get('stamp') else 0x2000000}"); e(f"s_mov_b32 {s(S_WS+3)}, 0x20000")
    e(f"s_mov_b32 {s(S_X+2)}, 2621440"); e(f"s_mov_b32 {s(S_X+3)}, 0x20000")
    e(f"s_mov_b32 {s(S_OUT+2)}, 2621440"); e(f"s_mov_b32 {s(S_OUT+3)}, 0x20000")
    aw = OPTS.get("awfirst", 1)
    e(f"s_cmp_lt_u32 {s(S_WV)}, 4"); e(f"s_cbranch_scc{0 if aw else 1} L_k2_F")
    if OPTS.get("aprio"): e(f"s_setprio {OPTS.get('aprio')}")
    if OPTS.get("noA"):
        post_args(e)
        for r in range(80): e(f"v_mov_b32 {v(V_ACC + r)}, 0")
    else: a_wave(e)
    e("s_branch L_k2_R")
    e.label("L_k2_F")
    if OPTS.get("fprio"): e(f"s_setprio {OPTS.get('fprio')}")
    if OPTS.get("ftest"):
        post_args(e)
        e(f"v_add_u32 {v(V_T+2)}, {s(S_LB)}, {v(V_HV)}")
        e("s_mov_b32 s60, 40")
        e.label("L_ft")
        k = OPTS.get("ftest")
        for i in range(20):
            if k == 1: e(f"v_mfma_f32_16x16x32_bf16 {v(V_ACC + 4*i,4)}, {v(20,4)}, {v(64,4)}, {v(V_ACC + 4*i,4)}")
            if k == 2: e(f"ds_read_b128 {v(20 + 4*(i % 8),4)}, {v(V_T+2)} offset:{(i % 16)*1024}"); e("s_nop 3")
            if k == 3: e(f"v_pk_mul_f32 {v(20 + 2*i,2)}, {v(64,2)}, {v(66,2)}"); e(f"v_fma_f32 {v(100 + i)}, v64, v65, v66"); e("s_nop 1")
        if k == 2: e("s_waitcnt lgkmcnt(0)")
        e("s_sub_u32 s60, s60, 1"); e("s_cmp_lg_u32 s60, 0"); e("s_cbranch_scc1 L_ft")
        for r in range(80): e(f"v_mov_b32 {v(V_ACC + r)}, 0")
    elif OPTS.get("noF"):
        post_args(e)
        for r in range(80): e(f"v_mov_b32 {v(V_ACC + r)}, 0")
    else: f_wave(e)
    e.label("L_k2_R")
    e(f"s_lshl_b32 {s(S_T)}, {s(S_RB)}, 6"); e(f"s_lshl_b32 {s(S_T+1)}, {s(S_W)}, 4"); e(f"s_add_u32 {s(S_T)}, {s(S_T)}, {s(S_T+1)}")
    e(f"v_add_u32 v10, {s(S_T)}, {v(V_I)}"); e(f"v_mul_u32_u24 v10, 1280, v10")
    e(f"v_lshlrev_b32 v4, 3, {v(V_G)}"); e(f"v_add_u32 v10, v10, v4")
    e(f"s_lshr_b32 {s(S_T+3)}, {s(S_WV)}, 2")
    e(f"s_mul_i32 {s(S_T+2)}, {s(S_CB)}, 160"); e(f"s_mul_i32 {s(S_T+4)}, {s(S_T+3)}, 96"); e(f"s_add_u32 {s(S_T+2)}, {s(S_T+2)}, {s(S_T+4)}")
    for k in range(3):
        e(f"buffer_load_dwordx2 {v(150 + 2*k,2)}, v10, {s(S_X,4)}, {s(S_T+2)} offen offset:{k*32}")
    e("s_waitcnt lgkmcnt(0)")
    e(f"v_add_u32 {v(V_T)}, {s(S_LB)}, {v(V_HV)}")
    e("s_nop 4")
    for mt in range(4):
        for ct in range(5):
            e(f"ds_write_b128 {v(V_T)}, {v(acc(mt,ct),4)} offset:{(mt*5 + ct)*1024}")
        if mt == 1: e("s_waitcnt lgkmcnt(4)")
    e(f"s_mul_i32 {s(S_T)}, {s(S_W)}, 5120"); e(f"s_mul_i32 {s(S_T+4)}, {s(S_T+3)}, 3072"); e(f"s_add_u32 {s(S_T)}, {s(S_T)}, {s(S_T+4)}")
    e(f"v_add_u32 v4, {s(S_T)}, {v(V_HV)}")
    e(f"v_add_u32 v5, {3*LDS_WAVE}, v4"); e(f"v_add_u32 v6, {6*LDS_WAVE}, v4")
    e("s_waitcnt lgkmcnt(0)")
    stamp(e, 6)
    e("s_barrier")
    if OPTS.get("fstamp"): stamp(e, 1)
    def rd(k):
        for ww in range(8):
            ad = 4 + ww // 3
            e(f"ds_read_b128 {v(20 + k*32 + ww*4,4)}, {v(ad)} offset:{(ww % 3)*LDS_WAVE + k*1024}")
    def fin(k):
        B = 20 + k*32
        if OPTS.get("sumA") or OPTS.get("sumF"):
            zs = range(4, 8) if OPTS.get("sumA") else range(0, 4)
            for ww in zs:
                for r in range(4): e(f"v_mov_b32 {v(B + ww*4 + r)}, 0")
        for h in range(2):
            for a_ in range(4):
                e(f"v_pk_add_f32 {v(B+8*a_+2*h,2)}, {v(B+8*a_+2*h,2)}, {v(B+8*a_+4+2*h,2)}")
        X = 150 + 2*k
        e(f"v_lshlrev_b32 {v(B+4)}, 16, {v(X)}"); e(f"v_and_b32 {v(B+5)}, 0xffff0000, {v(X)}")
        e(f"v_lshlrev_b32 {v(B+6)}, 16, {v(X+1)}"); e(f"v_and_b32 {v(B+7)}, 0xffff0000, {v(X+1)}")
        for h in range(2):
            e(f"v_pk_add_f32 {v(B+2*h,2)}, {v(B+2*h,2)}, {v(B+8+2*h,2)}")
            e(f"v_pk_add_f32 {v(B+16+2*h,2)}, {v(B+16+2*h,2)}, {v(B+24+2*h,2)}")
        for h in range(2):
            e(f"v_pk_add_f32 {v(B+16+2*h,2)}, {v(B+16+2*h,2)}, {v(B+4+2*h,2)}")
        for h in range(2):
            e(f"v_pk_add_f32 {v(B+2*h,2)}, {v(B+2*h,2)}, {v(B+16+2*h,2)}")
        e(f"v_cvt_pk_bf16_f32 {v(B)}, {v(B)}, {v(B+1)}")
        e(f"v_cvt_pk_bf16_f32 {v(B+1)}, {v(B+2)}, {v(B+3)}")
        e(f"buffer_store_dwordx2 {v(B,2)}, v10, {s(S_OUT,4)}, {s(S_T+2)} offen offset:{k*32}" + ((" " + OPTS.get("omod").replace("_", " ")) if OPTS.get("omod") else ""))
    rd(0)
    e("s_waitcnt lgkmcnt(2)")
    rd(1)
    e("s_waitcnt vmcnt(0) lgkmcnt(8)")
    if OPTS.get("fstamp"): stamp(e, 2)
    e(f"s_cmp_eq_u32 {s(S_T+3)}, 0"); e("s_cbranch_scc0 L_k2_h1")
    fin(0)
    if OPTS.get("fstamp"): stamp(e, 3)
    e("s_waitcnt lgkmcnt(2)")
    rd(2)
    e("s_waitcnt lgkmcnt(8)")
    fin(1)
    e("s_waitcnt lgkmcnt(0)")
    fin(2)
    e("s_branch L_k2_fin")
    e.label("L_k2_h1")
    fin(0)
    e("s_waitcnt lgkmcnt(0)")
    fin(1)
    e.label("L_k2_fin")
    if opts.get("stamp"):
        stamp(e, 7)
        e(f"s_lshl_b32 {s(S_T)}, s2, 3"); e(f"s_add_u32 {s(S_T)}, {s(S_T)}, {s(S_WV)}"); e(f"s_lshl_b32 {s(S_T)}, {s(S_T)}, 6")
        e(f"s_add_u32 {s(S_T)}, {s(S_T)}, {0x1200000}")
        e(f"v_mov_b32 v14, 0")
        e("s_memrealtime s[88:89]"); e("s_waitcnt lgkmcnt(0)")
        for k in range(8):
            e(f"v_mov_b32 v15, {s(70 + 2*k)}")
            e(f"buffer_store_dword v15, v14, {s(S_WS,4)}, {s(S_T)} offen offset:{4*k}")
            e("s_nop 1")
        e(f"v_mov_b32 v15, s86"); e(f"buffer_store_dword v15, v14, {s(S_WS,4)}, {s(S_T)} offen offset:{4*8}"); e("s_nop 1")
        e(f"v_mov_b32 v15, s88"); e(f"buffer_store_dword v15, v14, {s(S_WS,4)}, {s(S_T)} offen offset:{4*9}"); e("s_nop 1")
    if opts.get("probe"):
        pr = opts.get("probe")
        e("s_cmp_eq_u32 s2, 0"); e("s_cbranch_scc0 L_k2_end")
        e(f"s_cmp_eq_u32 {s(S_WV)}, 0"); e("s_cbranch_scc0 L_k2_end")
        e("s_waitcnt vmcnt(0)")
        e(f"v_lshlrev_b32 v20, 11, {v(V_LANE)}")
        e(f"s_mov_b32 s60, {0x1000000}")
        for k in range(4):
            e(f"buffer_load_dwordx2 v[{22+2*k}:{23+2*k}], v20, {s(S_WS,4)}, s60 offen offset:{32 + 512*k}")
        e("s_waitcnt vmcnt(0)")
        e("v_min_u32 v22, v22, v24"); e("v_min_u32 v26, v26, v28"); e("v_min_u32 v22, v22, v26")
        e("v_max_u32 v23, v23, v25"); e("v_max_u32 v27, v27, v29"); e("v_max_u32 v23, v23, v27")
        e("s_mov_b32 s61, -1"); e("s_mov_b32 s62, 0")
        for ln in range(64):
            e(f"v_readlane_b32 s63, v22, {ln}"); e(f"v_readlane_b32 s64, v23, {ln}"); e("s_nop 0")
            e("s_min_u32 s61, s61, s63"); e("s_max_u32 s62, s62, s64")
        e("s_memrealtime s[66:67]"); e("s_waitcnt lgkmcnt(0)")
        if pr == 1: e("s_sub_u32 s65, s62, s61")
        if pr == 2: e("s_sub_u32 s65, s86, s62")
        if pr == 3: e("s_sub_u32 s65, s66, s86")
        if pr == 4: e("s_mov_b32 s65, 0")
        e("s_add_u32 s65, s65, s66")
        e.label("L_probe_spin")
        e("s_memrealtime s[68:69]"); e("s_waitcnt lgkmcnt(0)")
        e("s_cmp_lt_u32 s68, s65"); e("s_cbranch_scc1 L_probe_spin")
    e.label("L_k2_end")
    e("s_endpgm")
```

```python
from asmlib import *
import math

NST = 10
NSLOT = 3
A_BYTES = 32768
BH = 10240
SLOT = A_BYTES + 2*BH
LDS_AUX = NSLOT * SLOT
LDS_STATS = LDS_AUX
LDS_CS = LDS_AUX + 2048
LDS_TOTAL = 163840
LDS_KVS = 0
LDS_RP0 = SLOT + 24576
LDS_RP = LDS_RP0
WS_PQ = 0
WS_H = 2621440
WS_KV = WS_H + 6291456
WS_STATS = WS_KV + 65536
WS_WF = WS_STATS + 32768
WS_FLAGS = WS_WF + 544*5120
WS_CSX = WS_FLAGS + 4096
WS_USED = WS_CSX + 32*8*1280
LOG2E = 1.4426950408889634

S_X = 8; S_B0 = 12; S_B1 = 16; S_WS = 20; S_DBG = 24
S_RB = 26; S_CG = 27; S_WAVE = 28; S_TYPE = 29; S_SUB = 30; S_BSTR = 31
S_CB0 = 32; S_CB1 = 33; S_ROT = 34; S_SLOT = 35; S_CNT = 36
S_T = 37
S_EPS6 = 40
S_L2E = 42
S_AOFF = 56; S_BOFF = 57; S_M0S = 60; S_T2 = 61; S_T3 = 62; S_T4 = 63
S_EXS = 64
S_OK = 67
S_NONCE = 68

V_ACC = 96
def acc(mt, ct): return V_ACC + (ct * 4 + mt) * 4
V_X = 32
V_W = 64
V_XB = 2; V_WB = 3; V_XA = 4; V_WA = 6
V_LANE = 8; V_I = 9; V_G = 10
V_CSA = 80
V_ONES = 92

OPTS = {}
def SM():
    m = OPTS.get('smod', 'sc1')
    return (' ' + m.replace('_', ' ')) if m else ''
STAMP = False
WS_STAMP = 0x1000000
def stamp(e, idx):
    if STAMP:
        e(f"s_memtime {s(70 + 2*idx, 2)}")
        e("s_waitcnt lgkmcnt(0)")
def stamp_flush(e, n):
    if STAMP:
        e(f"s_lshl_b32 {s(S_T)}, s2, 3"); e(f"s_add_u32 {s(S_T)}, {s(S_T)}, {s(S_WAVE)}"); e(f"s_lshl_b32 {s(S_T)}, {s(S_T)}, 6")
        e(f"s_add_u32 {s(S_T)}, {s(S_T)}, {WS_STAMP}")
        e(f"v_mov_b32 v14, 0")
        e("s_memrealtime s[88:89]"); e("s_waitcnt lgkmcnt(0)")
        for k in range(n):
            e(f"v_mov_b32 v15, {s(70 + 2*k)}")
            e(f"buffer_store_dword v15, v14, {s(S_WS,4)}, {s(S_T)} offen offset:{4*k}")
            e("s_nop 1")
        e(f"v_mov_b32 v15, s86"); e(f"buffer_store_dword v15, v14, {s(S_WS,4)}, {s(S_T)} offen offset:{4*8}"); e("s_nop 1")
        e(f"v_mov_b32 v15, s88"); e(f"buffer_store_dword v15, v14, {s(S_WS,4)}, {s(S_T)} offen offset:{4*9}"); e("s_nop 1")
        if OPTS.get("rtloop"):
            e(f"v_mov_b32 v15, s84"); e(f"buffer_store_dword v15, v14, {s(S_WS,4)}, {s(S_T)} offen offset:{4*10}"); e("s_nop 1")
            e(f"v_mov_b32 v15, s85"); e(f"buffer_store_dword v15, v14, {s(S_WS,4)}, {s(S_T)} offen offset:{4*11}"); e("s_nop 1")

def cs_owned(w): return [ct for ct in (w, w + 4, w + 8) if ct < 10]

def wrap_slot(e, sreg):
    e(f"s_add_u32 {s(sreg)}, {s(sreg)}, {SLOT}")
    e(f"s_cmp_eq_u32 {s(sreg)}, {NSLOT*SLOT}")
    e(f"s_cselect_b32 {s(sreg)}, 0, {s(sreg)}")

def _loop_parts(e, swapped, valid):
    RING = 4
    q = Queue(e, "lgkmcnt", 15)
    def rd_x(par, mt):
        if OPTS.get("nox"): return
        e(f"ds_read_b128 {v(V_X + par*16 + mt*4, 4)}, {v(V_XA + par)} offset:{mt*2048}")
        q.issue(("x", par, mt))
    def rd_w(f, part):
        if OPTS.get("now"): return
        ks, ct = divmod(f % 20, 10)
        if valid is not None and ct not in valid: return
        half, c16 = divmod(ct, 5)
        off = half * BH + ks * 5120 + c16 * 32 + part * 1280
        ring = f % RING
        e(f"ds_read_b64_tr_b16 {v(V_W + ring*4 + part*2, 2)}, {v(V_WA)} offset:{off}")
        q.issue(("w", ring, part))
    def next_addr():
        e(f"v_add_u32 {v(V_XA)}, {s(S_SLOT)}, {v(V_XB)}")
        e(f"v_add_u32 {v(V_WA)}, {s(S_SLOT)}, {v(V_WB)}")
        e(f"v_xor_b32 {v(V_XA + 1)}, 64, {v(V_XA)}")
        wrap_slot(e, S_SLOT)
    sched = {G: [] for G in range(20)}
    sched[0] = [("w", 2, 0), ("w", 2, 1), ("w", 3, 0), ("w", 3, 1)]
    for G in range(1, 17): sched[G] = [("w", G + 3, 0), ("w", G + 3, 1)]
    for k, G in enumerate((4, 5, 6, 7)): sched[G].append(("x", 1, k))
    sched[18] = [("x", 0, 0), ("x", 0, 1), ("w", 20, 0), ("w", 20, 1)]
    sched[19] = [("x", 0, 2), ("x", 0, 3), ("w", 21, 0), ("w", 21, 1)]
    def do_read(r):
        if r[0] == "x": rd_x(r[1], r[2])
        else: rd_w(r[1], r[2])
    def prologue():
        next_addr()
        for G in (18, 19):
            for r in sched[G]: do_read(r)
    def mm(G, mt):
        ks, ct = divmod(G, 10); ring = G % RING
        q.wait(("w", ring, 0), ("w", ring, 1), ("x", ks, mt))
        A = acc(mt, ct)
        xo = v(V_X + ks*16 + mt*4, 4); wo = v(V_W + ring*4, 4)
        if OPTS.get("nomfma") or (valid is not None and ct not in valid): pass
        elif swapped: e(f"v_mfma_f32_16x16x32_bf16 {v(A,4)}, {wo}, {xo}, {v(A,4)}")
        else: e(f"v_mfma_f32_16x16x32_bf16 {v(A,4)}, {xo}, {wo}, {v(A,4)}")
    def cm(G, own):
        ks, ct = divmod(G, 10); ring = G % RING
        if ct in own and not OPTS.get("nomfma"):
            wo = v(V_W + ring*4, 4); C = V_CSA + 4*own.index(ct)
            if swapped: e(f"v_mfma_f32_16x16x32_bf16 {v(C,4)}, {wo}, {v(V_ONES,4)}, {v(C,4)}")
            else: e(f"v_mfma_f32_16x16x32_bf16 {v(C,4)}, {v(V_ONES,4)}, {wo}, {v(C,4)}")
    def body(own):
        SN = OPTS.get("snake", 1)
        if SN == 2:
            for G in range(0, 20, 2):
                if G == 18: reads = list(sched[18]) + list(sched[19])
                else:
                    reads = [("w", G + 2, 0), ("w", G + 2, 1), ("w", G + 3, 0), ("w", G + 3, 1)]
                    if G == 4: reads += [("x", 1, 0), ("x", 1, 1)]
                    if G == 6: reads += [("x", 1, 2), ("x", 1, 3)]
                if G == 18:
                    q.drain(); e("s_barrier"); next_addr()
                seq = []
                for mt in range(4):
                    seq += [(G, mt), (G + 1, mt)] if mt % 2 == 0 else [(G + 1, mt), (G, mt)]
                ri = 0
                for idx, (g, mt) in enumerate(seq):
                    mm(g, mt)
                    if idx == 6: cm(G + 1 if seq[6][0] == G + 1 else G, own)
                    if idx == 7: cm(seq[7][0], own)
                    nrd = (len(reads) - ri + (7 - idx)) // (8 - idx)
                    for _ in range(nrd):
                        do_read(reads[ri]); ri += 1
                assert ri == len(reads)
            return
        for G in range(20):
            ks, ct = divmod(G, 10)
            reads = list(sched[G])
            if G == 18:
                q.drain()
                e("s_barrier")
                next_addr()
            ri = 0
            order = [3, 2, 1, 0] if (SN and G % 2 == 1) else [0, 1, 2, 3]
            for idx, mt in enumerate(order):
                mm(G, mt)
                if idx == 3: cm(G, own)
                nrd = (len(reads) - ri + (3 - idx)) // (4 - idx)
                for _ in range(nrd):
                    do_read(reads[ri]); ri += 1
            assert ri == len(reads)
    return q, prologue, body

def cs_flush(e, swapped, own, wait=True):
    if not own: return
    if swapped:
        e(f"v_lshlrev_b32 v11, 4, {v(V_G)}"); e(f"v_add_u32 v11, {LDS_CS}, v11")
        e(f"v_cmp_eq_u32 vcc, 0, {v(V_I)}")
    else:
        e(f"v_lshlrev_b32 v11, 2, {v(V_I)}"); e(f"v_add_u32 v11, {LDS_CS}, v11")
        e(f"v_cmp_eq_u32 vcc, 0, {v(V_G)}")
    e("s_nop 5")
    e(f"s_and_saveexec_b64 {s(S_EXS,2)}, vcc")
    for k, ct in enumerate(own):
        if swapped: e(f"ds_write_b128 v11, {v(V_CSA + 4*k,4)} offset:{ct*64}")
        else: e(f"ds_write_b32 v11, {v(V_CSA + 4*k)} offset:{ct*64}")
    e(f"s_mov_b64 exec, {s(S_EXS,2)}")
    if wait: e("s_waitcnt lgkmcnt(0)")
    else: e("s_nop 3")

def consumer_loop(e, swapped, tag, w, valid=None, ntag=None):
    own = cs_owned(w) if not OPTS.get("nocolsum") else []
    if valid is not None: own = [ct for ct in own if ct in valid]
    dcs = OPTS.get("dcs", 1)
    q, prologue, body = _loop_parts(e, swapped, valid)
    e(f"s_mov_b32 {s(S_SLOT)}, 0")
    stamp(e, 1)
    e("s_barrier")
    stamp(e, 2)
    if OPTS.get("rtloop"): e("s_memrealtime s[94:95]"); e("s_waitcnt lgkmcnt(0)"); e("s_mov_b32 s84, s94")
    prologue()
    state0 = list(q.p)
    if dcs:
        if OPTS.get("rot", 1) == 5:
            e(f"s_lshr_b32 {s(S_T3)}, 0xa0, {s(S_RB)}"); e(f"s_and_b32 {s(S_T3)}, {s(S_T3)}, 1"); e(f"s_add_u32 {s(S_CNT)}, {s(S_T3)}, 1")
        else:
            e(f"s_cmp_lt_u32 {s(S_RB)}, 2"); e(f"s_cselect_b32 {s(S_CNT)}, 2, 1")
        e(f"s_sub_u32 {s(S_T3)}, {NST}, {s(S_CNT)}")
    else:
        e(f"s_mov_b32 {s(S_CNT)}, {NST}")
    e.raw(".p2align 6")
    e.label(f"L_cloop_{tag}")
    body(own)
    e(f"s_sub_u32 {s(S_CNT)}, {s(S_CNT)}, 1")
    e(f"s_cmp_lg_u32 {s(S_CNT)}, 0")
    e(f"s_cbranch_scc1 L_cloop_{tag}")
    assert q.p == state0, (q.p, state0)
    if dcs:
        cs_flush(e, swapped, own, wait=False)
        e(f"s_mov_b32 {s(S_CNT)}, {s(S_T3)}")
        e(f"s_branch L_cloopN_{ntag}")
        return
    e("s_waitcnt lgkmcnt(0)")
    stamp(e, 3)
    if OPTS.get("rtloop"): e("s_memrealtime s[94:95]"); e("s_waitcnt lgkmcnt(0)"); e("s_mov_b32 s85, s94")
    cs_flush(e, swapped, own)

def shared_loop(e, swapped, ntag, valid=None):
    if not OPTS.get("dcs", 1): return
    t = Emit(); q0, pro0, _ = _loop_parts(t, swapped, valid); pro0(); st0 = list(q0.p)
    q, prologue, body = _loop_parts(e, swapped, valid)
    q.p = list(st0)
    e.raw(".p2align 6")
    e.label(f"L_cloopN_{ntag}")
    body([])
    e(f"s_sub_u32 {s(S_CNT)}, {s(S_CNT)}, 1")
    e(f"s_cmp_lg_u32 {s(S_CNT)}, 0")
    e(f"s_cbranch_scc1 L_cloopN_{ntag}")
    assert q.p == st0
    e("s_waitcnt lgkmcnt(0)")
    stamp(e, 3)
    if OPTS.get("rtloop"): e("s_memrealtime s[94:95]"); e("s_waitcnt lgkmcnt(0)"); e("s_mov_b32 s85, s94")

def setup_pre(e):
    e("s_cmp_ge_u32 s2, 256")
    e("s_cbranch_scc1 L_k1_end")
    e("s_load_dwordx4 s[4:7], s[0:1], 0")
    e("s_load_dwordx4 s[48:51], s[0:1], 32")
    e("s_load_dwordx4 s[52:55], s[0:1], 64")
    if STAMP: e(f"s_memtime {s(70,2)}")
    if STAMP: e(f"s_memrealtime s[86:87]")
    e(f"v_lshrrev_b32 v1, 6, v0")
    e(f"v_and_b32 {v(V_LANE)}, 63, v0")
    e(f"v_readfirstlane_b32 {s(S_WAVE)}, v1")
    e(f"s_and_b32 {s(S_T)}, s2, 7")
    e(f"s_lshr_b32 {s(S_T+1)}, s2, 3")
    e(f"s_and_b32 {s(S_RB)}, {s(S_T)}, 1")
    e(f"s_lshl_b32 {s(S_RB)}, {s(S_RB)}, 2")
    e(f"s_and_b32 {s(S_T+2)}, {s(S_T+1)}, 3")
    e(f"s_add_u32 {s(S_RB)}, {s(S_RB)}, {s(S_T+2)}")
    e(f"s_lshr_b32 {s(S_T)}, {s(S_T)}, 1")
    e(f"s_lshr_b32 {s(S_T+1)}, {s(S_T+1)}, 2")
    e(f"s_lshl_b32 {s(S_CG)}, {s(S_T)}, 3"); e(f"s_add_u32 {s(S_CG)}, {s(S_CG)}, {s(S_T+1)}")
    e(f"s_mul_i32 {s(S_SUB)}, {s(S_T)}, 5"); e(f"s_add_u32 {s(S_SUB)}, {s(S_SUB)}, {s(S_T+1)}"); e(f"s_sub_u32 {s(S_SUB)}, {s(S_SUB)}, 3")
    e(f"s_mov_b32 {s(S_TYPE)}, 2")
    e(f"s_cmp_eq_u32 {s(S_T+1)}, 2")
    e(f"s_cselect_b32 {s(S_TYPE)}, 0, {s(S_TYPE)}"); e(f"s_cselect_b32 {s(S_SUB)}, {s(S_T)}, {s(S_SUB)}")
    e(f"s_lshl_b32 {s(S_T+2)}, {s(S_T)}, 1"); e(f"s_add_u32 {s(S_T+2)}, {s(S_T+2)}, {s(S_T+1)}")
    e(f"s_cmp_lt_u32 {s(S_T+1)}, 2")
    e(f"s_cselect_b32 {s(S_TYPE)}, 1, {s(S_TYPE)}"); e(f"s_cselect_b32 {s(S_SUB)}, {s(S_T+2)}, {s(S_SUB)}")
    e(f"s_mul_i32 {s(S_CB0)}, {s(S_SUB)}, 160")
    e(f"s_mov_b32 {s(S_CB1)}, {s(S_CB0)}")
    e(f"s_and_b32 {s(S_ROT)}, {s(S_SUB)}, 1"); e(f"s_lshl_b32 {s(S_ROT)}, {s(S_ROT)}, 1")
    e(f"s_cmp_eq_u32 {s(S_TYPE)}, 2")
    e(f"s_cselect_b32 {s(S_ROT)}, {s(S_ROT)}, 0")
    e(f"s_mov_b32 {s(S_BSTR)}, 3840"); e(f"s_mov_b32 {s(S_B0+2)}, 2457600")
    e(f"s_cselect_b32 {s(S_BSTR)}, 3072, {s(S_BSTR)}")
    e(f"s_cselect_b32 {s(S_B0+2)}, 1966080, {s(S_B0+2)}"); e(f"s_mov_b32 {s(S_B1+2)}, {s(S_B0+2)}")
    e(f"s_cmp_eq_u32 {s(S_TYPE)}, 1")
    e(f"s_cselect_b32 {s(S_T)}, 1280, 0"); e(f"s_cselect_b32 {s(S_T+1)}, 2560, 0")
    e(f"s_add_u32 {s(S_CB0)}, {s(S_CB0)}, {s(S_T)}"); e(f"s_add_u32 {s(S_CB1)}, {s(S_CB1)}, {s(S_T+1)}")
    e(f"s_cmp_eq_u32 {s(S_TYPE)}, 0")
    e(f"s_cselect_b32 {s(S_T)}, {s(S_CB0)}, 0"); e(f"s_cselect_b32 {s(S_T+1)}, 160, 0")
    e(f"s_add_u32 {s(S_CB0)}, {s(S_CB0)}, {s(S_T)}"); e(f"s_add_u32 {s(S_CB1)}, {s(S_CB1)}, {s(S_T)}"); e(f"s_add_u32 {s(S_CB1)}, {s(S_CB1)}, {s(S_T+1)}")
    e(f"s_mov_b32 {s(S_X+2)}, 2621440"); e(f"s_mov_b32 {s(S_X+3)}, 0x20000")
    e(f"s_mov_b32 {s(S_WS+2)}, {WS_USED if not STAMP else 0x2000000}"); e(f"s_mov_b32 {s(S_WS+3)}, 0x20000")
    e(f"s_mov_b32 {s(S_B0+3)}, 0x20000"); e(f"s_mov_b32 {s(S_B1+3)}, 0x20000")
    e(f"v_and_b32 {v(V_I)}, 15, {v(V_LANE)}")
    e(f"v_lshrrev_b32 {v(V_G)}, 4, {v(V_LANE)}")

def setup_post(e):
    e("s_waitcnt lgkmcnt(0)")
    e(f"s_mov_b32 {s(S_X)}, s4"); e(f"s_mov_b32 {s(S_X+1)}, s5")
    e(f"s_cmp_eq_u32 {s(S_TYPE)}, 2")
    e(f"s_cselect_b32 {s(S_B0)}, s48, s6"); e(f"s_cselect_b32 {s(S_B0+1)}, s49, s7")
    e(f"s_cselect_b32 {s(S_B1)}, s50, s6"); e(f"s_cselect_b32 {s(S_B1+1)}, s51, s7")
    e(f"s_mov_b32 {s(S_WS)}, s54"); e(f"s_mov_b32 {s(S_WS+1)}, s55")
    e(f"s_mov_b32 {s(S_DBG)}, s52"); e(f"s_mov_b32 {s(S_DBG+1)}, s53")

def consumer_setup(e):
    e(f"v_and_b32 v11, 7, {v(V_I)}")
    e(f"v_xor_b32 v11, {v(V_G)}, v11")
    e(f"v_lshlrev_b32 v11, 4, v11")
    e(f"s_lshl_b32 {s(S_T)}, {s(S_WAVE)}, 13")
    e(f"v_lshlrev_b32 v12, 7, {v(V_I)}")
    e(f"v_add3_u32 {v(V_XB)}, v11, v12, {s(S_T)}")
    e(f"v_lshrrev_b32 v11, 1, {v(V_G)}")
    e(f"v_lshlrev_b32 v11, 4, v11")
    e(f"v_and_b32 v12, 1, {v(V_G)}")
    e(f"v_lshlrev_b32 v12, 2, v12")
    e(f"v_lshrrev_b32 v13, 2, {v(V_I)}")
    e(f"v_add3_u32 v11, v11, v12, v13")
    e(f"v_mul_u32_u24 v11, 160, v11")
    e(f"v_and_b32 v12, 3, {v(V_I)}")
    e(f"v_lshlrev_b32 v12, 3, v12")
    e(f"v_add_u32 v11, v11, v12")
    e(f"v_add_u32 {v(V_WB)}, {A_BYTES}, v11")
    if OPTS.get("dry", 1):
        e("s_mov_b64 exec, 0")
        for ty, nm in ((2, "gu"), (0, "q"), (1, "kv")):
            if ty != 1: e(f"s_cmp_eq_u32 {s(S_TYPE)}, {ty}"); e(f"s_cbranch_scc0 L_dry_n{nm}")
            for w in range(4):
                if w < 3:
                    e(f"s_cmp_eq_u32 {s(S_WAVE)}, {w}"); e(f"s_cbranch_scc1 L_{nm}_b{w}")
                else: e(f"s_branch L_{nm}_b{w}")
            if ty != 1: e.label(f"L_dry_n{nm}")
    e.label("L_dry_ret")
    e("s_mov_b64 exec, -1")
    e("s_nop 3")
    for r in range(V_CSA, V_CSA + 12): e(f"v_mov_b32 {v(r)}, 0")
    for r in range(V_ONES, V_ONES + 4): e(f"v_mov_b32 {v(r)}, 0x3f803f80")
    for r in range(V_ACC, 256):
        e(f"v_mov_b32 {v(r)}, 0")

P_VA = 16
P_VB = 20
P_ONE = 26
P_SL = 100
P_POLL = 60
P_RES = 56
DBG_NONCE = 0
DBG_FLAG = 64

def div10(e, dst, src):
    e(f"v_mul_u32_u24 {v(dst)}, 205, {v(src)}")
    e(f"v_lshrrev_b32 {v(dst)}, 11, {v(dst)}")

def SMW():
    m = OPTS.get('wmod', None)
    if m is None: return SM()
    return (' ' + m.replace('_', ' ')) if m != "none" else ''

def endp(e):
    if OPTS.get("fused"): e("s_branch L_phase_end")
    else: e("s_endpgm")

def lane0(e, on=True):
    if on:
        e(f"v_cmp_eq_u32 vcc, 0, {v(V_LANE)}")
        e(f"s_and_saveexec_b64 {s(S_EXS,2)}, vcc")
    else:
        e(f"s_mov_b64 exec, {s(S_EXS,2)}")

S_DA = 58; S_DB = 59; S_MA = 44; S_MB = 45
def issue_a(e, q, tag):
    for a_ in range(16):
        e(f"s_add_u32 m0, {s(S_MA)}, {a_*1024}")
        e(f"s_add_u32 {s(S_T)}, {s(S_AOFF)}, {a_*8*1280}")
        e(f"buffer_load_dwordx4 {v(P_VA)}, {s(S_X,4)}, {s(S_T)} offen lds")
        q.issue(tag)
    e(f"s_add_u32 {s(S_AOFF)}, {s(S_AOFF)}, 128")

def issue_b(e, q, tag):
    for b in range(10):
        if b == 5: e(f"s_add_u32 {s(S_BOFF)}, {s(S_BOFF)}, {s(S_T4)}")
        e(f"s_add_u32 m0, {s(S_MB)}, {b*1024}")
        e("s_nop 0")
        e(f"buffer_load_dwordx4 {v(P_VB + b % 5)}, {s(S_B0,4)}, {s(S_BOFF)} offen lds")
        q.issue(tag)
    e(f"s_add_u32 {s(S_BOFF)}, {s(S_BOFF)}, {s(S_T4)}")

def set_slot(e, slot_sgpr=None, slot_imm=None):
    if slot_sgpr is None:
        e(f"s_add_u32 {s(S_MA)}, {s(S_DA)}, {slot_imm}"); e(f"s_add_u32 {s(S_MB)}, {s(S_DB)}, {slot_imm}")
    else:
        e(f"s_add_u32 {s(S_MA)}, {s(S_DA)}, {s(slot_sgpr)}"); e(f"s_add_u32 {s(S_MB)}, {s(S_DB)}, {s(slot_sgpr)}")

S_KST = 46
def rot_wrap(e):
    if not OPTS.get("rot", 1): return
    e(f"s_add_u32 {s(S_KST)}, {s(S_KST)}, 1")
    e(f"s_cmp_eq_u32 {s(S_KST)}, 10")
    e(f"s_cselect_b32 {s(S_T)}, 1280, 0"); e(f"s_cselect_b32 {s(S_T+1)}, s47, 0"); e(f"s_cselect_b32 {s(S_KST)}, 0, {s(S_KST)}")
    e(f"s_sub_u32 {s(S_AOFF)}, {s(S_AOFF)}, {s(S_T)}"); e(f"s_sub_u32 {s(S_BOFF)}, {s(S_BOFF)}, {s(S_T+1)}")

def issue_stage(e, q, slot_sgpr=None, slot_imm=None, tag=None):
    if OPTS.get("nodma") and slot_sgpr is not None: return
    set_slot(e, slot_sgpr, slot_imm)
    issue_a(e, q, tag)
    issue_b(e, q, tag)
    rot_wrap(e)

def dma_wave(e):
    if OPTS.get("dprio", 3): e(f"s_setprio {OPTS.get('dprio', 3)}")
    q = Queue(e, "vmcnt", 63)
    n = 26
    e(f"s_sub_u32 {s(S_T3)}, {s(S_WAVE)}, 4")
    e(f"s_lshl_b32 {s(S_DA)}, {s(S_T3)}, 14")
    e(f"s_mul_i32 {s(S_DB)}, {s(S_T3)}, {BH}"); e(f"s_add_u32 {s(S_DB)}, {s(S_DB)}, {A_BYTES}")
    e(f"v_lshrrev_b32 v12, 3, {v(V_LANE)}")
    e(f"v_and_b32 v11, 7, {v(V_LANE)}")
    e(f"v_xor_b32 v11, v11, v12")
    e(f"v_lshlrev_b32 v11, 4, v11")
    e(f"v_mul_u32_u24 v12, 1280, v12")
    e(f"v_add_u32 {v(P_VA)}, v11, v12")
    e(f"s_lshl_b32 {s(S_AOFF)}, {s(S_RB)}, 1"); e(f"s_add_u32 {s(S_AOFF)}, {s(S_AOFF)}, {s(S_T3)}")
    e(f"s_mul_i32 {s(S_AOFF)}, {s(S_AOFF)}, {128*1280}")
    for b in range(5):
        e(f"v_add_u32 v11, {64*b}, {v(V_LANE)}")
        div10(e, 12, 11)
        e(f"v_mul_u32_u24 v13, 10, v12")
        e(f"v_sub_u32 v13, v11, v13")
        e(f"v_add_u32 v13, {s(S_ROT)}, v13")
        e(f"v_cmp_le_u32 vcc, 10, v13")
        e(f"v_subrev_u32 v14, 10, v13")
        e(f"v_and_b32 v15, 0x13, v12")
        e(f"v_cndmask_b32 v13, v13, v14, vcc")
        e(f"v_and_b32 v14, 4, v12"); e(f"v_lshlrev_b32 v14, 1, v14"); e(f"v_or_b32 v15, v15, v14")
        e(f"v_and_b32 v14, 8, v12"); e(f"v_lshrrev_b32 v14, 1, v14"); e(f"v_or_b32 v15, v15, v14")
        e(f"v_mul_lo_u32 v15, v15, {s(S_BSTR)}")
        e(f"v_lshlrev_b32 v13, 4, v13")
        e(f"v_add_u32 {v(P_VB + b)}, v15, v13")
    e(f"s_cmp_eq_u32 {s(S_T3)}, 0")
    e(f"s_cselect_b32 {s(S_BOFF)}, {s(S_CB0)}, {s(S_CB1)}")
    e(f"s_lshl_b32 {s(S_T4)}, {s(S_BSTR)}, 5")
    if OPTS.get("rot", 1):
        R = OPTS.get("rot", 1)
        e(f"s_lshl_b32 {s(S_KST)}, {s(S_RB)}, 1"); e(f"s_add_u32 {s(S_T)}, {s(S_RB)}, 2")
        e(f"s_cmp_lt_u32 {s(S_RB)}, 2"); e(f"s_cselect_b32 {s(S_KST)}, {s(S_KST)}, {s(S_T)}")
        if R == 4:
            e(f"s_and_b32 {s(S_T)}, {s(S_RB)}, 3"); e(f"s_mul_i32 {s(S_KST)}, {s(S_T)}, 5"); e(f"s_lshr_b32 {s(S_KST)}, {s(S_KST)}, 1")
            e(f"s_lshr_b32 {s(S_T)}, {s(S_RB)}, 2"); e(f"s_add_u32 {s(S_KST)}, {s(S_KST)}, {s(S_T)}")
        if R == 5:
            tab = sum(x << (4*i) for i, x in enumerate((0, 2, 5, 7, 1, 3, 6, 8)))
            e(f"s_lshl_b32 {s(S_T)}, {s(S_RB)}, 2"); e(f"s_lshr_b32 {s(S_KST)}, {hex(tab)}, {s(S_T)}"); e(f"s_and_b32 {s(S_KST)}, {s(S_KST)}, 15")
        if R in (2, 3):
            if R == 3: e(f"s_mov_b32 {s(S_KST)}, 0")
            e(f"s_and_b32 {s(S_T)}, {s(S_CG)}, 7")
            if OPTS.get("rotm", 1) > 1: e(f"s_mul_i32 {s(S_T)}, {s(S_T)}, {OPTS.get('rotm')}")
            e(f"s_add_u32 {s(S_KST)}, {s(S_KST)}, {s(S_T)}")
            for _ in range(3):
                e(f"s_cmp_ge_u32 {s(S_KST)}, 10"); e(f"s_cselect_b32 {s(S_T)}, 10, 0"); e(f"s_sub_u32 {s(S_KST)}, {s(S_KST)}, {s(S_T)}")
        e(f"s_mul_i32 s47, {s(S_BSTR)}, 640")
        e(f"s_lshl_b32 {s(S_T)}, {s(S_KST)}, 7"); e(f"s_add_u32 {s(S_AOFF)}, {s(S_AOFF)}, {s(S_T)}")
        e(f"s_mul_i32 {s(S_T)}, {s(S_KST)}, {s(S_BSTR)}"); e(f"s_lshl_b32 {s(S_T)}, {s(S_T)}, 6"); e(f"s_add_u32 {s(S_BOFF)}, {s(S_BOFF)}, {s(S_T)}")
    setup_post(e)
    e(f"s_cmp_eq_u32 {s(S_T3)}, 0")
    e(f"s_cselect_b32 {s(S_B0)}, {s(S_B0)}, {s(S_B1)}"); e(f"s_cselect_b32 {s(S_B0+1)}, {s(S_B0+1)}, {s(S_B1+1)}")
    stamp(e, 1)
    issue_stage(e, q, slot_imm=0, tag=0)
    stamp(e, 2)
    NPRE = OPTS.get("npre", 2)
    if NPRE == 2: issue_stage(e, q, slot_imm=SLOT, tag=1)
    if NPRE == 3:
        set_slot(e, None, SLOT); issue_b(e, q, 1)
    if NPRE == 4:
        set_slot(e, None, SLOT); issue_a(e, q, 1)
    stamp(e, 3)
    q.wait(0)
    stamp(e, 5)
    e("s_barrier")
    if NPRE == 1: issue_stage(e, q, slot_imm=SLOT, tag=1)
    if NPRE == 3: issue_a(e, q, 1)
    if NPRE == 4: issue_b(e, q, 1)
    issue_stage(e, q, slot_imm=2*SLOT, tag=2)
    e(f"s_mov_b32 {s(S_M0S)}, 0")
    e(f"s_mov_b32 {s(S_CNT)}, 7")
    e.label(f"L_dloop")
    e(f"s_waitcnt vmcnt({n})")
    e("s_barrier")
    q2 = Queue(e, "vmcnt", 63)
    issue_stage(e, q2, slot_sgpr=S_M0S, tag="x"); wrap_slot(e, S_M0S)
    e(f"s_sub_u32 {s(S_CNT)}, {s(S_CNT)}, 1")
    e(f"s_cmp_lg_u32 {s(S_CNT)}, 0")
    e(f"s_cbranch_scc1 L_dloop")
    e(f"s_waitcnt vmcnt({n})"); e("s_barrier")
    e(f"s_waitcnt vmcnt(0)"); e("s_barrier")
    e("s_barrier")
    e("s_barrier")
    e(f"s_cmp_eq_u32 {s(S_TYPE)}, 1")
    e(f"s_cbranch_scc1 L_kv_final")
    if STAMP:
        stamp(e, 4); stamp(e, 6); stamp_flush(e, 7)
    endp(e)

def stats4_load(e, row_sgpr):
    e(f"v_add_u32 v11, {s(row_sgpr)}, {v(V_G)}")
    e(f"v_mul_u32_u24 v11, 1280, v11")
    e(f"v_lshlrev_b32 v14, 4, {v(V_I)}")
    e(f"v_add_u32 v11, v11, v14")
    for k in range(5):
        e(f"buffer_load_dwordx4 {v(P_SL + 4*k, 4)}, v11, {s(S_X,4)}, 0 offen offset:{k*256}")

def stats4_compute(e):
    A = P_SL + 20
    for k in range(4): e(f"v_mov_b32 {v(A + k)}, 0")
    for d in range(20):
        e(f"v_dot2c_f32_bf16 {v(A + (d & 1))}, {v(P_SL + d)}, {v(P_ONE)}")
        e(f"v_dot2c_f32_bf16 {v(A + 2 + (d & 1))}, {v(P_SL + d)}, {v(P_SL + d)}")
    e("s_nop 2")
    e(f"v_add_f32 {v(A)}, {v(A)}, {v(A+1)}")
    e(f"v_add_f32 {v(A+2)}, {v(A+2)}, {v(A+3)}")
    for ctl in ("quad_perm:[1,0,3,2]", "quad_perm:[2,3,0,1]", "row_half_mirror", "row_mirror"):
        e("s_nop 0")
        e(f"v_add_f32_dpp {v(A)}, {v(A)}, {v(A)} {ctl} row_mask:0xf bank_mask:0xf")
        e(f"v_add_f32_dpp {v(A+2)}, {v(A+2)}, {v(A+2)} {ctl} row_mask:0xf bank_mask:0xf")
        e("s_nop 0")
    M = P_SL + 26
    e(f"v_mul_f32 {v(M)}, {f32(1.0/640)}, {v(A)}")
    e(f"v_mul_f32 {v(A+1)}, {v(M)}, {v(M)}")
    e(f"v_mul_f32 {v(A+2)}, {f32(1.0/640)}, {v(A+2)}")
    e(f"v_sub_f32 {v(A+2)}, {v(A+2)}, {v(A+1)}")
    e(f"v_max_f32 {v(A+2)}, 0, {v(A+2)}")
    e(f"v_add_f32 {v(A+2)}, {f32(1e-5)}, {v(A+2)}")
    e(f"v_rsq_f32 {v(M+1)}, {v(A+2)}")
    e("s_nop 0")

def write_stats_lds_from_pairs(e, R, tag):
    e(f"s_cmp_eq_u32 {s(S_TYPE)}, 1")
    e(f"s_cbranch_scc1 L_wsk_{tag}")
    e(f"v_lshlrev_b32 v13, 5, {v(V_LANE)}")
    e(f"v_add_u32 v13, {LDS_STATS}, v13")
    e(f"ds_write_b128 v13, {v(R,4)}")
    e(f"ds_write_b128 v13, {v(R+4,4)} offset:16")
    e(f"s_branch L_wsd_{tag}")
    e.label(f"L_wsk_{tag}")
    T = R + 8
    for k in range(4):
        e(f"v_mov_b32 {v(T + k)}, {v(R + 2*k)}")
        e(f"v_mov_b32 {v(T + 4 + k)}, {v(R + 2*k + 1)}")
    e(f"v_lshlrev_b32 v13, 4, {v(V_LANE)}")
    e(f"v_add_u32 v13, {LDS_STATS}, v13")
    e(f"ds_write_b128 v13, {v(T,4)}")
    e(f"ds_write_b128 v13, {v(T+4,4)} offset:1024")
    e.label(f"L_wsd_{tag}")

def fetch_stats(e):
    e(f"s_lshl_b32 {s(S_T)}, {s(S_RB)}, 12")
    e(f"s_add_u32 {s(S_T)}, {s(S_T)}, {WS_STATS}")
    e(f"v_lshlrev_b32 v11, 6, {v(V_LANE)}")
    for k in range(4):
        e(f"buffer_load_dwordx4 {v(P_SL + 4*k,4)}, v11, {s(S_WS,4)}, {s(S_T)} offen offset:{16*k} sc1")

def check_stats(e, tag):
    e(f"v_cmp_eq_u32 vcc, {s(S_NONCE)}, {v(P_SL + 1)}")
    e(f"s_mov_b64 s[92:93], vcc")
    for k in range(1, 8):
        e(f"v_cmp_eq_u32 vcc, {s(S_NONCE)}, {v(P_SL + 2*k + 1)}")
        e(f"s_and_b64 s[92:93], s[92:93], vcc")
    e(f"s_cmp_eq_u64 s[92:93], -1")
    e(f"s_cbranch_scc0 L_chk_no_{tag}")
    R = P_SL + 16
    for k in range(8):
        e(f"v_mov_b32 {v(R + k)}, {v(P_SL + 2*k)}")
    write_stats_lds_from_pairs(e, R, tag)
    e(f"s_mov_b32 {s(S_OK)}, 1")
    e.label(f"L_chk_no_{tag}")

def publish_stats(e, tag):
    e(f"v_lshlrev_b32 v13, 4, {v(V_G)}")
    e(f"s_lshl_b32 {s(S_T)}, {s(S_T3)}, 4"); e(f"s_add_u32 {s(S_T)}, {s(S_T)}, {WS_STATS}")
    e(f"v_mov_b32 v29, {s(S_NONCE)}"); e(f"v_mov_b32 v31, {s(S_NONCE)}")
    e(f"v_mov_b32 v33, {s(S_NONCE)}"); e(f"v_mov_b32 v35, {s(S_NONCE)}")
    e(f"v_mov_b32 v28, {v(P_RES)}"); e(f"v_mov_b32 v30, {v(P_RES+1)}")
    e(f"v_mov_b32 v32, {v(P_RES+2)}"); e(f"v_mov_b32 v34, {v(P_RES+3)}")
    e(f"v_cmp_eq_u32 vcc, 0, {v(V_I)}")
    e(f"s_and_saveexec_b64 {s(S_EXS,2)}, vcc")
    e(f"buffer_store_dwordx4 v[28:31], v13, {s(S_WS,4)}, {s(S_T)} offen sc1")
    e(f"buffer_store_dwordx4 v[32:35], v13, {s(S_WS,4)}, {s(S_T)} offen offset:64 sc1")
    e(f"s_mov_b64 exec, {s(S_EXS,2)}")

def poll_nonce(e):
    e(f"v_mov_b32 v11, 0")
    e(f"global_load_dword {v(P_POLL)}, v11, {s(S_DBG,2)} offset:{DBG_NONCE} sc1")

def try_publish(e, tag, repoll=True):
    e(f"s_cmp_lg_u32 {s(S_NONCE)}, 0"); e(f"s_cbranch_scc1 L_tp_{tag}")
    e("s_waitcnt vmcnt(0)")
    e(f"v_readfirstlane_b32 {s(S_NONCE)}, {v(P_POLL)}")
    e("s_nop 3")
    e(f"s_cmp_eq_u32 {s(S_NONCE)}, 0"); e(f"s_cbranch_scc1 L_tpr_{tag}")
    publish_stats(e, tag)
    e(f"s_branch L_tp_{tag}")
    e.label(f"L_tpr_{tag}")
    if repoll: poll_nonce(e)
    e.label(f"L_tp_{tag}")

def hbar(e, j):
    e("s_barrier")
    if OPTS.get("hstamp"):
        e("s_memtime s[90:91]"); e("s_waitcnt lgkmcnt(0)")
        e(f"v_writelane_b32 v62, s90, {j}")

def helper0(e, opts):
    e("s_cmp_eq_u32 s2, 0"); e("s_cbranch_scc0 L_h0_nononce")
    e("s_memrealtime s[92:93]"); e("s_waitcnt lgkmcnt(0)")
    e("s_or_b32 s92, s92, 1")
    e("v_mov_b32 v11, 0"); e("v_mov_b32 v12, s92")
    lane0(e)
    e(f"global_store_dword v11, v12, {s(S_DBG,2)} offset:{DBG_NONCE} sc1")
    lane0(e, False)
    e.label("L_h0_nononce")
    e(f"s_lshl_b32 {s(S_T)}, {s(S_RB)}, 8")
    e(f"s_lshl_b32 {s(S_T+1)}, {s(S_CG)}, 3")
    e(f"s_add_u32 {s(S_T3)}, {s(S_T)}, {s(S_T+1)}")
    stats4_load(e, S_T3)
    e(f"v_add_u32 v11, {4*1280}, v11")
    for k in range(5):
        e(f"buffer_load_dwordx4 {v(P_SL + 32 + 4*k, 4)}, v11, {s(S_X,4)}, 0 offen offset:{k*256}")
    e(f"v_mov_b32 {v(P_ONE)}, 0x3f803f80")
    e(f"s_mov_b32 {s(S_OK)}, 0"); e(f"s_mov_b32 {s(S_NONCE)}, 0")
    LATE = OPTS.get("statlate", 0)
    def do_stats():
        e("s_waitcnt vmcnt(5)")
        stats4_compute(e)
        e(f"v_mov_b32 {v(P_RES)}, {v(P_SL+26)}"); e(f"v_mov_b32 {v(P_RES+1)}, {v(P_SL+27)}")
        e("s_waitcnt vmcnt(0)")
        poll_nonce(e)
        for k in range(20): e(f"v_mov_b32 {v(P_SL + k)}, {v(P_SL + 32 + k)}")
        stats4_compute(e)
        e(f"v_mov_b32 {v(P_RES+2)}, {v(P_SL+26)}"); e(f"v_mov_b32 {v(P_RES+3)}, {v(P_SL+27)}")
    def do_stats_a():
        e("s_waitcnt vmcnt(5)")
        stats4_compute(e)
        e(f"v_mov_b32 {v(P_RES)}, {v(P_SL+26)}"); e(f"v_mov_b32 {v(P_RES+1)}, {v(P_SL+27)}")
        e("s_waitcnt vmcnt(0)")
        poll_nonce(e)
    def do_stats_b():
        for k in range(20): e(f"v_mov_b32 {v(P_SL + k)}, {v(P_SL + 32 + k)}")
        stats4_compute(e)
        e(f"v_mov_b32 {v(P_RES+2)}, {v(P_SL+26)}"); e(f"v_mov_b32 {v(P_RES+3)}, {v(P_SL+27)}")
    if not LATE: do_stats()
    FJ = OPTS.get("fetchj", 5); CJ = OPTS.get("checkj", 8)
    for j in range(11):
        e("s_barrier")
        if j == 0 and LATE: do_stats_a()
        if j == 1 and LATE: do_stats_b()
        pj = (2, 3, 4) if (LATE or OPTS.get("pj0", 1) == 2) else (1, 2, 3, 4)
        if j in pj: try_publish(e, f"l{j}", repoll=(j < 4))
        if j == FJ: fetch_stats(e)
        if j == CJ:
            e("s_waitcnt vmcnt(0)")
            e(f"s_cmp_eq_u32 {s(S_NONCE)}, 0"); e("s_cbranch_scc1 L_h0_okA")
            if not opts.get("forcefb"): check_stats(e, "a")
            e(f"s_cmp_eq_u32 {s(S_OK)}, 1"); e("s_cbranch_scc1 L_h0_okA")
            fetch_stats(e)
            e.label("L_h0_okA")
        if j == 10:
            e(f"s_cmp_eq_u32 {s(S_OK)}, 1"); e("s_cbranch_scc1 L_h0_okB")
            e(f"s_cmp_eq_u32 {s(S_NONCE)}, 0"); e("s_cbranch_scc1 L_h0_okB")
            e("s_waitcnt vmcnt(0)")
            if not opts.get("forcefb"): check_stats(e, "b")
            e.label("L_h0_okB")
    e(f"s_cmp_eq_u32 {s(S_OK)}, 1"); e(f"s_cbranch_scc1 L_h0_done")
    e(f"s_cmp_eq_u32 {s(S_NONCE)}, 0"); e(f"s_cbranch_scc1 L_h0_fb")
    e(f"s_mov_b32 {s(S_CNT)}, {0 if opts.get('forcefb') else 200}")
    e.label("L_h0_spin")
    e(f"s_cmp_eq_u32 {s(S_CNT)}, 0"); e(f"s_cbranch_scc1 L_h0_fb")
    fetch_stats(e)
    e("s_waitcnt vmcnt(0)")
    check_stats(e, "c")
    e(f"s_sub_u32 {s(S_CNT)}, {s(S_CNT)}, 1")
    e(f"s_cmp_eq_u32 {s(S_OK)}, 1"); e(f"s_cbranch_scc1 L_h0_done")
    e("s_sleep 4")
    e("s_branch L_h0_spin")
    e.label("L_h0_fb")
    e(f"s_mov_b32 {s(S_CNT)}, 0")
    e.label("L_fb_loop")
    e(f"s_lshl_b32 {s(S_T)}, {s(S_RB)}, 8")
    e(f"s_lshl_b32 {s(S_T+1)}, {s(S_CNT)}, 2")
    e(f"s_add_u32 {s(S_T)}, {s(S_T)}, {s(S_T+1)}")
    stats4_load(e, S_T)
    e("s_waitcnt vmcnt(0)")
    stats4_compute(e)
    e(f"v_add_u32 v15, {s(S_T+1)}, {v(V_G)}")
    e(f"v_cmp_eq_u32 vcc, 0, {v(V_I)}")
    e(f"s_and_saveexec_b64 {s(S_EXS,2)}, vcc")
    e(f"s_cmp_eq_u32 {s(S_TYPE)}, 1")
    e(f"s_cbranch_scc1 L_fb_kv")
    e(f"v_lshlrev_b32 v13, 3, v15"); e(f"v_add_u32 v13, {LDS_STATS}, v13")
    e(f"ds_write_b64 v13, {v(P_SL + 26, 2)}")
    e(f"s_branch L_fb_n")
    e.label("L_fb_kv")
    e(f"v_lshlrev_b32 v13, 2, v15"); e(f"v_add_u32 v13, {LDS_STATS}, v13")
    e(f"ds_write_b32 v13, {v(P_SL + 26)}")
    e(f"ds_write_b32 v13, {v(P_SL + 27)} offset:1024")
    e.label("L_fb_n")
    e(f"s_mov_b64 exec, {s(S_EXS,2)}")
    e(f"s_add_u32 {s(S_CNT)}, {s(S_CNT)}, 1")
    e(f"s_cmp_lt_u32 {s(S_CNT)}, 64")
    e("s_cbranch_scc1 L_fb_loop")
    e.label("L_h0_done")
    e("s_waitcnt lgkmcnt(0)")
    e("s_barrier")
    e(f"s_cmp_eq_u32 {s(S_TYPE)}, 1")
    e(f"s_cbranch_scc1 L_kv_final")
    endp(e)

def repack_setup(e):
    for b in range(5):
        e(f"v_add_u32 v11, {64*b}, {v(V_LANE)}")
        div10(e, 12, 11)
        e(f"v_mul_u32_u24 v13, 10, v12"); e(f"v_sub_u32 v13, v11, v13")
        e(f"v_mul_u32_u24 v12, 1280, v12"); e(f"v_lshlrev_b32 v13, 4, v13")
        e(f"v_add_u32 {v(40 + b)}, v12, v13")
    e(f"v_lshlrev_b32 v11, 2, {v(V_G)}"); e(f"v_lshrrev_b32 v12, 2, {v(V_I)}"); e(f"v_add_u32 v11, v11, v12")
    e(f"v_mul_u32_u24 v11, 160, v11"); e(f"v_and_b32 v12, 3, {v(V_I)}"); e(f"v_lshlrev_b32 v12, 3, v12")
    e(f"v_add_u32 v11, v11, v12"); e(f"v_add_u32 v45, {LDS_RP}, v11")
    e(f"v_lshlrev_b32 v46, 4, {v(V_LANE)}")

def repack_issue(e):
    for r in range(3):
        e(f"s_add_u32 {s(S_T)}, s2, {256*r}")
        if r == 2:
            e(f"s_cmp_ge_u32 {s(S_T)}, 544"); e("s_cbranch_scc1 L_rp_i_done")
        e(f"s_lshr_b32 {s(S_T+1)}, {s(S_T)}, 3")
        e(f"s_and_b32 {s(S_T+2)}, {s(S_T)}, 7")
        e(f"s_mul_i32 {s(S_T+2)}, {s(S_T+2)}, 160")
        e(f"s_cmp_ge_u32 {s(S_T+1)}, 48")
        e(f"s_cbranch_scc1 L_rp_wo{r}")
        e(f"s_mul_i32 {s(S_T+1)}, {s(S_T+1)}, {32*1280}"); e(f"s_add_u32 {s(S_T+1)}, {s(S_T+1)}, {s(S_T+2)}")
        for b in range(5):
            e(f"s_mov_b32 m0, {LDS_RP + r*5120 + b*1024}"); e("s_nop 0")
            e(f"buffer_load_dwordx4 {v(40 + b)}, s[44:47], {s(S_T+1)} offen lds")
        e(f"s_branch L_rp_n{r}")
        e.label(f"L_rp_wo{r}")
        e(f"s_sub_u32 {s(S_T+1)}, {s(S_T+1)}, 48")
        e(f"s_mul_i32 {s(S_T+1)}, {s(S_T+1)}, {32*1280}"); e(f"s_add_u32 {s(S_T+1)}, {s(S_T+1)}, {s(S_T+2)}")
        for b in range(5):
            e(f"s_mov_b32 m0, {LDS_RP + r*5120 + b*1024}"); e("s_nop 0")
            e(f"buffer_load_dwordx4 {v(40 + b)}, s[48:51], {s(S_T+1)} offen lds")
        e.label(f"L_rp_n{r}")
    e.label("L_rp_i_done")

def repack_finish(e):
    e("s_waitcnt vmcnt(0)")
    for r in range(3):
        R = 64 + 20*r
        e(f"s_add_u32 {s(S_T)}, s2, {256*r}")
        if r == 2:
            e(f"s_cmp_ge_u32 {s(S_T)}, 544"); e("s_cbranch_scc1 L_rp_f_done")
        for ct in range(5):
            for part in range(2):
                e(f"ds_read_b64_tr_b16 {v(R + 4*ct + 2*part, 2)}, v45 offset:{r*5120 + ct*32 + part*2560}")
        e(f"s_mul_i32 {s(S_T)}, {s(S_T)}, 5120"); e(f"s_add_u32 {s(S_T)}, {s(S_T)}, {WS_WF}")
        e(f"s_add_u32 {s(S_T+1)}, {s(S_T)}, 4096")
        for ct in range(5):
            e(f"s_waitcnt lgkmcnt({2*(4-ct)})")
            if ct < 4: e(f"buffer_store_dwordx4 {v(R + 4*ct,4)}, v46, {s(S_WS,4)}, {s(S_T)} offen offset:{ct*1024}{SMW()}")
            else: e(f"buffer_store_dwordx4 {v(R + 4*ct,4)}, v46, {s(S_WS,4)}, {s(S_T+1)} offen{SMW()}")
    e.label("L_rp_f_done")

def cs_publish(e, tag):
    e(f"v_lshlrev_b32 v11, 3, {v(V_LANE)}"); e(f"v_add_u32 v11, {LDS_CS}, v11")
    e("ds_read_b64 v[28:29], v11"); e("ds_read_b64 v[32:33], v11 offset:512")
    e(f"s_lshl_b32 {s(S_T)}, {s(S_CG)}, 3"); e(f"s_add_u32 {s(S_T)}, {s(S_T)}, {s(S_RB)}"); e(f"s_mul_i32 {s(S_T)}, {s(S_T)}, 1280")
    e(f"s_add_u32 {s(S_T)}, {s(S_T)}, {WS_CSX}")
    e(f"v_lshlrev_b32 v12, 4, {v(V_LANE)}")
    e("s_waitcnt lgkmcnt(0)")
    e("v_mov_b32 v30, v29"); e(f"v_mov_b32 v29, {s(S_NONCE)}"); e(f"v_mov_b32 v31, {s(S_NONCE)}")
    e("v_mov_b32 v34, v33"); e(f"v_mov_b32 v33, {s(S_NONCE)}"); e(f"v_mov_b32 v35, {s(S_NONCE)}")
    e(f"buffer_store_dwordx4 v[28:31], v12, {s(S_WS,4)}, {s(S_T)} offen sc1")
    e(f"v_cmp_gt_u32 vcc, 16, {v(V_LANE)}"); e(f"s_and_saveexec_b64 {s(S_EXS,2)}, vcc")
    e(f"buffer_store_dwordx4 v[32:35], v12, {s(S_WS,4)}, {s(S_T)} offen offset:1024 sc1")
    e(f"s_mov_b64 exec, {s(S_EXS,2)}")

def cs_try_publish(e, tag, repoll):
    e(f"s_cmp_lg_u32 {s(S_NONCE)}, 0"); e(f"s_cbranch_scc1 L_ctp_{tag}")
    e("s_waitcnt vmcnt(0)")
    e(f"v_readfirstlane_b32 {s(S_NONCE)}, v61")
    e("s_nop 3")
    e(f"s_cmp_eq_u32 {s(S_NONCE)}, 0"); e(f"s_cbranch_scc1 L_ctr_{tag}")
    cs_publish(e, tag)
    e(f"s_branch L_ctp_{tag}")
    e.label(f"L_ctr_{tag}")
    if repoll:
        e("v_mov_b32 v11, 0"); e(f"global_load_dword v61, v11, {s(S_DBG,2)} offset:{DBG_NONCE} sc1")
    e.label(f"L_ctp_{tag}")

def cs_fetch(e):
    e(f"s_mul_i32 {s(S_T)}, {s(S_CG)}, {8*1280}"); e(f"s_add_u32 {s(S_T)}, {s(S_T)}, {WS_CSX}")
    e(f"v_lshlrev_b32 v12, 4, {v(V_LANE)}")
    for r in range(8):
        e(f"s_add_u32 {s(S_T+1)}, {s(S_T)}, {r*1280}")
        e(f"buffer_load_dwordx4 {v(64 + 4*r,4)}, v12, {s(S_WS,4)}, {s(S_T+1)} offen sc1")
    e(f"v_cmp_gt_u32 vcc, 16, {v(V_LANE)}"); e(f"s_and_saveexec_b64 {s(S_EXS,2)}, vcc")
    for r in range(8):
        e(f"s_add_u32 {s(S_T+1)}, {s(S_T)}, {r*1280}")
        e(f"buffer_load_dwordx4 {v(96 + 4*r,4)}, v12, {s(S_WS,4)}, {s(S_T+1)} offen offset:1024 sc1")
    e(f"s_mov_b64 exec, {s(S_EXS,2)}")

def cs_check(e, tag, part=None):
    if part in (None, "tags"):
        e("s_mov_b32 s66, 0")
        e("s_mov_b64 s[92:93], -1")
        for r in range(8):
            for k in (1, 3):
                e(f"v_cmp_eq_u32 vcc, {s(S_NONCE)}, {v(64 + 4*r + k)}"); e("s_and_b64 s[92:93], s[92:93], vcc")
        e("s_mov_b64 s[90:91], 0xffff")
        for r in range(8):
            for k in (1, 3):
                e(f"v_cmp_eq_u32 vcc, {s(S_NONCE)}, {v(96 + 4*r + k)}"); e("s_and_b64 s[90:91], s[90:91], vcc")
        e("s_cmp_eq_u64 s[92:93], -1"); e(f"s_cbranch_scc0 L_cct_no_{tag}")
        e("s_cmp_eq_u64 s[90:91], 0xffff"); e(f"s_cbranch_scc0 L_cct_no_{tag}")
        e("s_mov_b32 s66, 1")
        e.label(f"L_cct_no_{tag}")
    if part in (None, "sum"):
        e("s_cmp_eq_u32 s66, 1"); e(f"s_cbranch_scc0 L_cck_no_{tag}")
        for base in (64, 96):
            for r in range(1, 8):
                e(f"v_add_f32 {v(base)}, {v(base)}, {v(base + 4*r)}"); e(f"v_add_f32 {v(base + 2)}, {v(base + 2)}, {v(base + 4*r + 2)}")
            e(f"v_mov_b32 {v(base + 1)}, {v(base + 2)}")
        e(f"v_lshlrev_b32 v11, 3, {v(V_LANE)}"); e(f"v_add_u32 v11, {LDS_CS}, v11")
        e("ds_write_b64 v11, v[64:65]")
        e(f"v_cmp_gt_u32 vcc, 16, {v(V_LANE)}"); e(f"s_and_saveexec_b64 {s(S_EXS,2)}, vcc")
        e("ds_write_b64 v11, v[96:97] offset:512")
        e(f"s_mov_b64 exec, {s(S_EXS,2)}")
        e(f"s_mov_b32 {s(S_OK)}, 1")
        e.label(f"L_cck_no_{tag}")

def cs_fallback(e):
    e(f"v_add_u32 v13, {s(S_ROT)}, {v(V_LANE)}")
    e("v_cmp_le_u32 vcc, 10, v13"); e("v_subrev_u32 v14, 10, v13"); e("s_nop 0"); e("v_cndmask_b32 v13, v13, v14, vcc")
    e("v_lshlrev_b32 v13, 4, v13")
    e(f"v_cmp_gt_u32 vcc, 10, {v(V_LANE)}"); e(f"s_and_saveexec_b64 {s(S_EXS,2)}, vcc")
    for hf in range(2):
        srd = S_B0 if hf == 0 else S_B1; cb = S_CB0 if hf == 0 else S_CB1
        for r in range(8): e(f"v_mov_b32 {v(16 + r)}, 0")
        e(f"s_mov_b32 {s(S_T)}, {s(cb)}"); e(f"s_mov_b32 {s(S_CNT)}, 80")
        e.label(f"L_csfb_{hf}")
        for r in range(8):
            e(f"buffer_load_dwordx4 {v(64 + 4*r,4)}, v13, {s(srd,4)}, {s(S_T)} offen")
            e(f"s_add_u32 {s(S_T)}, {s(S_T)}, {s(S_BSTR)}")
        e("s_waitcnt vmcnt(0)")
        for r in range(8):
            for d in range(4):
                e(f"v_lshlrev_b32 v24, 16, {v(64 + 4*r + d)}"); e(f"v_and_b32 v25, 0xffff0000, {v(64 + 4*r + d)}")
                e(f"v_add_f32 {v(16 + 2*d)}, {v(16 + 2*d)}, v24"); e(f"v_add_f32 {v(17 + 2*d)}, {v(17 + 2*d)}, v25")
        e(f"s_sub_u32 {s(S_CNT)}, {s(S_CNT)}, 1"); e(f"s_cmp_lg_u32 {s(S_CNT)}, 0"); e(f"s_cbranch_scc1 L_csfb_{hf}")
        e(f"v_lshlrev_b32 v11, 5, {v(V_LANE)}"); e(f"v_add_u32 v11, {LDS_CS + hf*320}, v11")
        e("ds_write_b128 v11, v[16:19]"); e("ds_write_b128 v11, v[20:23] offset:16")
    e(f"s_mov_b64 exec, {s(S_EXS,2)}")

def helper1(e, opts):
    touch = OPTS.get("touch", 0)
    if OPTS.get("codepf"):
        e("s_getpc_b64 s[90:91]")
        e.label("L_pc_here")
        e(f"s_sub_u32 s90, s90, L_pc_here-k1_kernel"); e("s_subb_u32 s91, s91, 0")
        e(f"v_lshlrev_b32 v30, 7, {v(V_LANE)}")
        for k in range(OPTS.get("codepf")):
            e(f"global_load_dword v31, v30, s[90:91]")
            e(f"v_add_u32 v30, 8192, v30")
    e("s_load_dwordx2 s[44:45], s[0:1], 48")
    e("s_load_dwordx2 s[48:49], s[0:1], 16")
    if touch:
        e(f"s_and_b32 {s(S_T+1)}, {s(S_RB)}, 3")
        e(f"v_and_b32 v20, 31, {v(V_LANE)}")
        e(f"v_lshlrev_b32 v21, 2, v20"); e(f"v_add_u32 v21, {s(S_T+1)}, v21"); e(f"v_mul_lo_u32 v21, v21, {s(S_BSTR)}")
        e(f"v_lshrrev_b32 v22, 5, {v(V_LANE)}"); e(f"v_lshlrev_b32 v22, 7, v22"); e(f"v_add_u32 v21, v21, v22")
        e(f"s_and_b32 {s(S_T+1)}, {s(S_CG)}, 7"); e(f"s_lshl_b32 {s(S_T+1)}, {s(S_T+1)}, 5")
        e(f"s_lshl_b32 {s(S_T+2)}, {s(S_RB)}, 8"); e(f"s_add_u32 {s(S_T+1)}, {s(S_T+1)}, {s(S_T+2)}")
        e(f"v_add_u32 v20, {s(S_T+1)}, v20"); e(f"v_mul_u32_u24 v20, 1280, v20"); e(f"v_add_u32 v20, v20, v22")
        e(f"s_lshl_b32 s54, {s(S_BSTR)}, 7")
        e(f"s_add_u32 {s(S_CB0)}, {s(S_CB0)}, s54"); e(f"s_add_u32 {s(S_CB1)}, {s(S_CB1)}, s54"); e(f"s_mov_b32 s52, 256")
    def trip():
        if not touch: return
        e(f"buffer_load_dword v24, v21, {s(S_B0,4)}, {s(S_CB0)} offen")
        e(f"buffer_load_dword v25, v21, {s(S_B1,4)}, {s(S_CB1)} offen")
        e(f"buffer_load_dword v26, v20, {s(S_X,4)}, s52 offen")
        e(f"s_add_u32 {s(S_CB0)}, {s(S_CB0)}, s54"); e(f"s_add_u32 {s(S_CB1)}, {s(S_CB1)}, s54"); e("s_add_u32 s52, s52, 256")
    tj = OPTS.get("tj", "s,0,2,4")
    tj = [x for x in str(tj).replace("x", ",").split(",")]
    if OPTS.get("tdelay"): e(f"s_sleep {OPTS.get('tdelay')}")
    for x in tj:
        if x == "s": trip()
    dcs = OPTS.get("dcs", 1)
    if dcs:
        e(f"s_mov_b32 {s(S_NONCE)}, 0"); e(f"s_mov_b32 {s(S_OK)}, 0")
        e("v_mov_b32 v11, 0"); e(f"global_load_dword v61, v11, {s(S_DBG,2)} offset:{DBG_NONCE} sc1")
    if not OPTS.get("norepack"): repack_setup(e)
    e("s_waitcnt lgkmcnt(0)")
    e("s_mov_b32 s46, 1966080"); e("s_mov_b32 s47, 0x20000")
    e("s_mov_b32 s50, 819200"); e("s_mov_b32 s51, 0x20000")
    e(f"s_cmp_eq_u32 {s(S_TYPE)}, 1"); e(f"s_cbranch_scc0 L_nozero")
    e(f"s_cmp_eq_u32 {s(S_RB)}, 0"); e(f"s_cbranch_scc0 L_nozero")
    for r in range(28, 32): e(f"v_mov_b32 {v(r)}, 0")
    e(f"s_mul_i32 {s(S_T)}, {s(S_SUB)}, 6720")
    e(f"s_add_u32 {s(S_T)}, {s(S_T)}, {WS_KV}")
    e(f"s_add_u32 {s(S_T2)}, {s(S_T)}, 4096")
    e(f"v_lshlrev_b32 v11, 4, {v(V_LANE)}")
    for k in range(7):
        if k == 6:
            e(f"v_cmp_gt_u32 vcc, 36, {v(V_LANE)}")
            e(f"s_and_saveexec_b64 {s(S_EXS,2)}, vcc")
        sreg = S_T if k < 4 else S_T2
        e(f"buffer_store_dwordx4 v[28:31], v11, {s(S_WS,4)}, {s(sreg)} offen offset:{(k % 4)*1024} sc1")
        if k == 6:
            e(f"s_mov_b64 exec, {s(S_EXS,2)}")
    e.label("L_nozero")
    if OPTS.get("rpearly") and not OPTS.get("norepack"):
        repack_issue(e); repack_finish(e); e("s_waitcnt lgkmcnt(0)")
    for j in range(11):
        hbar(e, j)
        for x in tj:
            if x == str(j): trip()
        if dcs:
            if j == 1:
                e("s_waitcnt vmcnt(0)")
                e(f"v_readfirstlane_b32 {s(S_T)}, v61"); e("s_nop 3")
                e(f"s_cmp_eq_u32 {s(S_T)}, 0"); e("s_cbranch_scc0 L_h1_haven")
                e("v_mov_b32 v11, 0"); e(f"global_load_dword v61, v11, {s(S_DBG,2)} offset:{DBG_NONCE} sc1")
                e.label("L_h1_haven")
            if j in (3, 4): cs_try_publish(e, f"p{j}", repoll=(j < 4))
            if j == OPTS.get("csfetchj", 6): pass
            CJ = OPTS.get("cscheckj", 7)
            if j == CJ:
                e("s_mov_b32 s66, 0")
                e("s_waitcnt vmcnt(0)")
                e(f"s_cmp_eq_u32 {s(S_NONCE)}, 0"); e("s_cbranch_scc1 L_h1_cA")
                if not opts.get("forcefb"): cs_check(e, "a", "tags")
                e("s_cmp_eq_u32 s66, 1"); e("s_cbranch_scc1 L_h1_cA")
                cs_fetch(e)
                e.label("L_h1_cA")
            if j == CJ + 1 and not opts.get("forcefb"): cs_check(e, "a2", "sum")
            if j == 10:
                e(f"s_cmp_eq_u32 {s(S_OK)}, 1"); e("s_cbranch_scc1 L_h1_cB")
                e(f"s_cmp_eq_u32 {s(S_NONCE)}, 0"); e("s_cbranch_scc1 L_h1_cB")
                e("s_waitcnt vmcnt(0)")
                if not opts.get("forcefb"): cs_check(e, "b")
                e.label("L_h1_cB")
        if j == OPTS.get("sigj", 6):
            e(f"s_cmp_eq_u32 {s(S_TYPE)}, 1"); e(f"s_cbranch_scc0 L_h1_nosig")
            e(f"s_cmp_eq_u32 {s(S_RB)}, 0"); e(f"s_cbranch_scc0 L_h1_nosig")
            e("s_waitcnt vmcnt(0)")
            e(f"s_lshl_b32 {s(S_T)}, {s(S_SUB)}, 2")
            e(f"v_mov_b32 v11, {s(S_T)}"); e(f"v_mov_b32 v12, 1")
            lane0(e); e(f"global_store_dword v11, v12, {s(S_DBG,2)} offset:{DBG_FLAG} sc1"); lane0(e, False)
            e.label("L_h1_nosig")
        if dcs and j == OPTS.get("csfetchj", 5): cs_fetch(e)
        if j == OPTS.get("rpj", 8) and not OPTS.get("norepack") and not OPTS.get("rpearly"): repack_issue(e)
        if j == 9:
            e(f"s_cmp_eq_u32 {s(S_TYPE)}, 1"); e(f"s_cbranch_scc0 L_h1_np")
            e(f"s_lshl_b32 {s(S_T)}, {s(S_SUB)}, 2")
            e(f"v_mov_b32 v11, {s(S_T)}")
            e(f"global_load_dword {v(P_POLL)}, v11, {s(S_DBG,2)} offset:{DBG_FLAG} sc1")
            e.label("L_h1_np")
    if OPTS.get("hstamp"):
        e(f"s_lshl_b32 {s(S_T)}, s2, 3"); e(f"s_add_u32 {s(S_T)}, {s(S_T)}, 4"); e(f"s_lshl_b32 {s(S_T)}, {s(S_T)}, 8")
        e(f"s_add_u32 {s(S_T)}, {s(S_T)}, {WS_STAMP + 0x100000}")
        e(f"v_lshlrev_b32 v14, 2, {v(V_LANE)}")
        e(f"buffer_store_dword v62, v14, {s(S_WS,4)}, {s(S_T)} offen")
    if dcs:
        e(f"s_cmp_eq_u32 {s(S_OK)}, 1"); e("s_cbranch_scc1 L_h1_csdone")
        e(f"s_cmp_eq_u32 {s(S_NONCE)}, 0"); e("s_cbranch_scc1 L_h1_csfb")
        e(f"s_mov_b32 {s(S_CNT)}, {0 if opts.get('forcefb') else 200}")
        e.label("L_h1_csspin")
        e(f"s_cmp_eq_u32 {s(S_CNT)}, 0"); e("s_cbranch_scc1 L_h1_csfb")
        cs_fetch(e)
        e("s_waitcnt vmcnt(0)")
        cs_check(e, "c")
        e(f"s_sub_u32 {s(S_CNT)}, {s(S_CNT)}, 1")
        e(f"s_cmp_eq_u32 {s(S_OK)}, 1"); e("s_cbranch_scc1 L_h1_csdone")
        e("s_sleep 4"); e("s_branch L_h1_csspin")
        e.label("L_h1_csfb")
        cs_fallback(e)
        e.label("L_h1_csdone")
        e("s_waitcnt lgkmcnt(0)")
    e("s_barrier")
    if not OPTS.get("norepack") and not OPTS.get("rpearly"): repack_finish(e)
    e(f"s_cmp_eq_u32 {s(S_TYPE)}, 1")
    e(f"s_cbranch_scc0 L_h1_end")
    e("s_waitcnt vmcnt(0)")
    e(f"s_lshl_b32 {s(S_T)}, {s(S_SUB)}, 2")
    e(f"v_mov_b32 v11, {s(S_T)}")
    e.label("L_poll_flag")
    e(f"v_readfirstlane_b32 {s(S_T)}, {v(P_POLL)}")
    e("s_nop 3")
    e(f"s_cmp_eq_u32 {s(S_T)}, 0")
    e(f"s_cbranch_scc0 L_kv_final")
    e("s_sleep 2")
    e(f"global_load_dword {v(P_POLL)}, v11, {s(S_DBG,2)} offset:{DBG_FLAG} sc1")
    e("s_waitcnt vmcnt(0)")
    e("s_branch L_poll_flag")
    e.label("L_h1_end")
    endp(e)

def ep_load_swapped(e):
    e(f"s_lshl_b32 {s(S_T)}, {s(S_WAVE)}, 9")
    e(f"v_lshlrev_b32 v11, 3, {v(V_I)}")
    e(f"v_add_u32 v11, {s(S_T)}, v11")
    e(f"v_add_u32 v11, {LDS_STATS}, v11")
    for mt in range(4):
        e(f"ds_read_b64 {v(16 + 2*mt, 2)}, v11 offset:{mt*128}")
    e(f"v_lshlrev_b32 v12, 4, {v(V_G)}")
    e(f"v_add_u32 v12, {LDS_CS}, v12")
    for ct in range(10):
        e(f"ds_read_b128 {v(32 + 4*ct, 4)}, v12 offset:{ct*64}")
    e("s_waitcnt lgkmcnt(0)")

def epilogue_gu(e):
    ep_load_swapped(e)
    for mt in range(4):
        e(f"v_mul_f32 {v(24 + 2*mt)}, {f32(-LOG2E)}, {v(17 + 2*mt)}")
        e(f"v_mul_f32 {v(25 + 2*mt)}, {v(17 + 2*mt)}, {v(17 + 2*mt)}")
    for mt in range(4):
        e(f"v_rcp_f32 {v(25 + 2*mt)}, {v(25 + 2*mt)}")
    e(f"v_lshlrev_b32 v11, 4, {v(V_LANE)}")
    e(f"s_mul_i32 {s(S_T)}, {s(S_WAVE)}, {4*48*1024}")
    e(f"v_add_u32 v11, {s(S_T)}, v11")
    e(f"s_mul_i32 {s(S_T)}, {s(S_RB)}, {16*48*1024}")
    e(f"s_add_u32 {s(S_T)}, {s(S_T)}, {WS_H}")
    e(f"s_mul_i32 {s(S_T+1)}, {s(S_SUB)}, 5")
    e(f"s_add_u32 {s(S_T+2)}, {s(S_T+1)}, 1")
    e(f"s_lshr_b32 {s(S_T+2)}, {s(S_T+2)}, 1")
    e(f"s_lshl_b32 {s(S_T+2)}, {s(S_T+2)}, 10")
    e(f"s_add_u32 {s(S_T2)}, {s(S_T)}, {s(S_T+2)}")
    e(f"s_and_b32 {s(S_T3)}, {s(S_SUB)}, 1")
    e(f"s_cmp_eq_u32 {s(S_T3)}, 0")
    e(f"s_cselect_b32 {s(S_T3)}, 4, -1")
    e(f"s_add_u32 {s(S_T+1)}, {s(S_T+1)}, {s(S_T3)}")
    e(f"s_lshr_b32 {s(S_T+1)}, {s(S_T+1)}, 1")
    e(f"s_lshl_b32 {s(S_T+1)}, {s(S_T+1)}, 10")
    e(f"s_add_u32 {s(S_T3)}, {s(S_T)}, {s(S_T+1)}")
    e(f"s_and_b32 {s(S_T+1)}, {s(S_SUB)}, 1")
    e(f"s_lshl_b32 {s(S_T+1)}, {s(S_T+1)}, 3")
    e(f"s_add_u32 {s(S_T3)}, {s(S_T3)}, {s(S_T+1)}")
    T = 72
    for mt in range(4):
        e.label(f"L_gu_b{mt}")
        MR = 16 + 2*mt; CI = 24 + 2*mt
        items = [(ct, hh) for ct in range(5) for hh in range(2)]
        for (ct, hh) in items:
            G = acc(mt, ct) + 2*hh; U = acc(mt, ct + 5) + 2*hh
            e(f"v_pk_fma_f32 {v(G,2)}, {v(32 + 4*ct + 2*hh,2)}, {v(MR,2)}, {v(G,2)} op_sel_hi:[1,0,1] neg_lo:[0,1,0] neg_hi:[0,1,0]")
            e(f"v_pk_fma_f32 {v(U,2)}, {v(32 + 4*(ct+5) + 2*hh,2)}, {v(MR,2)}, {v(U,2)} op_sel_hi:[1,0,1] neg_lo:[0,1,0] neg_hi:[0,1,0]")
        for k, (ct, hh) in enumerate(items):
            G = acc(mt, ct) + 2*hh
            e(f"v_pk_mul_f32 {v(T + 2*k,2)}, {v(G,2)}, {v(CI,2)} op_sel_hi:[1,0]")
        for k in range(10):
            e(f"v_exp_f32 {v(T + 2*k)}, {v(T + 2*k)}"); e(f"v_exp_f32 {v(T + 2*k + 1)}, {v(T + 2*k + 1)}")
        for k, (ct, hh) in enumerate(items):
            G = acc(mt, ct) + 2*hh; U = acc(mt, ct + 5) + 2*hh
            e(f"v_pk_mul_f32 {v(U,2)}, {v(G,2)}, {v(U,2)}")
        for k in range(10):
            e(f"v_pk_fma_f32 {v(T + 2*k,2)}, {v(T + 2*k,2)}, {v(CI,2)}, {v(CI,2)} op_sel:[0,1,1] op_sel_hi:[1,1,1]")
        for k in range(10):
            e(f"v_rcp_f32 {v(T + 2*k)}, {v(T + 2*k)}"); e(f"v_rcp_f32 {v(T + 2*k + 1)}, {v(T + 2*k + 1)}")
        e("s_nop 0")
        for k, (ct, hh) in enumerate(items):
            U = acc(mt, ct + 5) + 2*hh
            e(f"v_pk_mul_f32 {v(U,2)}, {v(U,2)}, {v(T + 2*k,2)}")
        for pp in range(2):
            O = acc(mt, 2*pp)
            for tt in range(2):
                U = acc(mt, 2*pp + tt + 5)
                e(f"v_cvt_pk_bf16_f32 {v(O + 2*tt)}, {v(U)}, {v(U+1)}")
                e(f"v_cvt_pk_bf16_f32 {v(O + 2*tt + 1)}, {v(U+2)}, {v(U+3)}")
        O = acc(mt, 4); U = acc(mt, 9)
        e(f"v_cvt_pk_bf16_f32 {v(O)}, {v(U)}, {v(U+1)}")
        e(f"v_cvt_pk_bf16_f32 {v(O+1)}, {v(U+2)}, {v(U+3)}")
        e("s_cbranch_execz L_dry_ret")
        if mt > 0:
            e(f"v_add_u32 v11, {48*1024}, v11")
        e(f"s_cmp_eq_u32 {s(S_SUB)}, 19")
        e(f"s_cbranch_scc1 L_gu_skip{mt}")
        e(f"buffer_store_dwordx4 {v(acc(mt,0),4)}, v11, {s(S_WS,4)}, {s(S_T2)} offen{SM()}")
        e(f"buffer_store_dwordx4 {v(acc(mt,2),4)}, v11, {s(S_WS,4)}, {s(S_T2)} offen offset:1024{SM()}")
        e.label(f"L_gu_skip{mt}")
        e(f"buffer_store_dwordx2 {v(acc(mt,4),2)}, v11, {s(S_WS,4)}, {s(S_T3)} offen{SM()}")
        e("s_nop 1")
    stamp(e, 5)
    if STAMP:
        e("s_waitcnt vmcnt(0)"); stamp(e, 6); stamp_flush(e, 7)
    endp(e)

def epilogue_q(e):
    ep_load_swapped(e)
    e(f"v_lshlrev_b32 v11, 4, {v(V_LANE)}")
    e(f"s_mul_i32 {s(S_T)}, {s(S_WAVE)}, {4*20*1024}")
    e(f"v_add_u32 v11, {s(S_T)}, v11")
    e(f"s_mul_i32 {s(S_T)}, {s(S_RB)}, {16*20*1024}")
    e(f"s_mul_i32 {s(S_T+1)}, {s(S_SUB)}, {5*1024}")
    e(f"s_add_u32 {s(S_T2)}, {s(S_T)}, {s(S_T+1)}")
    e(f"s_add_u32 {s(S_T2)}, {s(S_T2)}, {WS_PQ}")
    e(f"s_add_u32 {s(S_T3)}, {s(S_T2)}, 4096")
    T = 72
    for mt in range(4):
        e.label(f"L_q_b{mt}")
        MR = 16 + 2*mt
        for grp in range(2):
            items = [(ct, hh) for ct in range(grp*5, grp*5 + 5) for hh in range(2)]
            for (ct, hh) in items:
                A = acc(mt, ct) + 2*hh
                e(f"v_pk_fma_f32 {v(A,2)}, {v(32 + 4*ct + 2*hh,2)}, {v(MR,2)}, {v(A,2)} op_sel_hi:[1,0,1] neg_lo:[0,1,0] neg_hi:[0,1,0]")
            for (ct, hh) in items:
                A = acc(mt, ct) + 2*hh
                e(f"v_pk_fma_f32 {v(A,2)}, {v(A,2)}, {v(MR,2)}, {s(S_EPS6,2)} op_sel:[0,1,0] op_sel_hi:[1,1,1]")
            for k, (ct, hh) in enumerate(items):
                A = acc(mt, ct) + 2*hh
                e(f"v_pk_mul_f32 {v(T + 2*k,2)}, {v(A,2)}, {s(S_L2E,2)}")
            for k in range(10):
                e(f"v_exp_f32_e64 {v(T + 2*k)}, {v(T + 2*k)} clamp"); e(f"v_exp_f32_e64 {v(T + 2*k + 1)}, {v(T + 2*k + 1)} clamp")
            for (ct, hh) in items:
                A = acc(mt, ct) + 2*hh
                e(f"v_max_f32 {v(A)}, {s(S_EPS6)}, {v(A)}"); e(f"v_max_f32 {v(A+1)}, {s(S_EPS6)}, {v(A+1)}")
            for k, (ct, hh) in enumerate(items):
                A = acc(mt, ct) + 2*hh
                e(f"v_pk_add_f32 {v(A,2)}, {v(A,2)}, {v(T + 2*k,2)}")
        for pp in range(5):
            O = acc(mt, 2*pp); A0 = acc(mt, 2*pp); A1 = acc(mt, 2*pp + 1)
            e(f"v_cvt_pk_bf16_f32 {v(O)}, {v(A0)}, {v(A0+1)}")
            e(f"v_cvt_pk_bf16_f32 {v(O+1)}, {v(A0+2)}, {v(A0+3)}")
            e(f"v_cvt_pk_bf16_f32 {v(O+2)}, {v(A1)}, {v(A1+1)}")
            e(f"v_cvt_pk_bf16_f32 {v(O+3)}, {v(A1+2)}, {v(A1+3)}")
        e("s_cbranch_execz L_dry_ret")
        if mt > 0:
            e(f"v_add_u32 v11, {20*1024}, v11")
        for pp in range(5):
            if pp < 4:
                e(f"buffer_store_dwordx4 {v(acc(mt,2*pp),4)}, v11, {s(S_WS,4)}, {s(S_T2)} offen offset:{pp*1024}{SM()}")
            else:
                e(f"buffer_store_dwordx4 {v(acc(mt,2*pp),4)}, v11, {s(S_WS,4)}, {s(S_T3)} offen{SM()}")
        e("s_nop 1")
    stamp(e, 5)
    if STAMP:
        e("s_waitcnt vmcnt(0)"); stamp(e, 6); stamp_flush(e, 7)
    endp(e)

KV_TILES = [(0,0),(0,1),(1,0),(1,1),(1,2),(2,1),(2,2),(2,3),(3,2),(3,3),(3,4),(4,3),(4,4)]

def epilogue_kv(e):
    MV = 16; RV = 32; CS = 48; T = 60
    e(f"s_lshl_b32 {s(S_T)}, {s(S_WAVE)}, 8")
    e(f"v_lshlrev_b32 v11, 4, {v(V_G)}")
    e(f"v_add_u32 v11, {s(S_T)}, v11")
    e(f"v_add_u32 v11, {LDS_STATS}, v11")
    e(f"v_lshlrev_b32 v12, 2, {v(V_I)}")
    e(f"v_add_u32 v12, {LDS_CS}, v12")
    e(f"ds_read_b128 {v(MV, 4)}, v11"); e(f"ds_read_b128 {v(RV, 4)}, v11 offset:1024")
    for ct in range(10):
        e(f"ds_read_b32 {v(CS + ct)}, v12 offset:{ct*64}")
    e("s_waitcnt lgkmcnt(6)")
    for mt in range(1, 4):
        e(f"ds_read_b128 {v(MV + 4*mt, 4)}, v11 offset:{mt*64}")
        e(f"ds_read_b128 {v(RV + 4*mt, 4)}, v11 offset:{1024 + mt*64}")
    e("s_waitcnt lgkmcnt(6)")
    def cs_mod(ct):
        if ct % 2 == 0: return v(CS + ct, 2), 0, 0
        return v(CS + ct - 1, 2), 1, 1
    DQ = [acc(1, n) for n in range(10)] + [80, 84, 88] + [acc(3, td) for td in range(5)]
    def kv_mfma(n, kk):
        te, td = KV_TILES[n]
        c = "0" if kk == 0 else v(DQ[n], 4)
        return f"v_mfma_f32_16x16x32_bf16 {v(DQ[n],4)}, {v(acc(2*kk, 5 + te),4)}, {v(acc(2*kk, td),4)}, {c}"
    for mt in range(4):
        e.label(f"L_kv_b{mt}")
        if mt == 1: e("s_waitcnt lgkmcnt(0)")
        kk, odd = divmod(mt, 2)
        items = [(ct, hh) for ct in range(5) for hh in range(2)]
        allit = [(ct, hh) for ct in range(10) for hh in range(2)]
        L = []
        for (ct, hh) in allit:
            A = acc(mt, ct) + 2*hh
            c, o, oh = cs_mod(ct)
            L.append(f"v_pk_fma_f32 {v(A,2)}, {v(MV + 4*mt + 2*hh,2)}, {c}, {v(A,2)} op_sel:[0,{o},0] op_sel_hi:[1,{oh},1] neg_lo:[0,1,0] neg_hi:[0,1,0]")
        for (ct, hh) in items:
            A = acc(mt, ct) + 2*hh
            L.append(f"v_pk_fma_f32 {v(A,2)}, {v(A,2)}, {v(RV + 4*mt + 2*hh,2)}, {s(S_EPS6,2)}")
        for (ct, hh) in items:
            A = acc(mt, ct + 5) + 2*hh
            L.append(f"v_pk_mul_f32 {v(A,2)}, {v(A,2)}, {v(RV + 4*mt + 2*hh,2)}")
        for k, (ct, hh) in enumerate(items):
            A = acc(mt, ct) + 2*hh
            L.append(f"v_pk_mul_f32 {v(T + 2*k,2)}, {v(A,2)}, {s(S_L2E,2)}")
        for k in range(10):
            L.append(f"v_exp_f32_e64 {v(T + 2*k)}, {v(T + 2*k)} clamp"); L.append(f"v_exp_f32_e64 {v(T + 2*k + 1)}, {v(T + 2*k + 1)} clamp")
        for (ct, hh) in items:
            A = acc(mt, ct) + 2*hh
            L.append(f"v_max_f32 {v(A)}, {s(S_EPS6)}, {v(A)}"); L.append(f"v_max_f32 {v(A+1)}, {s(S_EPS6)}, {v(A+1)}")
        for k, (ct, hh) in enumerate(items):
            A = acc(mt, ct) + 2*hh
            L.append(f"v_pk_add_f32 {v(A,2)}, {v(A,2)}, {v(T + 2*k,2)}")
        for ct in range(10):
            A = acc(mt, ct); O = acc(2*kk, ct) + 2*odd
            L.append(f"v_cvt_pk_bf16_f32 {v(O)}, {v(A)}, {v(A+1)}")
            L.append(f"v_cvt_pk_bf16_f32 {v(O+1)}, {v(A+2)}, {v(A+3)}")
        if mt == 2 and not OPTS.get("kvnoil"):
            M = [kv_mfma(n, 0) for n in range(13)]
            lo = 50
            out = L[:lo]; rest = L[lo:lo + 40]
            for k, ins in enumerate(rest):
                out.append(ins)
                if k % 3 == 2 and M: out.append(M.pop(0))
            out += M + L[lo + 40:]
            L = out
        for ins in L: e(ins)
        if mt < 3: e("s_cbranch_execz L_dry_ret")
    if OPTS.get("kvstamp"): stamp(e, 1)
    e("s_nop 1")
    if OPTS.get("kvnoil"):
        for n in range(13): e(kv_mfma(n, 0))
    for td in range(5):
        e(f"v_mfma_f32_16x16x32_bf16 {v(DQ[13 + td],4)}, {v(V_ONES,4)}, {v(acc(0, td),4)}, 0")
    for n in range(13): e(kv_mfma(n, 1))
    for td in range(5):
        e(f"v_mfma_f32_16x16x32_bf16 {v(DQ[13 + td],4)}, {v(V_ONES,4)}, {v(acc(2, td),4)}, {v(DQ[13 + td],4)}")
    e(f"s_mul_i32 {s(S_T)}, {s(S_WAVE)}, {18*1024}")
    e(f"v_lshlrev_b32 v11, 4, {v(V_LANE)}")
    e(f"v_add_u32 v11, {s(S_T)}, v11")
    e(f"v_add_u32 v11, {LDS_KVS}, v11")
    e("s_cbranch_execz L_dry_ret")
    e("s_nop 2")
    for nn in range(18):
        if nn == 13: e("s_nop 3")
        e(f"ds_write_b128 v11, {v(DQ[nn],4)} offset:{nn*1024}")
        if nn == 11: e("s_waitcnt lgkmcnt(4)")

def kv_addr(e, dst, tag):
    TE = 0; TD = 0
    for n, (te, td) in enumerate(KV_TILES):
        TE |= te << (4*n); TD |= td << (4*n)
    e(f"s_cmp_ge_u32 {s(S_CNT)}, 13"); e(f"s_cbranch_scc1 L_kva_z{tag}")
    e(f"s_lshl_b32 {s(S_T)}, {s(S_CNT)}, 2")
    e(f"s_mov_b32 s92, {TE & 0xffffffff}"); e(f"s_mov_b32 s93, {TE >> 32}")
    e(f"s_lshr_b64 s[92:93], s[92:93], {s(S_T)}"); e(f"s_and_b32 {s(S_T+1)}, s92, 15")
    e(f"s_mov_b32 s92, {TD & 0xffffffff}"); e(f"s_mov_b32 s93, {TD >> 32}")
    e(f"s_lshr_b64 s[92:93], s[92:93], {s(S_T)}"); e(f"s_and_b32 {s(S_T+2)}, s92, 15")
    e(f"s_lshl_b32 {s(S_T+1)}, {s(S_T+1)}, 2"); e(f"s_lshl_b32 {s(S_T+2)}, {s(S_T+2)}, 4")
    e(f"v_add_u32 v11, {s(S_T+1)}, {v(V_G)}")
    e(f"v_mul_u32_u24 v12, 52, v11"); e(f"v_lshrrev_b32 v12, 8, v12")
    e(f"v_lshlrev_b32 v11, 2, v11"); e(f"v_sub_u32 v11, v11, v12"); e(f"v_mul_u32_u24 v11, 80, v11")
    e(f"v_add_u32 v13, {s(S_T+2)}, {v(V_I)}")
    e(f"v_mul_u32_u24 v14, 205, v13"); e(f"v_lshrrev_b32 v14, 12, v14")
    e(f"v_cmp_eq_u32 vcc, v12, v14")
    e(f"v_lshlrev_b32 v13, 2, v13")
    e(f"v_add_u32 v11, v11, v13")
    e(f"v_mov_b32 v12, 0x7ffffff0")
    e(f"v_cndmask_b32 {v(dst)}, v12, v11, vcc")
    e(f"s_branch L_kva_d{tag}")
    e.label(f"L_kva_z{tag}")
    e(f"s_sub_u32 {s(S_T)}, {s(S_CNT)}, 13"); e(f"s_lshl_b32 {s(S_T)}, {s(S_T)}, 6")
    e(f"v_lshlrev_b32 v11, 2, {v(V_I)}")
    e(f"v_add_u32 v11, {s(S_T)}, v11")
    e(f"v_add_u32 v11, 6400, v11")
    e(f"v_cmp_eq_u32 vcc, 0, {v(V_G)}")
    e(f"v_mov_b32 v12, 0x7ffffff0")
    e("s_nop 0")
    e(f"v_cndmask_b32 {v(dst)}, v12, v11, vcc")
    e.label(f"L_kva_d{tag}")

def kv_final(e):
    if OPTS.get("kvstamp"): stamp(e, 2)
    e.label("L_kv_final")
    e("v_mov_b32 v42, 0x7ffffff0")
    for k in range(3):
        e(f"s_add_u32 {s(S_CNT)}, {s(S_WAVE)}, {8*k}")
        if k == 2:
            e(f"s_cmp_lt_u32 {s(S_CNT)}, 18"); e("s_cbranch_scc0 L_kva_skip")
        kv_addr(e, 40 + k, str(k))
    e.label("L_kva_skip")
    e(f"s_mul_i32 {s(S_T4)}, {s(S_SUB)}, 6720")
    e(f"s_add_u32 {s(S_T4)}, {s(S_T4)}, {WS_KV}")
    e(f"s_lshl_b32 {s(S_T)}, {s(S_WAVE)}, 10")
    e(f"v_lshlrev_b32 v16, 4, {v(V_LANE)}")
    e(f"v_add_u32 v16, {s(S_T)}, v16")
    e(f"v_add_u32 v16, {LDS_KVS}, v16")
    e(f"v_add_u32 v17, {2*18*1024}, v16")
    e("s_waitcnt lgkmcnt(0)")
    e("s_barrier")
    if OPTS.get("kvstamp"): stamp(e, 3)
    def rd(k):
        for w in range(4):
            e(f"ds_read_b128 {v(44 + 16*k + 4*w,4)}, {'v16' if w < 2 else 'v17'} offset:{(w % 2)*18*1024 + k*8192}")
    def summ(k, nreg):
        B = 44 + 16*k
        if nreg == 4:
            for h in range(2):
                e(f"v_add_f32 {v(B+2*h)}, {v(B+2*h)}, {v(B+4+2*h)}"); e(f"v_add_f32 {v(B+2*h+1)}, {v(B+2*h+1)}, {v(B+5+2*h)}")
                e(f"v_add_f32 {v(B+8+2*h)}, {v(B+8+2*h)}, {v(B+12+2*h)}"); e(f"v_add_f32 {v(B+9+2*h)}, {v(B+9+2*h)}, {v(B+13+2*h)}")
            for r in range(4): e(f"v_add_f32 {v(B+r)}, {v(B+r)}, {v(B+8+r)}")
            for r in range(4):
                e(f"buffer_atomic_add_f32 {v(B + r)}, {v(40 + k)}, {s(S_WS,4)}, {s(S_T4)} offen offset:{80*r}")
        else:
            e(f"v_add_f32 {v(B)}, {v(B)}, {v(B+4)}"); e(f"v_add_f32 {v(B+8)}, {v(B+8)}, {v(B+12)}"); e(f"v_add_f32 {v(B)}, {v(B)}, {v(B+8)}")
            e(f"buffer_atomic_add_f32 {v(B)}, {v(40 + k)}, {s(S_WS,4)}, {s(S_T4)} offen")
    rd(0); rd(1)
    e(f"s_cmp_lt_u32 {s(S_WAVE)}, 2"); e("s_cbranch_scc0 L_kvf_no2")
    rd(2)
    e.label("L_kvf_no2")
    e("s_waitcnt lgkmcnt(0)")
    summ(0, 4)
    e(f"s_cmp_lt_u32 {s(S_WAVE)}, 5"); e("s_cbranch_scc0 L_kvf_z1")
    summ(1, 4)
    e("s_branch L_kvf_t2")
    e.label("L_kvf_z1")
    summ(1, 1)
    e.label("L_kvf_t2")
    e(f"s_cmp_lt_u32 {s(S_WAVE)}, 2"); e("s_cbranch_scc0 L_k1_end2")
    summ(2, 1)
    e.label("L_k1_end2")
    if STAMP:
        stamp(e, 5)
        e("s_waitcnt vmcnt(0)"); stamp(e, 6); stamp_flush(e, 7)
    endp(e)
    e.label("L_k1_end")
    e("s_endpgm")

def phase_end(e):
    e.label("L_phase_end")
    e("s_setprio 0")
    e("s_mov_b64 exec, -1")
    e("s_waitcnt vmcnt(0) lgkmcnt(0)")
    e("s_barrier")
    e(f"s_cmp_eq_u32 {s(S_WAVE)}, 6"); e("s_cbranch_scc0 L_pe_noflag")
    e("s_mov_b32 s60, 0x100000")
    e.label("L_pe_nonce")
    e(f"s_cmp_lg_u32 {s(S_NONCE)}, 0"); e("s_cbranch_scc1 L_pe_have")
    e("s_sub_u32 s60, s60, 1"); e("s_cmp_eq_u32 s60, 0"); e("s_cbranch_scc1 L_pe_have")
    poll_nonce(e)
    e("s_waitcnt vmcnt(0)")
    e(f"v_readfirstlane_b32 {s(S_NONCE)}, {v(P_POLL)}")
    e("s_nop 3")
    e("s_branch L_pe_nonce")
    e.label("L_pe_have")
    e(f"s_lshl_b32 s60, s2, 2"); e(f"s_add_u32 s60, s60, {WS_FLAGS}")
    e(f"v_mov_b32 v11, 0"); e(f"v_mov_b32 v12, {s(S_NONCE)}")
    lane0(e)
    e(f"buffer_store_dword v12, v11, {s(S_WS,4)}, s60 offen sc1")
    lane0(e, False)
    e.label("L_pe_noflag")

def gen_k1(e, opts=None):
    opts = opts or {}
    global STAMP
    STAMP = opts.get("stamp", False)
    OPTS.clear(); OPTS.update(opts)
    global LDS_RP
    LDS_RP = 2*SLOT if opts.get("rpearly") else LDS_RP0
    KN = opts.get("kname", "k1_kernel")
    e.raw(f".globl {KN}"); e.raw(".p2align 8"); e.raw(f".type {KN},@function"); e.label(KN)
    setup_pre(e)
    e(f"s_cmp_lt_u32 {s(S_WAVE)}, 4"); e("s_cbranch_scc1 L_consumers")
    e(f"s_cmp_ge_u32 {s(S_WAVE)}, 6"); e("s_cbranch_scc1 L_helpers")
    dma_wave(e)
    e.label("L_helpers")
    if OPTS.get("hprio", 3): e(f"s_setprio {OPTS.get('hprio', 3)}")
    setup_post(e)
    e(f"s_cmp_eq_u32 {s(S_WAVE)}, 7"); e("s_cbranch_scc1 L_prod3")
    helper0(e, opts)
    e.label("L_prod3"); helper1(e, opts)
    e.label("L_consumers")
    consumer_setup(e)
    e(f"s_mov_b32 {s(S_EPS6)}, {f32(1e-6)}"); e(f"s_mov_b32 {s(S_EPS6+1)}, {f32(1e-6)}")
    e(f"s_mov_b32 {s(S_L2E)}, {f32(LOG2E)}"); e(f"s_mov_b32 {s(S_L2E+1)}, {f32(LOG2E)}")
    setup_post(e)
    e(f"s_setprio {OPTS.get('cprio', 2)}")
    e(f"s_cmp_eq_u32 {s(S_TYPE)}, 1")
    e("s_cbranch_scc1 L_cons_kv")
    dcs = OPTS.get("dcs", 1)
    if OPTS.get("light", 1):
        e(f"s_cmp_eq_u32 {s(S_TYPE)}, 2"); e("s_cbranch_scc0 L_not_light")
        e(f"s_cmp_eq_u32 {s(S_SUB)}, 19"); e("s_cbranch_scc0 L_not_light")
        for w in range(4):
            if w < 3:
                e(f"s_cmp_eq_u32 {s(S_WAVE)}, {w}"); e(f"s_cbranch_scc0 L_lt_n{w}")
            consumer_loop(e, True, f"lt{w}", w, valid=(4, 9), ntag="lt")
            if not dcs: e("s_branch L_sw_done")
            if w < 3: e.label(f"L_lt_n{w}")
        shared_loop(e, True, "lt", valid=(4, 9))
        if dcs: e("s_branch L_sw_done")
        e.label("L_not_light")
    for w in range(4):
        if w < 3:
            e(f"s_cmp_eq_u32 {s(S_WAVE)}, {w}"); e(f"s_cbranch_scc0 L_sw_n{w}")
        consumer_loop(e, True, f"sw{w}", w, ntag="sw")
        if w < 3:
            if not dcs: e("s_branch L_sw_done")
            e.label(f"L_sw_n{w}")
    shared_loop(e, True, "sw")
    e.label("L_sw_done")
    e("s_barrier")
    stamp(e, 4)
    e(f"s_cmp_eq_u32 {s(S_TYPE)}, 0")
    e("s_cbranch_scc1 L_epi_q")
    epilogue_gu(e)
    e.label("L_epi_q")
    epilogue_q(e)
    e.label("L_cons_kv")
    for w in range(4):
        if w < 3:
            e(f"s_cmp_eq_u32 {s(S_WAVE)}, {w}"); e(f"s_cbranch_scc0 L_ns_n{w}")
        consumer_loop(e, False, f"ns{w}", w, ntag="ns")
        if w < 3:
            if not dcs: e("s_branch L_ns_done")
            e.label(f"L_ns_n{w}")
    shared_loop(e, False, "ns")
    e.label("L_ns_done")
    e("s_barrier")
    stamp(e, 4)
    epilogue_kv(e)
    kv_final(e)
```

```python
from asmlib import *
import k1
from k1 import WS_PQ, WS_H, WS_KV, WS_WF, WS_USED, WS_FLAGS

LDS_WAVE = 20480
ZBASE = 13440
LDS_TOTAL = 8 * LDS_WAVE
OPTS = {}
BLOCK = 512
NVGPR = 256

S_X = 8; S_WS = 20; S_OUT = 24
S_RB = 28; S_CB = 29; S_W = 30; S_LB = 31
S_T = 32
S_BO = 40; S_HO = 41; S_WV = 42; S_PQO = 45; S_EPS = 46

V_LANE = 1; V_I = 2; V_G = 3
V_HV = 9
V_T = 12
V_ACC = 176
def acc(mt, ct): return V_ACC + (ct * 4 + mt) * 4
V_HVM = 16
V_W = 20
V_H = 64
NH = 6
def set_nh(n):
    global NH
    NH = n
def bufA(k, mt): return v(V_H + 16*k + 4*mt, 4)
def bufW(k, ct): return v(V_W + 20*k + 4*ct, 4)
V_ZA = 11
V_KVT = 20
V_HE = 128
V_PQ = 128
V_NUM = 176
V_DEN = 216
V_RC = 228
V_TMP = 240
A_PQ0 = 128
V_PQS = 4
V_TB = [128, 148, 20, 40, 60]
V_O = 80

NUM = [(0,0),(1,0),(1,1),(2,0),(2,1),(3,1),(3,2),(4,1),(4,2),(5,2),(5,3),(6,2),(6,3),(7,3),(7,4),(8,3),(8,4),(9,4)]
DEN = [(0,0),(0,1),(0,2),(1,1),(1,2),(1,3),(1,4),(2,3),(2,4)]

def stamp(e, idx):
    if OPTS.get("stamp"):
        e(f"s_memtime {s(70 + 2*idx, 2)}")
        e("s_waitcnt lgkmcnt(0)")

def capture(fn):
    t = Emit(); fn(t)
    chunks = []; cur = []
    for l in t.lines:
        cur.append(l.strip())
        op = l.split()[0]
        if op.startswith("buffer_") or op.startswith("ds_") or op.startswith("global_"):
            chunks.append(cur); cur = []
    if cur:
        if chunks: chunks[-1] += cur
        else: chunks.append(cur)
    return [c for c in chunks if c]

def mfma_step(e, wop, aop, extra=None, first=False, nomfma=False, noextra=False):
    extra = list(extra or []) if not noextra else []
    n = len(extra); xi = 0; idx = 0
    for ct in range(5):
        for mt in ([3, 2, 1, 0] if (OPTS.get("snake2", 1) and ct % 2) else [0, 1, 2, 3]):
            A = acc(mt, ct)
            c = "0" if first else v(A, 4)
            if not nomfma: e(f"v_mfma_f32_16x16x32_bf16 {v(A,4)}, {wop(ct)}, {aop(mt)}, {c}")
            idx += 1
            want = (idx * n + 19) // 20 if n else 0
            while xi < want:
                for ins in extra[xi]: e(ins)
                xi += 1
    assert xi == n

S_KB = 43; S_KH = 44
def NFv(): return OPTS.get("nf", 11)
def rot2(e, idx, off, stride):
    if not OPTS.get("rot2", 0): return
    e(f"s_add_u32 {s(idx)}, {s(idx)}, 1")
    e(f"s_cmp_eq_u32 {s(idx)}, {NFv()}")
    e(f"s_cselect_b32 {s(S_T+1)}, {NFv()*stride}, 0"); e(f"s_cselect_b32 {s(idx)}, 0, {s(idx)}")
    e(f"s_sub_u32 {s(off)}, {s(off)}, {s(S_T+1)}")

def f_load_b(e, j):
    if OPTS.get("fnob"): return
    for ct in range(5):
        e(f"s_add_u32 m0, {s(S_LB)}, {(j % 4)*5120 + ct*1024}")
        e(f"s_add_u32 {s(S_T)}, {s(S_BO)}, {ct*1024}")
        e(f"buffer_load_dwordx4 {v(V_HV)}, {s(S_WS,4)}, {s(S_T)} offen lds")
    e(f"s_add_u32 {s(S_BO)}, {s(S_BO)}, {8*5120}")
    rot2(e, S_KB, S_BO, 8*5120)

def f_load_h(e, k):
    if OPTS.get("fnoh"): return
    for mt in range(4):
        e(f"buffer_load_dwordx4 {bufA(k, mt)}, {v(V_HVM + mt)}, {s(S_WS,4)}, {s(S_HO)} offen")
    e(f"s_add_u32 {s(S_HO)}, {s(S_HO)}, 1024")
    rot2(e, S_KH, S_HO, 1024)

def f_read_w(e, k, j):
    if OPTS.get("fnow"): return
    for ct in range(5):
        e(f"ds_read_b128 {bufW(k, ct)}, {v(V_T+2)} offset:{(j % 4)*5120 + ct*1024}")

def f_wave(e):
    for mt in range(4):
        e(f"v_add_u32 {v(V_HVM + mt)}, {mt*48*1024}, {v(V_HV)}")
    NF = OPTS.get("nf", 11)
    e(f"s_mul_i32 {s(S_BO)}, {s(S_W)}, {NF*8*5120}"); e(f"s_mul_i32 {s(S_T)}, {s(S_CB)}, 5120"); e(f"s_add_u32 {s(S_BO)}, {s(S_BO)}, {s(S_T)}")
    e(f"s_add_u32 {s(S_BO)}, {s(S_BO)}, {WS_WF}")
    e(f"s_mul_i32 {s(S_HO)}, {s(S_RB)}, {4*48*1024}"); e(f"s_mul_i32 {s(S_T)}, {s(S_W)}, {NF*1024}")
    e(f"s_add_u32 {s(S_HO)}, {s(S_HO)}, {s(S_T)}"); e(f"s_add_u32 {s(S_HO)}, {s(S_HO)}, {WS_H}")
    if OPTS.get("rot2", 0):
        e(f"s_lshr_b32 {s(S_T)}, s2, 3"); e(f"s_and_b32 {s(S_T+1)}, {s(S_T)}, 7"); e(f"s_lshr_b32 {s(S_T)}, {s(S_T)}, 3")
        e(f"s_mul_i32 {s(S_T+1)}, {s(S_T+1)}, {OPTS.get('r2a', 1)}"); e(f"s_mul_i32 {s(S_T)}, {s(S_T)}, {OPTS.get('r2b', 3)}")
        e(f"s_add_u32 {s(S_KB)}, {s(S_T)}, {s(S_T+1)}")
        for _ in range(4):
            e(f"s_cmp_ge_u32 {s(S_KB)}, {NF}"); e(f"s_cselect_b32 {s(S_T)}, {NF}, 0"); e(f"s_sub_u32 {s(S_KB)}, {s(S_KB)}, {s(S_T)}")
        e(f"s_mov_b32 {s(S_KH)}, {s(S_KB)}")
        e(f"s_mul_i32 {s(S_T)}, {s(S_KB)}, {8*5120}"); e(f"s_add_u32 {s(S_BO)}, {s(S_BO)}, {s(S_T)}")
        e(f"s_lshl_b32 {s(S_T)}, {s(S_KB)}, 10"); e(f"s_add_u32 {s(S_HO)}, {s(S_HO)}, {s(S_T)}")
    e(f"v_add_u32 {v(V_T+2)}, {s(S_LB)}, {v(V_HV)}")
    post_args(e, "F")
    if OPTS.get("fdelay"): e(f"s_sleep {OPTS.get('fdelay')}")
    q = Queue(e, "vmcnt", 63); lq = Queue(e, "lgkmcnt", 15)
    def qi(tag, n):
        for _ in range(n): q.issue(tag)
    items = [("b",0),("h",0),("b",1),("h",1),("b",2),("h",2),("b",3),("h",3),("h",4),("h",5)] + [("h", k) for k in range(6, NH)]
    npf = OPTS.get("npf", 6)
    for kind, t in items[:npf]:
        if kind == "b": f_load_b(e, t); qi(("b", t), 5)
        else: f_load_h(e, t); qi(("h", t), 4)
    late = items[npf:]
    stamp(e, 1)
    q.wait(("b", 0))
    f_read_w(e, 0, 0)
    for _ in range(5): lq.issue(("w", 0))
    for t in range(NF):
        ch = []; pv = []; pl = []
        if t + 1 < NF: q.wait(("b", t + 1))
        q.wait(("h", t))
        lq.wait(("w", t % 2))
        if t + 1 < NF:
            ch += capture(lambda t_: f_read_w(t_, (t + 1) % 2, t + 1)); pl += [("w", (t + 1) % 2)] * 5
        for _ in range(3):
            if late:
                kind, tt = late.pop(0)
                if kind == "b": ch += capture(lambda t_, tt=tt: f_load_b(t_, tt)); pv += [("b", tt)] * 5
                else: ch += capture(lambda t_, tt=tt: f_load_h(t_, tt)); pv += [("h", tt)] * 4
        if t + 4 < NF:
            ch += capture(lambda t_: f_load_b(t_, t + 4)); pv += [("b", t + 4)] * 5
        if t >= 1 and t - 1 + NH < NF:
            ch += capture(lambda t_: f_load_h(t_, (t - 1) % NH)); pv += [("h", t - 1 + NH)] * 4
        for x in pl: lq.issue(x)
        for x in pv: q.issue(x)
        mfma_step(e, lambda ct: bufW(t % 2, ct), lambda mt: bufA(t % NH, mt), extra=ch, first=(t == 0), nomfma=OPTS.get("fnomfma"))
        if t == 0: stamp(e, 2)
    stamp(e, 5)

def load_pq(e, set_):
    R = V_PQSET[set_]
    for p in range(5):
        if p < 4:
            e(f"buffer_load_dwordx4 {v(R + 4*p,4)}, {v(V_HV)}, {s(S_WS,4)}, {s(S_PQO)} offen offset:{p*1024}")
        else:
            e(f"s_add_u32 {s(S_T)}, {s(S_PQO)}, 4096")
            e(f"buffer_load_dwordx4 {v(R + 4*p,4)}, {v(V_HV)}, {s(S_WS,4)}, {s(S_T)} offen")
    e(f"s_add_u32 {s(S_PQO)}, {s(S_PQO)}, {20*1024}")

def load_kv(e):
    e(f"s_mul_i32 {s(S_T)}, {s(S_W)}, 13440"); e(f"s_add_u32 {s(S_T)}, {s(S_T)}, {WS_KV}")
    for k in range(14):
        if k == 13:
            e(f"v_cmp_gt_u32 vcc, 8, {v(V_LANE)}"); e(f"s_and_saveexec_b64 s[36:37], vcc")
        e(f"s_add_u32 m0, {s(S_LB)}, {k*1024}")
        e(f"s_add_u32 {s(S_T+2)}, {s(S_T)}, {k*1024}")
        e(f"buffer_load_dwordx4 {v(V_HV)}, {s(S_WS,4)}, {s(S_T+2)} offen lds")
        if k == 13: e("s_mov_b64 exec, s[36:37]")

def load_tb(e, j):
    R = V_TB[j]
    for ct in range(5):
        if ct < 4:
            e(f"buffer_load_dwordx4 {v(R + 4*ct,4)}, {v(V_HV)}, {s(S_WS,4)}, {s(S_BO)} offen offset:{ct*1024}")
        else:
            e(f"s_add_u32 {s(S_T)}, {s(S_BO)}, 4096")
            e(f"buffer_load_dwordx4 {v(R + 4*ct,4)}, {v(V_HV)}, {s(S_WS,4)}, {s(S_T)} offen")
    e(f"s_add_u32 {s(S_BO)}, {s(S_BO)}, {8*5120}")

V_PQSET = [176, 196]
V_NUM = 128
V_DEN = 216
V_RC = 228
V_TB = [20, 40, 60, 128, 148]

def precompute(e):
    for r in range(4): e(f"v_mov_b32 {v(V_TMP + r)}, 0")
    e(f"v_add_u32 {v(V_T)}, {s(S_LB)}, {v(V_HV)}")
    e(f"v_cmp_gt_u32 vcc, 44, {v(V_LANE)}"); e(f"s_and_saveexec_b64 s[36:37], vcc")
    e(f"ds_write_b128 {v(V_T)}, {v(V_TMP,4)} offset:{ZBASE}")
    e("s_mov_b64 exec, s[36:37]")
    e(f"v_lshlrev_b32 {v(V_T+3)}, 4, {v(V_G)}")
    for t in range(10):
        e(f"v_add_u32 {v(V_T)}, {16*t}, {v(V_I)}")
        e(f"v_mul_u32_u24 {v(V_HE + t)}, 205, {v(V_T)}"); e(f"v_lshrrev_b32 {v(V_HE + t)}, 12, {v(V_HE + t)}")
        e(f"v_sub_u32 {v(V_T)}, {v(V_T)}, {v(V_HE + t)}"); e(f"v_mul_u32_u24 {v(V_T)}, 80, {v(V_T)}")
        e(f"v_lshrrev_b32 {v(V_T+1)}, 2, {v(V_HE + t)}"); e(f"v_mul_u32_u24 {v(V_T+1)}, 320, {v(V_T+1)}")
        e(f"v_add3_u32 {v(V_T)}, {v(V_T)}, {v(V_T+1)}, {v(V_T+3)}")
        e(f"v_add_u32 {v(V_HE + 10 + t)}, {s(S_LB)}, {v(V_T)}")
    for wh in range(10):
        e(f"v_add_u32 {v(V_T)}, {4*wh}, {v(V_G)}")
        e(f"v_mul_u32_u24 {v(V_HE + 20 + wh)}, 52, {v(V_T)}"); e(f"v_lshrrev_b32 {v(V_HE + 20 + wh)}, 8, {v(V_HE + 20 + wh)}")
        e(f"v_lshrrev_b32 {v(V_T+1)}, 2, {v(V_HE + 20 + wh)}"); e(f"v_mul_u32_u24 {v(V_T+1)}, 6400, {v(V_T+1)}")
        e(f"v_add3_u32 {v(V_T+1)}, {v(V_T+1)}, {v(V_T+3)}, {s(S_LB)}")
        e(f"v_add_u32 {v(V_HE + 30 + wh)}, 6400, {v(V_T+1)}")
    for u in range(3):
        e(f"v_and_b32 {v(V_T)}, 3, {v(V_I)}"); e(f"v_lshlrev_b32 {v(V_T)}, 2, {v(V_T)}")
        e(f"v_lshrrev_b32 {v(V_T+1)}, 2, {v(V_I)}")
        e(f"v_add3_u32 {v(V_T)}, {v(V_T)}, {v(V_T+1)}, {16*u}")
        e(f"v_mul_u32_u24 {v(V_HE + 40 + u)}, 52, {v(V_T)}"); e(f"v_lshrrev_b32 {v(V_HE + 40 + u)}, 8, {v(V_HE + 40 + u)}")
    e(f"s_add_u32 {s(S_T)}, {s(S_LB)}, {ZBASE}")
    e(f"v_mov_b32 {v(V_ZA)}, {s(S_T)}")

def build_frags(e):
    lq = Queue(e, "lgkmcnt", 15)
    frs = [("n", t, w) for (t, w) in NUM] + [("d", u, w) for (u, w) in DEN]
    halves = []
    for fi, (kind, t, w) in enumerate(frs):
        for hf in range(2):
            wh = 2*w + hf
            hsrc = V_HE + t if kind == "n" else V_HE + 40 + t
            asrc = V_HE + 10 + t if kind == "n" else V_HE + 30 + wh
            halves.append((fi, hf, wh, hsrc, asrc))
    M = [48, 50, 52, 54]
    def cmp(hi):
        fi, hf, wh, hsrc, asrc = halves[hi]
        e(f"v_cmp_eq_u32 {s(M[hi % 4],2)}, {v(hsrc)}, {v(V_HE + 20 + wh)}")
    def rd(hi):
        fi, hf, wh, hsrc, asrc = halves[hi]
        tb = V_TMP + (fi % 2) * 8
        ad = V_T + (hi % 2)
        e(f"v_cndmask_b32 {v(ad)}, {v(V_ZA)}, {v(asrc)}, {s(M[hi % 4],2)}")
        e(f"ds_read_b128 {v(tb + 4*hf, 4)}, {v(ad)} offset:{64*wh}")
        lq.issue(("f", fi))
    def fin(fi):
        lq.wait(("f", fi))
        tb = V_TMP + (fi % 2) * 8
        R = V_KVT + 4*fi
        for k in range(4):
            e(f"v_cvt_pk_bf16_f32 {v(R + k)}, {v(tb + 2*k)}, {v(tb + 2*k + 1)}")
    n = len(halves)
    cmp(0); cmp(1); cmp(2)
    for hi in range(n):
        if hi + 3 < n: cmp(hi + 3)
        else: e("s_nop 0")
        rd(hi)
        fi, hf = halves[hi][0], halves[hi][1]
        if hf == 1 and fi >= 1: fin(fi - 1)
    fin(len(frs) - 1)

def o_block(e, b):
    PQ = V_PQSET[b % 2]
    den = {}
    for n_, (u, w) in enumerate(DEN): den.setdefault(u, []).append((18 + n_, w))
    num = {}
    for fi, (t, w) in enumerate(NUM): num.setdefault(t, []).append((fi, w))
    seq = []
    def D(u, k): fi, w = den[u][k]; return (V_DEN + 4*u, fi, w, k == 0)
    def N(t, k): fi, w = num[t][k]; return (V_NUM + 4*t, fi, w, k == 0)
    seq += [D(0,0), D(1,0), D(2,0), N(0,0), N(1,0), N(2,0), N(3,0)]
    seq += [D(0,1), D(1,1), D(2,1), N(4,0), N(5,0), N(6,0), N(7,0)]
    seq += [D(0,2), D(1,2), N(8,0), N(9,0), N(1,1), N(2,1), N(3,1)]
    seq += [D(1,3), N(4,1), N(5,1), N(6,1), N(7,1), N(8,1)]
    assert len(seq) == 27
    if OPTS.get("zeroc"):
        for r in list(range(V_NUM, V_NUM + 40)) + list(range(V_DEN, V_DEN + 12)): e(f"v_mov_b32 {v(r)}, 0")
        e("s_nop 1")
    for (dst, fi, w, first) in seq:
        c = "0" if (first and not OPTS.get("zeroc")) else v(dst, 4)
        e(f"v_mfma_f32_16x16x32_bf16 {v(dst,4)}, {v(V_KVT + 4*fi,4)}, {v(PQ + 4*w,4)}, {c}")
    if b < 2 and OPTS.get("pqearly", 1): pass
def o_rc(e):
    for t2 in range(10): e(f"v_add_f32 {v(V_RC + t2)}, {s(S_EPS)}, {v(V_DEN + 4*(t2 >> 2) + (t2 & 3))}")
    for t2 in range(10): e(f"v_rcp_f32 {v(V_RC + t2)}, {v(V_RC + t2)}")

def o_finish(e, b):
    n1 = OPTS.get("nop_pm", 0); n2 = OPTS.get("nop_dw", 0)
    for p in range(5):
        for t in (2*p, 2*p + 1):
            N = V_NUM + 4*t
            r = V_RC + t
            if r % 2 == 0: pr, o, oh = v(r,2), 0, 0
            else: pr, o, oh = v(r-1,2), 1, 1
            if OPTS.get("nopk", 1):
                for k in range(4): e(f"v_mul_f32 {v(N+k)}, {v(N+k)}, {v(r)}")
            else:
                e(f"v_pk_mul_f32 {v(N,2)}, {v(N,2)}, {pr} op_sel:[0,{o}] op_sel_hi:[1,{oh}]")
                e(f"v_pk_mul_f32 {v(N+2,2)}, {v(N+2,2)}, {pr} op_sel:[0,{o}] op_sel_hi:[1,{oh}]")
        if n1: e(f"s_nop {n1}")
        O = V_NUM + 8*p
        e(f"v_cvt_pk_bf16_f32 {v(O)}, {v(O)}, {v(O+1)}")
        e(f"v_cvt_pk_bf16_f32 {v(O+1)}, {v(O+2)}, {v(O+3)}")
        e(f"v_cvt_pk_bf16_f32 {v(O+2)}, {v(O+4)}, {v(O+5)}")
        e(f"v_cvt_pk_bf16_f32 {v(O+3)}, {v(O+6)}, {v(O+7)}")
        if n2: e(f"s_nop {n2}")
        e(f"ds_write_b128 {v(V_T+2)}, {v(O,4)} offset:{(b*5 + p)*1024}")

def a_wave(e):
    e(f"s_mul_i32 {s(S_PQO)}, {s(S_RB)}, {4*20*1024}"); e(f"s_mul_i32 {s(S_T)}, {s(S_W)}, {5*1024}")
    e(f"s_add_u32 {s(S_PQO)}, {s(S_PQO)}, {s(S_T)}"); e(f"s_add_u32 {s(S_PQO)}, {s(S_PQO)}, {WS_PQ}")
    e(f"s_mul_i32 {s(S_BO)}, {s(S_W)}, {5*8*5120}"); e(f"s_mul_i32 {s(S_T)}, {s(S_CB)}, 5120"); e(f"s_add_u32 {s(S_BO)}, {s(S_BO)}, {s(S_T)}")
    e(f"s_add_u32 {s(S_BO)}, {s(S_BO)}, {WS_WF + 48*8*5120}")
    if OPTS.get("fused"): precompute(e)
    post_args(e, "A")
    q = Queue(e, "vmcnt", 63); lq = Queue(e, "lgkmcnt", 15)
    def qi(tag, n):
        for _ in range(n): q.issue(tag)
    load_kv(e); qi("kv", 14)
    load_pq(e, 0); qi(("pq", 0), 5)
    load_pq(e, 1); qi(("pq", 1), 5)
    stamp(e, 1)
    if not OPTS.get("fused"): precompute(e)
    if OPTS.get("kvall", 1): q.drain()
    else: q.wait("kv")
    stamp(e, 2)
    e("s_waitcnt lgkmcnt(0)")
    build_frags(e)
    stamp(e, 3)
    e(f"s_mov_b32 {s(S_EPS)}, {f32(1e-6)}")
    e(f"v_add_u32 {v(V_T+2)}, {s(S_LB)}, {v(V_HV)}")
    for b in range(4):
        q.wait(("pq", b))
        o_block(e, b)
        if OPTS.get("drainA"):
            e("s_nop 7"); e(f"v_mov_b32 v5, {v(V_NUM + 4*8)}"); e(f"v_mov_b32 v5, {v(V_NUM + 4*7)}")
        if b < 2:
            load_pq(e, b % 2); qi(("pq", b + 2), 5)
        if b == 3:
            for j in range(3):
                load_tb(e, j); qi(("tb", j), 5)
        e("s_nop 7")
        if OPTS.get("longnop"):
            for _ in range(OPTS.get("longnop")): e("s_nop 15")
        o_rc(e)
        e("s_nop 1")
        o_finish(e, b)
    stamp(e, 4)
    e("s_nop 1")
    if OPTS.get("fixa"): e("s_waitcnt lgkmcnt(0)")
    for j in range(3, 5):
        load_tb(e, j); qi(("tb", j), 5)
    def read_o(t):
        return [f"ds_read_b128 {v(V_O + (t % 2)*16 + 4*mt,4)}, {v(V_T+2)} offset:{(mt*5 + t)*1024}" for mt in range(4)]
    for ins in read_o(0): e(ins)
    for _ in range(4): lq.issue(("o", 0))
    NF = OPTS.get("nf", 11); NX = 12 - NF
    XH = [112, 96, 80, 112, 96]
    def xb(t_, k):
        if k == 0:
            t_(f"s_mul_i32 {s(S_BO)}, {s(S_W)}, {NX*8*5120}"); t_(f"s_mul_i32 {s(S_T)}, {s(S_CB)}, 5120"); t_(f"s_add_u32 {s(S_BO)}, {s(S_BO)}, {s(S_T)}")
            t_(f"s_add_u32 {s(S_BO)}, {s(S_BO)}, {WS_WF + 4*NF*8*5120}")
        R = V_TB[k]
        for ct in range(5):
            if ct < 4: t_(f"buffer_load_dwordx4 {v(R + 4*ct,4)}, {v(V_HV)}, {s(S_WS,4)}, {s(S_BO)} offen offset:{ct*1024}")
            else:
                t_(f"s_add_u32 {s(S_T)}, {s(S_BO)}, 4096")
                t_(f"buffer_load_dwordx4 {v(R + 4*ct,4)}, {v(V_HV)}, {s(S_WS,4)}, {s(S_T)} offen")
        t_(f"s_add_u32 {s(S_BO)}, {s(S_BO)}, {8*5120}")
    def xh(t_, k):
        if k == 0:
            t_(f"s_mul_i32 {s(S_HO)}, {s(S_RB)}, {4*48*1024}"); t_(f"s_mul_i32 {s(S_T)}, {s(S_W)}, {NX*1024}")
            t_(f"s_add_u32 {s(S_HO)}, {s(S_HO)}, {s(S_T)}"); t_(f"s_add_u32 {s(S_HO)}, {s(S_HO)}, {WS_H + 4*NF*1024}")
        for mt in range(4):
            t_(f"s_add_u32 {s(S_T)}, {s(S_HO)}, {mt*48*1024}")
            t_(f"buffer_load_dwordx4 {v(XH[k] + 4*mt,4)}, {v(V_HV)}, {s(S_WS,4)}, {s(S_T)} offen")
        t_(f"s_add_u32 {s(S_HO)}, {s(S_HO)}, 1024")
    for t in range(5 + NX):
        ch = []
        if t < 5:
            q.wait(("tb", t)); lq.wait(("o", t))
            if t + 1 < 5:
                ch += [[ins] for ins in read_o(t + 1)]
                for _ in range(4): lq.issue(("o", t + 1))
        else:
            q.wait(("xb", t - 5), ("xh", t - 5))
        pend = []
        k = t - 1
        if 0 <= k < NX:
            ch += capture(lambda t_: xb(t_, k)); pend += [("xb", k)] * 5
        if t == 1 and NX >= 1: ch += capture(lambda t_: xh(t_, 0)); pend += [("xh", 0)] * 4
        if t == 4 and NX >= 2: ch += capture(lambda t_: xh(t_, 1)); pend += [("xh", 1)] * 4
        if t == 5 and NX >= 3: ch += capture(lambda t_: xh(t_, 2)); pend += [("xh", 2)] * 4
        if t == 6 and NX >= 4: ch += capture(lambda t_: xh(t_, 3)); pend += [("xh", 3)] * 4
        if t == 7 and NX >= 5: ch += capture(lambda t_: xh(t_, 4)); pend += [("xh", 4)] * 4
        for x in pend: q.issue(x)
        if t < 5:
            mfma_step(e, lambda ct: v(V_TB[t] + 4*ct, 4), lambda mt: v(V_O + (t % 2)*16 + 4*mt, 4), extra=ch, first=(t == 0))
        else:
            mfma_step(e, lambda ct: v(V_TB[t - 5] + 4*ct, 4), lambda mt: v(XH[t - 5] + 4*mt, 4), extra=ch)
    stamp(e, 5)

def post_args(e, tag=""):
    e("s_waitcnt lgkmcnt(0)")
    if OPTS.get("fused"):
        e(f"s_mov_b32 {s(S_OUT)}, s50"); e(f"s_mov_b32 {s(S_OUT+1)}, s51")
        if tag == "F":
            e(f"s_cmp_eq_u32 {s(S_WV)}, 6"); e("s_cbranch_scc0 L_gb_done")
            e(f"s_mov_b32 s60, {WS_FLAGS}"); e("s_mov_b32 s62, 0x40000")
            e.label("L_gb_poll")
            e(f"buffer_load_dwordx4 v[20:23], {v(V_HV)}, {s(S_WS,4)}, s60 offen sc1")
            e("s_waitcnt vmcnt(0)")
            e("v_cmp_eq_u32 vcc, s68, v20"); e("s_mov_b64 s[64:65], vcc")
            for k in range(1, 4):
                e(f"v_cmp_eq_u32 vcc, s68, v{20+k}"); e("s_and_b64 s[64:65], s[64:65], vcc")
            e("s_cmp_eq_u64 s[64:65], -1"); e("s_cbranch_scc1 L_gb_done")
            e("s_sub_u32 s62, s62, 1"); e("s_cmp_eq_u32 s62, 0"); e("s_cbranch_scc1 L_gb_done")
            e(f"s_sleep {OPTS.get('gbsleep', 8)}")
            e("s_branch L_gb_poll")
            e.label("L_gb_done")
        e("s_barrier")
        if OPTS.get("stamp"): e(f"s_memtime {s(70,2)}"); e("s_memrealtime s[86:87]"); e("s_waitcnt lgkmcnt(0)")
        return
    e(f"s_mov_b32 {s(S_WS)}, s52"); e(f"s_mov_b32 {s(S_WS+1)}, s53")
    e(f"s_mov_b32 {s(S_X)}, s4"); e(f"s_mov_b32 {s(S_X+1)}, s5")
    e(f"s_mov_b32 {s(S_OUT)}, s50"); e(f"s_mov_b32 {s(S_OUT+1)}, s51")

def gen_k2(e, opts=None):
    opts = opts or {}
    OPTS.clear(); OPTS.update(opts)
    set_nh(opts.get("nh", 6))
    if not opts.get("fused"):
        e.raw(".globl k2_kernel"); e.raw(".p2align 8"); e.raw(".type k2_kernel,@function"); e.label("k2_kernel")
        e("s_cmp_ge_u32 s2, 256")
        e("s_cbranch_scc1 L_k2_end")
        e("s_load_dwordx2 s[4:5], s[0:1], 0")
        e("s_load_dwordx2 s[50:51], s[0:1], 56")
        e("s_load_dwordx2 s[52:53], s[0:1], 72")
        if opts.get("stamp"): e(f"s_memtime {s(70,2)}"); e("s_memrealtime s[86:87]")
    else:
        e("s_load_dwordx2 s[50:51], s[0:1], 56")
    e("v_lshrrev_b32 v4, 6, v0")
    e(f"v_and_b32 {v(V_LANE)}, 63, v0")
    e(f"v_readfirstlane_b32 {s(S_WV)}, v4")
    e(f"v_and_b32 {v(V_I)}, 15, {v(V_LANE)}")
    e(f"v_lshrrev_b32 {v(V_G)}, 4, {v(V_LANE)}")
    e(f"s_and_b32 {s(S_T)}, s2, 7"); e(f"s_lshr_b32 {s(S_T+1)}, s2, 3")
    MAP = OPTS.get("k2map", 0)
    if MAP == 0:
        e(f"s_lshr_b32 {s(S_RB)}, {s(S_T)}, 1"); e(f"s_lshl_b32 {s(S_RB)}, {s(S_RB)}, 3")
        e(f"s_and_b32 {s(S_T+2)}, {s(S_T+1)}, 7"); e(f"s_add_u32 {s(S_RB)}, {s(S_RB)}, {s(S_T+2)}")
        e(f"s_and_b32 {s(S_CB)}, {s(S_T)}, 1"); e(f"s_lshl_b32 {s(S_CB)}, {s(S_CB)}, 2")
        e(f"s_lshr_b32 {s(S_T+2)}, {s(S_T+1)}, 3"); e(f"s_add_u32 {s(S_CB)}, {s(S_CB)}, {s(S_T+2)}")
    elif MAP == 1:
        e(f"s_lshl_b32 {s(S_RB)}, {s(S_T)}, 2"); e(f"s_and_b32 {s(S_T+2)}, {s(S_T+1)}, 3"); e(f"s_add_u32 {s(S_RB)}, {s(S_RB)}, {s(S_T+2)}")
        e(f"s_lshr_b32 {s(S_CB)}, {s(S_T+1)}, 2")
    elif MAP == 2:
        e(f"s_lshr_b32 {s(S_RB)}, {s(S_T)}, 2"); e(f"s_lshl_b32 {s(S_RB)}, {s(S_RB)}, 4"); e(f"s_and_b32 {s(S_T+2)}, {s(S_T+1)}, 15"); e(f"s_add_u32 {s(S_RB)}, {s(S_RB)}, {s(S_T+2)}")
        e(f"s_and_b32 {s(S_CB)}, {s(S_T)}, 3"); e(f"s_lshl_b32 {s(S_CB)}, {s(S_CB)}, 1"); e(f"s_lshr_b32 {s(S_T+2)}, {s(S_T+1)}, 4"); e(f"s_add_u32 {s(S_CB)}, {s(S_CB)}, {s(S_T+2)}")
    elif MAP == 3:
        e(f"s_lshr_b32 {s(S_RB)}, {s(S_T)}, 1"); e(f"s_lshl_b32 {s(S_RB)}, {s(S_RB)}, 3"); e(f"s_lshr_b32 {s(S_T+2)}, {s(S_T+1)}, 2"); e(f"s_add_u32 {s(S_RB)}, {s(S_RB)}, {s(S_T+2)}")
        e(f"s_and_b32 {s(S_CB)}, {s(S_T)}, 1"); e(f"s_lshl_b32 {s(S_CB)}, {s(S_CB)}, 2"); e(f"s_and_b32 {s(S_T+2)}, {s(S_T+1)}, 3"); e(f"s_add_u32 {s(S_CB)}, {s(S_CB)}, {s(S_T+2)}")
    e(f"s_and_b32 {s(S_W)}, {s(S_WV)}, 3")
    e(f"s_mul_i32 {s(S_LB)}, {s(S_WV)}, {LDS_WAVE}")
    e(f"v_lshlrev_b32 {v(V_HV)}, 4, {v(V_LANE)}")
    e(f"s_mov_b32 {s(S_WS+2)}, {WS_USED if not opts.get('stamp') else 0x2000000}"); e(f"s_mov_b32 {s(S_WS+3)}, 0x20000")
    e(f"s_mov_b32 {s(S_X+2)}, 2621440"); e(f"s_mov_b32 {s(S_X+3)}, 0x20000")
    e(f"s_mov_b32 {s(S_OUT+2)}, 2621440"); e(f"s_mov_b32 {s(S_OUT+3)}, 0x20000")
    aw = OPTS.get("awfirst", 1)
    e(f"s_cmp_lt_u32 {s(S_WV)}, 4"); e(f"s_cbranch_scc{0 if aw else 1} L_k2_F")
    if OPTS.get("aprio"): e(f"s_setprio {OPTS.get('aprio')}")
    if OPTS.get("noA"):
        post_args(e)
        for r in range(80): e(f"v_mov_b32 {v(V_ACC + r)}, 0")
    else: a_wave(e)
    e("s_branch L_k2_R")
    e.label("L_k2_F")
    if OPTS.get("fprio"): e(f"s_setprio {OPTS.get('fprio')}")
    if OPTS.get("ftest"):
        post_args(e)
        e(f"v_add_u32 {v(V_T+2)}, {s(S_LB)}, {v(V_HV)}")
        e("s_mov_b32 s60, 40")
        e.label("L_ft")
        k = OPTS.get("ftest")
        for i in range(20):
            if k == 1: e(f"v_mfma_f32_16x16x32_bf16 {v(V_ACC + 4*i,4)}, {v(20,4)}, {v(64,4)}, {v(V_ACC + 4*i,4)}")
            if k == 2: e(f"ds_read_b128 {v(20 + 4*(i % 8),4)}, {v(V_T+2)} offset:{(i % 16)*1024}"); e("s_nop 3")
            if k == 3: e(f"v_pk_mul_f32 {v(20 + 2*i,2)}, {v(64,2)}, {v(66,2)}"); e(f"v_fma_f32 {v(100 + i)}, v64, v65, v66"); e("s_nop 1")
        if k == 2: e("s_waitcnt lgkmcnt(0)")
        e("s_sub_u32 s60, s60, 1"); e("s_cmp_lg_u32 s60, 0"); e("s_cbranch_scc1 L_ft")
        for r in range(80): e(f"v_mov_b32 {v(V_ACC + r)}, 0")
    elif OPTS.get("noF"):
        post_args(e)
        for r in range(80): e(f"v_mov_b32 {v(V_ACC + r)}, 0")
    else: f_wave(e)
    e.label("L_k2_R")
    e(f"s_lshl_b32 {s(S_T)}, {s(S_RB)}, 6"); e(f"s_lshl_b32 {s(S_T+1)}, {s(S_W)}, 4"); e(f"s_add_u32 {s(S_T)}, {s(S_T)}, {s(S_T+1)}")
    e(f"v_add_u32 v10, {s(S_T)}, {v(V_I)}"); e(f"v_mul_u32_u24 v10, 1280, v10")
    e(f"v_lshlrev_b32 v4, 3, {v(V_G)}"); e(f"v_add_u32 v10, v10, v4")
    e(f"s_lshr_b32 {s(S_T+3)}, {s(S_WV)}, 2")
    e(f"s_mul_i32 {s(S_T+2)}, {s(S_CB)}, 160"); e(f"s_mul_i32 {s(S_T+4)}, {s(S_T+3)}, 96"); e(f"s_add_u32 {s(S_T+2)}, {s(S_T+2)}, {s(S_T+4)}")
    for k in range(3):
        e(f"buffer_load_dwordx2 {v(150 + 2*k,2)}, v10, {s(S_X,4)}, {s(S_T+2)} offen offset:{k*32}")
    e("s_waitcnt lgkmcnt(0)")
    e(f"v_add_u32 {v(V_T)}, {s(S_LB)}, {v(V_HV)}")
    e("s_nop 4")
    for mt in range(4):
        for ct in range(5):
            e(f"ds_write_b128 {v(V_T)}, {v(acc(mt,ct),4)} offset:{(mt*5 + ct)*1024}")
        if mt == 1: e("s_waitcnt lgkmcnt(4)")
    e(f"s_mul_i32 {s(S_T)}, {s(S_W)}, 5120"); e(f"s_mul_i32 {s(S_T+4)}, {s(S_T+3)}, 3072"); e(f"s_add_u32 {s(S_T)}, {s(S_T)}, {s(S_T+4)}")
    e(f"v_add_u32 v4, {s(S_T)}, {v(V_HV)}")
    e(f"v_add_u32 v5, {3*LDS_WAVE}, v4"); e(f"v_add_u32 v6, {6*LDS_WAVE}, v4")
    e("s_waitcnt lgkmcnt(0)")
    stamp(e, 6)
    e("s_barrier")
    if OPTS.get("fstamp"): stamp(e, 1)
    def rd(k):
        for ww in range(8):
            ad = 4 + ww // 3
            e(f"ds_read_b128 {v(20 + k*32 + ww*4,4)}, {v(ad)} offset:{(ww % 3)*LDS_WAVE + k*1024}")
    def fin(k):
        B = 20 + k*32
        if OPTS.get("sumA") or OPTS.get("sumF"):
            zs = range(4, 8) if OPTS.get("sumA") else range(0, 4)
            for ww in zs:
                for r in range(4): e(f"v_mov_b32 {v(B + ww*4 + r)}, 0")
        for h in range(2):
            for a_ in range(4):
                e(f"v_pk_add_f32 {v(B+8*a_+2*h,2)}, {v(B+8*a_+2*h,2)}, {v(B+8*a_+4+2*h,2)}")
        X = 150 + 2*k
        e(f"v_lshlrev_b32 {v(B+4)}, 16, {v(X)}"); e(f"v_and_b32 {v(B+5)}, 0xffff0000, {v(X)}")
        e(f"v_lshlrev_b32 {v(B+6)}, 16, {v(X+1)}"); e(f"v_and_b32 {v(B+7)}, 0xffff0000, {v(X+1)}")
        for h in range(2):
            e(f"v_pk_add_f32 {v(B+2*h,2)}, {v(B+2*h,2)}, {v(B+8+2*h,2)}")
            e(f"v_pk_add_f32 {v(B+16+2*h,2)}, {v(B+16+2*h,2)}, {v(B+24+2*h,2)}")
        for h in range(2):
            e(f"v_pk_add_f32 {v(B+16+2*h,2)}, {v(B+16+2*h,2)}, {v(B+4+2*h,2)}")
        for h in range(2):
            e(f"v_pk_add_f32 {v(B+2*h,2)}, {v(B+2*h,2)}, {v(B+16+2*h,2)}")
        e(f"v_cvt_pk_bf16_f32 {v(B)}, {v(B)}, {v(B+1)}")
        e(f"v_cvt_pk_bf16_f32 {v(B+1)}, {v(B+2)}, {v(B+3)}")
        e(f"buffer_store_dwordx2 {v(B,2)}, v10, {s(S_OUT,4)}, {s(S_T+2)} offen offset:{k*32}" + ((" " + OPTS.get("omod").replace("_", " ")) if OPTS.get("omod") else ""))
    rd(0)
    e("s_waitcnt lgkmcnt(2)")
    rd(1)
    e("s_waitcnt vmcnt(0) lgkmcnt(8)")
    if OPTS.get("fstamp"): stamp(e, 2)
    e(f"s_cmp_eq_u32 {s(S_T+3)}, 0"); e("s_cbranch_scc0 L_k2_h1")
    fin(0)
    if OPTS.get("fstamp"): stamp(e, 3)
    e("s_waitcnt lgkmcnt(2)")
    rd(2)
    e("s_waitcnt lgkmcnt(8)")
    fin(1)
    e("s_waitcnt lgkmcnt(0)")
    fin(2)
    e("s_branch L_k2_fin")
    e.label("L_k2_h1")
    fin(0)
    e("s_waitcnt lgkmcnt(0)")
    fin(1)
    e.label("L_k2_fin")
    if opts.get("stamp"):
        stamp(e, 7)
        e(f"s_lshl_b32 {s(S_T)}, s2, 3"); e(f"s_add_u32 {s(S_T)}, {s(S_T)}, {s(S_WV)}"); e(f"s_lshl_b32 {s(S_T)}, {s(S_T)}, 6")
        e(f"s_add_u32 {s(S_T)}, {s(S_T)}, {0x1200000}")
        e(f"v_mov_b32 v14, 0")
        e("s_memrealtime s[88:89]"); e("s_waitcnt lgkmcnt(0)")
        for k in range(8):
            e(f"v_mov_b32 v15, {s(70 + 2*k)}")
            e(f"buffer_store_dword v15, v14, {s(S_WS,4)}, {s(S_T)} offen offset:{4*k}")
            e("s_nop 1")
        e(f"v_mov_b32 v15, s86"); e(f"buffer_store_dword v15, v14, {s(S_WS,4)}, {s(S_T)} offen offset:{4*8}"); e("s_nop 1")
        e(f"v_mov_b32 v15, s88"); e(f"buffer_store_dword v15, v14, {s(S_WS,4)}, {s(S_T)} offen offset:{4*9}"); e("s_nop 1")
    if opts.get("probe"):
        pr = opts.get("probe")
        e("s_cmp_eq_u32 s2, 0"); e("s_cbranch_scc0 L_k2_end")
        e(f"s_cmp_eq_u32 {s(S_WV)}, 0"); e("s_cbranch_scc0 L_k2_end")
        e("s_waitcnt vmcnt(0)")
        e(f"v_lshlrev_b32 v20, 11, {v(V_LANE)}")
        e(f"s_mov_b32 s60, {0x1000000}")
        for k in range(4):
            e(f"buffer_load_dwordx2 v[{22+2*k}:{23+2*k}], v20, {s(S_WS,4)}, s60 offen offset:{32 + 512*k}")
        e("s_waitcnt vmcnt(0)")
        e("v_min_u32 v22, v22, v24"); e("v_min_u32 v26, v26, v28"); e("v_min_u32 v22, v22, v26")
        e("v_max_u32 v23, v23, v25"); e("v_max_u32 v27, v27, v29"); e("v_max_u32 v23, v23, v27")
        e("s_mov_b32 s61, -1"); e("s_mov_b32 s62, 0")
        for ln in range(64):
            e(f"v_readlane_b32 s63, v22, {ln}"); e(f"v_readlane_b32 s64, v23, {ln}"); e("s_nop 0")
            e("s_min_u32 s61, s61, s63"); e("s_max_u32 s62, s62, s64")
        e("s_memrealtime s[66:67]"); e("s_waitcnt lgkmcnt(0)")
        if pr == 1: e("s_sub_u32 s65, s62, s61")
        if pr == 2: e("s_sub_u32 s65, s86, s62")
        if pr == 3: e("s_sub_u32 s65, s66, s86")
        if pr == 4: e("s_mov_b32 s65, 0")
        e("s_add_u32 s65, s65, s66")
        e.label("L_probe_spin")
        e("s_memrealtime s[68:69]"); e("s_waitcnt lgkmcnt(0)")
        e("s_cmp_lt_u32 s68, s65"); e("s_cbranch_scc1 L_probe_spin")
    e.label("L_k2_end")
    e("s_endpgm")
```
